```python
import torch

def _softmax(x, axis=-1):
    return torch.softmax(x, dim=axis)
def _gelu(x):
    return torch.nn.functional.gelu(x, approximate="tanh")
def _silu(x):
    return torch.nn.functional.silu(x)
def _sigmoid(x):
    return torch.sigmoid(x)
def _layernorm(x, axis=-1, eps=1e-5):
    m = x.mean(dim=axis, keepdim=True)
    v = x.var(dim=axis, keepdim=True, unbiased=False)
    return (x - m) / torch.sqrt(v + eps)
def _scatter_add(tgt, idx, src, axis=0):
    return tgt.clone().index_add_(axis, idx, src)
def _segment_sum(src, seg, n):
    out = torch.zeros((n,) + src.shape[1:], dtype=src.dtype)
    return out.index_add_(0, seg, src)
def _pad(x, pw):
    flat = tuple(v for pair in reversed(pw) for v in pair)
    return torch.nn.functional.pad(x, flat)

kernel_name = 'concat_heads__gqa_block_cached__gqa_block_cached__near_ridge'

def setup_inputs():

    _w = (lambda a: (lambda t: t.to(torch.bfloat16) if t.is_floating_point() else t)(torch.as_tensor(a)))
    def _A_setup():
        B, Sq, D = 16, 112, 576
        Hq, Hkv, Sk, Dh = 32, 16, 512, 128
        assert Hq % Hkv == 0, (Hq, Hkv)
        return {
            "x": _w((lambda *s: torch.randn(*s, dtype=torch.bfloat16) * 0.8)(B, Sq, D)),
            "k_cache": _w((lambda *s: torch.randn(*s, dtype=torch.bfloat16) * 0.8)(B, Hkv, Sk, Dh)),
            "v_cache": _w((lambda *s: torch.randn(*s, dtype=torch.bfloat16) * 0.05)(B, Hkv, Sk, Dh)),
            "wq": _w((lambda *s: torch.randn(*s, dtype=torch.bfloat16) * 0.8)(D, Hq * Dh) * (D ** -0.5)),
            "wo": _w((lambda *s: torch.randn(*s, dtype=torch.bfloat16) * 0.05)(Hq * Dh, D) * ((Hq * Dh) ** -0.5)),
        }
    _A_in = _A_setup()

    def _B_setup():
        B, Sq, D = 16, 112, 576
        Hq, Hkv, Sk, Dh = 32, 16, 512, 128
        assert Hq % Hkv == 0, (Hq, Hkv)
        return {
            "x": _w((lambda *s: torch.randn(*s, dtype=torch.bfloat16) * 0.8)(B, Sq, D)),
            "k_cache": _w((lambda *s: torch.randn(*s, dtype=torch.bfloat16) * 0.8)(B, Hkv, Sk, Dh)),
            "v_cache": _w((lambda *s: torch.randn(*s, dtype=torch.bfloat16) * 0.05)(B, Hkv, Sk, Dh)),
            "wq": _w((lambda *s: torch.randn(*s, dtype=torch.bfloat16) * 0.8)(D, Hq * Dh) * (D ** -0.5)),
            "wo": _w((lambda *s: torch.randn(*s, dtype=torch.bfloat16) * 0.05)(Hq * Dh, D) * ((Hq * Dh) ** -0.5)),
        }
    _B_in = _B_setup()

    return {
        "A_x": _A_in["x"],
        "A_k_cache": _A_in["k_cache"],
        "A_v_cache": _A_in["v_cache"],
        "A_wq": _A_in["wq"],
        "A_wo": _A_in["wo"],
        "B_x": _B_in["x"],
        "B_k_cache": _B_in["k_cache"],
        "B_v_cache": _B_in["v_cache"],
        "B_wq": _B_in["wq"],
        "B_wo": _B_in["wo"],
    }

def reference(A_x, A_k_cache, A_v_cache, A_wq, A_wo, B_x, B_k_cache, B_v_cache, B_wq, B_wo):
    def _A_ref(x, k_cache, v_cache, wq, wo):
        B, Sq, D = x.shape
        Hq, Dh = 32, 128
        Hkv = k_cache.shape[1]
        rep = Hq // Hkv
        q = (lambda x, *d: x.permute(*d))((x @ wq).reshape(B, Sq, Hq, Dh), 0, 2, 1, 3)
        k = (lambda x, n, axis: torch.repeat_interleave(x, n, dim=axis))(k_cache, rep, axis=1)
        v = (lambda x, n, axis: torch.repeat_interleave(x, n, dim=axis))(v_cache, rep, axis=1)
        scores = torch.einsum("bhqd,bhkd->bhqk", q, k) * (Dh ** -0.5)
        p = _softmax(scores, axis=-1)
        o = torch.einsum("bhqk,bhkd->bhqd", p, v)
        return (lambda x, *d: x.permute(*d))(o, 0, 2, 1, 3).reshape(B, Sq, Hq * Dh) @ wo

    def _B_ref(x, k_cache, v_cache, wq, wo):
        B, Sq, D = x.shape
        Hq, Dh = 32, 128
        Hkv = k_cache.shape[1]
        rep = Hq // Hkv
        q = (lambda x, *d: x.permute(*d))((x @ wq).reshape(B, Sq, Hq, Dh), 0, 2, 1, 3)
        k = (lambda x, n, axis: torch.repeat_interleave(x, n, dim=axis))(k_cache, rep, axis=1)
        v = (lambda x, n, axis: torch.repeat_interleave(x, n, dim=axis))(v_cache, rep, axis=1)
        scores = torch.einsum("bhqd,bhkd->bhqk", q, k) * (Dh ** -0.5)
        p = _softmax(scores, axis=-1)
        o = torch.einsum("bhqk,bhkd->bhqd", p, v)
        return (lambda x, *d: x.permute(*d))(o, 0, 2, 1, 3).reshape(B, Sq, Hq * Dh) @ wo

    a = _A_ref(A_x, A_k_cache, A_v_cache, A_wq, A_wo)
    b = _B_ref(B_x, B_k_cache, B_v_cache, B_wq, B_wo)
    return torch.concatenate([a, b], axis=-1)
```

```python
import re

REG_RE = re.compile(r'\b([vas])\[(\d+):(\d+)\]|\b([vas])(\d+)\b|\b(vcc|exec|m0|scc)\b')

def regs_of(text):
    out = []
    for m in REG_RE.finditer(text):
        if m.group(1):
            out += [(m.group(1), i) for i in range(int(m.group(2)), int(m.group(3)) + 1)]
        elif m.group(4):
            out.append((m.group(4), int(m.group(5))))
        else:
            out.append((m.group(6), 0))
    return out

TRANS = ("v_exp_f32", "v_log_f32", "v_rcp_f32", "v_rsq_f32", "v_sqrt_f32", "v_sin_f32", "v_cos_f32")

class I:
    __slots__ = ("text", "op", "defs", "uses", "kind", "srcc", "passes", "tag", "srcab")
    def __init__(self, text, tag=None):
        self.text = text.strip()
        self.tag = tag
        t = self.text.split(";")[0].strip()
        self.defs = set(); self.uses = set(); self.srcc = set(); self.srcab = set(); self.passes = 0
        if not t or t.endswith(":") or t.startswith("."):
            self.op = ""; self.kind = "label"; return
        parts = t.split(None, 1)
        op = parts[0]; self.op = op
        rest = parts[1] if len(parts) > 1 else ""
        ops = [o.strip() for o in rest.split(",")] if rest else []
        R = [regs_of(o) for o in ops]
        allr = lambda lst: set(r for x in lst for r in x)
        if op.startswith("v_mfma"):
            self.kind = "mfma"
            self.defs = set(R[0]); self.srcab = set(R[1]) | set(R[2]); self.srcc = set(R[3])
            self.uses = self.srcab | self.srcc
            self.passes = 8 if "32x32x16" in op else (4 if "16x16x32" in op else (2 if "4x4x4" in op else 16))
        elif op.startswith("ds_read") :
            self.kind = "dsr"; self.defs = set(R[0]); self.uses = allr(R[1:])
        elif op.startswith("ds_bpermute") or op.startswith("ds_permute") or op.startswith("ds_swizzle"):
            self.kind = "dsr"; self.defs = set(R[0]); self.uses = allr(R[1:])
        elif op.startswith("ds_write"):
            self.kind = "dsw"; self.uses = allr(R)
        elif op.startswith("buffer_load") or op.startswith("global_load"):
            if re.search(r'\blds\b', rest) or "_lds_" in op:
                self.kind = "dma"; self.uses = allr(R) | {("m0", 0)}
            else:
                self.kind = "vload"; self.defs = set(R[0]); self.uses = allr(R[1:])
        elif op.startswith("buffer_store") or op.startswith("global_store"):
            self.kind = "vstore"; self.uses = allr(R)
        elif op.startswith("buffer_atomic") or op.startswith("global_atomic"):
            self.kind = "vstore"; self.uses = allr(R)
        elif op.startswith("s_load") or op.startswith("s_memtime") or op.startswith("s_memrealtime"):
            self.kind = "smem"; self.defs = set(R[0]); self.uses = allr(R[1:])
        elif op == "s_waitcnt": self.kind = "wait"
        elif op == "s_barrier": self.kind = "barrier"
        elif op == "s_nop": self.kind = "nop"
        elif op.startswith("s_cbranch") or op == "s_branch" or op == "s_endpgm" or op == "s_setprio" or op == "s_sleep":
            self.kind = "branch" if "branch" in op else "misc"
            if "vcc" in op: self.uses = {("vcc", 0)}
            if "scc" in op: self.uses = {("scc", 0)}
        elif op.startswith("s_cmp"):
            self.kind = "salu"; self.uses = allr(R); self.defs = {("scc", 0)}
        elif op.startswith("s_"):
            self.kind = "salu"; self.defs = set(R[0]) if R else set(); self.uses = allr(R[1:])
            if "saveexec" in op: self.defs |= {("exec", 0)}
            if op.startswith("s_cselect") or op.startswith("s_addc"): self.uses |= {("scc", 0)}
            if not op.startswith("s_mov") and not op.startswith("s_cselect"): self.defs |= {("scc", 0)}
        elif op.startswith("v_"):
            self.kind = "valu"
            if op.startswith("v_permlane") and "swap" in op:
                self.defs = set(R[0]) | set(R[1]); self.uses = set(self.defs)
            elif op.startswith("v_cmp"):
                self.defs = set(R[0]); self.uses = allr(R[1:])
            elif op.startswith("v_add_co") or op.startswith("v_sub_co") or op.startswith("v_addc_co"):
                self.defs = set(R[0]) | set(R[1]); self.uses = allr(R[2:])
            else:
                self.defs = set(R[0]); self.uses = allr(R[1:])
                if op.startswith("v_fmac") or op.startswith("v_pk_fmac"): self.uses |= self.defs
                if op.startswith("v_cndmask") and len(ops) == 3: self.uses |= {("vcc", 0)}
        else:
            raise ValueError("unknown instruction: " + text)
    def states(self):
        if self.kind == "label": return 0
        if self.kind == "nop": return int(self.text.split()[1], 0) + 1
        return 1
    def __str__(self):
        return self.text if self.kind == "label" else "  " + self.text

def parse_wait(ins):
    vm = re.search(r'vmcnt\((\d+)\)', ins.text); lg = re.search(r'lgkmcnt\((\d+)\)', ins.text)
    return (int(vm.group(1)) if vm else None, int(lg.group(1)) if lg else None)

def auto_wait(seq, init_lgkm=None, init_vm=None):
    lg = list(init_lgkm or [])
    vm = list(init_vm or [])
    need = {}
    for idx, ins in enumerate(seq):
        if ins.kind == "label": continue
        if ins.kind == "wait":
            v, l = parse_wait(ins)
            if v is not None: vm = vm[len(vm) - v:] if v < len(vm) else vm
            if l is not None: lg = lg[len(lg) - l:] if l < len(lg) else lg
            if v == 0: vm = []
            if l == 0: lg = []
            continue
        touched = ins.uses | {r for r in ins.defs if r[0] in ('v','a','s')}
        nl = nv = None
        for k in range(len(lg) - 1, -1, -1):
            if lg[k] & touched:
                nl = len(lg) - 1 - k; break
        for k in range(len(vm) - 1, -1, -1):
            if vm[k] & touched:
                nv = len(vm) - 1 - k; break
        if nl is not None or nv is not None:
            need[idx] = (nv, nl)
            if nl is not None: lg = lg[len(lg) - nl:] if nl else []
            if nv is not None: vm = vm[len(vm) - nv:] if nv else []
        if ins.kind in ("dsr", "dsw"): lg.append(set(ins.defs))
        elif ins.kind == "smem": lg.append(set(ins.defs)); lg.append(set(ins.defs))
        elif ins.kind in ("vload", "dma", "vstore"): vm.append(set(ins.defs))
    return need, lg, vm

def wait_ins(nv, nl):
    s = "s_waitcnt"
    if nv is not None: s += f" vmcnt({min(nv,63)})"
    if nl is not None: s += f" lgkmcnt({min(nl,15)})"
    return I(s)

def apply_waits(seq, need):
    out = []
    for idx, ins in enumerate(seq):
        if idx in need: out.append(wait_ins(*need[idx]))
        out.append(ins)
    return out

def merge_need(a, b):
    out = dict(a)
    for k, (v, l) in b.items():
        if k in out:
            v0, l0 = out[k]
            v = v if v0 is None else (v0 if v is None else min(v, v0))
            l = l if l0 is None else (l0 if l is None else min(l, l0))
        out[k] = (v, l)
    return out

def waits_linear(seq):
    need, _, _ = auto_wait(seq)
    return apply_waits(seq, need)

def waits_loop(pre, body, post):
    n0, lg, vm = auto_wait(pre)
    pre2 = apply_waits(pre, n0)
    need = {}
    for _ in range(6):
        b2 = apply_waits(body, need)
        idxmap = []
        for idx, ins in enumerate(body):
            if idx in need: idxmap.append(None)
            idxmap.append(idx)
        n1, lg1, vm1 = auto_wait(b2, lg, vm)
        n2, lg2, vm2 = auto_wait(apply_waits(b2, n1), lg1, vm1)
        if not n1 and not n2: break
        add = {}
        for k, v in n1.items(): add[idxmap[k]] = v
        if not n1:
            for k, v in n2.items(): add[idxmap[k]] = v
        need = merge_need(need, add)
    else:
        raise RuntimeError("waits_loop did not converge")
    b2 = apply_waits(body, need)
    _, lgA, vmA = auto_wait(b2, lg, vm)
    _, lgB, vmB = auto_wait(b2, lgA, vmA)
    nA, _, _ = auto_wait(post, lgA, vmA)
    nB, _, _ = auto_wait(post, lgB, vmB)
    post2 = apply_waits(post, merge_need(nA, nB))
    return pre2, b2, post2

def check_hazards(seq, name=""):
    msgs = []
    n = len(seq)
    for i, p in enumerate(seq):
        if p.kind in ("label",): continue
        dist = 0
        for j in range(i + 1, min(n, i + 40)):
            c = seq[j]
            if c.kind == "label": continue
            req = 0; why = ""
            vdefs = {r for r in p.defs if r[0] in "va"}
            sdefs = {r for r in p.defs if r[0] == "s" or r[0] == "vcc"}
            if p.kind == "valu":
                if c.kind == "mfma" and (vdefs & c.uses): req, why = 2, "valu->mfma"
                if c.kind == "valu" and c.op.startswith("v_permlane") and (vdefs & c.uses): req, why = max(req, 2), "valu->permlane"
                if c.kind == "valu" and (c.op.startswith("v_readfirstlane") or c.op.startswith("v_readlane")) and (vdefs & c.uses): req, why = max(req, 1), "valu->readlane"
                if p.op in TRANS and c.kind in ("valu", "mfma", "vstore", "dsw") and c.op not in TRANS and (vdefs & c.uses): req, why = max(req, 1), "trans->valu"
                if sdefs and c.kind == "valu" and (sdefs & c.uses): req, why = max(req, 2), "valu sgpr->valu"
                if sdefs and c.kind in ("vload", "dma", "vstore") and (sdefs & c.uses): req, why = max(req, 5), "valu sgpr->vmem"
                if ("exec", 0) in p.defs and c.kind == "mfma": req, why = max(req, 4), "exec->mfma"
                if "dpp" in c.text and (vdefs & c.uses): req, why = max(req, 2), "valu->dpp"
            if p.kind == "mfma":
                tbl = {2: 5, 4: 8, 8: 12, 16: 20}[p.passes]
                if c.kind == "mfma":
                    if p.defs & c.srcab: req, why = tbl, "mfma D->mfma AB"
                    if p.defs & c.srcc:
                        if p.defs == c.srcc and p.passes == c.passes:
                            r2 = 2 if p.passes == 2 else 0
                        else: r2 = {2: 4, 4: 6, 8: 10, 16: 18}[p.passes]
                        if r2 > req: req, why = r2, "mfma D->mfma C overlap"
                    elif p.defs & c.defs:
                        r2 = {2: 4, 4: 6, 8: 10, 16: 18}[p.passes]
                        if r2 > req: req, why = r2, "mfma D->mfma D waw"
                elif c.kind in ("valu", "dsr", "dsw", "vload", "vstore", "dma"):
                    if p.defs & (c.uses | c.defs): req, why = tbl, "mfma D->valu/mem"
                    if c.kind in ("valu", "dsr", "vload") and (p.srcc & c.defs):
                        r2 = {2: 1, 4: 3, 8: 7, 16: 15}[p.passes]
                        if r2 > req: req, why = r2, "mfma C WAR"
            if p.kind == "salu" and ("m0", 0) in p.defs and c.kind == "dma": req, why = max(req, 1), "m0->dma"
            if p.kind == "vstore" and ("x4" in p.op or "x3" in p.op):
                data = set(regs_of(p.text.split(None,1)[1].split(",")[0 if p.op.startswith("buffer") else 1]))
                if data & c.defs: req, why = max(req, 2 if c.kind == "valu" else 1), "store data WAR"
            if req > dist:
                msgs.append(f"{name}: hazard {why}: need {req} have {dist}: [{i}] {p.text}  ->  [{j}] {c.text}")
            dist += c.states()
            if dist > 20: break
    return msgs

class Prog:
    def __init__(self): self.L = []
    def __call__(self, text, tag=None):
        for line in text.strip().split("\n"):
            line = line.strip()
            if line: self.L.append(I(line, tag))
        return self
    def ext(self, lst): self.L.extend(lst)
    def text(self): return "\n".join(str(i) for i in self.L)

def cost(ins):
    if ins.kind == "label": return 0
    if ins.op in TRANS: return 8
    if ins.kind == "mfma": return 8
    return 4

def interleave(mfmas, fillers, start=0, budget=24):
    raise NotImplementedError

def resolve_waits(instances):
    need = {}
    for key, _ in instances: need.setdefault(key, {})
    for _ in range(12):
        lg, vm = [], []
        changed = False
        for key, code in instances:
            nd = need[key]
            c2 = apply_waits(code, nd)
            idxmap = []
            for idx in range(len(code)):
                if idx in nd: idxmap.append(None)
                idxmap.append(idx)
            n1, lg, vm = auto_wait(c2, lg, vm)
            if n1:
                changed = True
                need[key] = merge_need(nd, {idxmap[k]: v for k, v in n1.items()})
        if not changed: break
    else:
        raise RuntimeError("resolve_waits did not converge")
    out = {}; full = []
    for key, code in instances:
        c2 = apply_waits(code, need[key])
        if key not in out: out[key] = c2
        else:
            assert [i.text for i in out[key]] == [i.text for i in c2], f"loop instances differ in text for {key}"
        full += c2
    return out, full

class Sched:
    def __init__(self, mfmas, budget):
        self.m = mfmas; self.g = [[] for _ in mfmas]; self.budget = budget
    def c(self, i): return sum(cost(x) for x in self.g[i])
    def put(self, i, ins):
        if isinstance(ins, str): ins = [I(x) for x in ins.strip().split("\n")]
        elif isinstance(ins, I): ins = [ins]
        self.g[i].extend(ins); return i
    def place(self, ins, lo, hi):
        if isinstance(ins, str): ins = [I(x) for x in ins.strip().split("\n")]
        elif isinstance(ins, I): ins = [ins]
        need = sum(cost(x) for x in ins)
        hi = min(hi, len(self.m) - 1); lo = max(lo, 0)
        assert lo <= hi, (lo, hi, ins[0].text)
        for i in range(lo, hi + 1):
            if self.c(i) + need <= self.budget: return self.put(i, ins)
        best = min(range(lo, hi + 1), key=lambda i: (self.c(i), i))
        return self.put(best, ins)
    def stream(self, items, lo, hi):
        for it in items:
            lo = self.place(it, lo, hi)
        return lo
    def emit(self):
        out = []
        for m, g in zip(self.m, self.g):
            out.append(m); out.extend(g)
        return out
    def est(self, per):
        return sum(max(per, 8 + self.c(i)) for i in range(len(self.m)))

def hazard_list(seq):
    res = []
    for m in check_hazards(seq):
        mm = re.search(r"need (\d+) have (\d+): \[(\d+)\].*->  \[(\d+)\]", m)
        res.append((int(mm.group(3)), int(mm.group(4)), int(mm.group(1)) - int(mm.group(2))))
    return res

def resolve_all(instances):
    inst = [(k, list(c)) for k, c in instances]
    nfix = 0
    for _ in range(20):
        out, full = resolve_waits(inst)
        hz = hazard_list(full)
        if not hz: return out, full, nfix
        fixes = {}
        pos = 0; owner = []
        for n, (key, code) in enumerate(inst):
            ln = len(out[key])
            owner.append((pos, pos + ln, n)); pos += ln
        for (i, j, miss) in hz:
            for (a, b, n) in owner:
                if a <= j < b:
                    key, code = inst[n]
                    obj = full[j]
                    idx = next(x for x, o in enumerate(code) if o is obj)
                    fixes[(key, idx)] = max(fixes.get((key, idx), 0), miss)
        bykey = {}
        for (key, idx), miss in fixes.items(): bykey.setdefault(key, []).append((idx, miss))
        for key, lst in bykey.items():
            lst.sort()
            chosen = []; last = -100
            for idx, miss in lst:
                if idx - last > 12: chosen.append((idx, miss)); last = idx
            for n, (k2, code) in enumerate(inst):
                if k2 == key:
                    for idx, miss in sorted(chosen, reverse=True):
                        code.insert(idx, I(f"s_nop {miss-1}"))
            nfix += len(chosen)
    raise RuntimeError("hazard fixing did not converge")
```

```python
import os, sys, math, struct
from asmlib import *

TS = 131072
KVT = 8704
KVS = 4 * KVT
XB = [2 * KVS, KVS]
WB = 3 * KVS
CSCALE = math.log2(math.e) / math.sqrt(128.0)
THRESH = 8.0

def f2u(x): return struct.unpack("<I", struct.pack("<f", x))[0]

def kd(name, vgpr, acc, sgpr=96):
    return f""".amdhsa_kernel {name}
  .amdhsa_next_free_vgpr {vgpr}
  .amdhsa_next_free_sgpr {sgpr}
  .amdhsa_accum_offset {acc}
  .amdhsa_group_segment_fixed_size 0
  .amdhsa_kernarg_size 104
  .amdhsa_user_sgpr_count 2
  .amdhsa_user_sgpr_kernarg_segment_ptr 1
  .amdhsa_system_sgpr_workgroup_id_x 1
.end_amdhsa_kernel"""

def R(kind, base, n=4): return f"{kind}[{base}:{base+n-1}]"

def m16(d, a, b, c):
    return I(f"v_mfma_f32_16x16x32_bf16 {d}, {a}, {b}, {c}")

def stamp(P, idx, on):
    if on: P(f"s_memtime s[{80+2*idx}:{81+2*idx}]\ns_waitcnt lgkmcnt(0)")

def stamp_store(E, nst, swave, sws):
    E("s_waitcnt vmcnt(0)\ns_memrealtime s[76:77]\ns_waitcnt lgkmcnt(0)")
    E(f"""s_add_u32 s72, s{sws}, 0x4000000
s_addc_u32 s73, s{sws+1}, 0
s_mov_b32 s74, 0x100000
s_mov_b32 s75, 0x00020000
s_lshl_b32 s70, s2, 8
s_lshl_b32 s71, s{swave}, 6
s_add_u32 s70, s70, s71
v_mov_b32 v14, s70
v_mbcnt_lo_u32_b32 v15, -1, 0
v_mbcnt_hi_u32_b32 v15, -1, v15
v_cmp_eq_u32 vcc, 0, v15
s_and_saveexec_b64 s[78:79], vcc""")
    for i in range(1, nst):
        E(f"s_sub_u32 s71, s{80+2*i}, s80\nv_mov_b32 v10, s71\nbuffer_store_dword v10, v14, s[72:75], 0 offen offset:{4*i}\ns_nop 1")
    E(f"v_mov_b32 v10, s76\nbuffer_store_dword v10, v14, s[72:75], 0 offen offset:60\ns_nop 1")
    E(f"v_mov_b32 v10, s98\nbuffer_store_dword v10, v14, s[72:75], 0 offen offset:56\ns_nop 1")

def gen_k1(name="attn_kernel", STAMP=False, KVFLAG="nt", MAPPING=1, verbose=True):
    sW = 40
    sBLK, sKVH, sBP, sBL, sHH = 41, 42, 43, 44, 45
    sWQoff, sXoff, sKVoff = 46, 47, 48
    sWQm0, sXm0, sKVm0 = 49, 50, 51
    sT0, sT1, sT2 = 52, 53, 54
    sCNT = 55
    sWrd, sXrd = 56, 57
    sTH = 58
    sC = 60
    sKd, sVd = 62, 63
    sKVw = 64
    sWQw = 65
    sK16, sKm32, sKKVS, sKm3KVS = 66, 67, 68, 69
    sT3, sT4 = 70, 71
    SX, SWQ, SKV, SO = 24, 28, 32, 36
    vL = 1
    vKVd = [2, 3, 4, 5]
    vKa = 6; vVa = [7, 8, 9, 10]; vMX = 11; vT = 12; vF = 13
    vWa = list(range(6, 14)); vXa = [14, 15]; vWd = [16, 17, 18, 19]; vXd = [20, 21]
    ACC0 = 32
    def grp(g, nt): return ACC0 + (g * 7 + nt) * 8
    def acc(mt, nt): return grp(mt >> 1, nt) + 4 * (mt & 1)
    def Q(nt, g): return R("v", grp(g, nt))
    holes = [grp(g, nt) + 4 for g in range(4) for nt in range(7)] + [20, 24, 28]
    Kf = [[holes[4 * s + g] for g in range(4)] for s in range(2)]
    Vf = [holes[8 + d] for d in range(8)]
    Sb = [[holes[16 + 2 * b + s] for s in range(2)] for b in range(3)]
    Ci = [holes[22 + t] for t in range(7)]
    Pf = holes[29]
    sbuf = lambda t: 2 if t == 6 else (t & 1)
    def O(t, d): return R("a", (t * 8 + d) * 4)
    def Lr(t): return R("a", 224 + 4 * t)
    ONES = R("a", 252)
    def Af(i): return 4 * (i % 4)
    def Bf(par, nt): return 16 + (par * 7 + nt) * 4

    kvf = (" " + KVFLAG) if KVFLAG else ""

    P = Prog()
    P(f"""
.globl {name}
.p2align 8
.type {name},@function
{name}:
s_cmp_ge_u32 s2, 256
s_cbranch_scc1 {name}_done
s_load_dwordx8 s[4:11], s[0:1], 0
s_load_dwordx8 s[12:19], s[0:1], 40
s_load_dwordx2 s[20:21], s[0:1], 96
""")
    if STAMP: P("s_memtime s[80:81]\ns_memrealtime s[98:99]")
    P(f"""
v_lshrrev_b32 v10, 6, v0
v_and_b32 v{vL}, 63, v0
s_and_b32 s{sT0}, s2, 7
v_readfirstlane_b32 s{sW}, v10
s_lshr_b32 s{sT1}, s2, 3
s_lshr_b32 s{sBLK}, s{sT0}, 2
s_and_b32 s{sT0}, s{sT0}, 3
""")
    if MAPPING == 1:
        P(f"""
s_lshl_b32 s{sKVH}, s{sT0}, 2
s_and_b32 s{sT2}, s{sT1}, 3
s_add_u32 s{sKVH}, s{sKVH}, s{sT2}
s_lshr_b32 s{sBP}, s{sT1}, 2
""")
    else:
        P(f"""
s_lshl_b32 s{sBP}, s{sT0}, 1
s_and_b32 s{sT2}, s{sT1}, 1
s_add_u32 s{sBP}, s{sBP}, s{sT2}
s_lshr_b32 s{sKVH}, s{sT1}, 1
""")
    P(f"""
s_lshr_b32 s{sBL}, s{sW}, 1
s_and_b32 s{sHH}, s{sW}, 1
""")
    P(f"""
v_lshrrev_b32 v10, 5, v{vL}
v_and_b32 v11, 31, v{vL}
s_lshl_b32 s{sT0}, s{sHH}, 3
v_lshlrev_b32 v12, 1, v10
v_or_b32 v12, s{sT0}, v12
v_xor_b32 v12, v12, v11
v_lshlrev_b32 v13, 13, v10
v_lshl_add_u32 v{vWd[0]}, v12, 4, v13
v_add_u32 v{vWd[2]}, {4*8192-2048}, v{vWd[0]}
v_xor_b32 v12, 4, v12
v_lshl_add_u32 v{vWd[1]}, v12, 4, v13
v_add_u32 v{vWd[1]}, {2*8192-1024}, v{vWd[1]}
v_add_u32 v{vWd[3]}, {4*8192-2048}, v{vWd[1]}
""")
    P(f"""
v_lshrrev_b32 v10, 3, v{vL}
v_mul_u32_u24 v10, 1152, v10
v_lshrrev_b32 v11, 4, v{vL}
v_and_b32 v12, 7, v{vL}
v_xor_b32 v11, v11, v12
s_lshl_b32 s{sT0}, s{sHH}, 2
v_xor_b32 v11, s{sT0}, v11
v_lshl_add_u32 v{vXd[0]}, v11, 4, v10
v_xor_b32 v11, 4, v11
v_lshl_add_u32 v{vXd[1]}, v11, 4, v10
""")
    P(f"""
s_lshl_b32 s{sWQoff}, s{sW}, 16
s_lshl_b32 s{sT0}, s{sKVH}, 9
s_add_u32 s{sWQoff}, s{sWQoff}, s{sT0}
s_mul_i32 s{sXoff}, s{sW}, {56*1152}
s_lshl_b32 s{sWQm0}, s{sW}, 12
s_add_u32 s{sWQm0}, s{sWQm0}, {WB}
s_mul_i32 s{sXm0}, s{sW}, {7*1024}
s_mul_i32 s{sKVm0}, s{sW}, {KVT}
s_mov_b32 s{sKVoff}, 0
s_mov_b32 s{sK16}, 16384
s_mov_b32 s{sKm32}, {(-2*16384) & 0xffffffff}
s_mov_b32 s{sKKVS}, {KVS}
s_mov_b32 s{sKm3KVS}, {(-3*KVS) & 0xffffffff}
s_mov_b32 s{sWQw}, 0
s_mov_b32 s{sKVw}, 0
s_waitcnt lgkmcnt(0)
s_cmp_eq_u32 s{sBLK}, 0
s_cselect_b64 s[4:5], s[4:5], s[12:13]
s_cselect_b64 s[6:7], s[6:7], s[14:15]
s_cselect_b64 s[8:9], s[8:9], s[16:17]
s_cselect_b64 s[10:11], s[10:11], s[18:19]
s_mul_i32 s{sT0}, s{sBP}, 258048
s_add_u32 s{SX}, s4, s{sT0}
s_addc_u32 s{SX+1}, s5, 0
s_mov_b32 s{SX+2}, 258048
s_mov_b32 s{SX+3}, 0x00020000
s_mov_b32 s{SWQ}, s10
s_mov_b32 s{SWQ+1}, s11
s_mov_b32 s{SWQ+2}, 4718592
s_mov_b32 s{SWQ+3}, 0x00020000
""")

    def flat(groups): return [i for g in groups for i in g]
    def dma_wq(stage):
        out = [[I(f"s_mov_b32 m0, s{sWQm0}"), I(f"s_add_u32 s{sWQw}, s{sWQw}, 1")]]
        for k in range(4):
            d = I(f"buffer_load_dwordx4 v{vWd[k]}, s[{SWQ}:{SWQ+3}], s{sWQoff} offen offset:{1024*k} lds")
            d.defs = {("wq", stage)}; out.append([d])
        out += [[I(f"s_add_u32 s{sWQoff}, s{sWQoff}, {32*8192}")],
                [I(f"s_cmp_eq_u32 s{sWQw}, 3"),
                 I(f"s_cselect_b32 s{sT0}, s{sKm32}, s{sK16}"),
                 I(f"s_cselect_b32 s{sWQw}, 0, s{sWQw}")],
                [I(f"s_add_u32 s{sWQm0}, s{sWQm0}, s{sT0}")]]
        return out
    def dma_x(stage, dyn):
        out = []
        for i in range(7):
            if i % 4 == 0:
                if dyn: out.append([I(f"s_add_u32 m0, s{sXm0}, {4096*(i//4)}")])
                else: out.append([I(f"s_add_u32 m0, s{sXm0}, {XB[stage & 1] + 4096*(i//4)}")])
            d = I(f"buffer_load_dwordx4 v{vXd[i&1]}, s[{SX}:{SX+3}], s{sT1} offen offset:{1024*(i%4)} lds")
            d.defs = {("x", stage)}
            out.append([I(f"s_add_u32 s{sT1}, s{sXoff}, {i*9216 - 1024*(i%4)}"), d])
        out.append([I(f"s_add_u32 s{sXoff}, s{sXoff}, 128")])
        if dyn: out.append([I(f"s_xor_b32 s{sXm0}, s{sXm0}, s{sXrd}")])
        return out
    def dma_kv(stage):
        out = []
        for half in range(2):
            out.append([I(f"s_add_u32 m0, s{sKVm0}, {4352*half}"),
                        I(f"s_add_u32 s{sKVw}, s{sKVw}, 1") if half == 0 else I(f"s_add_u32 s{sKVoff}, s{sKVoff}, 4096")])
            for k in range(4):
                d = I(f"buffer_load_dwordx4 v{vKVd[k]}, s[{SKV}:{SKV+3}], s{sKVoff} offen offset:{1088*k}{kvf} lds")
                d.defs = {("kv", stage)}; out.append([d])
        out += [[I(f"s_and_b32 s{sKVw}, s{sKVw}, 3"), I(f"s_cselect_b32 s{sT0}, s{sKKVS}, s{sKm3KVS}")],
                [I(f"s_add_u32 s{sKVoff}, s{sKVoff}, 4096"), I(f"s_add_u32 s{sKVm0}, s{sKVm0}, s{sT0}")]]
        return out

    for gl in (dma_wq(0), dma_x(0, False), dma_wq(1), dma_x(1, False), dma_wq(2)): P.ext(flat(gl))
    P(f"""
s_cmp_eq_u32 s{sHH}, 0
s_cselect_b64 s[6:7], s[6:7], s[8:9]
s_lshl_b32 s{sT0}, s{sBP}, 1
s_add_u32 s{sT0}, s{sT0}, s{sBL}
s_lshl_b32 s{sT1}, s{sT0}, 4
s_add_u32 s{sT1}, s{sT1}, s{sKVH}
s_lshl_b32 s{sT1}, s{sT1}, 17
s_add_u32 s{SKV}, s6, s{sT1}
s_addc_u32 s{SKV+1}, s7, 0
s_sub_u32 s{SKV}, s{SKV}, 192
s_subb_u32 s{SKV+1}, s{SKV+1}, 0
s_mov_b32 s{SKV+2}, {131072+192}
s_mov_b32 s{SKV+3}, 0x00020000
s_lshl_b32 s{sT1}, s{sBLK}, 4
s_add_u32 s{sT0}, s{sT0}, s{sT1}
s_mul_i32 s{sT0}, s{sT0}, {7*TS}
s_lshl_b32 s{sT1}, s{sKVH}, 1
s_add_u32 s{sT1}, s{sT1}, s{sHH}
s_lshl_b32 s{sT1}, s{sT1}, 12
s_add_u32 s{sT0}, s{sT0}, s{sT1}
s_add_u32 s{SO}, s20, s{sT0}
s_addc_u32 s{SO+1}, s21, 0
s_mov_b32 s{SO+2}, {6*TS+4096}
s_mov_b32 s{SO+3}, 0x00020000
v_lshrrev_b32 v10, 4, v{vL}
v_and_b32 v11, 1, v10
v_lshlrev_b32 v11, 1, v11
v_lshrrev_b32 v12, 1, v10
v_lshl_or_b32 v11, v12, 3, v11
s_cmp_eq_u32 s{sHH}, 0
s_cselect_b64 vcc, -1, 0
v_cndmask_b32 v11, v11, v10, vcc
v_and_b32 v12, 15, v{vL}
v_xor_b32 v11, v11, v12
v_lshlrev_b32 v11, 4, v11
v_lshl_add_u32 v11, v10, 8, v11
v_add_u32 v{vKVd[0]}, 192, v11
v_add_u32 v{vKVd[1]}, 128, v11
v_add_u32 v{vKVd[2]}, 64, v11
v_mov_b32 v{vKVd[3]}, v11
""")
    P.ext(flat(dma_kv(0)))
    P(f"""
s_add_u32 s{sT0}, s{sXm0}, {XB[1]}
s_add_u32 s{sXm0}, s{sXm0}, {XB[0]}
s_xor_b32 s{sXrd}, s{sXm0}, s{sT0}
""")
    P(f"""
v_lshrrev_b32 v22, 4, v{vL}
v_bfe_u32 v23, v{vL}, 2, 2
v_lshl_add_u32 v24, v22, 3, v23
v_lshlrev_b32 v24, 9, v24
v_and_b32 v25, 1, v22
v_lshl_or_b32 v25, v25, 2, v23
v_lshl_add_u32 v24, v25, 5, v24
v_and_b32 v25, 3, v{vL}
v_lshl_add_u32 v24, v25, 3, v24
s_lshl_b32 s{sT0}, s{sHH}, 8
s_add_u32 s{sT0}, s{sT0}, {WB}
v_add_u32 v{vWa[0]}, s{sT0}, v24
""")
    for mt in range(1, 8): P(f"v_xor_b32 v{vWa[mt]}, {32*mt}, v{vWa[0]}")
    P(f"""
v_and_b32 v23, 15, v{vL}
v_lshrrev_b32 v24, 1, v23
v_xor_b32 v24, v24, v22
v_lshlrev_b32 v24, 4, v24
v_lshl_add_u32 v24, v23, 7, v24
s_mul_i32 s{sT0}, s{sBL}, {112*128}
s_add_u32 s{sT0}, s{sT0}, {XB[0]}
v_add_u32 v{vXa[0]}, s{sT0}, v24
v_xor_b32 v{vXa[1]}, 64, v{vXa[0]}
s_mov_b32 s{sWrd}, 0
s_mov_b32 s{sC}, {f2u(CSCALE)}
s_mov_b32 s{sC+1}, {f2u(CSCALE)}
s_mov_b32 s{sTH}, {f2u(THRESH)}
s_mov_b32 s{sCNT}, 0
""")

    def a_reads(ks, mt):
        out = []
        for half in range(2):
            r = Af(mt) + 2 * half
            d = I(f"ds_read_b64_tr_b16 a[{r}:{r+1}], v{vWa[mt]} offset:{2048*half}")
            d.defs |= {("wqrd", ks)}; out.append(d)
        return out
    def b_read(ks, nt):
        r = Bf(ks & 1, nt)
        d = I(f"ds_read_b128 a[{r}:{r+3}], v{vXa[ks&1]} offset:{2048*nt}")
        d.defs |= {("xrd", ks >> 1)}
        return d
    def qbarrier(i):
        b = I("s_barrier")
        b.uses = {("wq", i), ("wqrd", i - 1)}
        if i % 2 == 0: b.uses |= {("x", i // 2), ("xrd", i // 2 - 1)}
        if i == 18: b.uses |= {("kv", 0)}
        return b
    def wq_addr_advance():
        pre = [[I(f"s_add_u32 s{sWrd}, s{sWrd}, 1")], [I(f"s_cmp_eq_u32 s{sWrd}, 3"),
               I(f"s_cselect_b32 s{sT2}, s{sKm32}, s{sK16}"), I(f"s_cselect_b32 s{sWrd}, 0, s{sWrd}")]]
        return pre, [I(f"v_add_u32 v{vWa[mt]}, s{sT2}, v{vWa[mt]}") for mt in range(8)]
    XD = XB[0] ^ XB[1]
    assert (XB[0] & XB[1]) == 0 or True

    P.ext([qbarrier(0)])
    P.ext(a_reads(0, 0)); P.ext([b_read(0, nt) for nt in range(7)]); P.ext(a_reads(0, 1))
    stamp(P, 1, STAMP)
    inst = [("pre", P.L)]

    def conv_group(g, nt):
        r = grp(g, nt)
        o = []
        for q in range(4): o.append(I(f"v_pk_mul_f32 v[{r+2*q}:{r+2*q+1}], v[{r+2*q}:{r+2*q+1}], s[{sC}:{sC+1}]"))
        for q in range(4): o.append(I(f"v_cvt_pk_bf16_f32 v{r+q}, v{r+2*q}, v{r+2*q+1}"))
        return o
    def swap_group(g, nt):
        r = grp(g, nt)
        return ([I(f"v_permlane32_swap_b32 v{r}, v{r+2}"), I(f"v_permlane32_swap_b32 v{r+1}, v{r+3}")],
                [I(f"v_permlane16_swap_b32 v{r}, v{r+2}"), I(f"v_permlane16_swap_b32 v{r+1}, v{r+3}")])

    def qstep(ks, first):
        mf = []
        for mt in range(8):
            for nt in range(7):
                c = R("v", acc(mt, nt))
                mf.append(m16(c, R("a", Af(mt)), R("a", Bf(ks & 1, nt)), "0" if first else c))
        S = Sched(mf, 8)
        for mt in range(6):
            S.stream(a_reads(ks, mt + 2), 7 * mt, 7 * mt + 3)
        nxt = ks + 1
        if nxt < 18:
            pre, adv = wq_addr_advance()
            S.stream(pre, 28, 36)
            S.stream(adv[:7], 37, 41)
            S.put(41, adv[7])
            g = S.put(42, qbarrier(nxt))
            return S, nxt
        return S, None

    sXdelta = 59
    inst[0][1].append(I(f"s_mov_b32 s{sXdelta}, {(XB[1]-XB[0]) & 0xffffffff}"))

    def qstage(k, mode):
        out = []
        for ks in (2 * k, 2 * k + 1):
            S, nxt = qstep(ks, first=(ks == 0))
            if nxt is not None:
                if nxt % 2 == 0:
                    S.stream([I(f"v_add_u32 v{vXa[0]}, s{sXdelta}, v{vXa[0]}"), I(f"v_add_u32 v{vXa[1]}, s{sXdelta}, v{vXa[1]}"),
                              I(f"s_sub_u32 s{sXdelta}, 0, s{sXdelta}")], 20, 41)
                S.stream(a_reads(nxt, 0), 42, 45)
                S.stream([b_read(nxt, nt) for nt in range(7)], 43, 52)
                S.stream(a_reads(nxt, 1), 49, 53)
            qstage.pending.append((S, nxt))
            out.append(S)
        return out
    qstage.pending = []

    def dma_after(i):
        lst = []
        if i + 2 <= 17: lst += dma_wq(i + 2)
        if i % 2 == 0 and i // 2 + 1 <= 8: lst += dma_x(i // 2 + 1, True)
        if i == 16: lst += dma_kv(1)
        return lst


    for k in range(9):
        Ss = qstage(k, None)
        code = []
        key = "qloop" if 1 <= k <= 7 else f"q{k}"
        if k == 1: pass
        if key == "qloop": code.append(I(f"{name}_qloop:"))
        for S, ks in zip(Ss, (2 * k, 2 * k + 1)):
            if ks >= 1:
                items = dma_after(ks)
                S.stream(items, 1, 34)
            code += S.emit()
        if key == "qloop":
            code += [I(f"s_add_u32 s{sCNT}, s{sCNT}, 1"), I(f"s_cmp_lt_u32 s{sCNT}, 7"), I(f"s_cbranch_scc1 {name}_qloop")]
        inst.append((key, code))
        if verbose and k in (1, 8): print(f"k1 q-stage {k}: est cycles", sum(S.est(16) for S in Ss))

    C = Prog()
    C.ext([qbarrier(18)])
    C.ext(flat(dma_kv(2))); C.ext(flat(dma_kv(3)))
    stamp(C, 2, STAMP)
    C(f"""
v_and_b32 v14, 15, v{vL}
v_lshrrev_b32 v15, 4, v{vL}
v_lshrrev_b32 v16, 2, v14
v_and_b32 v17, 3, v14
v_mul_u32_u24 v18, 1088, v16
v_lshl_add_u32 v18, v17, 8, v18
v_xor_b32 v19, v15, v17
v_lshl_add_u32 v18, v19, 4, v18
s_mul_i32 s{sT0}, s{sBL}, {2*KVT}
v_add_u32 v{vKa}, s{sT0}, v18
""")
    C(f"""
v_mul_u32_u24 v18, 1088, v15
v_lshl_add_u32 v18, v16, 8, v18
v_lshl_add_u32 v18, v17, 3, v18
s_add_u32 s{sT0}, s{sT0}, {KVT}
v_add_u32 v18, s{sT0}, v18
v_and_b32 v19, 1, v16
v_lshrrev_b32 v14, 1, v16
v_lshl_or_b32 v19, v14, 2, v19
""")
    for u in range(4):
        pat = (u & 1) | ((u >> 1) << 2)
        C(f"v_xor_b32 v14, {pat}, v19\nv_lshl_add_u32 v{vVa[u]}, v14, 5, v18")
    C(f"s_mov_b32 s{sKd}, 0\ns_mov_b32 s{sVd}, 0\ns_mov_b32 s{sCNT}, 0")
    C("s_nop 4")
    groups = [(g, nt) for nt in range(7) for g in range(4)]
    prev = None
    for i, (g, nt) in enumerate(groups):
        C.ext(conv_group(g, nt))
        if i >= 1: C.ext(swap_group(*groups[i - 1])[0])
        if i >= 2: C.ext(swap_group(*groups[i - 2])[1])
    C("s_nop 1")
    C.ext(swap_group(*groups[-1])[0]); C.ext(swap_group(*groups[-2])[1]); C("s_nop 1"); C.ext(swap_group(*groups[-1])[1])
    C(f"v_mov_b32 v14, 0x3f803f80\nv_mov_b32 v15, 0")
    for i in range(4): C(f"v_accvgpr_write_b32 a{252+i}, v14")
    for i in range(32): C(f"v_accvgpr_write_b32 a{6*32+i}, v15")
    for i in range(4): C(f"v_accvgpr_write_b32 a{224+24+i}, v15")

    def k_read(j, sub, g):
        r = Kf[sub][g]
        d = I(f"ds_read_b128 v[{r}:{r+3}], v{vKa} offset:{64*g + 4352*sub}")
        d.defs |= {("krd", j)}
        return d
    def v_reads(j, dt):
        u = (dt & 1) | ((dt >> 2) << 1)
        out = []
        for half in range(2):
            r = Vf[dt] + 2 * half
            d = I(f"ds_read_b64_tr_b16 v[{r}:{r+1}], v{vVa[u]} offset:{64*((dt>>1)&1) + 4352*half}")
            d.defs |= {("vrd", j)}; out.append(d)
        return out
    def adv(sreg, vregs, st):
        return [[I(f"s_add_u32 s{sreg}, s{sreg}, 1")], [I(f"s_and_b32 s{sreg}, s{sreg}, 3"),
                I(f"s_cselect_b32 s{st}, s{sKKVS}, s{sKm3KVS}")]] + \
               [[I(f"v_add_u32 v{v}, s{st}, v{v}")] for v in vregs]
    def abarrier(j):
        b = I("s_barrier"); b.uses = {("kv", j + 1), ("krd", j), ("vrd", j)}
        return b
    def qk(t, zero):
        o = []
        for sub in range(2):
            d = R("v", Sb[sbuf(t)][sub])
            for g in range(4):
                c = d if g else ("0" if zero else R("v", Ci[t]))
                o.append(m16(d, R("v", Kf[sub][g]), Q(t, g), c))
        return o
    def pv(t, zero):
        o = [m16(O(t, d), R("v", Vf[d]), R("v", Pf), "0" if zero else O(t, d)) for d in range(8)]
        o.append(m16(Lr(t), ONES, R("v", Pf), "0" if zero else Lr(t)))
        return o
    def sregs(t): return [Sb[sbuf(t)][0] + i for i in range(4)] + [Sb[sbuf(t)][1] + i for i in range(4)]

    for sub in range(2):
        for g in range(4): C.ext([k_read(0, sub, g)])
    for dt in range(8): C.ext(v_reads(0, dt))
    C.ext(qk(0, True))
    stamp(C, 3, STAMP)
    inst.append(("conv", C.L))

    slow = Prog()
    def block(j, first):
        mf = []; base = []
        for s in range(7):
            base.append(len(mf))
            if not (first and s == 0): mf += pv((s - 1) % 7, first)
            mf += qk((s + 1) % 7, first and s < 6)
        base.append(len(mf))
        S = Sched(mf, 8)
        for t in range(7):
            b0 = base[t]; sr = sregs(t); n = base[t + 1] - b0
            if first:
                ops = [f"s_nop 4" if t == 0 else None,
                       f"v_max3_f32 v{vMX}, v{sr[0]}, v{sr[1]}, v{sr[2]}", f"s_nop 3",
                       f"v_max3_f32 v{vMX}, v{vMX}, v{sr[3]}, v{sr[4]}",
                       f"v_max3_f32 v{vMX}, v{vMX}, v{sr[5]}, v{sr[6]}",
                       f"v_max_f32 v{vMX}, v{vMX}, v{sr[7]}",
                       f"v_mov_b32 v{vT}, v{vMX}", "s_nop 1", f"v_permlane32_swap_b32 v{vT}, v{vMX}",
                       f"v_max_f32 v{vMX}, v{vT}, v{vMX}",
                       f"v_mov_b32 v{vT}, v{vMX}", "s_nop 1", f"v_permlane16_swap_b32 v{vT}, v{vMX}",
                       f"v_max_f32 v{vMX}, v{vT}, v{vMX}"]
                ops += [f"v_sub_f32 v{r}, v{r}, v{vMX}" for r in sr]
                ops += [f"v_exp_f32 v{r}, v{r}" for r in sr]
                ops += [f"v_sub_f32 v{Ci[t]+i}, 0, v{vMX}" for i in range(4)]
                ops = [o for o in ops if o]
                for i, o in enumerate(ops):
                    S.put(b0 + min(n - 2, (i * (n - 2)) // len(ops)), o)
                for q in range(4): S.put(b0 + n - 2, f"v_cvt_pk_bf16_f32 v{Pf+q}, v{sr[2*q]}, v{sr[2*q+1]}")
                S.put(b0 + n - 1, "s_nop 0")
            else:
                S.put(b0 + 0, f"v_max3_f32 v{vMX}, v{sr[0]}, v{sr[1]}, v{sr[2]}")
                S.put(b0 + 2, f"v_max3_f32 v{vT}, v{sr[4]}, v{sr[5]}, v{sr[6]}")
                S.put(b0 + 3, f"v_max3_f32 v{vMX}, v{vMX}, v{sr[3]}, v{sr[7]}")
                S.put(b0 + 3, f"v_max_f32 v{vMX}, v{vMX}, v{vT}")
                S.put(b0 + 4, f"v_cmp_lt_f32 vcc, s{sTH}, v{vMX}")
                S.put(b0 + 4, f"s_cbranch_vccnz {name}_slow{t}")
                S.put(b0 + 4, f"{name}_back{t}:")
                for i in range(8): S.put(b0 + 5 + i, f"v_exp_f32 v{sr[i]}, v{sr[i]}")
                S.put(b0 + 13, f"v_cvt_pk_bf16_f32 v{Pf}, v{sr[0]}, v{sr[1]}\nv_cvt_pk_bf16_f32 v{Pf+1}, v{sr[2]}, v{sr[3]}")
                S.put(b0 + 14, f"v_cvt_pk_bf16_f32 v{Pf+2}, v{sr[4]}, v{sr[5]}\nv_cvt_pk_bf16_f32 v{Pf+3}, v{sr[6]}, v{sr[7]}")
        if not first:
            lo = 0
            for dt in range(8):
                for d in v_reads(j, dt):
                    lo = S.place(d, max(lo, dt), 17 + dt - 6)
        gb = base[2] + (1 if not first else 1)
        S.put(gb, abarrier(j))
        S.stream(dma_kv(j + 4), gb + 1, base[5])
        S.stream(adv(sVd, vVa, sT3), base[2], base[6])
        S.stream(adv(sKd, [vKa], sT4), base[3], base[5] + 8)
        lo = base[5] + 9
        for sub in range(2):
            for g in range(4):
                i = 4 * sub + g
                lo = S.place(k_read(j + 1, sub, g), max(lo, base[5] + 9 + i), base[6] + 9 + i - 6)
        return S

    S0 = block(0, True)
    inst.append(("blk0", S0.emit()))
    for j in range(1, 16):
        S = block(j, False)
        code = [I(f"{name}_aloop:")] + S.emit() + [I(f"s_add_u32 s{sCNT}, s{sCNT}, 1"), I(f"s_cmp_lt_u32 s{sCNT}, 15"),
                                                   I(f"s_cbranch_scc1 {name}_aloop")]
        inst.append(("aloop", code))
        if verbose and j == 1: print("k1 attention block est cycles", S.est(16), "ideal", 16 * len(S.m))

    E = Prog()
    E.ext(pv(6, False))
    stamp(E, 4, STAMP)
    E(f"v_lshlrev_b32 v2, 4, v{vL}")
    E("s_nop 7")
    tmp = 32
    for t in range(7):
        inv = 16 + 2 * (t & 1)
        E(f"v_accvgpr_read_b32 v{inv}, a{224+4*t}\ns_mov_b32 s{sT0}, {t*TS}\nv_rcp_f32 v{inv}, v{inv}")
        for g in range(4):
            r = tmp + 16 * ((t * 4 + g) % 8)
            for i in range(8): E(f"v_accvgpr_read_b32 v{r+i}, a{(t*8+2*g)*4+i}")
            for q in range(4): E(f"v_pk_mul_f32 v[{r+2*q}:{r+2*q+1}], v[{r+2*q}:{r+2*q+1}], v[{inv}:{inv+1}] op_sel_hi:[1,0]")
            for q in range(4): E(f"v_cvt_pk_bf16_f32 v{r+8+q}, v{r+2*q}, v{r+2*q+1}")
            E(f"buffer_store_dwordx4 v[{r+8}:{r+11}], v2, s[{SO}:{SO+3}], s{sT0} offen offset:{1024*g}")
    if STAMP:
        stamp(E, 5, True)
        stamp_store(E, 6, sW, 20)
    E(f"{name}_done:\ns_endpgm")
    inst.append(("end", E.L))

    for t in range(7):
        sr = sregs(t)
        slow(f"""{name}_slow{t}:
v_mov_b32 v{vT}, v{vMX}
s_nop 1
v_permlane32_swap_b32 v{vT}, v{vMX}
v_max_f32 v{vMX}, v{vT}, v{vMX}
v_mov_b32 v{vT}, v{vMX}
s_nop 1
v_permlane16_swap_b32 v{vT}, v{vMX}
v_max_f32 v{vMX}, v{vT}, v{vMX}
v_max_f32 v{vMX}, 0, v{vMX}
v_exp_f32 v{vF}, -v{vMX}
""")
        for r in sr: slow(f"v_sub_f32 v{r}, v{r}, v{vMX}")
        for i in range(4): slow(f"v_sub_f32 v{Ci[t]+i}, v{Ci[t]+i}, v{vMX}")
        regs = [t * 32 + i for i in range(32)] + [224 + 4 * t + i for i in range(4)]
        for a in regs:
            slow(f"v_accvgpr_read_b32 v{vT}, a{a}\nv_mul_f32 v{vT}, v{vT}, v{vF}\nv_accvgpr_write_b32 a{a}, v{vT}")
        slow(f"s_nop 1\ns_branch {name}_back{t}")

    out, full, nfix = resolve_all(inst)
    if verbose: print("k1 nops inserted:", nfix)
    msgs = check_hazards(full, name) + check_hazards(slow.L, name + "_slow")
    seen = set()
    for m_ in msgs:
        key = m_.split("]")[1][:60] + m_.split("->")[-1][-50:]
        if key not in seen: print(m_); seen.add(key)
    order = []
    for key, _ in inst:
        if key not in order: order.append(key)
    text = "\n".join(str(i) for key in order for i in out[key]) + "\n" + slow.text()
    launch = f"; @launch kernel={name} grid=(256,1,1) block=(256,1,1) lds=163840"
    return launch, text, kd(name, 512, 256, 102)

def gen_k2(name="oproj_kernel", NS=4, STAMP=False, verbose=True):
    for Lp in range(126): assert (Lp * 57) >> 9 == Lp // 9
    KS = 4
    PB = KS * NS
    ACC = 16
    AF = 48
    BF = 80
    NV = BF + 8 * PB
    vLane16 = 2; vA = [3, 4, 5, 6]; vDma = [7, 8, 9, 10]; vOut = 11
    P = Prog()
    P(f"""
.globl {name}
.p2align 8
.type {name},@function
{name}:
s_cmp_ge_u32 s2, 256
s_cbranch_scc1 {name}_done
s_load_dwordx2 s[4:5], s[0:1], 32
s_load_dwordx2 s[6:7], s[0:1], 72
s_load_dwordx2 s[8:9], s[0:1], 80
s_load_dwordx2 s[10:11], s[0:1], 96
""")
    if STAMP: P("s_memtime s[80:81]\ns_memrealtime s[98:99]")
    P(f"""
s_and_b32 s20, s2, 7
s_lshr_b32 s21, s2, 3
s_and_b32 s22, s20, 1
s_mul_i32 s23, s22, 31
s_cmp_eq_u32 s23, 31
s_cselect_b32 s23, s21, 0
s_cmp_eq_u32 s23, 31
s_cbranch_scc1 {name}_done
s_mul_i32 s22, s20, 63
s_add_u32 s22, s22, 1
s_lshr_b32 s22, s22, 1
s_add_u32 s22, s22, s21
s_cmp_ge_u32 s22, 126
s_cselect_b32 s24, 1, 0
s_mul_i32 s25, s24, 126
s_sub_u32 s22, s22, s25
s_mul_i32 s26, s22, 57
s_lshr_b32 s26, s26, 9
s_mul_i32 s27, s26, 9
s_sub_u32 s27, s22, s27
v_and_b32 v1, 63, v0
v_lshrrev_b32 v12, 6, v0
v_lshlrev_b32 v{vLane16}, 4, v1
v_readfirstlane_b32 s28, v12
""")
    P(f"""
s_lshl_b32 s29, s26, 3
s_lshl_b32 s30, s28, 1
s_add_u32 s29, s29, s30
s_mul_i32 s30, s24, 112
s_add_u32 s30, s30, s29
s_mul_i32 s30, s30, {TS}
v_lshrrev_b32 v12, 3, v1
v_mul_u32_u24 v12, 1152, v12
v_bfe_u32 v13, v1, 4, 2
v_lshlrev_b32 v13, 1, v13
v_and_b32 v14, 7, v1
v_xor_b32 v13, v13, v14
v_lshl_add_u32 v{vDma[0]}, v13, 4, v12
v_add_u32 v{vDma[1]}, 8192, v{vDma[0]}
v_add_u32 v{vDma[2]}, 16384, v{vDma[0]}
v_add_u32 v{vDma[3]}, 24576, v{vDma[0]}
s_mul_i32 s44, s28, 36864
s_lshl_b32 s46, s27, 7
s_add_u32 s44, s44, s46
s_lshl_b32 s45, s28, 12
s_mov_b32 s47, 0
s_mov_b32 s48, {TS}
s_waitcnt lgkmcnt(0)
s_cmp_eq_u32 s24, 0
s_cselect_b32 s32, s4, s6
s_cselect_b32 s33, s5, s7
s_mov_b32 s34, 4718592
s_mov_b32 s35, 0x00020000
s_add_u32 s36, s10, s30
s_addc_u32 s37, s11, 0
s_mov_b32 s38, 131072
s_mov_b32 s39, 0x00020000
s_add_u32 s56, s36, {TS}
s_addc_u32 s57, s37, 0
s_mov_b32 s58, 131072
s_mov_b32 s59, 0x00020000
s_mov_b32 s40, s8
s_mov_b32 s41, s9
s_mov_b32 s42, 4128768
s_mov_b32 s43, 0x00020000
""")
    def dma(stage):
        slot = stage % NS
        out = [I(f"s_add_u32 m0, s45, {slot*16384}"), I("s_nop 0")]
        for i in range(4):
            d = I(f"buffer_load_dwordx4 v{vDma[i]}, s[32:35], s44 offen offset:{1024*i} lds")
            d.defs = {("lds", stage)}
            out.append(d)
        out.append(I("s_add_u32 s44, s44, 147456"))
        return out
    def bload(g):
        out = []
        for nt in range(2):
            r = BF + 8 * (g % PB) + 4 * nt
            srd = "s[36:39]" if nt == 0 else "s[56:59]"
            out.append(I(f"buffer_load_dwordx4 v[{r}:{r+3}], v{vLane16}, {srd}, s47 offen offset:{1024*(g%4)}"))
        if g % 4 == 3: out.append(I("s_add_u32 s47, s47, 4096"))
        return out
    def areads(g, mt):
        stage = g // KS; slot = stage % NS; ks = g % KS
        r = AF + 16 * (g % 2) + 4 * mt
        out = []
        for half in range(2):
            d = I(f"ds_read_b64_tr_b16 v[{r+2*half}:{r+2*half+1}], v{vA[mt]} offset:{slot*16384 + ks*4096 + half*2048}")
            d.defs |= {("ldsrd", stage)}
            out.append(d)
        return out
    def barrier(stage):
        b = I("s_barrier"); b.uses = {("lds", stage), ("ldsrd", stage - 1)}
        return b
    for st in range(NS - 1):
        P.ext(dma(st))
        for g in range(KS * st, KS * st + KS): P.ext(bload(g))
    for g in range(KS * (NS - 1), PB): P.ext(bload(g))
    P(f"""
v_lshrrev_b32 v12, 2, v1
v_bfe_u32 v13, v12, 1, 2
v_lshlrev_b32 v12, 7, v12
v_lshl_add_u32 v12, v13, 5, v12
v_and_b32 v13, 3, v1
v_lshl_add_u32 v{vA[0]}, v13, 3, v12
v_xor_b32 v{vA[1]}, 32, v{vA[0]}
v_xor_b32 v{vA[2]}, 64, v{vA[0]}
v_xor_b32 v{vA[3]}, 96, v{vA[0]}
""")
    P(f"""
s_lshl_b32 s50, s29, 4
v_and_b32 v12, 15, v1
v_add_u32 v12, s50, v12
v_mul_u32_u24 v12, 2304, v12
v_lshrrev_b32 v13, 4, v1
v_lshlrev_b32 v13, 3, v13
s_mul_i32 s53, s24, 1152
s_lshl_b32 s54, s27, 7
s_add_u32 s53, s53, s54
v_add3_u32 v{vOut}, v12, v13, s53
s_mov_b32 s55, 0
""")
    for i in range(32): P(f"v_mov_b32 v{ACC+i}, 0")
    P.ext([barrier(0)])
    P.ext(dma(NS - 1))
    for mt in range(4): P.ext(areads(0, mt))
    stamp(P, 1, STAMP)
    inst = [("pre", P.L)]
    NIT = 128 // PB
    for it in range(NIT):
        code = [I(f"{name}_loop:")]
        for gl in range(PB):
            g = it * PB + gl
            mf = []
            for mt in range(4):
                for nt in range(2):
                    c = R("v", ACC + 8 * mt + 4 * nt)
                    mf.append(m16(c, R("v", AF + 16 * (g % 2) + 4 * mt), R("v", BF + 8 * (g % PB) + 4 * nt), c))
            S = Sched(mf, 8)
            gn = g + 1
            lo = 0
            if gn % KS == 0:
                S.put(1, barrier(gn // KS)); lo = 1
            for mt in range(4): lo = S.stream(areads(gn, mt), lo, 6)
            if gn % KS == 0: S.stream(dma(gn // KS + NS - 1), 5, 7)
            S.put(7, bload(g + PB))
            code += S.emit()
        code += [I("s_add_u32 s55, s55, 1"), I(f"s_cmp_lt_u32 s55, {NIT}"), I(f"s_cbranch_scc1 {name}_loop")]
        inst.append(("loop", code))
    E = Prog()
    E("s_nop 7")
    stamp(E, 2, STAMP)
    for mt in range(4):
        for nt in range(2):
            c = ACC + 8 * mt + 4 * nt
            t = AF + 4 * mt + 2 * nt
            E(f"v_cvt_pk_bf16_f32 v{t}, v{c}, v{c+1}\nv_cvt_pk_bf16_f32 v{t+1}, v{c+2}, v{c+3}")
            if nt == 0:
                E(f"buffer_store_dwordx2 v[{t}:{t+1}], v{vOut}, s[40:43], 0 offen offset:{32*mt}")
            else:
                E(f"s_mov_b32 s50, {16*2304}\nbuffer_store_dwordx2 v[{t}:{t+1}], v{vOut}, s[40:43], s50 offen offset:{32*mt}")
    if STAMP:
        E("s_waitcnt vmcnt(0)")
        stamp(E, 3, True)
        E("s_add_u32 s10, s10, 0x100000\ns_addc_u32 s11, s11, 0")
        stamp_store(E, 4, 28, 10)
    E(f"{name}_done:\ns_endpgm")
    inst.append(("end", E.L))
    out, full, nfix = resolve_all(inst)
    for m_ in check_hazards(full, name)[:10]: print(m_)
    text = "\n".join(str(i) for key in ("pre", "loop", "end") for i in out[key])
    launch = f"; @launch kernel={name} grid=(256,1,1) block=(256,1,1) lds={NS*16384}"
    return launch, text, kd(name, NV, ((NV + 3) // 4) * 4, 102)

def write(path, kernels, header=""):
    with open(path, "w") as f:
        f.write(header)
        for l, _, _ in kernels: f.write(l + "\n")
        f.write('.amdgcn_target "amdgcn-amd-amdhsa--gfx950"\n.text\n')
        for _, c, _ in kernels: f.write(c + "\n")
        f.write('.section .rodata,"a"\n')
        for _, _, k in kernels: f.write(".p2align 6\n" + k + "\n")

HEADER = """; Fused GQA block x2 (Q-proj + attention, then O-proj); generated by a hand-written generator script.
"""

if __name__ == "__main__":
    out = sys.argv[1] if len(sys.argv) > 1 else "full.s"
    st = bool(os.environ.get("STAMP"))
    kw = {}
    if "KVFLAG" in os.environ: kw["KVFLAG"] = os.environ["KVFLAG"]
    if "MAPPING" in os.environ: kw["MAPPING"] = int(os.environ["MAPPING"])
    write(out, [gen_k1(STAMP=st, **kw), gen_k2(STAMP=st)], HEADER)
```

```python
import os, sys, math, struct
from asmlib import *

TS = 131072
KVT = 8704
KVS = 4 * KVT
XB = [2 * KVS, KVS]
WB = 3 * KVS
CSCALE = math.log2(math.e) / math.sqrt(128.0)
THRESH = 8.0

def f2u(x): return struct.unpack("<I", struct.pack("<f", x))[0]

def kd(name, vgpr, acc, sgpr=96):
    return f""".amdhsa_kernel {name}
  .amdhsa_next_free_vgpr {vgpr}
  .amdhsa_next_free_sgpr {sgpr}
  .amdhsa_accum_offset {acc}
  .amdhsa_group_segment_fixed_size 0
  .amdhsa_kernarg_size 104
  .amdhsa_user_sgpr_count 2
  .amdhsa_user_sgpr_kernarg_segment_ptr 1
  .amdhsa_system_sgpr_workgroup_id_x 1
.end_amdhsa_kernel"""

def R(kind, base, n=4): return f"{kind}[{base}:{base+n-1}]"

def m16(d, a, b, c):
    return I(f"v_mfma_f32_16x16x32_bf16 {d}, {a}, {b}, {c}")

def stamp(P, idx, on):
    if on: P(f"s_memtime s[{80+2*idx}:{81+2*idx}]\ns_waitcnt lgkmcnt(0)")

def stamp_store(E, nst, swave, sws, dbgoff=None):
    E("s_waitcnt vmcnt(0)\ns_memrealtime s[76:77]\ns_waitcnt lgkmcnt(0)")
    DBG = os.environ.get("DBG")
    if DBG:
        wg = int(DBG)
        E(f"""s_load_dwordx2 s[72:73], s[0:1], 88
s_waitcnt lgkmcnt(0)
s_sub_u32 s72, s72, {dbgoff[0]}
s_subb_u32 s73, s73, 0
s_mov_b32 s74, 64
s_mov_b32 s75, 0x00020000
s_xor_b32 s70, s2, {wg}
s_or_b32 s70, s70, s{swave}
s_lshl_b32 s70, s70, 8
s_add_u32 s70, s70, {dbgoff[1]}
v_mov_b32 v14, s70
v_mbcnt_lo_u32_b32 v15, -1, 0
v_mbcnt_hi_u32_b32 v15, -1, v15
v_cmp_eq_u32 vcc, 0, v15
s_and_saveexec_b64 s[78:79], vcc""")
        for i in range(1, nst):
            E(f"s_sub_u32 s71, s{80+2*i}, s80\nv_mov_b32 v10, s71\nbuffer_store_dword v10, v14, s[72:75], 0 offen offset:{4*(i+1)}\ns_nop 1")
        E(f"v_mov_b32 v10, s76\nbuffer_store_dword v10, v14, s[72:75], 0 offen offset:4\ns_nop 1")
        E(f"v_mov_b32 v10, s98\nbuffer_store_dword v10, v14, s[72:75], 0 offen offset:0\ns_nop 1")
        return
    E(f"""s_add_u32 s72, s{sws}, 0x4000000
s_addc_u32 s73, s{sws+1}, 0
s_mov_b32 s74, 0x100000
s_mov_b32 s75, 0x00020000
s_lshl_b32 s70, s2, 8
s_lshl_b32 s71, s{swave}, 6
s_add_u32 s70, s70, s71
v_mov_b32 v14, s70
v_mbcnt_lo_u32_b32 v15, -1, 0
v_mbcnt_hi_u32_b32 v15, -1, v15
v_cmp_eq_u32 vcc, 0, v15
s_and_saveexec_b64 s[78:79], vcc""")
    for i in range(1, nst):
        E(f"s_sub_u32 s71, s{80+2*i}, s80\nv_mov_b32 v10, s71\nbuffer_store_dword v10, v14, s[72:75], 0 offen offset:{4*i}\ns_nop 1")
    E(f"v_mov_b32 v10, s76\nbuffer_store_dword v10, v14, s[72:75], 0 offen offset:60\ns_nop 1")
    E(f"v_mov_b32 v10, s98\nbuffer_store_dword v10, v14, s[72:75], 0 offen offset:56\ns_nop 1")

def gen_k1(name="attn_kernel", STAMP=False, KVFLAG="nt", MAPPING=1, verbose=True):
    sW = 40
    sBLK, sKVH, sBP, sBL, sHH = 41, 42, 43, 44, 45
    sWQoff, sXoff, sKVoff = 46, 47, 48
    sWQm0, sXm0, sKVm0 = 49, 50, 51
    sT0, sT1, sT2 = 52, 53, 54
    sCNT = 55
    sWrd, sXrd = 56, 57
    sTH = 58
    sC = 60
    sKd, sVd = 62, 63
    sKVw = 64
    sWQw = 65
    sK16, sKm32, sKKVS, sKm3KVS = 66, 67, 68, 69
    sT3, sT4 = 70, 71
    SX, SWQ, SKV, SO = 24, 28, 32, 36
    vL = 1
    vKVd = [2, 3, 4, 5]
    vKa = 6; vVa = [7, 8, 9, 10]; vMX = 11; vT = 12; vF = 13
    vWa = list(range(6, 14)); vXa = [14, 15]; vWd = [16, 17, 18, 19]; vXd = [20, 21]
    ACC0 = 32
    def grp(g, nt): return ACC0 + (g * 7 + nt) * 8
    def acc(mt, nt): return grp(mt >> 1, nt) + 4 * (mt & 1)
    def Q(nt, g): return R("v", grp(g, nt))
    holes = [grp(g, nt) + 4 for g in range(4) for nt in range(7)] + [20, 24, 28]
    Kf = [[holes[4 * s + g] for g in range(4)] for s in range(2)]
    Vf = [holes[8 + d] for d in range(8)]
    Sb = [[holes[16 + 2 * b + s] for s in range(2)] for b in range(3)]
    Ci = [holes[22 + t] for t in range(7)]
    Pf = holes[29]
    Er = [holes[30] + i for i in range(4)] + [14, 15, 16, 17]
    BRG = int(os.environ.get('BRG', 13))
    sbuf = lambda t: 2 if t == 6 else (t & 1)
    def O(t, d): return R("a", (t * 8 + d) * 4)
    def Lr(t): return R("a", 224 + 4 * t)
    ONES = R("a", 252)
    def Af(i): return 4 * (i % 4)
    def Bf(par, nt): return 16 + (par * 7 + nt) * 4

    kvf = (" " + KVFLAG) if KVFLAG else ""

    P = Prog()
    P(f"""
.globl {name}
.p2align 8
.type {name},@function
{name}:
s_cmp_ge_u32 s2, 256
s_cbranch_scc1 {name}_done
s_load_dwordx8 s[4:11], s[0:1], 0
s_load_dwordx8 s[12:19], s[0:1], 40
s_load_dwordx2 s[20:21], s[0:1], 96
""")
    if STAMP: P("s_memtime s[80:81]\ns_memrealtime s[98:99]")
    P(f"""
v_lshrrev_b32 v10, 6, v0
v_and_b32 v{vL}, 63, v0
s_and_b32 s{sT0}, s2, 7
v_readfirstlane_b32 s{sW}, v10
s_lshr_b32 s{sT1}, s2, 3
s_lshr_b32 s{sBLK}, s{sT0}, 2
s_and_b32 s{sT0}, s{sT0}, 3
""")
    if MAPPING == 1:
        P(f"""
s_lshl_b32 s{sKVH}, s{sT0}, 2
s_and_b32 s{sT2}, s{sT1}, 3
s_add_u32 s{sKVH}, s{sKVH}, s{sT2}
s_lshr_b32 s{sBP}, s{sT1}, 2
""")
    else:
        P(f"""
s_lshl_b32 s{sBP}, s{sT0}, 1
s_and_b32 s{sT2}, s{sT1}, 1
s_add_u32 s{sBP}, s{sBP}, s{sT2}
s_lshr_b32 s{sKVH}, s{sT1}, 1
""")
    P(f"""
s_lshr_b32 s{sBL}, s{sW}, 1
s_and_b32 s{sHH}, s{sW}, 1
""")
    P(f"""
v_lshrrev_b32 v10, 5, v{vL}
v_and_b32 v11, 31, v{vL}
s_lshl_b32 s{sT0}, s{sHH}, 3
v_lshlrev_b32 v12, 1, v10
v_or_b32 v12, s{sT0}, v12
v_xor_b32 v12, v12, v11
v_lshlrev_b32 v13, 13, v10
v_lshl_add_u32 v{vWd[0]}, v12, 4, v13
v_add_u32 v{vWd[2]}, {4*8192-2048}, v{vWd[0]}
v_xor_b32 v12, 4, v12
v_lshl_add_u32 v{vWd[1]}, v12, 4, v13
v_add_u32 v{vWd[1]}, {2*8192-1024}, v{vWd[1]}
v_add_u32 v{vWd[3]}, {4*8192-2048}, v{vWd[1]}
""")
    P(f"""
v_lshrrev_b32 v10, 3, v{vL}
v_mul_u32_u24 v10, 1152, v10
v_lshrrev_b32 v11, 4, v{vL}
v_and_b32 v12, 7, v{vL}
v_xor_b32 v11, v11, v12
s_lshl_b32 s{sT0}, s{sHH}, 2
v_xor_b32 v11, s{sT0}, v11
v_lshl_add_u32 v{vXd[0]}, v11, 4, v10
v_xor_b32 v11, 4, v11
v_lshl_add_u32 v{vXd[1]}, v11, 4, v10
""")
    P(f"""
s_lshl_b32 s{sWQoff}, s{sW}, 16
s_lshl_b32 s{sT0}, s{sKVH}, 9
s_add_u32 s{sWQoff}, s{sWQoff}, s{sT0}
s_mul_i32 s{sXoff}, s{sW}, {56*1152}
s_lshl_b32 s{sWQm0}, s{sW}, 12
s_add_u32 s{sWQm0}, s{sWQm0}, {WB}
s_mul_i32 s{sXm0}, s{sW}, {7*1024}
s_mul_i32 s{sKVm0}, s{sW}, {KVT}
s_mov_b32 s{sKVoff}, 0
s_mov_b32 s{sK16}, 16384
s_mov_b32 s{sKm32}, {(-2*16384) & 0xffffffff}
s_mov_b32 s{sKKVS}, {KVS}
s_mov_b32 s{sKm3KVS}, {(-3*KVS) & 0xffffffff}
s_mov_b32 s{sWQw}, 0
s_mov_b32 s{sKVw}, 0
s_waitcnt lgkmcnt(0)
s_cmp_eq_u32 s{sBLK}, 0
s_cselect_b64 s[4:5], s[4:5], s[12:13]
s_cselect_b64 s[6:7], s[6:7], s[14:15]
s_cselect_b64 s[8:9], s[8:9], s[16:17]
s_cselect_b64 s[10:11], s[10:11], s[18:19]
s_mul_i32 s{sT0}, s{sBP}, 258048
s_add_u32 s{SX}, s4, s{sT0}
s_addc_u32 s{SX+1}, s5, 0
s_mov_b32 s{SX+2}, 258048
s_mov_b32 s{SX+3}, 0x00020000
s_mov_b32 s{SWQ}, s10
s_mov_b32 s{SWQ+1}, s11
s_mov_b32 s{SWQ+2}, 4718592
s_mov_b32 s{SWQ+3}, 0x00020000
""")

    def flat(groups): return [i for g in groups for i in g]
    def dma_wq(stage):
        out = [[I(f"s_mov_b32 m0, s{sWQm0}"), I(f"s_add_u32 s{sWQw}, s{sWQw}, 1")]]
        for k in range(4):
            d = I(f"buffer_load_dwordx4 v{vWd[k]}, s[{SWQ}:{SWQ+3}], s{sWQoff} offen offset:{1024*k} lds")
            d.defs = {("wq", stage)}; out.append([d])
        out += [[I(f"s_add_u32 s{sWQoff}, s{sWQoff}, {32*8192}")],
                [I(f"s_cmp_eq_u32 s{sWQw}, 3"),
                 I(f"s_cselect_b32 s{sT0}, s{sKm32}, s{sK16}"),
                 I(f"s_cselect_b32 s{sWQw}, 0, s{sWQw}")],
                [I(f"s_add_u32 s{sWQm0}, s{sWQm0}, s{sT0}")]]
        return out
    def dma_x(stage, dyn):
        out = []
        for i in range(7):
            if i % 4 == 0:
                if dyn: out.append([I(f"s_add_u32 m0, s{sXm0}, {4096*(i//4)}")])
                else: out.append([I(f"s_add_u32 m0, s{sXm0}, {XB[stage & 1] + 4096*(i//4)}")])
            d = I(f"buffer_load_dwordx4 v{vXd[i&1]}, s[{SX}:{SX+3}], s{sT1} offen offset:{1024*(i%4)} lds")
            d.defs = {("x", stage)}
            out.append([I(f"s_add_u32 s{sT1}, s{sXoff}, {i*9216 - 1024*(i%4)}"), d])
        out.append([I(f"s_add_u32 s{sXoff}, s{sXoff}, 128")])
        if dyn: out.append([I(f"s_xor_b32 s{sXm0}, s{sXm0}, s{sXrd}")])
        return out
    def dma_kv(stage):
        out = []
        for half in range(2):
            out.append([I(f"s_add_u32 m0, s{sKVm0}, {4352*half}"),
                        I(f"s_add_u32 s{sKVw}, s{sKVw}, 1") if half == 0 else I(f"s_add_u32 s{sKVoff}, s{sKVoff}, 4096")])
            for k in range(4):
                d = I(f"buffer_load_dwordx4 v{vKVd[k]}, s[{SKV}:{SKV+3}], s{sKVoff} offen offset:{1088*k}{kvf} lds")
                d.defs = {("kv", stage)}; out.append([d])
        out += [[I(f"s_and_b32 s{sKVw}, s{sKVw}, 3"), I(f"s_cselect_b32 s{sT0}, s{sKKVS}, s{sKm3KVS}")],
                [I(f"s_add_u32 s{sKVoff}, s{sKVoff}, 4096"), I(f"s_add_u32 s{sKVm0}, s{sKVm0}, s{sT0}")]]
        return out

    for gl in (dma_wq(0), dma_x(0, False), dma_wq(1), dma_x(1, False), dma_wq(2)): P.ext(flat(gl))
    P(f"""
s_cmp_eq_u32 s{sHH}, 0
s_cselect_b64 s[6:7], s[6:7], s[8:9]
s_lshl_b32 s{sT0}, s{sBP}, 1
s_add_u32 s{sT0}, s{sT0}, s{sBL}
s_lshl_b32 s{sT1}, s{sT0}, 4
s_add_u32 s{sT1}, s{sT1}, s{sKVH}
s_lshl_b32 s{sT1}, s{sT1}, 17
s_add_u32 s{SKV}, s6, s{sT1}
s_addc_u32 s{SKV+1}, s7, 0
s_sub_u32 s{SKV}, s{SKV}, 192
s_subb_u32 s{SKV+1}, s{SKV+1}, 0
s_mov_b32 s{SKV+2}, {131072+192}
s_mov_b32 s{SKV+3}, 0x00020000
s_lshl_b32 s{sT1}, s{sBLK}, 4
s_add_u32 s{sT0}, s{sT0}, s{sT1}
s_mul_i32 s{sT0}, s{sT0}, {7*TS}
s_lshl_b32 s{sT1}, s{sKVH}, 1
s_add_u32 s{sT1}, s{sT1}, s{sHH}
s_lshl_b32 s{sT1}, s{sT1}, 12
s_add_u32 s{sT0}, s{sT0}, s{sT1}
s_add_u32 s{SO}, s20, s{sT0}
s_addc_u32 s{SO+1}, s21, 0
s_mov_b32 s{SO+2}, {6*TS+4096}
s_mov_b32 s{SO+3}, 0x00020000
v_lshrrev_b32 v10, 4, v{vL}
v_and_b32 v11, 1, v10
v_lshlrev_b32 v11, 1, v11
v_lshrrev_b32 v12, 1, v10
v_lshl_or_b32 v11, v12, 3, v11
s_cmp_eq_u32 s{sHH}, 0
s_cselect_b64 vcc, -1, 0
v_cndmask_b32 v11, v11, v10, vcc
v_and_b32 v12, 15, v{vL}
v_xor_b32 v11, v11, v12
v_lshlrev_b32 v11, 4, v11
v_lshl_add_u32 v11, v10, 8, v11
v_add_u32 v{vKVd[0]}, 192, v11
v_add_u32 v{vKVd[1]}, 128, v11
v_add_u32 v{vKVd[2]}, 64, v11
v_mov_b32 v{vKVd[3]}, v11
""")
    P.ext(flat(dma_kv(0)))
    P(f"""
s_add_u32 s{sT0}, s{sXm0}, {XB[1]}
s_add_u32 s{sXm0}, s{sXm0}, {XB[0]}
s_xor_b32 s{sXrd}, s{sXm0}, s{sT0}
""")
    P(f"""
v_lshrrev_b32 v22, 4, v{vL}
v_bfe_u32 v23, v{vL}, 2, 2
v_lshl_add_u32 v24, v22, 3, v23
v_lshlrev_b32 v24, 9, v24
v_and_b32 v25, 1, v22
v_lshl_or_b32 v25, v25, 2, v23
v_lshl_add_u32 v24, v25, 5, v24
v_and_b32 v25, 3, v{vL}
v_lshl_add_u32 v24, v25, 3, v24
s_lshl_b32 s{sT0}, s{sHH}, 8
s_add_u32 s{sT0}, s{sT0}, {WB}
v_add_u32 v{vWa[0]}, s{sT0}, v24
""")
    for mt in range(1, 8): P(f"v_xor_b32 v{vWa[mt]}, {32*mt}, v{vWa[0]}")
    P(f"""
v_and_b32 v23, 15, v{vL}
v_lshrrev_b32 v24, 1, v23
v_xor_b32 v24, v24, v22
v_lshlrev_b32 v24, 4, v24
v_lshl_add_u32 v24, v23, 7, v24
s_mul_i32 s{sT0}, s{sBL}, {112*128}
s_add_u32 s{sT0}, s{sT0}, {XB[0]}
v_add_u32 v{vXa[0]}, s{sT0}, v24
v_xor_b32 v{vXa[1]}, 64, v{vXa[0]}
s_mov_b32 s{sWrd}, 0
s_mov_b32 s{sC}, {f2u(CSCALE)}
s_mov_b32 s{sC+1}, {f2u(CSCALE)}
s_mov_b32 s{sTH}, {f2u(THRESH)}
s_mov_b32 s{sCNT}, 0
""")

    def a_reads(ks, mt):
        out = []
        for half in range(2):
            r = Af(mt) + 2 * half
            d = I(f"ds_read_b64_tr_b16 a[{r}:{r+1}], v{vWa[mt]} offset:{2048*half}")
            d.defs |= {("wqrd", ks)}; out.append(d)
        return out
    def b_read(ks, nt):
        r = Bf(ks & 1, nt)
        d = I(f"ds_read_b128 a[{r}:{r+3}], v{vXa[ks&1]} offset:{2048*nt}")
        d.defs |= {("xrd", ks >> 1)}
        return d
    def qbarrier(i):
        b = I("s_barrier")
        b.uses = {("wq", i), ("wqrd", i - 1)}
        if i % 2 == 0: b.uses |= {("x", i // 2), ("xrd", i // 2 - 1)}
        if i == 18: b.uses |= {("kv", 0)}
        return b
    def wq_addr_advance():
        pre = [[I(f"s_add_u32 s{sWrd}, s{sWrd}, 1")], [I(f"s_cmp_eq_u32 s{sWrd}, 3"),
               I(f"s_cselect_b32 s{sT2}, s{sKm32}, s{sK16}"), I(f"s_cselect_b32 s{sWrd}, 0, s{sWrd}")]]
        return pre, [I(f"v_add_u32 v{vWa[mt]}, s{sT2}, v{vWa[mt]}") for mt in range(8)]
    XD = XB[0] ^ XB[1]
    assert (XB[0] & XB[1]) == 0 or True

    P.ext([qbarrier(0)])
    P.ext(a_reads(0, 0)); P.ext([b_read(0, nt) for nt in range(7)]); P.ext(a_reads(0, 1))
    stamp(P, 1, STAMP)
    inst = [("pre", P.L)]

    def conv_group(g, nt):
        r = grp(g, nt)
        o = []
        for q in range(4): o.append(I(f"v_pk_mul_f32 v[{r+2*q}:{r+2*q+1}], v[{r+2*q}:{r+2*q+1}], s[{sC}:{sC+1}]"))
        for q in range(4): o.append(I(f"v_cvt_pk_bf16_f32 v{r+q}, v{r+2*q}, v{r+2*q+1}"))
        return o
    def swap_group(g, nt):
        r = grp(g, nt)
        return ([I(f"v_permlane32_swap_b32 v{r}, v{r+2}"), I(f"v_permlane32_swap_b32 v{r+1}, v{r+3}")],
                [I(f"v_permlane16_swap_b32 v{r}, v{r+2}"), I(f"v_permlane16_swap_b32 v{r+1}, v{r+3}")])

    def qstep(ks, first):
        mf = []
        for mt in range(8):
            for nt in range(7):
                c = R("v", acc(mt, nt))
                mf.append(m16(c, R("a", Af(mt)), R("a", Bf(ks & 1, nt)), "0" if first else c))
        S = Sched(mf, 8)
        for mt in range(6):
            S.stream(a_reads(ks, mt + 2), 7 * mt, 7 * mt + 3)
        nxt = ks + 1
        if nxt < 18:
            pre, adv = wq_addr_advance()
            S.stream(pre, 28, 36)
            S.stream(adv[:7], 37, 41)
            S.put(41, adv[7])
            g = S.put(42, qbarrier(nxt))
            return S, nxt
        return S, None

    sXdelta = 59
    inst[0][1].append(I(f"s_mov_b32 s{sXdelta}, {(XB[1]-XB[0]) & 0xffffffff}"))

    def qstage(k, mode):
        out = []
        for ks in (2 * k, 2 * k + 1):
            S, nxt = qstep(ks, first=(ks == 0))
            if nxt is not None:
                if nxt % 2 == 0:
                    S.stream([I(f"v_add_u32 v{vXa[0]}, s{sXdelta}, v{vXa[0]}"), I(f"v_add_u32 v{vXa[1]}, s{sXdelta}, v{vXa[1]}"),
                              I(f"s_sub_u32 s{sXdelta}, 0, s{sXdelta}")], 20, 41)
                S.stream(a_reads(nxt, 0), 42, 45)
                S.stream([b_read(nxt, nt) for nt in range(7)], 43, 52)
                S.stream(a_reads(nxt, 1), 49, 53)
            qstage.pending.append((S, nxt))
            out.append(S)
        return out
    qstage.pending = []

    def dma_after(i):
        lst = []
        if i + 2 <= 17: lst += dma_wq(i + 2)
        if i % 2 == 0 and i // 2 + 1 <= 8: lst += dma_x(i // 2 + 1, True)
        if i == 16: lst += dma_kv(1)
        return lst


    for k in range(9):
        Ss = qstage(k, None)
        code = []
        key = "qloop" if 1 <= k <= 7 else f"q{k}"
        if k == 1: pass
        if key == "qloop": code.append(I(f"{name}_qloop:"))
        for S, ks in zip(Ss, (2 * k, 2 * k + 1)):
            if ks >= 1:
                items = dma_after(ks)
                S.stream(items, 1, 34)
            code += S.emit()
        if key == "qloop":
            code += [I(f"s_add_u32 s{sCNT}, s{sCNT}, 1"), I(f"s_cmp_lt_u32 s{sCNT}, 7"), I(f"s_cbranch_scc1 {name}_qloop")]
        inst.append((key, code))
        if verbose and k in (1, 8): print(f"k1 q-stage {k}: est cycles", sum(S.est(16) for S in Ss))

    C = Prog()
    C.ext([qbarrier(18)])
    C.ext(flat(dma_kv(2))); C.ext(flat(dma_kv(3)))
    stamp(C, 2, STAMP)
    C(f"""
v_and_b32 v14, 15, v{vL}
v_lshrrev_b32 v15, 4, v{vL}
v_lshrrev_b32 v16, 2, v14
v_and_b32 v17, 3, v14
v_mul_u32_u24 v18, 1088, v16
v_lshl_add_u32 v18, v17, 8, v18
v_xor_b32 v19, v15, v17
v_lshl_add_u32 v18, v19, 4, v18
s_mul_i32 s{sT0}, s{sBL}, {2*KVT}
v_add_u32 v{vKa}, s{sT0}, v18
""")
    C(f"""
v_mul_u32_u24 v18, 1088, v15
v_lshl_add_u32 v18, v16, 8, v18
v_lshl_add_u32 v18, v17, 3, v18
s_add_u32 s{sT0}, s{sT0}, {KVT}
v_add_u32 v18, s{sT0}, v18
v_and_b32 v19, 1, v16
v_lshrrev_b32 v14, 1, v16
v_lshl_or_b32 v19, v14, 2, v19
""")
    for u in range(4):
        pat = (u & 1) | ((u >> 1) << 2)
        C(f"v_xor_b32 v14, {pat}, v19\nv_lshl_add_u32 v{vVa[u]}, v14, 5, v18")
    C(f"s_mov_b32 s{sKd}, 0\ns_mov_b32 s{sVd}, 0\ns_mov_b32 s{sCNT}, 0")
    C("s_nop 4")
    groups = [(g, nt) for nt in range(7) for g in range(4)]
    prev = None
    for i, (g, nt) in enumerate(groups):
        C.ext(conv_group(g, nt))
        if i >= 1: C.ext(swap_group(*groups[i - 1])[0])
        if i >= 2: C.ext(swap_group(*groups[i - 2])[1])
    C("s_nop 1")
    C.ext(swap_group(*groups[-1])[0]); C.ext(swap_group(*groups[-2])[1]); C("s_nop 1"); C.ext(swap_group(*groups[-1])[1])
    C(f"v_mov_b32 v14, 0x3f803f80\nv_mov_b32 v15, 0")
    for i in range(4): C(f"v_accvgpr_write_b32 a{252+i}, v14")
    for i in range(32): C(f"v_accvgpr_write_b32 a{6*32+i}, v15")
    for i in range(4): C(f"v_accvgpr_write_b32 a{224+24+i}, v15")

    def k_read(j, sub, g):
        r = Kf[sub][g]
        d = I(f"ds_read_b128 v[{r}:{r+3}], v{vKa} offset:{64*g + 4352*sub}")
        d.defs |= {("krd", j)}
        return d
    def v_reads(j, dt):
        u = (dt & 1) | ((dt >> 2) << 1)
        out = []
        for half in range(2):
            r = Vf[dt] + 2 * half
            d = I(f"ds_read_b64_tr_b16 v[{r}:{r+1}], v{vVa[u]} offset:{64*((dt>>1)&1) + 4352*half}")
            d.defs |= {("vrd", j)}; out.append(d)
        return out
    def adv(sreg, vregs, st):
        return [[I(f"s_add_u32 s{sreg}, s{sreg}, 1")], [I(f"s_and_b32 s{sreg}, s{sreg}, 3"),
                I(f"s_cselect_b32 s{st}, s{sKKVS}, s{sKm3KVS}")]] + \
               [[I(f"v_add_u32 v{v}, s{st}, v{v}")] for v in vregs]
    def abarrier(j):
        b = I("s_barrier"); b.uses = {("kv", j + 1), ("krd", j), ("vrd", j)}
        return b
    def qk(t, zero):
        o = []
        for sub in range(2):
            d = R("v", Sb[sbuf(t)][sub])
            for g in range(4):
                c = d if g else ("0" if zero else R("v", Ci[t]))
                o.append(m16(d, R("v", Kf[sub][g]), Q(t, g), c))
        return o
    def pv(t, zero):
        o = [m16(O(t, d), R("v", Vf[d]), R("v", Pf), "0" if zero else O(t, d)) for d in range(8)]
        o.append(m16(Lr(t), ONES, R("v", Pf), "0" if zero else Lr(t)))
        return o
    def sregs(t): return [Sb[sbuf(t)][0] + i for i in range(4)] + [Sb[sbuf(t)][1] + i for i in range(4)]

    for sub in range(2):
        for g in range(4): C.ext([k_read(0, sub, g)])
    for dt in range(8): C.ext(v_reads(0, dt))
    C.ext(qk(0, True))
    stamp(C, 3, STAMP)
    inst.append(("conv", C.L))

    slow = Prog()
    def block(j, first):
        mf = []; base = []
        for s in range(7):
            base.append(len(mf))
            if not (first and s == 0): mf += pv((s - 1) % 7, first)
            mf += qk((s + 1) % 7, first and s < 6)
        base.append(len(mf))
        S = Sched(mf, 8)
        for t in range(7):
            b0 = base[t]; sr = sregs(t); n = base[t + 1] - b0
            if first:
                ops = [f"s_nop 4" if t == 0 else None,
                       f"v_max3_f32 v{vMX}, v{sr[0]}, v{sr[1]}, v{sr[2]}", f"s_nop 3",
                       f"v_max3_f32 v{vMX}, v{vMX}, v{sr[3]}, v{sr[4]}",
                       f"v_max3_f32 v{vMX}, v{vMX}, v{sr[5]}, v{sr[6]}",
                       f"v_max_f32 v{vMX}, v{vMX}, v{sr[7]}",
                       f"v_mov_b32 v{vT}, v{vMX}", "s_nop 1", f"v_permlane32_swap_b32 v{vT}, v{vMX}",
                       f"v_max_f32 v{vMX}, v{vT}, v{vMX}",
                       f"v_mov_b32 v{vT}, v{vMX}", "s_nop 1", f"v_permlane16_swap_b32 v{vT}, v{vMX}",
                       f"v_max_f32 v{vMX}, v{vT}, v{vMX}"]
                ops += [f"v_sub_f32 v{r}, v{r}, v{vMX}" for r in sr]
                ops += [f"v_exp_f32 v{r}, v{r}" for r in sr]
                ops += [f"v_sub_f32 v{Ci[t]+i}, 0, v{vMX}" for i in range(4)]
                ops = [o for o in ops if o]
                for i, o in enumerate(ops):
                    S.put(b0 + min(n - 2, (i * (n - 2)) // len(ops)), o)
                for q in range(4): S.put(b0 + n - 2, f"v_cvt_pk_bf16_f32 v{Pf+q}, v{sr[2*q]}, v{sr[2*q+1]}")
                S.put(b0 + n - 1, "s_nop 0")
            else:
                S.put(b0 + 0, f"v_exp_f32 v{Er[0]}, v{sr[0]}")
                S.put(b0 + 1, f"v_exp_f32 v{Er[1]}, v{sr[1]}")
                S.put(b0 + 2, f"v_exp_f32 v{Er[2]}, v{sr[2]}")
                S.put(b0 + 3, f"v_exp_f32 v{Er[3]}, v{sr[3]}")
                S.put(b0 + 4, f"v_max3_f32 v{vMX}, v{sr[0]}, v{sr[1]}, v{sr[2]}")
                S.put(b0 + 4, f"v_max3_f32 v{vT}, v{sr[4]}, v{sr[5]}, v{sr[6]}")
                S.put(b0 + 5, f"v_exp_f32 v{Er[4]}, v{sr[4]}")
                S.put(b0 + 6, f"v_max3_f32 v{vMX}, v{vMX}, v{sr[3]}, v{sr[7]}")
                S.put(b0 + 7, f"v_exp_f32 v{Er[5]}, v{sr[5]}")
                S.put(b0 + 8, f"v_max_f32 v{vMX}, v{vMX}, v{vT}")
                S.put(b0 + 9, f"v_exp_f32 v{Er[6]}, v{sr[6]}")
                S.put(b0 + 10, f"v_cmp_lt_f32 vcc, s{sTH}, v{vMX}")
                S.put(b0 + 11, f"v_exp_f32 v{Er[7]}, v{sr[7]}")
                S.put(b0 + BRG, f"s_cbranch_vccnz {name}_slow{t}")
                S.put(b0 + BRG, f"{name}_back{t}:")
                S.put(b0 + 14, f"v_cvt_pk_bf16_f32 v{Pf}, v{Er[0]}, v{Er[1]}\nv_cvt_pk_bf16_f32 v{Pf+1}, v{Er[2]}, v{Er[3]}")
                S.put(b0 + 15, f"v_cvt_pk_bf16_f32 v{Pf+2}, v{Er[4]}, v{Er[5]}\nv_cvt_pk_bf16_f32 v{Pf+3}, v{Er[6]}, v{Er[7]}")
        if not first:
            lo = 0
            for dt in range(8):
                for d in v_reads(j, dt):
                    lo = S.place(d, max(lo, dt), 17 + dt - 6)
        gb = base[2] + (1 if not first else 1)
        S.put(gb, abarrier(j))
        S.stream(dma_kv(j + 4), gb + 1, base[5])
        S.stream(adv(sVd, vVa, sT3), base[2], base[6])
        S.stream(adv(sKd, [vKa], sT4), base[3], base[5] + 8)
        lo = base[5] + 9
        for sub in range(2):
            for g in range(4):
                i = 4 * sub + g
                lo = S.place(k_read(j + 1, sub, g), max(lo, base[5] + 9 + i), base[6] + 9 + i - 6)
        return S

    S0 = block(0, True)
    inst.append(("blk0", S0.emit()))
    for j in range(1, 16):
        S = block(j, False)
        code = [I(f"{name}_aloop:")] + S.emit() + [I(f"s_add_u32 s{sCNT}, s{sCNT}, 1"), I(f"s_cmp_lt_u32 s{sCNT}, 15"),
                                                   I(f"s_cbranch_scc1 {name}_aloop")]
        inst.append(("aloop", code))
        if verbose and j == 1: print("k1 attention block est cycles", S.est(16), "ideal", 16 * len(S.m))

    E = Prog()
    E.ext(pv(6, False))
    stamp(E, 4, STAMP)
    E(f"v_lshlrev_b32 v2, 4, v{vL}")
    E("s_nop 7")
    tmp = 32
    for t in range(7):
        inv = 16 + 2 * (t & 1)
        E(f"v_accvgpr_read_b32 v{inv}, a{224+4*t}\ns_mov_b32 s{sT0}, {t*TS}\nv_rcp_f32 v{inv}, v{inv}")
        for g in range(4):
            r = tmp + 16 * ((t * 4 + g) % 8)
            for i in range(8): E(f"v_accvgpr_read_b32 v{r+i}, a{(t*8+2*g)*4+i}")
            for q in range(4): E(f"v_pk_mul_f32 v[{r+2*q}:{r+2*q+1}], v[{r+2*q}:{r+2*q+1}], v[{inv}:{inv+1}] op_sel_hi:[1,0]")
            for q in range(4): E(f"v_cvt_pk_bf16_f32 v{r+8+q}, v{r+2*q}, v{r+2*q+1}")
            E(f"buffer_store_dwordx4 v[{r+8}:{r+11}], v2, s[{SO}:{SO+3}], s{sT0} offen offset:{1024*g}")
    if STAMP:
        stamp(E, 5, True)
        stamp_store(E, 6, sW, 20, (0, 0))
    E(f"{name}_done:\ns_endpgm")
    inst.append(("end", E.L))

    for t in range(7):
        sr = sregs(t)
        slow(f"""{name}_slow{t}:
v_mov_b32 v{vT}, v{vMX}
s_nop 1
v_permlane32_swap_b32 v{vT}, v{vMX}
v_max_f32 v{vMX}, v{vT}, v{vMX}
v_mov_b32 v{vT}, v{vMX}
s_nop 1
v_permlane16_swap_b32 v{vT}, v{vMX}
v_max_f32 v{vMX}, v{vT}, v{vMX}
v_max_f32 v{vMX}, 0, v{vMX}
v_exp_f32 v{vF}, -v{vMX}
""")
        for r in sr: slow(f"v_sub_f32 v{r}, v{r}, v{vMX}")
        for i in range(8): slow(f"v_exp_f32 v{Er[i]}, v{sr[i]}")
        for i in range(4): slow(f"v_sub_f32 v{Ci[t]+i}, v{Ci[t]+i}, v{vMX}")
        regs = [t * 32 + i for i in range(32)] + [224 + 4 * t + i for i in range(4)]
        for a in regs:
            slow(f"v_accvgpr_read_b32 v{vT}, a{a}\nv_mul_f32 v{vT}, v{vT}, v{vF}\nv_accvgpr_write_b32 a{a}, v{vT}")
        slow(f"s_nop 1\ns_branch {name}_back{t}")

    EXP = os.environ.get("EXP", "").split(",")
    def keep(key, i):
        if key == "aloop":
            if "a_nodma" in EXP and i.kind == "dma": return False
            if "a_nobar" in EXP and i.kind == "barrier": return False
            if "a_nods" in EXP and i.kind == "dsr": return False
            if "a_noexp" in EXP and i.op == "v_exp_f32": return False
            if "a_nomax" in EXP and (i.op.startswith("v_max") or i.op.startswith("v_cmp") or i.op == "s_cbranch_vccnz"): return False
            if "a_nobr" in EXP and (i.op == "s_cbranch_vccnz"): return False
            if "a_nocvt" in EXP and i.op.startswith("v_cvt"): return False
        if key == "qloop":
            if "q_nodma" in EXP and i.kind == "dma": return False
            if "q_nobar" in EXP and i.kind == "barrier": return False
            if "q_nods" in EXP and i.kind == "dsr": return False
        return True
    inst = [(k_, [i for i in c_ if keep(k_, i)]) for k_, c_ in inst]
    out, full, nfix = resolve_all(inst)
    if verbose: print("k1 nops inserted:", nfix)
    msgs = check_hazards(full, name) + check_hazards(slow.L, name + "_slow")
    seen = set()
    for m_ in msgs:
        key = m_.split("]")[1][:60] + m_.split("->")[-1][-50:]
        if key not in seen: print(m_); seen.add(key)
    order = []
    for key, _ in inst:
        if key not in order: order.append(key)
    text = "\n".join(str(i) for key in order for i in out[key]) + "\n" + slow.text()
    launch = f"; @launch kernel={name} grid=(256,1,1) block=(256,1,1) lds=163840"
    return launch, text, kd(name, 512, 256, 102)

def gen_k2(name="oproj_kernel", NS=4, STAMP=False, verbose=True):
    for Lp in range(126): assert (Lp * 57) >> 9 == Lp // 9
    KS = 4
    PB = KS * NS
    ACC = 16
    AF = 48
    BF = 80
    NV = BF + 8 * PB
    vLane16 = 2; vA = [3, 4, 5, 6]; vDma = [7, 8, 9, 10]; vOut = 11
    P = Prog()
    P(f"""
.globl {name}
.p2align 8
.type {name},@function
{name}:
s_cmp_ge_u32 s2, 256
s_cbranch_scc1 {name}_done
s_load_dwordx2 s[4:5], s[0:1], 32
s_load_dwordx2 s[6:7], s[0:1], 72
s_load_dwordx2 s[8:9], s[0:1], 80
s_load_dwordx2 s[10:11], s[0:1], 96
""")
    if STAMP: P("s_memtime s[80:81]\ns_memrealtime s[98:99]")
    P(f"""
s_and_b32 s20, s2, 7
s_lshr_b32 s21, s2, 3
s_and_b32 s22, s20, 1
s_mul_i32 s23, s22, 31
s_cmp_eq_u32 s23, 31
s_cselect_b32 s23, s21, 0
s_cmp_eq_u32 s23, 31
s_cbranch_scc1 {name}_done
s_mul_i32 s22, s20, 63
s_add_u32 s22, s22, 1
s_lshr_b32 s22, s22, 1
s_add_u32 s22, s22, s21
s_cmp_ge_u32 s22, 126
s_cselect_b32 s24, 1, 0
s_mul_i32 s25, s24, 126
s_sub_u32 s22, s22, s25
s_mul_i32 s26, s22, 57
s_lshr_b32 s26, s26, 9
s_mul_i32 s27, s26, 9
s_sub_u32 s27, s22, s27
v_and_b32 v1, 63, v0
v_lshrrev_b32 v12, 6, v0
v_lshlrev_b32 v{vLane16}, 4, v1
v_readfirstlane_b32 s28, v12
""")
    P(f"""
s_lshl_b32 s29, s26, 3
s_lshl_b32 s30, s28, 1
s_add_u32 s29, s29, s30
s_mul_i32 s30, s24, 112
s_add_u32 s30, s30, s29
s_mul_i32 s30, s30, {TS}
v_lshrrev_b32 v12, 3, v1
v_mul_u32_u24 v12, 1152, v12
v_bfe_u32 v13, v1, 4, 2
v_lshlrev_b32 v13, 1, v13
v_and_b32 v14, 7, v1
v_xor_b32 v13, v13, v14
v_lshl_add_u32 v{vDma[0]}, v13, 4, v12
v_add_u32 v{vDma[1]}, 8192, v{vDma[0]}
v_add_u32 v{vDma[2]}, 16384, v{vDma[0]}
v_add_u32 v{vDma[3]}, 24576, v{vDma[0]}
s_mul_i32 s44, s28, 36864
s_lshl_b32 s46, s27, 7
s_add_u32 s44, s44, s46
s_lshl_b32 s45, s28, 12
s_mov_b32 s47, 0
s_mov_b32 s48, {TS}
s_waitcnt lgkmcnt(0)
s_cmp_eq_u32 s24, 0
s_cselect_b32 s32, s4, s6
s_cselect_b32 s33, s5, s7
s_mov_b32 s34, 4718592
s_mov_b32 s35, 0x00020000
s_add_u32 s36, s10, s30
s_addc_u32 s37, s11, 0
s_mov_b32 s38, 131072
s_mov_b32 s39, 0x00020000
s_add_u32 s56, s36, {TS}
s_addc_u32 s57, s37, 0
s_mov_b32 s58, 131072
s_mov_b32 s59, 0x00020000
s_mov_b32 s40, s8
s_mov_b32 s41, s9
s_mov_b32 s42, 4128768
s_mov_b32 s43, 0x00020000
""")
    def dma(stage):
        slot = stage % NS
        out = [I(f"s_add_u32 m0, s45, {slot*16384}"), I("s_nop 0")]
        for i in range(4):
            d = I(f"buffer_load_dwordx4 v{vDma[i]}, s[32:35], s44 offen offset:{1024*i} lds")
            d.defs = {("lds", stage)}
            out.append(d)
        out.append(I("s_add_u32 s44, s44, 147456"))
        return out
    def bload(g):
        out = []
        for nt in range(2):
            r = BF + 8 * (g % PB) + 4 * nt
            srd = "s[36:39]" if nt == 0 else "s[56:59]"
            out.append(I(f"buffer_load_dwordx4 v[{r}:{r+3}], v{vLane16}, {srd}, s47 offen offset:{1024*(g%4)}"))
        if g % 4 == 3: out.append(I("s_add_u32 s47, s47, 4096"))
        return out
    def areads(g, mt):
        stage = g // KS; slot = stage % NS; ks = g % KS
        r = AF + 16 * (g % 2) + 4 * mt
        out = []
        for half in range(2):
            d = I(f"ds_read_b64_tr_b16 v[{r+2*half}:{r+2*half+1}], v{vA[mt]} offset:{slot*16384 + ks*4096 + half*2048}")
            d.defs |= {("ldsrd", stage)}
            out.append(d)
        return out
    def barrier(stage):
        b = I("s_barrier"); b.uses = {("lds", stage), ("ldsrd", stage - 1)}
        return b
    for st in range(NS - 1):
        P.ext(dma(st))
        for g in range(KS * st, KS * st + KS): P.ext(bload(g))
    for g in range(KS * (NS - 1), PB): P.ext(bload(g))
    P(f"""
v_lshrrev_b32 v12, 2, v1
v_bfe_u32 v13, v12, 1, 2
v_lshlrev_b32 v12, 7, v12
v_lshl_add_u32 v12, v13, 5, v12
v_and_b32 v13, 3, v1
v_lshl_add_u32 v{vA[0]}, v13, 3, v12
v_xor_b32 v{vA[1]}, 32, v{vA[0]}
v_xor_b32 v{vA[2]}, 64, v{vA[0]}
v_xor_b32 v{vA[3]}, 96, v{vA[0]}
""")
    P(f"""
s_lshl_b32 s50, s29, 4
v_and_b32 v12, 15, v1
v_add_u32 v12, s50, v12
v_mul_u32_u24 v12, 2304, v12
v_lshrrev_b32 v13, 4, v1
v_lshlrev_b32 v13, 3, v13
s_mul_i32 s53, s24, 1152
s_lshl_b32 s54, s27, 7
s_add_u32 s53, s53, s54
v_add3_u32 v{vOut}, v12, v13, s53
s_mov_b32 s55, 0
""")
    for i in range(32): P(f"v_mov_b32 v{ACC+i}, 0")
    P.ext([barrier(0)])
    P.ext(dma(NS - 1))
    for mt in range(4): P.ext(areads(0, mt))
    stamp(P, 1, STAMP)
    inst = [("pre", P.L)]
    NIT = 128 // PB
    for it in range(NIT):
        code = [I(f"{name}_loop:")]
        for gl in range(PB):
            g = it * PB + gl
            mf = []
            for mt in range(4):
                for nt in range(2):
                    c = R("v", ACC + 8 * mt + 4 * nt)
                    mf.append(m16(c, R("v", AF + 16 * (g % 2) + 4 * mt), R("v", BF + 8 * (g % PB) + 4 * nt), c))
            S = Sched(mf, 8)
            gn = g + 1
            lo = 0
            if gn % KS == 0:
                S.put(1, barrier(gn // KS)); lo = 1
            for mt in range(4): lo = S.stream(areads(gn, mt), lo, 6)
            if gn % KS == 0: S.stream(dma(gn // KS + NS - 1), 5, 7)
            S.put(7, bload(g + PB))
            code += S.emit()
        code += [I("s_add_u32 s55, s55, 1"), I(f"s_cmp_lt_u32 s55, {NIT}"), I(f"s_cbranch_scc1 {name}_loop")]
        inst.append(("loop", code))
    E = Prog()
    E("s_nop 7")
    stamp(E, 2, STAMP)
    for mt in range(4):
        for nt in range(2):
            c = ACC + 8 * mt + 4 * nt
            t = AF + 4 * mt + 2 * nt
            E(f"v_cvt_pk_bf16_f32 v{t}, v{c}, v{c+1}\nv_cvt_pk_bf16_f32 v{t+1}, v{c+2}, v{c+3}")
            if nt == 0:
                E(f"buffer_store_dwordx2 v[{t}:{t+1}], v{vOut}, s[40:43], 0 offen offset:{32*mt}")
            else:
                E(f"s_mov_b32 s50, {16*2304}\nbuffer_store_dwordx2 v[{t}:{t+1}], v{vOut}, s[40:43], s50 offen offset:{32*mt}")
    if STAMP:
        E("s_waitcnt vmcnt(0)")
        stamp(E, 3, True)
        E("s_add_u32 s10, s10, 0x100000\ns_addc_u32 s11, s11, 0")
        stamp_store(E, 4, 28, 10, (512, 32))
    E(f"{name}_done:\ns_endpgm")
    inst.append(("end", E.L))
    out, full, nfix = resolve_all(inst)
    for m_ in check_hazards(full, name)[:10]: print(m_)
    text = "\n".join(str(i) for key in ("pre", "loop", "end") for i in out[key])
    launch = f"; @launch kernel={name} grid=(256,1,1) block=(256,1,1) lds={NS*16384}"
    return launch, text, kd(name, NV, ((NV + 3) // 4) * 4, 102)

def write(path, kernels, header=""):
    with open(path, "w") as f:
        f.write(header)
        for l, _, _ in kernels: f.write(l + "\n")
        f.write('.amdgcn_target "amdgcn-amd-amdhsa--gfx950"\n.text\n')
        for _, c, _ in kernels: f.write(c + "\n")
        f.write('.section .rodata,"a"\n')
        for _, _, k in kernels: f.write(".p2align 6\n" + k + "\n")

HEADER = """; Fused GQA block x2 (Q-proj + attention, then O-proj); generated by a hand-written generator script.
"""

if __name__ == "__main__":
    out = sys.argv[1] if len(sys.argv) > 1 else "full.s"
    st = bool(os.environ.get("STAMP"))
    kw = {}
    if "KVFLAG" in os.environ: kw["KVFLAG"] = os.environ["KVFLAG"]
    if "MAPPING" in os.environ: kw["MAPPING"] = int(os.environ["MAPPING"])
    write(out, [gen_k1(STAMP=st, **kw), gen_k2(STAMP=st)], HEADER)
```

```python
import os, sys, math, struct
from asmlib import *

TS = 131072
KVT = 8704
KVS = 4 * KVT
XB = [2 * KVS, KVS]
WB = 3 * KVS
CSCALE = math.log2(math.e) / math.sqrt(128.0)
THRESH = 8.0

def f2u(x): return struct.unpack("<I", struct.pack("<f", x))[0]

def kd(name, vgpr, acc, sgpr=96):
    return f""".amdhsa_kernel {name}
  .amdhsa_next_free_vgpr {vgpr}
  .amdhsa_next_free_sgpr {sgpr}
  .amdhsa_accum_offset {acc}
  .amdhsa_group_segment_fixed_size 0
  .amdhsa_kernarg_size 104
  .amdhsa_user_sgpr_count 2
  .amdhsa_user_sgpr_kernarg_segment_ptr 1
  .amdhsa_system_sgpr_workgroup_id_x 1
.end_amdhsa_kernel"""

def R(kind, base, n=4): return f"{kind}[{base}:{base+n-1}]"

def m16(d, a, b, c):
    return I(f"v_mfma_f32_16x16x32_bf16 {d}, {a}, {b}, {c}")

def stamp(P, idx, on):
    if on: P(f"s_memtime s[{80+2*idx}:{81+2*idx}]\ns_waitcnt lgkmcnt(0)")

def stamp_store(E, nst, swave, sws, dbgoff=None):
    E("s_waitcnt vmcnt(0)\ns_memrealtime s[76:77]\ns_waitcnt lgkmcnt(0)")
    DBG = os.environ.get("DBG")
    if DBG:
        wg = int(DBG)
        E(f"""s_load_dwordx2 s[72:73], s[0:1], 88
s_waitcnt lgkmcnt(0)
s_add_u32 s72, s72, {dbgoff[0]}
s_addc_u32 s73, s73, 0
s_mov_b32 s74, 64
s_mov_b32 s75, 0x00020000
s_xor_b32 s70, s2, {wg}
s_or_b32 s70, s70, s{swave}
s_lshl_b32 s70, s70, 8
s_add_u32 s70, s70, {dbgoff[1]}
v_mov_b32 v14, s70
v_mbcnt_lo_u32_b32 v15, -1, 0
v_mbcnt_hi_u32_b32 v15, -1, v15
v_cmp_eq_u32 vcc, 0, v15
s_and_saveexec_b64 s[78:79], vcc""")
        for i in range(1, nst):
            E(f"s_sub_u32 s71, s{80+2*i}, s80\nv_mov_b32 v10, s71\nbuffer_store_dword v10, v14, s[72:75], 0 offen offset:{4*(i+1)}\ns_nop 1")
        E(f"v_mov_b32 v10, s76\nbuffer_store_dword v10, v14, s[72:75], 0 offen offset:4\ns_nop 1")
        E(f"v_mov_b32 v10, s98\nbuffer_store_dword v10, v14, s[72:75], 0 offen offset:0\ns_nop 1")
        return
    E(f"""s_add_u32 s72, s{sws}, 0x4000000
s_addc_u32 s73, s{sws+1}, 0
s_mov_b32 s74, 0x100000
s_mov_b32 s75, 0x00020000
s_lshl_b32 s70, s2, 8
s_lshl_b32 s71, s{swave}, 6
s_add_u32 s70, s70, s71
v_mov_b32 v14, s70
v_mbcnt_lo_u32_b32 v15, -1, 0
v_mbcnt_hi_u32_b32 v15, -1, v15
v_cmp_eq_u32 vcc, 0, v15
s_and_saveexec_b64 s[78:79], vcc""")
    for i in range(1, nst):
        E(f"s_sub_u32 s71, s{80+2*i}, s80\nv_mov_b32 v10, s71\nbuffer_store_dword v10, v14, s[72:75], 0 offen offset:{4*i}\ns_nop 1")
    E(f"v_mov_b32 v10, s76\nbuffer_store_dword v10, v14, s[72:75], 0 offen offset:60\ns_nop 1")
    E(f"v_mov_b32 v10, s98\nbuffer_store_dword v10, v14, s[72:75], 0 offen offset:56\ns_nop 1")

def gen_k1(name="attn_kernel", STAMP=False, KVFLAG="nt", MAPPING=1, verbose=True):
    sW = 40
    sBLK, sKVH, sBP, sBL, sHH = 41, 42, 43, 44, 45
    sWQoff, sXoff, sKVoff = 46, 47, 48
    sWQm0, sXm0, sKVm0 = 49, 50, 51
    sT0, sT1, sT2 = 52, 53, 54
    sCNT = 55
    sWrd, sXrd = 56, 57
    sTH = 58
    sC = 60
    sKd, sVd = 62, 63
    sKVw = 64
    sWQw = 65
    sK16, sKm32, sKKVS, sKm3KVS = 66, 67, 68, 69
    sT3, sT4 = 70, 71
    SX, SWQ, SKV, SO = 24, 28, 32, 36
    vL = 1
    vKVd = [2, 3, 4, 5]
    vKa = 6; vVa = [7, 8, 9, 10]; vMX = 11; vT = 12; vF = 13
    vWa = list(range(6, 14)); vXa = [14, 15]; vWd = [16, 17, 18, 19]; vXd = [20, 21]
    ACC0 = 32
    def grp(g, nt): return ACC0 + (g * 7 + nt) * 8
    def acc(mt, nt): return grp(mt >> 1, nt) + 4 * (mt & 1)
    def Q(nt, g): return R("v", grp(g, nt))
    holes = [grp(g, nt) + 4 for g in range(4) for nt in range(7)] + [20, 24, 28]
    Kf = [[holes[4 * s + g] for g in range(4)] for s in range(2)]
    Vf = [holes[8 + d] for d in range(8)]
    Sb = [[holes[16 + 2 * b + s] for s in range(2)] for b in range(3)]
    Ci = [holes[22 + t] for t in range(7)]
    Pf = holes[29]
    Er = [holes[30] + i for i in range(4)] + [14, 15, 16, 17]
    BRG = int(os.environ.get('BRG', 13))
    sbuf = lambda t: 2 if t == 6 else (t & 1)
    def O(t, d): return R("a", (t * 8 + d) * 4)
    def Lr(t): return R("a", 224 + 4 * t)
    ONES = R("a", 252)
    def Af(i): return 4 * (i % 4)
    def Bf(par, nt): return 16 + (par * 7 + nt) * 4

    kvf = (" " + KVFLAG) if KVFLAG else ""

    P = Prog()
    P(f"""
.globl {name}
.p2align 8
.type {name},@function
{name}:
s_cmp_ge_u32 s2, 256
s_cbranch_scc1 {name}_done
s_load_dwordx8 s[4:11], s[0:1], 0
s_load_dwordx8 s[12:19], s[0:1], 40
s_load_dwordx2 s[20:21], s[0:1], 96
""")
    if STAMP: P("s_memtime s[80:81]\ns_memrealtime s[98:99]")
    P(f"""
v_lshrrev_b32 v10, 6, v0
v_and_b32 v{vL}, 63, v0
s_and_b32 s{sT0}, s2, 7
v_readfirstlane_b32 s{sW}, v10
s_lshr_b32 s{sT1}, s2, 3
s_lshr_b32 s{sBLK}, s{sT0}, 2
s_and_b32 s{sT0}, s{sT0}, 3
""")
    if MAPPING == 1:
        P(f"""
s_lshl_b32 s{sKVH}, s{sT0}, 2
s_and_b32 s{sT2}, s{sT1}, 3
s_add_u32 s{sKVH}, s{sKVH}, s{sT2}
s_lshr_b32 s{sBP}, s{sT1}, 2
""")
    else:
        P(f"""
s_lshl_b32 s{sBP}, s{sT0}, 1
s_and_b32 s{sT2}, s{sT1}, 1
s_add_u32 s{sBP}, s{sBP}, s{sT2}
s_lshr_b32 s{sKVH}, s{sT1}, 1
""")
    P(f"""
s_lshr_b32 s{sBL}, s{sW}, 1
s_and_b32 s{sHH}, s{sW}, 1
""")
    P(f"""
v_lshrrev_b32 v10, 5, v{vL}
v_and_b32 v11, 31, v{vL}
s_lshl_b32 s{sT0}, s{sHH}, 3
v_lshlrev_b32 v12, 1, v10
v_or_b32 v12, s{sT0}, v12
v_xor_b32 v12, v12, v11
v_lshlrev_b32 v13, 13, v10
v_lshl_add_u32 v{vWd[0]}, v12, 4, v13
v_add_u32 v{vWd[2]}, {4*8192-2048}, v{vWd[0]}
v_xor_b32 v12, 4, v12
v_lshl_add_u32 v{vWd[1]}, v12, 4, v13
v_add_u32 v{vWd[1]}, {2*8192-1024}, v{vWd[1]}
v_add_u32 v{vWd[3]}, {4*8192-2048}, v{vWd[1]}
""")
    P(f"""
v_lshrrev_b32 v10, 3, v{vL}
v_mul_u32_u24 v10, 1152, v10
v_lshrrev_b32 v11, 4, v{vL}
v_and_b32 v12, 7, v{vL}
v_xor_b32 v11, v11, v12
s_lshl_b32 s{sT0}, s{sHH}, 2
v_xor_b32 v11, s{sT0}, v11
v_lshl_add_u32 v{vXd[0]}, v11, 4, v10
v_xor_b32 v11, 4, v11
v_lshl_add_u32 v{vXd[1]}, v11, 4, v10
""")
    P(f"""
s_lshl_b32 s{sWQoff}, s{sW}, 16
s_lshl_b32 s{sT0}, s{sKVH}, 9
s_add_u32 s{sWQoff}, s{sWQoff}, s{sT0}
s_mul_i32 s{sXoff}, s{sW}, {56*1152}
s_lshl_b32 s{sWQm0}, s{sW}, 12
s_add_u32 s{sWQm0}, s{sWQm0}, {WB}
s_mul_i32 s{sXm0}, s{sW}, {7*1024}
s_mul_i32 s{sKVm0}, s{sW}, {KVT}
s_mov_b32 s{sKVoff}, 0
s_mov_b32 s{sK16}, 16384
s_mov_b32 s{sKm32}, {(-2*16384) & 0xffffffff}
s_mov_b32 s{sKKVS}, {KVS}
s_mov_b32 s{sKm3KVS}, {(-3*KVS) & 0xffffffff}
s_mov_b32 s{sWQw}, 0
s_mov_b32 s{sKVw}, 0
s_waitcnt lgkmcnt(0)
s_cmp_eq_u32 s{sBLK}, 0
s_cselect_b64 s[4:5], s[4:5], s[12:13]
s_cselect_b64 s[6:7], s[6:7], s[14:15]
s_cselect_b64 s[8:9], s[8:9], s[16:17]
s_cselect_b64 s[10:11], s[10:11], s[18:19]
s_mul_i32 s{sT0}, s{sBP}, 258048
s_add_u32 s{SX}, s4, s{sT0}
s_addc_u32 s{SX+1}, s5, 0
s_mov_b32 s{SX+2}, 258048
s_mov_b32 s{SX+3}, 0x00020000
s_mov_b32 s{SWQ}, s10
s_mov_b32 s{SWQ+1}, s11
s_mov_b32 s{SWQ+2}, 4718592
s_mov_b32 s{SWQ+3}, 0x00020000
""")

    def flat(groups): return [i for g in groups for i in g]
    def dma_wq(stage):
        out = [[I(f"s_mov_b32 m0, s{sWQm0}"), I(f"s_add_u32 s{sWQw}, s{sWQw}, 1")]]
        for k in range(4):
            d = I(f"buffer_load_dwordx4 v{vWd[k]}, s[{SWQ}:{SWQ+3}], s{sWQoff} offen offset:{1024*k} lds")
            d.defs = {("wq", stage)}; out.append([d])
        out += [[I(f"s_add_u32 s{sWQoff}, s{sWQoff}, {32*8192}")],
                [I(f"s_cmp_eq_u32 s{sWQw}, 3"),
                 I(f"s_cselect_b32 s{sT0}, s{sKm32}, s{sK16}"),
                 I(f"s_cselect_b32 s{sWQw}, 0, s{sWQw}")],
                [I(f"s_add_u32 s{sWQm0}, s{sWQm0}, s{sT0}")]]
        return out
    def dma_x(stage, dyn):
        out = []
        for i in range(7):
            if i % 4 == 0:
                if dyn: out.append([I(f"s_add_u32 m0, s{sXm0}, {4096*(i//4)}")])
                else: out.append([I(f"s_add_u32 m0, s{sXm0}, {XB[stage & 1] + 4096*(i//4)}")])
            d = I(f"buffer_load_dwordx4 v{vXd[i&1]}, s[{SX}:{SX+3}], s{sT1} offen offset:{1024*(i%4)} lds")
            d.defs = {("x", stage)}
            out.append([I(f"s_add_u32 s{sT1}, s{sXoff}, {i*9216 - 1024*(i%4)}"), d])
        out.append([I(f"s_add_u32 s{sXoff}, s{sXoff}, 128")])
        if dyn: out.append([I(f"s_xor_b32 s{sXm0}, s{sXm0}, s{sXrd}")])
        return out
    def dma_kv(stage):
        out = []
        for half in range(2):
            out.append([I(f"s_add_u32 m0, s{sKVm0}, {4352*half}"),
                        I(f"s_add_u32 s{sKVw}, s{sKVw}, 1") if half == 0 else I(f"s_add_u32 s{sKVoff}, s{sKVoff}, 4096")])
            for k in range(4):
                d = I(f"buffer_load_dwordx4 v{vKVd[k]}, s[{SKV}:{SKV+3}], s{sKVoff} offen offset:{1088*k}{kvf} lds")
                d.defs = {("kv", stage)}; out.append([d])
        out += [[I(f"s_and_b32 s{sKVw}, s{sKVw}, 3"), I(f"s_cselect_b32 s{sT0}, s{sKKVS}, s{sKm3KVS}")],
                [I(f"s_add_u32 s{sKVoff}, s{sKVoff}, 4096"), I(f"s_add_u32 s{sKVm0}, s{sKVm0}, s{sT0}")]]
        return out

    for gl in (dma_wq(0), dma_x(0, False), dma_wq(1), dma_x(1, False), dma_wq(2)): P.ext(flat(gl))
    P(f"""
s_cmp_eq_u32 s{sHH}, 0
s_cselect_b64 s[6:7], s[6:7], s[8:9]
s_lshl_b32 s{sT0}, s{sBP}, 1
s_add_u32 s{sT0}, s{sT0}, s{sBL}
s_lshl_b32 s{sT1}, s{sT0}, 4
s_add_u32 s{sT1}, s{sT1}, s{sKVH}
s_lshl_b32 s{sT1}, s{sT1}, 17
s_add_u32 s{SKV}, s6, s{sT1}
s_addc_u32 s{SKV+1}, s7, 0
s_sub_u32 s{SKV}, s{SKV}, 192
s_subb_u32 s{SKV+1}, s{SKV+1}, 0
s_mov_b32 s{SKV+2}, {131072+192}
s_mov_b32 s{SKV+3}, 0x00020000
s_lshl_b32 s{sT1}, s{sBLK}, 4
s_add_u32 s{sT0}, s{sT0}, s{sT1}
s_mul_i32 s{sT0}, s{sT0}, {7*TS}
s_lshl_b32 s{sT1}, s{sKVH}, 1
s_add_u32 s{sT1}, s{sT1}, s{sHH}
s_lshl_b32 s{sT1}, s{sT1}, 12
s_add_u32 s{sT0}, s{sT0}, s{sT1}
s_add_u32 s{SO}, s20, s{sT0}
s_addc_u32 s{SO+1}, s21, 0
s_mov_b32 s{SO+2}, {6*TS+4096}
s_mov_b32 s{SO+3}, 0x00020000
v_lshrrev_b32 v10, 4, v{vL}
v_and_b32 v11, 1, v10
v_lshlrev_b32 v11, 1, v11
v_lshrrev_b32 v12, 1, v10
v_lshl_or_b32 v11, v12, 3, v11
s_cmp_eq_u32 s{sHH}, 0
s_cselect_b64 vcc, -1, 0
v_cndmask_b32 v11, v11, v10, vcc
v_and_b32 v12, 15, v{vL}
v_xor_b32 v11, v11, v12
v_lshlrev_b32 v11, 4, v11
v_lshl_add_u32 v11, v10, 8, v11
v_add_u32 v{vKVd[0]}, 192, v11
v_add_u32 v{vKVd[1]}, 128, v11
v_add_u32 v{vKVd[2]}, 64, v11
v_mov_b32 v{vKVd[3]}, v11
""")
    P.ext(flat(dma_kv(0)))
    P(f"""
s_add_u32 s{sT0}, s{sXm0}, {XB[1]}
s_add_u32 s{sXm0}, s{sXm0}, {XB[0]}
s_xor_b32 s{sXrd}, s{sXm0}, s{sT0}
""")
    P(f"""
v_lshrrev_b32 v22, 4, v{vL}
v_bfe_u32 v23, v{vL}, 2, 2
v_lshl_add_u32 v24, v22, 3, v23
v_lshlrev_b32 v24, 9, v24
v_and_b32 v25, 1, v22
v_lshl_or_b32 v25, v25, 2, v23
v_lshl_add_u32 v24, v25, 5, v24
v_and_b32 v25, 3, v{vL}
v_lshl_add_u32 v24, v25, 3, v24
s_lshl_b32 s{sT0}, s{sHH}, 8
s_add_u32 s{sT0}, s{sT0}, {WB}
v_add_u32 v{vWa[0]}, s{sT0}, v24
""")
    for mt in range(1, 8): P(f"v_xor_b32 v{vWa[mt]}, {32*mt}, v{vWa[0]}")
    P(f"""
v_and_b32 v23, 15, v{vL}
v_lshrrev_b32 v24, 1, v23
v_xor_b32 v24, v24, v22
v_lshlrev_b32 v24, 4, v24
v_lshl_add_u32 v24, v23, 7, v24
s_mul_i32 s{sT0}, s{sBL}, {112*128}
s_add_u32 s{sT0}, s{sT0}, {XB[0]}
v_add_u32 v{vXa[0]}, s{sT0}, v24
v_xor_b32 v{vXa[1]}, 64, v{vXa[0]}
s_mov_b32 s{sWrd}, 0
s_mov_b32 s{sC}, {f2u(CSCALE)}
s_mov_b32 s{sC+1}, {f2u(CSCALE)}
s_mov_b32 s{sTH}, {f2u(THRESH)}
s_mov_b32 s{sCNT}, 0
""")

    def a_reads(ks, mt):
        out = []
        for half in range(2):
            r = Af(mt) + 2 * half
            d = I(f"ds_read_b64_tr_b16 a[{r}:{r+1}], v{vWa[mt]} offset:{2048*half}")
            d.defs |= {("wqrd", ks)}; out.append(d)
        return out
    def b_read(ks, nt):
        r = Bf(ks & 1, nt)
        d = I(f"ds_read_b128 a[{r}:{r+3}], v{vXa[ks&1]} offset:{2048*nt}")
        d.defs |= {("xrd", ks >> 1)}
        return d
    def qbarrier(i):
        b = I("s_barrier")
        b.uses = {("wq", i), ("wqrd", i - 1)}
        if i % 2 == 0: b.uses |= {("x", i // 2), ("xrd", i // 2 - 1)}
        if i == 18: b.uses |= {("kv", 0)}
        return b
    def wq_addr_advance():
        pre = [[I(f"s_add_u32 s{sWrd}, s{sWrd}, 1")], [I(f"s_cmp_eq_u32 s{sWrd}, 3"),
               I(f"s_cselect_b32 s{sT2}, s{sKm32}, s{sK16}"), I(f"s_cselect_b32 s{sWrd}, 0, s{sWrd}")]]
        return pre, [I(f"v_add_u32 v{vWa[mt]}, s{sT2}, v{vWa[mt]}") for mt in range(8)]
    XD = XB[0] ^ XB[1]
    assert (XB[0] & XB[1]) == 0 or True

    P.ext([qbarrier(0)])
    P.ext(a_reads(0, 0)); P.ext([b_read(0, nt) for nt in range(7)]); P.ext(a_reads(0, 1))
    stamp(P, 1, STAMP)
    inst = [("pre", P.L)]

    def conv_group(g, nt):
        r = grp(g, nt)
        o = []
        for q in range(4): o.append(I(f"v_pk_mul_f32 v[{r+2*q}:{r+2*q+1}], v[{r+2*q}:{r+2*q+1}], s[{sC}:{sC+1}]"))
        for q in range(4): o.append(I(f"v_cvt_pk_bf16_f32 v{r+q}, v{r+2*q}, v{r+2*q+1}"))
        return o
    def swap_group(g, nt):
        r = grp(g, nt)
        return ([I(f"v_permlane32_swap_b32 v{r}, v{r+2}"), I(f"v_permlane32_swap_b32 v{r+1}, v{r+3}")],
                [I(f"v_permlane16_swap_b32 v{r}, v{r+2}"), I(f"v_permlane16_swap_b32 v{r+1}, v{r+3}")])

    def qstep(ks, first):
        mf = []
        for mt in range(8):
            for nt in range(7):
                c = R("v", acc(mt, nt))
                mf.append(m16(c, R("a", Af(mt)), R("a", Bf(ks & 1, nt)), "0" if first else c))
        S = Sched(mf, 8)
        for mt in range(6):
            S.stream(a_reads(ks, mt + 2), 7 * mt, 7 * mt + 3)
        nxt = ks + 1
        if nxt < 18:
            pre, adv = wq_addr_advance()
            S.stream(pre, 28, 36)
            S.stream(adv[:7], 37, 41)
            S.put(41, adv[7])
            g = S.put(42, qbarrier(nxt))
            return S, nxt
        return S, None

    sXdelta = 59
    inst[0][1].append(I(f"s_mov_b32 s{sXdelta}, {(XB[1]-XB[0]) & 0xffffffff}"))

    def qstage(k, mode):
        out = []
        for ks in (2 * k, 2 * k + 1):
            S, nxt = qstep(ks, first=(ks == 0))
            if nxt is not None:
                if nxt % 2 == 0:
                    S.stream([I(f"v_add_u32 v{vXa[0]}, s{sXdelta}, v{vXa[0]}"), I(f"v_add_u32 v{vXa[1]}, s{sXdelta}, v{vXa[1]}"),
                              I(f"s_sub_u32 s{sXdelta}, 0, s{sXdelta}")], 20, 41)
                S.stream(a_reads(nxt, 0), 42, 45)
                S.stream([b_read(nxt, nt) for nt in range(7)], 43, 52)
                S.stream(a_reads(nxt, 1), 49, 53)
            qstage.pending.append((S, nxt))
            out.append(S)
        return out
    qstage.pending = []

    def dma_after(i):
        lst = []
        if i + 2 <= 17: lst += dma_wq(i + 2)
        if i % 2 == 0 and i // 2 + 1 <= 8: lst += dma_x(i // 2 + 1, True)
        if i == 16: lst += dma_kv(1)
        return lst


    for k in range(9):
        Ss = qstage(k, None)
        code = []
        key = "qloop" if 1 <= k <= 7 else f"q{k}"
        if k == 1: pass
        if key == "qloop": code.append(I(f"{name}_qloop:"))
        for S, ks in zip(Ss, (2 * k, 2 * k + 1)):
            if ks >= 1:
                items = dma_after(ks)
                S.stream(items, 1, 34)
            code += S.emit()
        if key == "qloop":
            code += [I(f"s_add_u32 s{sCNT}, s{sCNT}, 1"), I(f"s_cmp_lt_u32 s{sCNT}, 7"), I(f"s_cbranch_scc1 {name}_qloop")]
        inst.append((key, code))
        if verbose and k in (1, 8): print(f"k1 q-stage {k}: est cycles", sum(S.est(16) for S in Ss))

    C = Prog()
    C.ext([qbarrier(18)])
    C.ext(flat(dma_kv(2))); C.ext(flat(dma_kv(3)))
    stamp(C, 2, STAMP)
    C(f"""
v_and_b32 v14, 15, v{vL}
v_lshrrev_b32 v15, 4, v{vL}
v_lshrrev_b32 v16, 2, v14
v_and_b32 v17, 3, v14
v_mul_u32_u24 v18, 1088, v16
v_lshl_add_u32 v18, v17, 8, v18
v_xor_b32 v19, v15, v17
v_lshl_add_u32 v18, v19, 4, v18
s_mul_i32 s{sT0}, s{sBL}, {2*KVT}
v_add_u32 v{vKa}, s{sT0}, v18
""")
    C(f"""
v_mul_u32_u24 v18, 1088, v15
v_lshl_add_u32 v18, v16, 8, v18
v_lshl_add_u32 v18, v17, 3, v18
s_add_u32 s{sT0}, s{sT0}, {KVT}
v_add_u32 v18, s{sT0}, v18
v_and_b32 v19, 1, v16
v_lshrrev_b32 v14, 1, v16
v_lshl_or_b32 v19, v14, 2, v19
""")
    for u in range(4):
        pat = (u & 1) | ((u >> 1) << 2)
        C(f"v_xor_b32 v14, {pat}, v19\nv_lshl_add_u32 v{vVa[u]}, v14, 5, v18")
    C(f"s_mov_b32 s{sKd}, 0\ns_mov_b32 s{sVd}, 0\ns_mov_b32 s{sCNT}, 0")
    C("s_nop 4")
    groups = [(g, nt) for nt in range(7) for g in range(4)]
    prev = None
    for i, (g, nt) in enumerate(groups):
        C.ext(conv_group(g, nt))
        if i >= 1: C.ext(swap_group(*groups[i - 1])[0])
        if i >= 2: C.ext(swap_group(*groups[i - 2])[1])
    C("s_nop 1")
    C.ext(swap_group(*groups[-1])[0]); C.ext(swap_group(*groups[-2])[1]); C("s_nop 1"); C.ext(swap_group(*groups[-1])[1])
    C(f"v_mov_b32 v14, 0x3f803f80\nv_mov_b32 v15, 0")
    for i in range(4): C(f"v_accvgpr_write_b32 a{252+i}, v14")
    for i in range(32): C(f"v_accvgpr_write_b32 a{6*32+i}, v15")
    for i in range(4): C(f"v_accvgpr_write_b32 a{224+24+i}, v15")

    def k_read(j, sub, g):
        r = Kf[sub][g]
        d = I(f"ds_read_b128 v[{r}:{r+3}], v{vKa} offset:{64*g + 4352*sub}")
        d.defs |= {("krd", j)}
        return d
    def v_reads(j, dt):
        u = (dt & 1) | ((dt >> 2) << 1)
        out = []
        for half in range(2):
            r = Vf[dt] + 2 * half
            d = I(f"ds_read_b64_tr_b16 v[{r}:{r+1}], v{vVa[u]} offset:{64*((dt>>1)&1) + 4352*half}")
            d.defs |= {("vrd", j)}; out.append(d)
        return out
    def adv(sreg, vregs, st):
        return [[I(f"s_add_u32 s{sreg}, s{sreg}, 1")], [I(f"s_and_b32 s{sreg}, s{sreg}, 3"),
                I(f"s_cselect_b32 s{st}, s{sKKVS}, s{sKm3KVS}")]] + \
               [[I(f"v_add_u32 v{v}, s{st}, v{v}")] for v in vregs]
    def abarrier(j):
        b = I("s_barrier"); b.uses = {("kv", j + 1), ("krd", j), ("vrd", j)}
        return b
    def qk(t, zero):
        o = []
        for sub in range(2):
            d = R("v", Sb[sbuf(t)][sub])
            for g in range(4):
                c = d if g else ("0" if zero else R("v", Ci[t]))
                o.append(m16(d, R("v", Kf[sub][g]), Q(t, g), c))
        return o
    def pv(t, zero):
        o = [m16(O(t, d), R("v", Vf[d]), R("v", Pf), "0" if zero else O(t, d)) for d in range(8)]
        o.append(m16(Lr(t), ONES, R("v", Pf), "0" if zero else Lr(t)))
        return o
    def sregs(t): return [Sb[sbuf(t)][0] + i for i in range(4)] + [Sb[sbuf(t)][1] + i for i in range(4)]

    for sub in range(2):
        for g in range(4): C.ext([k_read(0, sub, g)])
    for dt in range(8): C.ext(v_reads(0, dt))
    C.ext(qk(0, True))
    stamp(C, 3, STAMP)
    inst.append(("conv", C.L))

    slow = Prog()
    def block(j, first):
        mf = []; base = []
        for s in range(7):
            base.append(len(mf))
            if not (first and s == 0): mf += pv((s - 1) % 7, first)
            mf += qk((s + 1) % 7, first and s < 6)
        base.append(len(mf))
        S = Sched(mf, 8)
        for t in range(7):
            b0 = base[t]; sr = sregs(t); n = base[t + 1] - b0
            if first:
                ops = [f"s_nop 4" if t == 0 else None,
                       f"v_max3_f32 v{vMX}, v{sr[0]}, v{sr[1]}, v{sr[2]}", f"s_nop 3",
                       f"v_max3_f32 v{vMX}, v{vMX}, v{sr[3]}, v{sr[4]}",
                       f"v_max3_f32 v{vMX}, v{vMX}, v{sr[5]}, v{sr[6]}",
                       f"v_max_f32 v{vMX}, v{vMX}, v{sr[7]}",
                       f"v_mov_b32 v{vT}, v{vMX}", "s_nop 1", f"v_permlane32_swap_b32 v{vT}, v{vMX}",
                       f"v_max_f32 v{vMX}, v{vT}, v{vMX}",
                       f"v_mov_b32 v{vT}, v{vMX}", "s_nop 1", f"v_permlane16_swap_b32 v{vT}, v{vMX}",
                       f"v_max_f32 v{vMX}, v{vT}, v{vMX}"]
                ops += [f"v_sub_f32 v{r}, v{r}, v{vMX}" for r in sr]
                ops += [f"v_exp_f32 v{r}, v{r}" for r in sr]
                ops += [f"v_sub_f32 v{Ci[t]+i}, 0, v{vMX}" for i in range(4)]
                ops = [o for o in ops if o]
                for i, o in enumerate(ops):
                    S.put(b0 + min(n - 2, (i * (n - 2)) // len(ops)), o)
                for q in range(4): S.put(b0 + n - 2, f"v_cvt_pk_bf16_f32 v{Pf+q}, v{sr[2*q]}, v{sr[2*q+1]}")
                S.put(b0 + n - 1, "s_nop 0")
            else:
                S.put(b0 + 0, f"v_exp_f32 v{Er[0]}, v{sr[0]}")
                S.put(b0 + 1, f"v_exp_f32 v{Er[1]}, v{sr[1]}")
                S.put(b0 + 2, f"v_exp_f32 v{Er[2]}, v{sr[2]}")
                S.put(b0 + 3, f"v_exp_f32 v{Er[3]}, v{sr[3]}")
                S.put(b0 + 4, f"v_max3_f32 v{vMX}, v{sr[0]}, v{sr[1]}, v{sr[2]}")
                S.put(b0 + 4, f"v_max3_f32 v{vT}, v{sr[4]}, v{sr[5]}, v{sr[6]}")
                S.put(b0 + 5, f"v_exp_f32 v{Er[4]}, v{sr[4]}")
                S.put(b0 + 6, f"v_max3_f32 v{vMX}, v{vMX}, v{sr[3]}, v{sr[7]}")
                S.put(b0 + 7, f"v_exp_f32 v{Er[5]}, v{sr[5]}")
                S.put(b0 + 8, f"v_max_f32 v{vMX}, v{vMX}, v{vT}")
                S.put(b0 + 9, f"v_exp_f32 v{Er[6]}, v{sr[6]}")
                S.put(b0 + 10, f"v_cmp_lt_f32 vcc, s{sTH}, v{vMX}")
                S.put(b0 + 11, f"v_exp_f32 v{Er[7]}, v{sr[7]}")
                S.put(b0 + BRG, f"s_cbranch_vccnz {name}_slow{t}")
                S.put(b0 + BRG, f"{name}_back{t}:")
                S.put(b0 + 14, f"v_cvt_pk_bf16_f32 v{Pf}, v{Er[0]}, v{Er[1]}\nv_cvt_pk_bf16_f32 v{Pf+1}, v{Er[2]}, v{Er[3]}")
                S.put(b0 + 15, f"v_cvt_pk_bf16_f32 v{Pf+2}, v{Er[4]}, v{Er[5]}\nv_cvt_pk_bf16_f32 v{Pf+3}, v{Er[6]}, v{Er[7]}")
        if not first:
            lo = 0
            for dt in range(8):
                for d in v_reads(j, dt):
                    lo = S.place(d, max(lo, dt), 17 + dt - 6)
        gb = base[2] + (1 if not first else 1)
        S.put(gb, abarrier(j))
        S.stream(dma_kv(j + 4), gb + 1, base[5])
        S.stream(adv(sVd, vVa, sT3), base[2], base[6])
        S.stream(adv(sKd, [vKa], sT4), base[3], base[5] + 8)
        lo = base[5] + 9
        for sub in range(2):
            for g in range(4):
                i = 4 * sub + g
                lo = S.place(k_read(j + 1, sub, g), max(lo, base[5] + 9 + i), base[6] + 9 + i - 6)
        return S

    S0 = block(0, True)
    inst.append(("blk0", S0.emit()))
    for j in range(1, 16):
        S = block(j, False)
        code = [I(f"{name}_aloop:")] + S.emit() + [I(f"s_add_u32 s{sCNT}, s{sCNT}, 1"), I(f"s_cmp_lt_u32 s{sCNT}, 15"),
                                                   I(f"s_cbranch_scc1 {name}_aloop")]
        inst.append(("aloop", code))
        if verbose and j == 1: print("k1 attention block est cycles", S.est(16), "ideal", 16 * len(S.m))

    E = Prog()
    E.ext(pv(6, False))
    stamp(E, 4, STAMP)
    E(f"v_lshlrev_b32 v2, 4, v{vL}")
    E("s_nop 7")
    tmp = 32
    for t in range(7):
        inv = 16 + 2 * (t & 1)
        E(f"v_accvgpr_read_b32 v{inv}, a{224+4*t}\ns_mov_b32 s{sT0}, {t*TS}\nv_rcp_f32 v{inv}, v{inv}")
        for g in range(4):
            r = tmp + 16 * ((t * 4 + g) % 8)
            for i in range(8): E(f"v_accvgpr_read_b32 v{r+i}, a{(t*8+2*g)*4+i}")
            for q in range(4): E(f"v_pk_mul_f32 v[{r+2*q}:{r+2*q+1}], v[{r+2*q}:{r+2*q+1}], v[{inv}:{inv+1}] op_sel_hi:[1,0]")
            for q in range(4): E(f"v_cvt_pk_bf16_f32 v{r+8+q}, v{r+2*q}, v{r+2*q+1}")
            E(f"buffer_store_dwordx4 v[{r+8}:{r+11}], v2, s[{SO}:{SO+3}], s{sT0} offen offset:{1024*g}")
    if STAMP:
        stamp(E, 5, True)
        stamp_store(E, 6, sW, 20, (512, 0))
    E(f"{name}_done:\ns_endpgm")
    inst.append(("end", E.L))

    for t in range(7):
        sr = sregs(t)
        slow(f"""{name}_slow{t}:
v_mov_b32 v{vT}, v{vMX}
s_nop 1
v_permlane32_swap_b32 v{vT}, v{vMX}
v_max_f32 v{vMX}, v{vT}, v{vMX}
v_mov_b32 v{vT}, v{vMX}
s_nop 1
v_permlane16_swap_b32 v{vT}, v{vMX}
v_max_f32 v{vMX}, v{vT}, v{vMX}
v_max_f32 v{vMX}, 0, v{vMX}
v_exp_f32 v{vF}, -v{vMX}
""")
        for r in sr: slow(f"v_sub_f32 v{r}, v{r}, v{vMX}")
        for i in range(8): slow(f"v_exp_f32 v{Er[i]}, v{sr[i]}")
        for i in range(4): slow(f"v_sub_f32 v{Ci[t]+i}, v{Ci[t]+i}, v{vMX}")
        regs = [t * 32 + i for i in range(32)] + [224 + 4 * t + i for i in range(4)]
        for a in regs:
            slow(f"v_accvgpr_read_b32 v{vT}, a{a}\nv_mul_f32 v{vT}, v{vT}, v{vF}\nv_accvgpr_write_b32 a{a}, v{vT}")
        slow(f"s_nop 1\ns_branch {name}_back{t}")

    EXP = os.environ.get("EXP", "").split(",")
    def keep(key, i):
        if key == "aloop":
            if "a_nodma" in EXP and i.kind == "dma": return False
            if "a_nobar" in EXP and i.kind == "barrier": return False
            if "a_nods" in EXP and i.kind == "dsr": return False
            if "a_noexp" in EXP and i.op == "v_exp_f32": return False
            if "a_nomax" in EXP and (i.op.startswith("v_max") or i.op.startswith("v_cmp") or i.op == "s_cbranch_vccnz"): return False
            if "a_nobr" in EXP and (i.op == "s_cbranch_vccnz"): return False
            if "a_nocvt" in EXP and i.op.startswith("v_cvt"): return False
        if key == "qloop":
            if "q_nodma" in EXP and i.kind == "dma": return False
            if "q_nobar" in EXP and i.kind == "barrier": return False
            if "q_nods" in EXP and i.kind == "dsr": return False
        return True
    inst = [(k_, [i for i in c_ if keep(k_, i)]) for k_, c_ in inst]
    out, full, nfix = resolve_all(inst)
    if verbose: print("k1 nops inserted:", nfix)
    msgs = check_hazards(full, name) + check_hazards(slow.L, name + "_slow")
    seen = set()
    for m_ in msgs:
        key = m_.split("]")[1][:60] + m_.split("->")[-1][-50:]
        if key not in seen: print(m_); seen.add(key)
    order = []
    for key, _ in inst:
        if key not in order: order.append(key)
    text = "\n".join(str(i) for key in order for i in out[key]) + "\n" + slow.text()
    launch = f"; @launch kernel={name} grid=(256,1,1) block=(256,1,1) lds=163840"
    return launch, text, kd(name, 512, 256, 102)

def gen_k2(name="oproj_kernel", NS=4, STAMP=False, verbose=True):
    for Lp in range(126): assert (Lp * 57) >> 9 == Lp // 9
    KS = 4
    PB = KS * NS
    ACC = 16
    AF = 48
    BF = 80
    NV = BF + 8 * PB
    vLane16 = 2; vA = [3, 4, 5, 6]; vDma = [7, 8, 9, 10]; vOut = 11
    P = Prog()
    P(f"""
.globl {name}
.p2align 8
.type {name},@function
{name}:
s_cmp_ge_u32 s2, 256
s_cbranch_scc1 {name}_done
s_load_dwordx2 s[4:5], s[0:1], 32
s_load_dwordx2 s[6:7], s[0:1], 72
s_load_dwordx2 s[8:9], s[0:1], 80
s_load_dwordx2 s[10:11], s[0:1], 96
""")
    if STAMP: P("s_memtime s[80:81]\ns_memrealtime s[98:99]")
    P(f"""
s_and_b32 s20, s2, 7
s_lshr_b32 s21, s2, 3
s_and_b32 s22, s20, 1
s_mul_i32 s23, s22, 31
s_cmp_eq_u32 s23, 31
s_cselect_b32 s23, s21, 0
s_cmp_eq_u32 s23, 31
s_cbranch_scc1 {name}_done
s_mul_i32 s22, s20, 63
s_add_u32 s22, s22, 1
s_lshr_b32 s22, s22, 1
s_add_u32 s22, s22, s21
s_cmp_ge_u32 s22, 126
s_cselect_b32 s24, 1, 0
s_mul_i32 s25, s24, 126
s_sub_u32 s22, s22, s25
s_mul_i32 s26, s22, 57
s_lshr_b32 s26, s26, 9
s_mul_i32 s27, s26, 9
s_sub_u32 s27, s22, s27
v_and_b32 v1, 63, v0
v_lshrrev_b32 v12, 6, v0
v_lshlrev_b32 v{vLane16}, 4, v1
v_readfirstlane_b32 s28, v12
""")
    P(f"""
s_lshl_b32 s29, s26, 3
s_lshl_b32 s30, s28, 1
s_add_u32 s29, s29, s30
s_mul_i32 s30, s24, 112
s_add_u32 s30, s30, s29
s_mul_i32 s30, s30, {TS}
v_lshrrev_b32 v12, 3, v1
v_mul_u32_u24 v12, 1152, v12
v_bfe_u32 v13, v1, 4, 2
v_lshlrev_b32 v13, 1, v13
v_and_b32 v14, 7, v1
v_xor_b32 v13, v13, v14
v_lshl_add_u32 v{vDma[0]}, v13, 4, v12
v_add_u32 v{vDma[1]}, 8192, v{vDma[0]}
v_add_u32 v{vDma[2]}, 16384, v{vDma[0]}
v_add_u32 v{vDma[3]}, 24576, v{vDma[0]}
s_mul_i32 s44, s28, 36864
s_lshl_b32 s46, s27, 7
s_add_u32 s44, s44, s46
s_lshl_b32 s45, s28, 12
s_mov_b32 s47, 0
s_mov_b32 s48, {TS}
s_waitcnt lgkmcnt(0)
s_cmp_eq_u32 s24, 0
s_cselect_b32 s32, s4, s6
s_cselect_b32 s33, s5, s7
s_mov_b32 s34, 4718592
s_mov_b32 s35, 0x00020000
s_add_u32 s36, s10, s30
s_addc_u32 s37, s11, 0
s_mov_b32 s38, 131072
s_mov_b32 s39, 0x00020000
s_add_u32 s56, s36, {TS}
s_addc_u32 s57, s37, 0
s_mov_b32 s58, 131072
s_mov_b32 s59, 0x00020000
s_mov_b32 s40, s8
s_mov_b32 s41, s9
s_mov_b32 s42, 4128768
s_mov_b32 s43, 0x00020000
""")
    def dma(stage):
        slot = stage % NS
        out = [I(f"s_add_u32 m0, s45, {slot*16384}"), I("s_nop 0")]
        for i in range(4):
            d = I(f"buffer_load_dwordx4 v{vDma[i]}, s[32:35], s44 offen offset:{1024*i} lds")
            d.defs = {("lds", stage)}
            out.append(d)
        out.append(I("s_add_u32 s44, s44, 147456"))
        return out
    def bload(g):
        out = []
        for nt in range(2):
            r = BF + 8 * (g % PB) + 4 * nt
            srd = "s[36:39]" if nt == 0 else "s[56:59]"
            out.append(I(f"buffer_load_dwordx4 v[{r}:{r+3}], v{vLane16}, {srd}, s47 offen offset:{1024*(g%4)}"))
        if g % 4 == 3: out.append(I("s_add_u32 s47, s47, 4096"))
        return out
    def areads(g, mt):
        stage = g // KS; slot = stage % NS; ks = g % KS
        r = AF + 16 * (g % 2) + 4 * mt
        out = []
        for half in range(2):
            d = I(f"ds_read_b64_tr_b16 v[{r+2*half}:{r+2*half+1}], v{vA[mt]} offset:{slot*16384 + ks*4096 + half*2048}")
            d.defs |= {("ldsrd", stage)}
            out.append(d)
        return out
    def barrier(stage):
        b = I("s_barrier"); b.uses = {("lds", stage), ("ldsrd", stage - 1)}
        return b
    for st in range(NS - 1):
        P.ext(dma(st))
        for g in range(KS * st, KS * st + KS): P.ext(bload(g))
    for g in range(KS * (NS - 1), PB): P.ext(bload(g))
    P(f"""
v_lshrrev_b32 v12, 2, v1
v_bfe_u32 v13, v12, 1, 2
v_lshlrev_b32 v12, 7, v12
v_lshl_add_u32 v12, v13, 5, v12
v_and_b32 v13, 3, v1
v_lshl_add_u32 v{vA[0]}, v13, 3, v12
v_xor_b32 v{vA[1]}, 32, v{vA[0]}
v_xor_b32 v{vA[2]}, 64, v{vA[0]}
v_xor_b32 v{vA[3]}, 96, v{vA[0]}
""")
    P(f"""
s_lshl_b32 s50, s29, 4
v_and_b32 v12, 15, v1
v_add_u32 v12, s50, v12
v_mul_u32_u24 v12, 2304, v12
v_lshrrev_b32 v13, 4, v1
v_lshlrev_b32 v13, 3, v13
s_mul_i32 s53, s24, 1152
s_lshl_b32 s54, s27, 7
s_add_u32 s53, s53, s54
v_add3_u32 v{vOut}, v12, v13, s53
s_mov_b32 s55, 0
""")
    for i in range(32): P(f"v_mov_b32 v{ACC+i}, 0")
    P.ext([barrier(0)])
    P.ext(dma(NS - 1))
    for mt in range(4): P.ext(areads(0, mt))
    stamp(P, 1, STAMP)
    inst = [("pre", P.L)]
    NIT = 128 // PB
    for it in range(NIT):
        code = [I(f"{name}_loop:")]
        for gl in range(PB):
            g = it * PB + gl
            mf = []
            for mt in range(4):
                for nt in range(2):
                    c = R("v", ACC + 8 * mt + 4 * nt)
                    mf.append(m16(c, R("v", AF + 16 * (g % 2) + 4 * mt), R("v", BF + 8 * (g % PB) + 4 * nt), c))
            S = Sched(mf, 8)
            gn = g + 1
            lo = 0
            if gn % KS == 0:
                S.put(1, barrier(gn // KS)); lo = 1
            for mt in range(4): lo = S.stream(areads(gn, mt), lo, 6)
            if gn % KS == 0: S.stream(dma(gn // KS + NS - 1), 5, 7)
            S.put(7, bload(g + PB))
            code += S.emit()
        code += [I("s_add_u32 s55, s55, 1"), I(f"s_cmp_lt_u32 s55, {NIT}"), I(f"s_cbranch_scc1 {name}_loop")]
        inst.append(("loop", code))
    E = Prog()
    E("s_nop 7")
    stamp(E, 2, STAMP)
    for mt in range(4):
        for nt in range(2):
            c = ACC + 8 * mt + 4 * nt
            t = AF + 4 * mt + 2 * nt
            E(f"v_cvt_pk_bf16_f32 v{t}, v{c}, v{c+1}\nv_cvt_pk_bf16_f32 v{t+1}, v{c+2}, v{c+3}")
            if nt == 0:
                E(f"buffer_store_dwordx2 v[{t}:{t+1}], v{vOut}, s[40:43], 0 offen offset:{32*mt}")
            else:
                E(f"s_mov_b32 s50, {16*2304}\nbuffer_store_dwordx2 v[{t}:{t+1}], v{vOut}, s[40:43], s50 offen offset:{32*mt}")
    if STAMP:
        E("s_waitcnt vmcnt(0)")
        stamp(E, 3, True)
        E("s_add_u32 s10, s10, 0x100000\ns_addc_u32 s11, s11, 0")
        stamp_store(E, 4, 28, 10, (0, 32))
    E(f"{name}_done:\ns_endpgm")
    inst.append(("end", E.L))
    out, full, nfix = resolve_all(inst)
    for m_ in check_hazards(full, name)[:10]: print(m_)
    text = "\n".join(str(i) for key in ("pre", "loop", "end") for i in out[key])
    launch = f"; @launch kernel={name} grid=(256,1,1) block=(256,1,1) lds={NS*16384}"
    return launch, text, kd(name, NV, ((NV + 3) // 4) * 4, 102)

def write(path, kernels, header=""):
    with open(path, "w") as f:
        f.write(header)
        for l, _, _ in kernels: f.write(l + "\n")
        f.write('.amdgcn_target "amdgcn-amd-amdhsa--gfx950"\n.text\n')
        for _, c, _ in kernels: f.write(c + "\n")
        f.write('.section .rodata,"a"\n')
        for _, _, k in kernels: f.write(".p2align 6\n" + k + "\n")

HEADER = """; Fused GQA block x2 (Q-proj + attention, then O-proj); generated by a hand-written generator script.
"""

if __name__ == "__main__":
    out = sys.argv[1] if len(sys.argv) > 1 else "full.s"
    st = bool(os.environ.get("STAMP"))
    kw = {}
    if "KVFLAG" in os.environ: kw["KVFLAG"] = os.environ["KVFLAG"]
    if "MAPPING" in os.environ: kw["MAPPING"] = int(os.environ["MAPPING"])
    write(out, [gen_k1(STAMP=st, **kw), gen_k2(STAMP=st)], HEADER)
```

```python
import re

REG_RE = re.compile(r'\b([vas])\[(\d+):(\d+)\]|\b([vas])(\d+)\b|\b(vcc|exec|m0|scc)\b')

def regs_of(text):
    out = []
    for m in REG_RE.finditer(text):
        if m.group(1):
            out += [(m.group(1), i) for i in range(int(m.group(2)), int(m.group(3)) + 1)]
        elif m.group(4):
            out.append((m.group(4), int(m.group(5))))
        else:
            out.append((m.group(6), 0))
    return out

TRANS = ("v_exp_f32", "v_log_f32", "v_rcp_f32", "v_rsq_f32", "v_sqrt_f32", "v_sin_f32", "v_cos_f32")

class I:
    __slots__ = ("text", "op", "defs", "uses", "kind", "srcc", "passes", "tag", "srcab")
    def __init__(self, text, tag=None):
        self.text = text.strip()
        self.tag = tag
        t = self.text.split(";")[0].strip()
        self.defs = set(); self.uses = set(); self.srcc = set(); self.srcab = set(); self.passes = 0
        if not t or t.endswith(":") or t.startswith("."):
            self.op = ""; self.kind = "label"; return
        parts = t.split(None, 1)
        op = parts[0]; self.op = op
        rest = parts[1] if len(parts) > 1 else ""
        ops = [o.strip() for o in rest.split(",")] if rest else []
        R = [regs_of(o) for o in ops]
        allr = lambda lst: set(r for x in lst for r in x)
        if op.startswith("v_mfma"):
            self.kind = "mfma"
            self.defs = set(R[0]); self.srcab = set(R[1]) | set(R[2]); self.srcc = set(R[3])
            self.uses = self.srcab | self.srcc
            self.passes = 8 if "32x32x16" in op else (4 if "16x16x32" in op else (2 if "4x4x4" in op else 16))
        elif op.startswith("ds_read") :
            self.kind = "dsr"; self.defs = set(R[0]); self.uses = allr(R[1:])
        elif op.startswith("ds_bpermute") or op.startswith("ds_permute") or op.startswith("ds_swizzle"):
            self.kind = "dsr"; self.defs = set(R[0]); self.uses = allr(R[1:])
        elif op.startswith("ds_write"):
            self.kind = "dsw"; self.uses = allr(R)
        elif op.startswith("buffer_load") or op.startswith("global_load"):
            if re.search(r'\blds\b', rest) or "_lds_" in op:
                self.kind = "dma"; self.uses = allr(R) | {("m0", 0)}
            else:
                self.kind = "vload"; self.defs = set(R[0]); self.uses = allr(R[1:])
        elif op.startswith("buffer_store") or op.startswith("global_store"):
            self.kind = "vstore"; self.uses = allr(R)
        elif op.startswith("buffer_atomic") or op.startswith("global_atomic"):
            self.kind = "vstore"; self.uses = allr(R)
        elif op.startswith("s_load") or op.startswith("s_memtime") or op.startswith("s_memrealtime"):
            self.kind = "smem"; self.defs = set(R[0]); self.uses = allr(R[1:])
        elif op == "s_waitcnt": self.kind = "wait"
        elif op == "s_barrier": self.kind = "barrier"
        elif op == "s_nop": self.kind = "nop"
        elif op.startswith("s_cbranch") or op == "s_branch" or op == "s_endpgm" or op == "s_setprio" or op == "s_sleep":
            self.kind = "branch" if "branch" in op else "misc"
            if "vcc" in op: self.uses = {("vcc", 0)}
            if "scc" in op: self.uses = {("scc", 0)}
        elif op.startswith("s_cmp"):
            self.kind = "salu"; self.uses = allr(R); self.defs = {("scc", 0)}
        elif op.startswith("s_"):
            self.kind = "salu"; self.defs = set(R[0]) if R else set(); self.uses = allr(R[1:])
            if "saveexec" in op: self.defs |= {("exec", 0)}
            if op.startswith("s_cselect") or op.startswith("s_addc"): self.uses |= {("scc", 0)}
            if not op.startswith("s_mov") and not op.startswith("s_cselect"): self.defs |= {("scc", 0)}
        elif op.startswith("v_"):
            self.kind = "valu"
            if op.startswith("v_permlane") and "swap" in op:
                self.defs = set(R[0]) | set(R[1]); self.uses = set(self.defs)
            elif op.startswith("v_cmp"):
                self.defs = set(R[0]); self.uses = allr(R[1:])
            elif op.startswith("v_add_co") or op.startswith("v_sub_co") or op.startswith("v_addc_co"):
                self.defs = set(R[0]) | set(R[1]); self.uses = allr(R[2:])
            else:
                self.defs = set(R[0]); self.uses = allr(R[1:])
                if op.startswith("v_fmac") or op.startswith("v_pk_fmac"): self.uses |= self.defs
                if op.startswith("v_cndmask") and len(ops) == 3: self.uses |= {("vcc", 0)}
        else:
            raise ValueError("unknown instruction: " + text)
    def states(self):
        if self.kind == "label": return 0
        if self.kind == "nop": return int(self.text.split()[1], 0) + 1
        return 1
    def __str__(self):
        return self.text if self.kind == "label" else "  " + self.text

def parse_wait(ins):
    vm = re.search(r'vmcnt\((\d+)\)', ins.text); lg = re.search(r'lgkmcnt\((\d+)\)', ins.text)
    return (int(vm.group(1)) if vm else None, int(lg.group(1)) if lg else None)

def auto_wait(seq, init_lgkm=None, init_vm=None):
    lg = list(init_lgkm or [])
    vm = list(init_vm or [])
    need = {}
    for idx, ins in enumerate(seq):
        if ins.kind == "label": continue
        if ins.kind == "wait":
            v, l = parse_wait(ins)
            if v is not None: vm = vm[len(vm) - v:] if v < len(vm) else vm
            if l is not None: lg = lg[len(lg) - l:] if l < len(lg) else lg
            if v == 0: vm = []
            if l == 0: lg = []
            continue
        touched = ins.uses | {r for r in ins.defs if r[0] in ('v','a','s')}
        nl = nv = None
        for k in range(len(lg) - 1, -1, -1):
            if lg[k] & touched:
                nl = len(lg) - 1 - k; break
        for k in range(len(vm) - 1, -1, -1):
            if vm[k] & touched:
                nv = len(vm) - 1 - k; break
        if nl is not None or nv is not None:
            need[idx] = (nv, nl)
            if nl is not None: lg = lg[len(lg) - nl:] if nl else []
            if nv is not None: vm = vm[len(vm) - nv:] if nv else []
        if ins.kind in ("dsr", "dsw"): lg.append(set(ins.defs))
        elif ins.kind == "smem": lg.append(set(ins.defs)); lg.append(set(ins.defs))
        elif ins.kind in ("vload", "dma", "vstore"): vm.append(set(ins.defs))
    return need, lg, vm

def wait_ins(nv, nl):
    s = "s_waitcnt"
    if nv is not None: s += f" vmcnt({min(nv,63)})"
    if nl is not None: s += f" lgkmcnt({min(nl,15)})"
    return I(s)

def apply_waits(seq, need):
    out = []
    for idx, ins in enumerate(seq):
        if idx in need: out.append(wait_ins(*need[idx]))
        out.append(ins)
    return out

def merge_need(a, b):
    out = dict(a)
    for k, (v, l) in b.items():
        if k in out:
            v0, l0 = out[k]
            v = v if v0 is None else (v0 if v is None else min(v, v0))
            l = l if l0 is None else (l0 if l is None else min(l, l0))
        out[k] = (v, l)
    return out

def waits_linear(seq):
    need, _, _ = auto_wait(seq)
    return apply_waits(seq, need)

def waits_loop(pre, body, post):
    n0, lg, vm = auto_wait(pre)
    pre2 = apply_waits(pre, n0)
    need = {}
    for _ in range(6):
        b2 = apply_waits(body, need)
        idxmap = []
        for idx, ins in enumerate(body):
            if idx in need: idxmap.append(None)
            idxmap.append(idx)
        n1, lg1, vm1 = auto_wait(b2, lg, vm)
        n2, lg2, vm2 = auto_wait(apply_waits(b2, n1), lg1, vm1)
        if not n1 and not n2: break
        add = {}
        for k, v in n1.items(): add[idxmap[k]] = v
        if not n1:
            for k, v in n2.items(): add[idxmap[k]] = v
        need = merge_need(need, add)
    else:
        raise RuntimeError("waits_loop did not converge")
    b2 = apply_waits(body, need)
    _, lgA, vmA = auto_wait(b2, lg, vm)
    _, lgB, vmB = auto_wait(b2, lgA, vmA)
    nA, _, _ = auto_wait(post, lgA, vmA)
    nB, _, _ = auto_wait(post, lgB, vmB)
    post2 = apply_waits(post, merge_need(nA, nB))
    return pre2, b2, post2

def check_hazards(seq, name=""):
    msgs = []
    n = len(seq)
    for i, p in enumerate(seq):
        if p.kind in ("label",): continue
        dist = 0
        for j in range(i + 1, min(n, i + 40)):
            c = seq[j]
            if c.kind == "label": continue
            req = 0; why = ""
            vdefs = {r for r in p.defs if r[0] in "va"}
            sdefs = {r for r in p.defs if r[0] == "s" or r[0] == "vcc"}
            if p.kind == "valu":
                if c.kind == "mfma" and (vdefs & c.uses): req, why = 2, "valu->mfma"
                if c.kind == "valu" and c.op.startswith("v_permlane") and (vdefs & c.uses): req, why = max(req, 2), "valu->permlane"
                if c.kind == "valu" and (c.op.startswith("v_readfirstlane") or c.op.startswith("v_readlane")) and (vdefs & c.uses): req, why = max(req, 1), "valu->readlane"
                if p.op in TRANS and c.kind in ("valu", "mfma", "vstore", "dsw") and c.op not in TRANS and (vdefs & c.uses): req, why = max(req, 1), "trans->valu"
                if sdefs and c.kind == "valu" and (sdefs & c.uses): req, why = max(req, 2), "valu sgpr->valu"
                if sdefs and c.kind in ("vload", "dma", "vstore") and (sdefs & c.uses): req, why = max(req, 5), "valu sgpr->vmem"
                if ("exec", 0) in p.defs and c.kind == "mfma": req, why = max(req, 4), "exec->mfma"
                if "dpp" in c.text and (vdefs & c.uses): req, why = max(req, 2), "valu->dpp"
            if p.kind == "mfma":
                tbl = {2: 5, 4: 8, 8: 12, 16: 20}[p.passes]
                if c.kind == "mfma":
                    if p.defs & c.srcab: req, why = tbl, "mfma D->mfma AB"
                    if p.defs & c.srcc:
                        if p.defs == c.srcc and p.passes == c.passes:
                            r2 = 2 if p.passes == 2 else 0
                        else: r2 = {2: 4, 4: 6, 8: 10, 16: 18}[p.passes]
                        if r2 > req: req, why = r2, "mfma D->mfma C overlap"
                    elif p.defs & c.defs:
                        r2 = {2: 4, 4: 6, 8: 10, 16: 18}[p.passes]
                        if r2 > req: req, why = r2, "mfma D->mfma D waw"
                elif c.kind in ("valu", "dsr", "dsw", "vload", "vstore", "dma"):
                    if p.defs & (c.uses | c.defs): req, why = tbl, "mfma D->valu/mem"
                    if c.kind in ("valu", "dsr", "vload") and (p.srcc & c.defs):
                        r2 = {2: 1, 4: 3, 8: 7, 16: 15}[p.passes]
                        if r2 > req: req, why = r2, "mfma C WAR"
            if p.kind == "salu" and ("m0", 0) in p.defs and c.kind == "dma": req, why = max(req, 1), "m0->dma"
            if p.kind == "vstore" and ("x4" in p.op or "x3" in p.op):
                data = set(regs_of(p.text.split(None,1)[1].split(",")[0 if p.op.startswith("buffer") else 1]))
                if data & c.defs: req, why = max(req, 2 if c.kind == "valu" else 1), "store data WAR"
            if req > dist:
                msgs.append(f"{name}: hazard {why}: need {req} have {dist}: [{i}] {p.text}  ->  [{j}] {c.text}")
            dist += c.states()
            if dist > 20: break
    return msgs

class Prog:
    def __init__(self): self.L = []
    def __call__(self, text, tag=None):
        for line in text.strip().split("\n"):
            line = line.strip()
            if line: self.L.append(I(line, tag))
        return self
    def ext(self, lst): self.L.extend(lst)
    def text(self): return "\n".join(str(i) for i in self.L)

def cost(ins):
    if ins.kind == "label": return 0
    if ins.op in TRANS: return 8
    if ins.kind == "mfma": return 8
    return 4

def interleave(mfmas, fillers, start=0, budget=24):
    raise NotImplementedError

def resolve_waits(instances):
    need = {}
    for key, _ in instances: need.setdefault(key, {})
    for _ in range(12):
        lg, vm = [], []
        changed = False
        for key, code in instances:
            nd = need[key]
            c2 = apply_waits(code, nd)
            idxmap = []
            for idx in range(len(code)):
                if idx in nd: idxmap.append(None)
                idxmap.append(idx)
            n1, lg, vm = auto_wait(c2, lg, vm)
            if n1:
                changed = True
                need[key] = merge_need(nd, {idxmap[k]: v for k, v in n1.items()})
        if not changed: break
    else:
        raise RuntimeError("resolve_waits did not converge")
    out = {}; full = []
    for key, code in instances:
        c2 = apply_waits(code, need[key])
        if key not in out: out[key] = c2
        else:
            assert [i.text for i in out[key]] == [i.text for i in c2], f"loop instances differ in text for {key}"
        full += c2
    return out, full

class Sched:
    def __init__(self, mfmas, budget):
        self.m = mfmas; self.g = [[] for _ in mfmas]; self.budget = budget
    def c(self, i): return sum(cost(x) for x in self.g[i])
    def put(self, i, ins):
        if isinstance(ins, str): ins = [I(x) for x in ins.strip().split("\n")]
        elif isinstance(ins, I): ins = [ins]
        self.g[i].extend(ins); return i
    def place(self, ins, lo, hi):
        if isinstance(ins, str): ins = [I(x) for x in ins.strip().split("\n")]
        elif isinstance(ins, I): ins = [ins]
        need = sum(cost(x) for x in ins)
        hi = min(hi, len(self.m) - 1); lo = max(lo, 0)
        assert lo <= hi, (lo, hi, ins[0].text)
        for i in range(lo, hi + 1):
            if self.c(i) + need <= self.budget: return self.put(i, ins)
        best = min(range(lo, hi + 1), key=lambda i: (self.c(i), i))
        return self.put(best, ins)
    def stream(self, items, lo, hi):
        for it in items:
            lo = self.place(it, lo, hi)
        return lo
    def emit(self):
        out = []
        for m, g in zip(self.m, self.g):
            out.append(m); out.extend(g)
        return out
    def est(self, per):
        return sum(max(per, 8 + self.c(i)) for i in range(len(self.m)))

def hazard_list(seq):
    res = []
    for m in check_hazards(seq):
        mm = re.search(r"need (\d+) have (\d+): \[(\d+)\].*->  \[(\d+)\]", m)
        res.append((int(mm.group(3)), int(mm.group(4)), int(mm.group(1)) - int(mm.group(2))))
    return res

def resolve_all(instances):
    inst = [(k, list(c)) for k, c in instances]
    nfix = 0
    for _ in range(20):
        out, full = resolve_waits(inst)
        hz = hazard_list(full)
        if not hz: return out, full, nfix
        fixes = {}
        pos = 0; owner = []
        for n, (key, code) in enumerate(inst):
            ln = len(out[key])
            owner.append((pos, pos + ln, n)); pos += ln
        for (i, j, miss) in hz:
            for (a, b, n) in owner:
                if a <= j < b:
                    key, code = inst[n]
                    obj = full[j]
                    idx = next(x for x, o in enumerate(code) if o is obj)
                    fixes[(key, idx)] = max(fixes.get((key, idx), 0), miss)
        bykey = {}
        for (key, idx), miss in fixes.items(): bykey.setdefault(key, []).append((idx, miss))
        for key, lst in bykey.items():
            lst.sort()
            chosen = []; last = -100
            for idx, miss in lst:
                if idx - last > 12: chosen.append((idx, miss)); last = idx
            for n, (k2, code) in enumerate(inst):
                if k2 == key:
                    for idx, miss in sorted(chosen, reverse=True):
                        code.insert(idx, I(f"s_nop {miss-1}"))
            nfix += len(chosen)
    raise RuntimeError("hazard fixing did not converge")

def is_scalar(i): return i.kind in ("salu", "wait", "nop", "misc", "barrier")
def is_mem(i): return i.kind in ("dsr", "dsw", "dma", "vload", "vstore")

def gap_over(g):
    g = [i for i in g if i.kind != "label"]
    port = 0; pen = 0; seen_valu = False; nmem = 0
    for n, i in enumerate(g):
        if is_scalar(i):
            st = i.states() if i.kind == "nop" else 1
            port += st - (1 if n == 0 else 0)
        elif i.kind == "branch": port += 2; pen += 2
        elif is_mem(i):
            port += 1; nmem += 1
            if seen_valu: pen += 8
            if nmem > 1: pen += 4
        else:
            seen_valu = True
            port += 2 if i.op in TRANS else (5 if i.op.startswith("v_pk_") else 1)
    return max(0, port - 2) * 4 + pen

def dep(a, b):
    return bool((a.defs & (b.uses | b.defs)) or (a.uses & b.defs))

def order_gap(groups):
    def rank(gr):
        k = [i for i in gr if i.kind != "label"]
        if not k: return 3
        if any(i.kind == "branch" for i in k): return 0
        if all(is_scalar(i) for i in k): return 0
        if any(is_mem(i) for i in k): return 1
        return 2
    out = []
    for gr in groups:
        pos = len(out)
        r = rank(gr)
        while pos > 0 and rank(out[pos - 1]) > r and rank(out[pos-1]) != 3 and not any(dep(a, b) for a in out[pos - 1] for b in gr) \
                and not any(x.kind in ("barrier", "branch") for x in gr + out[pos - 1]):
            pos -= 1
        out.insert(pos, gr)
    return out

class Sched2:
    def __init__(self, mfmas):
        self.m = mfmas; self.g = [[] for _ in mfmas]
    @staticmethod
    def norm(ins):
        if isinstance(ins, str): return [I(x) for x in ins.strip().split("\n")]
        if isinstance(ins, I): return [ins]
        return list(ins)
    def flat(self, groups): return [i for gr in order_gap(groups) for i in gr]
    def over(self, i, extra=None):
        return gap_over(self.flat(self.g[i] + ([extra] if extra else [])))
    def put(self, i, ins):
        self.g[i].append(self.norm(ins)); return i
    def place(self, ins, lo, hi, late=False):
        ins = self.norm(ins)
        hi = min(hi, len(self.m) - 1); lo = max(lo, 0)
        assert lo <= hi, (lo, hi, ins[0].text)
        rng = range(hi, lo - 1, -1) if late else range(lo, hi + 1)
        best = min(rng, key=lambda i: self.over(i, ins) - self.over(i))
        return self.put(best, ins)
    def stream(self, items, lo, hi):
        for it in items: lo = self.place(it, lo, hi)
        return lo
    def emit(self):
        out = []
        for m, g in zip(self.m, self.g):
            out.append(m); out.extend(self.flat(g))
        return out
    def est(self, per=16):
        return sum(per + self.over(i) for i in range(len(self.m)))

def hoist_waits(code):
    code = list(code)
    i = 0
    while i < len(code) - 1:
        w = code[i]
        if w.kind == "wait" and code[i + 1].kind == "mfma":
            v, l = parse_wait(w)
            p = i
            ok = True
            while p > 0 and code[p - 1].kind != "mfma":
                x = code[p - 1]
                if x.kind in ("label", "branch", "barrier", "smem"): ok = False; break
                if x.kind in ("dsr", "dsw") and l is not None:
                    if l == 0: ok = False; break
                    l -= 1
                if x.kind in ("vload", "dma", "vstore") and v is not None:
                    if v == 0: ok = False; break
                    v -= 1
                p -= 1
            if ok and p > 0 and p < i:
                del code[i]
                if code[p].kind == "wait":
                    v0, l0 = parse_wait(code[p])
                    v = v0 if v is None else (v if v0 is None else min(v, v0))
                    l = l0 if l is None else (l if l0 is None else min(l, l0))
                    code[p] = wait_ins(v, l)
                    continue
                code.insert(p, wait_ins(v, l))
        i += 1
    return code

def est_code(code, per=16):
    tot = 0; gap = None
    for i in code:
        if i.kind == "mfma":
            if gap is not None: tot += per + gap_over(gap)
            gap = []
        elif gap is not None: gap.append(i)
    if gap is not None: tot += per + gap_over(gap)
    return tot

def resolve_all2(instances, hoist=True):
    out, full = resolve_waits(instances)
    need_inst = []
    pos = 0
    for key, code in instances:
        ln = len(out[key])
        c = full[pos:pos + ln]; pos += ln
        need_inst.append((key, hoist_waits(c) if hoist else c))
    return resolve_all(need_inst)

def spaced(S, groups, lo, hi, step):
    cur = lo; nxt = lo
    for gi, gr in enumerate(groups):
        gr = Sched2.norm(gr)
        if any(i.kind in ("dma", "vload", "vstore") for i in gr):
            a = min(max(cur, nxt), hi)
            cur = S.place(gr, a, min(a + 2, hi))
            nxt = cur + step
        else:
            cur = S.place(gr, cur, min(max(cur, nxt), hi))
    return cur
```

```python
import os, sys, math, struct
from asmlib import *

TS = 131072
KVT = 8704
KVS = 4 * KVT
XB = [2 * KVS, KVS]
WB = 98304
CSCALE = math.log2(math.e) / math.sqrt(128.0)
THRESH = 8.0

def f2u(x): return struct.unpack("<I", struct.pack("<f", x))[0]

def kd(name, vgpr, acc, sgpr=96):
    return f""".amdhsa_kernel {name}
  .amdhsa_next_free_vgpr {vgpr}
  .amdhsa_next_free_sgpr {sgpr}
  .amdhsa_accum_offset {acc}
  .amdhsa_group_segment_fixed_size 0
  .amdhsa_kernarg_size 104
  .amdhsa_user_sgpr_count 2
  .amdhsa_user_sgpr_kernarg_segment_ptr 1
  .amdhsa_system_sgpr_workgroup_id_x 1
.end_amdhsa_kernel"""

def R(kind, base, n=4): return f"{kind}[{base}:{base+n-1}]"

def m16(d, a, b, c):
    return I(f"v_mfma_f32_16x16x32_bf16 {d}, {a}, {b}, {c}")

def stamp(P, idx, on):
    if on: P(f"s_memtime s[{80+2*idx}:{81+2*idx}]\ns_waitcnt lgkmcnt(0)")

def stamp_store(E, nst, swave, sws, dbgoff=None):
    E("s_waitcnt vmcnt(0)\ns_memrealtime s[76:77]\ns_waitcnt lgkmcnt(0)")
    DBG = os.environ.get("DBG")
    if DBG:
        wg = int(DBG)
        E(f"""s_load_dwordx2 s[72:73], s[0:1], 88
s_waitcnt lgkmcnt(0)
s_add_u32 s72, s72, {dbgoff[0]}
s_addc_u32 s73, s73, 0
s_mov_b32 s74, 64
s_mov_b32 s75, 0x00020000
s_xor_b32 s70, s2, {wg}
s_or_b32 s70, s70, s{swave}
s_lshl_b32 s70, s70, 8
s_add_u32 s70, s70, {dbgoff[1]}
v_mov_b32 v14, s70
v_mbcnt_lo_u32_b32 v15, -1, 0
v_mbcnt_hi_u32_b32 v15, -1, v15
v_cmp_eq_u32 vcc, 0, v15
s_and_saveexec_b64 s[78:79], vcc""")
        for i in range(1, nst):
            E(f"s_sub_u32 s71, s{80+2*i}, s80\nv_mov_b32 v10, s71\nbuffer_store_dword v10, v14, s[72:75], 0 offen offset:{4*(i+1)}\ns_nop 1")
        E(f"v_mov_b32 v10, s76\nbuffer_store_dword v10, v14, s[72:75], 0 offen offset:4\ns_nop 1")
        E(f"v_mov_b32 v10, s98\nbuffer_store_dword v10, v14, s[72:75], 0 offen offset:0\ns_nop 1")
        return
    E(f"""s_add_u32 s72, s{sws}, 0x4000000
s_addc_u32 s73, s{sws+1}, 0
s_mov_b32 s74, 0x100000
s_mov_b32 s75, 0x00020000
s_lshl_b32 s70, s2, 8
s_lshl_b32 s71, s{swave}, 6
s_add_u32 s70, s70, s71
v_mov_b32 v14, s70
v_mbcnt_lo_u32_b32 v15, -1, 0
v_mbcnt_hi_u32_b32 v15, -1, v15
v_cmp_eq_u32 vcc, 0, v15
s_and_saveexec_b64 s[78:79], vcc""")
    for i in range(1, nst):
        E(f"s_sub_u32 s71, s{80+2*i}, s80\nv_mov_b32 v10, s71\nbuffer_store_dword v10, v14, s[72:75], 0 offen offset:{4*i}\ns_nop 1")
    E(f"v_mov_b32 v10, s76\nbuffer_store_dword v10, v14, s[72:75], 0 offen offset:60\ns_nop 1")
    E(f"v_mov_b32 v10, s98\nbuffer_store_dword v10, v14, s[72:75], 0 offen offset:56\ns_nop 1")

def gen_k1(name="attn_kernel", STAMP=False, KVFLAG="", MAPPING=1, ROT=0, TOUCH=0, TFLAG="", WOT=1, TD=2, verbose=True):
    sW = 40
    sBLK, sKVH, sBP, sBL, sHH = 41, 42, 43, 44, 45
    sWQoff, sXoff, sKVoff = 46, 47, 48
    sWQm0, sXm0, sKVm0 = 49, 50, 51
    sT0, sT1, sT2 = 52, 53, 54
    sCNT = 55
    sWrd, sXrd = 56, 57
    sTH = 58
    sC = 60
    sKd, sVd = 62, 63
    sKVw = 64
    sWQw = 65
    sK16, sKm48, sKKVS, sKm3KVS = 66, 67, 68, 69
    sT3, sT4 = 70, 71
    sWend, sXend, sTo = 72, 73, 74
    vTq, vTa, vDum = 26, 13, 0
    SX, SWQ, SKV, SO = 24, 28, 32, 36
    vL = 1
    vKVd = [2, 3, 4, 5]
    vKa = 6; vVa = [7, 8, 9, 10]; vMX = 11; vT = 12; vF = 19
    vWa = list(range(6, 14)); vXa = [14, 15]; vWd = [16, 17, 18, 19]; vXd = [20, 21]
    ACC0 = 32
    def grp(g, nt): return ACC0 + (g * 7 + nt) * 8
    def acc(mt, nt): return grp(mt >> 1, nt) + 4 * (mt & 1)
    def Q(nt, g): return R("v", grp(g, nt))
    holes = [grp(g, nt) + 4 for g in range(4) for nt in range(7)] + [20, 24, 28]
    Kf = [[holes[4 * s + g] for g in range(4)] for s in range(2)]
    Vf = [holes[8 + d] for d in range(8)]
    Sb = [[holes[16 + 2 * b + s] for s in range(2)] for b in range(3)]
    Ci = [holes[22 + t] for t in range(7)]
    Pf = holes[29]
    Er = [holes[30] + i for i in range(4)] + [14, 15, 16, 17]
    VGAPS = [0, 1, 2, 3, 4, 5, 6, 8, 10, 12, 14, 15, 16, 17, 18, 19]
    KGAPS = [9, 11, 13, 15, 16, 18, 20, 22]
    sbuf = lambda t: 2 if t == 6 else (t & 1)
    def O(t, d): return R("a", (t * 8 + d) * 4)
    def Lr(t): return R("a", 224 + 4 * t)
    ONES = R("a", 252)
    def Af(i): return 4 * (i % 4)
    def Bf(par, nt): return 16 + (par * 7 + nt) * 4

    kvf = (" " + KVFLAG) if KVFLAG else ""

    P = Prog()
    P(f"""
.globl {name}
.p2align 8
.type {name},@function
{name}:
s_cmp_ge_u32 s2, 256
s_cbranch_scc1 {name}_done
s_load_dwordx8 s[4:11], s[0:1], 0
s_load_dwordx8 s[12:19], s[0:1], 40
s_load_dwordx2 s[20:21], s[0:1], 96
s_load_dwordx2 s[22:23], s[0:1], 32
s_load_dwordx2 s[76:77], s[0:1], 72
""")
    if STAMP: P("s_memtime s[80:81]\ns_memrealtime s[98:99]")
    P(f"""
v_lshrrev_b32 v10, 6, v0
v_and_b32 v{vL}, 63, v0
s_and_b32 s{sT0}, s2, 7
v_readfirstlane_b32 s{sW}, v10
s_lshr_b32 s{sT1}, s2, 3
s_lshr_b32 s{sBLK}, s{sT0}, 2
s_and_b32 s{sT0}, s{sT0}, 3
""")
    if MAPPING == 1:
        P(f"""
s_lshl_b32 s{sKVH}, s{sT0}, 2
s_and_b32 s{sT2}, s{sT1}, 3
s_add_u32 s{sKVH}, s{sKVH}, s{sT2}
s_lshr_b32 s{sBP}, s{sT1}, 2
""")
    else:
        P(f"""
s_lshl_b32 s{sBP}, s{sT0}, 1
s_and_b32 s{sT2}, s{sT1}, 1
s_add_u32 s{sBP}, s{sBP}, s{sT2}
s_lshr_b32 s{sKVH}, s{sT1}, 1
""")
    P(f"""
s_lshr_b32 s{sBL}, s{sW}, 1
s_and_b32 s{sHH}, s{sW}, 1
""")
    P(f"""
v_lshrrev_b32 v10, 5, v{vL}
v_and_b32 v11, 31, v{vL}
s_lshl_b32 s{sT0}, s{sHH}, 3
v_lshlrev_b32 v12, 1, v10
v_or_b32 v12, s{sT0}, v12
v_xor_b32 v12, v12, v11
v_lshlrev_b32 v13, 13, v10
v_lshl_add_u32 v{vWd[0]}, v12, 4, v13
v_add_u32 v{vWd[2]}, {4*8192-2048}, v{vWd[0]}
v_xor_b32 v12, 4, v12
v_lshl_add_u32 v{vWd[1]}, v12, 4, v13
v_add_u32 v{vWd[1]}, {2*8192-1024}, v{vWd[1]}
v_add_u32 v{vWd[3]}, {4*8192-2048}, v{vWd[1]}
""")
    P(f"""
v_lshrrev_b32 v10, 3, v{vL}
v_mul_u32_u24 v10, 1152, v10
v_lshrrev_b32 v11, 4, v{vL}
v_and_b32 v12, 7, v{vL}
v_xor_b32 v11, v11, v12
s_lshl_b32 s{sT0}, s{sHH}, 2
v_xor_b32 v11, s{sT0}, v11
v_lshl_add_u32 v{vXd[0]}, v11, 4, v10
v_xor_b32 v11, 4, v11
v_lshl_add_u32 v{vXd[1]}, v11, 4, v10
""")
    rot_code = f"""s_and_b32 s{sT0}, s{sKVH}, 3
s_lshl_b32 s{sT0}, s{sT0}, 1
s_add_u32 s{sT0}, s{sT0}, s{sBP}
s_cmp_ge_u32 s{sT0}, 9
s_cselect_b32 s{sT1}, 9, 0
s_sub_u32 s{sT0}, s{sT0}, s{sT1}
s_lshl_b32 s{sT1}, s{sT0}, 19
s_add_u32 s{sWQoff}, s{sWQoff}, s{sT1}
s_lshl_b32 s{sT1}, s{sT0}, 7
s_add_u32 s{sXoff}, s{sXoff}, s{sT1}""" if ROT else ""
    P(f"""
s_lshl_b32 s{sWQoff}, s{sW}, 16
s_lshl_b32 s{sT0}, s{sKVH}, 9
s_add_u32 s{sWQoff}, s{sWQoff}, s{sT0}
s_mul_i32 s{sXoff}, s{sW}, {56*1152}
s_lshl_b32 s{sWQm0}, s{sW}, 12
s_add_u32 s{sWQm0}, s{sWQm0}, {WB}
s_mul_i32 s{sXm0}, s{sW}, {7*1024}
s_add_u32 s{sT0}, s{sXm0}, {XB[1]}
s_add_u32 s{sXm0}, s{sXm0}, {XB[0]}
s_xor_b32 s{sXrd}, s{sXm0}, s{sT0}
s_mul_i32 s{sKVm0}, s{sW}, {KVT}
s_add_u32 s{sWend}, s{sWQoff}, {576*8192}
s_add_u32 s{sXend}, s{sXoff}, 1152
{rot_code}
s_mov_b32 s{sKVoff}, 0
s_mov_b32 s{sK16}, 16384
s_mov_b32 s{sKm48}, {(-3*16384) & 0xffffffff}
s_mov_b32 s{sKKVS}, {KVS}
s_mov_b32 s{sKm3KVS}, {(-3*KVS) & 0xffffffff}
s_mov_b32 s{sWQw}, 0
s_mov_b32 s{sKVw}, 0
s_waitcnt lgkmcnt(0)
s_cmp_eq_u32 s{sBLK}, 0
s_cselect_b64 s[4:5], s[4:5], s[12:13]
s_cselect_b64 s[6:7], s[6:7], s[14:15]
s_cselect_b64 s[8:9], s[8:9], s[16:17]
s_cselect_b64 s[10:11], s[10:11], s[18:19]
s_cselect_b64 s[22:23], s[22:23], s[76:77]
s_mul_i32 s{sT0}, s{sBP}, 258048
s_add_u32 s{SX}, s4, s{sT0}
s_addc_u32 s{SX+1}, s5, 0
s_mov_b32 s{SX+2}, 258048
s_mov_b32 s{SX+3}, 0x00020000
s_mov_b32 s{SWQ}, s10
s_mov_b32 s{SWQ+1}, s11
s_mov_b32 s{SWQ+2}, 4718592
s_mov_b32 s{SWQ+3}, 0x00020000
""")

    def flat(groups): return [i for g in groups for i in g]
    def dma_wq(stage):
        out = [[I(f"s_mov_b32 m0, s{sWQm0}"), I(f"s_add_u32 s{sWQw}, s{sWQw}, 1")]]
        for k in range(4):
            d = I(f"buffer_load_dwordx4 v{vWd[k]}, s[{SWQ}:{SWQ+3}], s{sWQoff} offen offset:{1024*k} lds")
            d.defs = {("wq", stage)}; out.append([d])
        out += [[I(f"s_add_u32 s{sWQoff}, s{sWQoff}, {32*8192}")],
                [I(f"s_and_b32 s{sWQw}, s{sWQw}, 3"),
                 I(f"s_cselect_b32 s{sT0}, s{sK16}, s{sKm48}")],
                [I(f"s_add_u32 s{sWQm0}, s{sWQm0}, s{sT0}")]]
        if ROT and stage % 2 == 1:
            out += [[I(f"s_cmp_ge_u32 s{sWQoff}, s{sWend}"), I(f"s_cselect_b32 s{sT0}, {576*8192}, 0")],
                    [I(f"s_sub_u32 s{sWQoff}, s{sWQoff}, s{sT0}")]]
        return out
    def dma_x(stage, part):
        out = [[I(f"s_add_u32 m0, s{sXm0}, {4096*part}")]]
        for i in (range(4) if part == 0 else range(4, 7)):
            d = I(f"buffer_load_dwordx4 v{vXd[i&1]}, s[{SX}:{SX+3}], s{sT1} offen offset:{1024*(i%4)} lds")
            d.defs = {("x", stage)}
            out.append([I(f"s_add_u32 s{sT1}, s{sXoff}, {i*9216 - 1024*(i%4)}"), d])
        if part == 1:
            out.append([I(f"s_add_u32 s{sXoff}, s{sXoff}, 128")])
            if ROT:
                out += [[I(f"s_cmp_ge_u32 s{sXoff}, s{sXend}"), I(f"s_cselect_b32 s{sT1}, 1152, 0")],
                        [I(f"s_sub_u32 s{sXoff}, s{sXoff}, s{sT1}")]]
            out.append([I(f"s_xor_b32 s{sXm0}, s{sXm0}, s{sXrd}")])
        return out
    def dma_kv(stage):
        out = []
        for half in range(2):
            out.append([I(f"s_add_u32 m0, s{sKVm0}, {4352*half}"),
                        I(f"s_add_u32 s{sKVw}, s{sKVw}, 1") if half == 0 else I(f"s_add_u32 s{sKVoff}, s{sKVoff}, 4096")])
            for k in range(4):
                d = I(f"buffer_load_dwordx4 v{vKVd[k]}, s[{SKV}:{SKV+3}], s{sKVoff} offen offset:{1088*k}{kvf} lds")
                d.defs = {("kv", stage)}; out.append([d])
        out += [[I(f"s_and_b32 s{sKVw}, s{sKVw}, 3"), I(f"s_cselect_b32 s{sT0}, s{sKKVS}, s{sKm3KVS}")],
                [I(f"s_add_u32 s{sKVoff}, s{sKVoff}, 4096"), I(f"s_add_u32 s{sKVm0}, s{sKVm0}, s{sT0}")]]
        return out

    tf = (" " + TFLAG) if TFLAG else ""
    def touch(vreg, step):
        d = I(f"buffer_load_dword v{vDum}, v{vreg}, s[{SKV}:{SKV+3}], s{sTo} offen{tf}")
        d.defs = set()
        return [[d], [I(f"s_add_u32 s{sTo}, s{sTo}, {step}")]]
    for gl in (dma_wq(0), dma_x(0, 0), dma_x(0, 1), dma_wq(1), dma_x(1, 0), dma_wq(2)): P.ext(flat(gl))
    P(f"""
s_cmp_eq_u32 s{sHH}, 0
s_cselect_b64 s[6:7], s[6:7], s[8:9]
s_lshl_b32 s{sT0}, s{sBP}, 1
s_add_u32 s{sT0}, s{sT0}, s{sBL}
s_lshl_b32 s{sT1}, s{sT0}, 4
s_add_u32 s{sT1}, s{sT1}, s{sKVH}
s_lshl_b32 s{sT1}, s{sT1}, 17
s_add_u32 s{SKV}, s6, s{sT1}
s_addc_u32 s{SKV+1}, s7, 0
s_sub_u32 s{SKV}, s{SKV}, 192
s_subb_u32 s{SKV+1}, s{SKV+1}, 0
s_mov_b32 s{SKV+2}, {131072+192}
s_mov_b32 s{SKV+3}, 0x00020000
s_lshl_b32 s{sT1}, s{sBLK}, 4
s_add_u32 s{sT0}, s{sT0}, s{sT1}
s_mul_i32 s{sT0}, s{sT0}, {7*TS}
s_lshl_b32 s{sT1}, s{sKVH}, 1
s_add_u32 s{sT1}, s{sT1}, s{sHH}
s_lshl_b32 s{sT1}, s{sT1}, 12
s_add_u32 s{sT0}, s{sT0}, s{sT1}
s_add_u32 s{SO}, s20, s{sT0}
s_addc_u32 s{SO+1}, s21, 0
s_mov_b32 s{SO+2}, {6*TS+4096}
s_mov_b32 s{SO+3}, 0x00020000
v_lshrrev_b32 v10, 4, v{vL}
v_and_b32 v11, 1, v10
v_lshlrev_b32 v11, 1, v11
v_lshrrev_b32 v12, 1, v10
v_lshl_or_b32 v11, v12, 3, v11
s_cmp_eq_u32 s{sHH}, 0
s_cselect_b64 vcc, -1, 0
v_cndmask_b32 v11, v11, v10, vcc
v_and_b32 v12, 15, v{vL}
v_xor_b32 v11, v11, v12
v_lshlrev_b32 v11, 4, v11
v_lshl_add_u32 v11, v10, 8, v11
v_add_u32 v{vKVd[0]}, 192, v11
v_add_u32 v{vKVd[1]}, 128, v11
v_add_u32 v{vKVd[2]}, 64, v11
v_mov_b32 v{vKVd[3]}, v11
""")
    P(f"v_lshlrev_b32 v{vTq}, 5, v{vL}\ns_mov_b32 s{sTo}, {8192+192}")
    P(f"""
s_lshl_b32 s{sT0}, s{sKVH}, 3
s_add_u32 s{sT0}, s{sT0}, s{sBP}
s_lshl_b32 s{sT0}, s{sT0}, 2
s_add_u32 s{sT0}, s{sT0}, s{sW}
s_mul_i32 s{sT0}, s{sT0}, 9216
s_add_u32 s12, s22, s{sT0}
s_addc_u32 s13, s23, 0
s_mov_b32 s14, 9216
s_mov_b32 s15, 0x00020000
""")
    P("s_mov_b32 s16, 0")
    def wo_touch():
        d = I(f"buffer_load_dword v{vDum}, v{vKVd[3]}, s[12:15], s16 offen"); d.defs = set()
        return [[d], [I("s_add_u32 s16, s16, 1024")]]
    P(f"""
v_lshrrev_b32 v22, 4, v{vL}
v_bfe_u32 v23, v{vL}, 2, 2
v_lshl_add_u32 v24, v22, 3, v23
v_lshlrev_b32 v24, 9, v24
v_and_b32 v25, 1, v22
v_lshl_or_b32 v25, v25, 2, v23
v_lshl_add_u32 v24, v25, 5, v24
v_and_b32 v25, 3, v{vL}
v_lshl_add_u32 v24, v25, 3, v24
s_lshl_b32 s{sT0}, s{sHH}, 8
s_add_u32 s{sT0}, s{sT0}, {WB}
v_add_u32 v{vWa[0]}, s{sT0}, v24
""")
    for mt in range(1, 8): P(f"v_xor_b32 v{vWa[mt]}, {32*mt}, v{vWa[0]}")
    P(f"""
v_and_b32 v23, 15, v{vL}
v_lshrrev_b32 v24, 1, v23
v_xor_b32 v24, v24, v22
v_lshlrev_b32 v24, 4, v24
v_lshl_add_u32 v24, v23, 7, v24
s_mul_i32 s{sT0}, s{sBL}, {112*128}
s_add_u32 s{sT0}, s{sT0}, {XB[0]}
v_add_u32 v{vXa[0]}, s{sT0}, v24
v_xor_b32 v{vXa[1]}, 64, v{vXa[0]}
s_mov_b32 s{sC}, {f2u(CSCALE)}
s_mov_b32 s{sC+1}, {f2u(CSCALE)}
s_mov_b32 s{sTH}, {f2u(THRESH)}
s_mov_b32 s{sCNT}, 0
""")

    def a_reads(ks, mt):
        out = []
        for half in range(2):
            r = Af(mt) + 2 * half
            d = I(f"ds_read_b64_tr_b16 a[{r}:{r+1}], v{vWa[mt]} offset:{2048*half + 16384*(ks&1)}")
            d.defs |= {("wqrd", ks)}; out.append(d)
        return out
    def b_read(ks, nt):
        r = Bf(ks & 1, nt)
        d = I(f"ds_read_b128 a[{r}:{r+3}], v{vXa[ks&1]} offset:{2048*nt}")
        d.defs |= {("xrd", ks >> 1)}
        return d
    def qbarrier(i):
        b = I("s_barrier")
        b.uses = {("wq", i), ("wqrd", i - 1)}
        if i % 2 == 0: b.uses |= {("x", i // 2)}
        else: b.uses |= {("xrd", i // 2)}
        if i == 18: b.uses |= {("kv", 0)}
        return b

    P.ext([qbarrier(0)])
    P.ext(a_reads(0, 0)); P.ext([b_read(0, nt) for nt in range(7)]); P.ext(a_reads(0, 1))
    stamp(P, 1, STAMP)
    inst = [("pre", P.L)]

    def conv_group(g, nt):
        r = grp(g, nt)
        o = []
        for q in range(4): o.append(I(f"v_pk_mul_f32 v[{r+2*q}:{r+2*q+1}], v[{r+2*q}:{r+2*q+1}], s[{sC}:{sC+1}]"))
        for q in range(4): o.append(I(f"v_cvt_pk_bf16_f32 v{r+q}, v{r+2*q}, v{r+2*q+1}"))
        return o
    def swap_group(g, nt):
        r = grp(g, nt)
        return ([I(f"v_permlane32_swap_b32 v{r}, v{r+2}"), I(f"v_permlane32_swap_b32 v{r+1}, v{r+3}")],
                [I(f"v_permlane16_swap_b32 v{r}, v{r+2}"), I(f"v_permlane16_swap_b32 v{r+1}, v{r+3}")])

    sXdelta = 59
    inst[0][1].append(I(f"s_mov_b32 s{sXdelta}, {(XB[1]-XB[0]) & 0xffffffff}"))
    inst[0][1].append(I(f"s_mov_b32 s{sWrd}, 32768"))

    def dma_in(ks):
        lst = []
        k = ks // 2
        if ks % 2 == 0:
            if k + 1 <= 8: lst += dma_x(k + 1, 1)
            if ks + 3 <= 17: lst += dma_wq(ks + 3)
        else:
            if ks + 3 <= 17: lst += dma_wq(ks + 3)
            if k + 2 <= 8: lst += dma_x(k + 2, 0)
        if ks == 0: lst += dma_kv(0)
        if ks == 15: lst += dma_kv(1)
        if ks == 17: lst += dma_kv(2)
        if (TOUCH & 1) and 2 <= ks <= 17: lst += touch(vTq, 2048)
        return lst

    def qstep(ks):
        mf = []
        for mt in range(8):
            for nt in range(7):
                c = R("v", acc(mt, nt))
                mf.append(m16(c, R("a", Af(mt)), R("a", Bf(ks & 1, nt)), "0" if ks == 0 else c))
        S = Sched2(mf)
        for mt in range(6):
            S.stream(a_reads(ks, mt + 2), 7 * mt, 7 * mt + 3)
        nxt = ks + 1
        if ks % 2 == 0:
            S.stream([b_read(nxt, nt) for nt in range(7)], 2, 20)
        if nxt < 18:
            if nxt % 2 == 0:
                S.stream([I(f"v_add_u32 v{vXa[0]}, s{sXdelta}, v{vXa[0]}"), I(f"v_add_u32 v{vXa[1]}, s{sXdelta}, v{vXa[1]}"),
                          I(f"s_sub_u32 s{sXdelta}, 0, s{sXdelta}")], 20, 36)
                advs = [I(f"v_add_u32 v{vWa[mt]}, s{sWrd}, v{vWa[mt]}") for mt in range(8)]
                S.stream(advs[:7], 32, 40)
                S.put(40, advs[7])
                S.put(41, I(f"s_sub_u32 s{sWrd}, 0, s{sWrd}"))
            S.put(42, qbarrier(nxt))
            S.stream(a_reads(nxt, 0), 42, 45)
            if nxt % 2 == 0: S.stream([b_read(nxt, nt) for nt in range(7)], 43, 52)
            S.stream(a_reads(nxt, 1), 49, 53)
        items = dma_in(ks)
        nd = sum(1 for g_ in items for i_ in g_ if i_.kind in ("dma", "vload"))
        if nd: spaced(S, items, 1, 55, max(3, min(6, 52 // nd)))
        return S

    for k in range(9):
        Ss = [qstep(2 * k), qstep(2 * k + 1)]
        code = []
        key = "qloop" if 1 <= k <= 6 else f"q{k}"
        if key == "qloop": code.append(I(f"{name}_qloop:"))
        for S in Ss: code += S.emit()
        if key == "qloop":
            code += [I(f"s_add_u32 s{sCNT}, s{sCNT}, 1"), I(f"s_cmp_lt_u32 s{sCNT}, 6"), I(f"s_cbranch_scc1 {name}_qloop")]
        inst.append((key, code))
        if STAMP and k in (0, 6):
            T_ = Prog(); stamp(T_, 6 if k == 0 else 7, True); inst.append((f"st{k}", T_.L))

    C = Prog()
    C.ext([qbarrier(18)])
    C(f"v_lshlrev_b32 v{vTa}, 7, v{vL}")
    late = dma_kv(3)
    if TOUCH & 2:
        first_t = 5 if (TOUCH & 1) else 4
        late += [[I(f"s_mov_b32 s{sTo}, {first_t*8192+192}")]]
        for st_ in range(first_t, 4 + TD): late += touch(vTa, 8192)
    stamp(C, 2, STAMP)
    C(f"""
v_and_b32 v14, 15, v{vL}
v_lshrrev_b32 v15, 4, v{vL}
v_lshrrev_b32 v16, 2, v14
v_and_b32 v17, 3, v14
v_mul_u32_u24 v18, 1088, v16
v_lshl_add_u32 v18, v17, 8, v18
v_xor_b32 v19, v15, v17
v_lshl_add_u32 v18, v19, 4, v18
s_mul_i32 s{sT0}, s{sBL}, {2*KVT}
v_add_u32 v{vKa}, s{sT0}, v18
""")
    C(f"""
v_mul_u32_u24 v18, 1088, v15
v_lshl_add_u32 v18, v16, 8, v18
v_lshl_add_u32 v18, v17, 3, v18
s_add_u32 s{sT0}, s{sT0}, {KVT}
v_add_u32 v18, s{sT0}, v18
v_and_b32 v19, 1, v16
v_lshrrev_b32 v14, 1, v16
v_lshl_or_b32 v19, v14, 2, v19
""")
    for u in range(4):
        pat = (u & 1) | ((u >> 1) << 2)
        C(f"v_xor_b32 v14, {pat}, v19\nv_lshl_add_u32 v{vVa[u]}, v14, 5, v18")
    C(f"s_mov_b32 s{sKd}, 0\ns_mov_b32 s{sVd}, 0\ns_mov_b32 s{sCNT}, 0")
    C("s_nop 4")
    groups = [(g, nt) for nt in range(7) for g in range(4)]
    prev = None
    for i, (g, nt) in enumerate(groups):
        if late: C.ext(late.pop(0))
        C.ext(conv_group(g, nt))
        if i >= 1: C.ext(swap_group(*groups[i - 1])[0])
        if i >= 2: C.ext(swap_group(*groups[i - 2])[1])
    C("s_nop 1")
    C.ext(swap_group(*groups[-1])[0]); C.ext(swap_group(*groups[-2])[1]); C("s_nop 1"); C.ext(swap_group(*groups[-1])[1])
    C(f"v_mov_b32 v14, 0x3f803f80\nv_mov_b32 v15, 0")
    for i in range(4): C(f"v_accvgpr_write_b32 a{252+i}, v14")
    for i in range(32): C(f"v_accvgpr_write_b32 a{6*32+i}, v15")
    for i in range(4): C(f"v_accvgpr_write_b32 a{224+24+i}, v15")

    def k_read(j, sub, g):
        r = Kf[sub][g]
        d = I(f"ds_read_b128 v[{r}:{r+3}], v{vKa} offset:{64*g + 4352*sub}")
        d.defs |= {("krd", j)}
        return d
    def v_reads(j, dt):
        u = (dt & 1) | ((dt >> 2) << 1)
        out = []
        for half in range(2):
            r = Vf[dt] + 2 * half
            d = I(f"ds_read_b64_tr_b16 v[{r}:{r+1}], v{vVa[u]} offset:{64*((dt>>1)&1) + 4352*half}")
            d.defs |= {("vrd", j)}; out.append(d)
        return out
    def adv(sreg, vregs, st):
        return [[I(f"s_add_u32 s{sreg}, s{sreg}, 1")], [I(f"s_and_b32 s{sreg}, s{sreg}, 3"),
                I(f"s_cselect_b32 s{st}, s{sKKVS}, s{sKm3KVS}")]] + \
               [[I(f"v_add_u32 v{v}, s{st}, v{v}")] for v in vregs]
    def abarrier(j):
        b = I("s_barrier"); b.uses = {("kv", j + 1), ("krd", j), ("vrd", j)}
        return b
    def qk(t, zero):
        o = []
        for sub in range(2):
            d = R("v", Sb[sbuf(t)][sub])
            for g in range(4):
                c = d if g else ("0" if zero else R("v", Ci[t]))
                o.append(m16(d, R("v", Kf[sub][g]), Q(t, g), c))
        return o
    def pv(t, zero):
        o = [m16(O(t, d), R("v", Vf[d]), R("v", Pf), "0" if zero else O(t, d)) for d in range(8)]
        o.append(m16(Lr(t), ONES, R("v", Pf), "0" if zero else Lr(t)))
        return o
    def sregs(t): return [Sb[sbuf(t)][0] + i for i in range(4)] + [Sb[sbuf(t)][1] + i for i in range(4)]

    for sub in range(2):
        for g in range(4): C.ext([k_read(0, sub, g)])
    for dt in range(8): C.ext(v_reads(0, dt))
    C.ext(qk(0, True))
    stamp(C, 3, STAMP)
    inst.append(("conv", C.L))

    slow = Prog()
    def block(j, first):
        mf = []; base = []
        for s in range(7):
            base.append(len(mf))
            if not (first and s == 0): mf += pv((s - 1) % 7, first)
            mf += qk((s + 1) % 7, first and s < 6)
        base.append(len(mf))
        S = Sched2(mf)
        if not first:
            for n, gp in enumerate(VGAPS):
                dt = n // 2
                assert dt <= gp <= 17 + dt - 4
                S.put(gp, v_reads(j, dt)[n % 2])
        for i, gp in enumerate(KGAPS):
            assert 9 + i <= gp <= 17 + 9 + i - 4
            S.put(base[5] + gp, k_read(j + 1, i // 4, i % 4))
        gb = base[2] + 1
        S.put(gb, abarrier(j))
        for t in range(7):
            b0 = base[t]; sr = sregs(t); n = base[t + 1] - b0
            if first:
                ops = [f"v_max3_f32 v{vMX}, v{sr[0]}, v{sr[1]}, v{sr[2]}",
                       f"v_max3_f32 v{vMX}, v{vMX}, v{sr[3]}, v{sr[4]}",
                       f"v_max3_f32 v{vMX}, v{vMX}, v{sr[5]}, v{sr[6]}",
                       f"v_max_f32 v{vMX}, v{vMX}, v{sr[7]}",
                       f"v_mov_b32 v{vT}, v{vMX}", f"v_permlane32_swap_b32 v{vT}, v{vMX}",
                       f"v_max_f32 v{vMX}, v{vT}, v{vMX}",
                       f"v_mov_b32 v{vT}, v{vMX}", f"v_permlane16_swap_b32 v{vT}, v{vMX}",
                       f"v_max_f32 v{vMX}, v{vT}, v{vMX}"]
                ops += [f"v_sub_f32 v{r}, v{r}, v{vMX}" for r in sr]
                ops += [f"v_exp_f32 v{r}, v{r}" for r in sr]
                ops += [f"v_sub_f32 v{Ci[t]+i}, 0, v{vMX}" for i in range(4)]
                for i, o in enumerate(ops):
                    S.put(b0 + min(n - 2, 1 + (i * (n - 3)) // len(ops)), o)
                for q in range(4): S.put(b0 + n - 2, f"v_cvt_pk_bf16_f32 v{Pf+q}, v{sr[2*q]}, v{sr[2*q+1]}")
            else:
                g1 = S.place(f"v_max3_f32 v{vMX}, v{sr[0]}, v{sr[1]}, v{sr[2]}", b0, b0 + 5)
                g2 = S.place(f"v_max3_f32 v{vT}, v{sr[4]}, v{sr[5]}, v{sr[6]}", b0 + 3, b0 + 7)
                g3 = S.place(f"v_max3_f32 v{vMX}, v{vMX}, v{sr[3]}, v{sr[7]}", max(g1, b0 + 3), b0 + 8)
                g4 = S.place(f"v_max_f32 v{vMX}, v{vMX}, v{vT}", max(g2, g3), b0 + 9)
                g5 = S.place(f"v_cmp_lt_f32 vcc, s{sTH}, v{vMX}", g4, b0 + 10)
                gbr = S.place(f"s_cbranch_vccnz {name}_slow{t}\n{name}_back{t}:", g5 + 2, b0 + 12)
                ge = []
                for i in range(8):
                    ge.append(S.place(f"v_exp_f32 v{Er[i]}, v{sr[i]}", b0 + (3 if i >= 4 else 0), b0 + 14))
                for q in range(4):
                    S.place(f"v_cvt_pk_bf16_f32 v{Pf+q}, v{Er[2*q]}, v{Er[2*q+1]}", max(ge[2*q] + 1, ge[2*q+1] + 1, gbr + 1, b0 + 8), b0 + 15)
        spaced(S, dma_kv(j + 4) + (touch(vTa, 8192) if TOUCH & 2 else []) + (wo_touch() if WOT else []), gb + 1, base[5] + 6, 5)
        S.stream(adv(sVd, vVa, sT3), base[2], base[6])
        S.stream(adv(sKd, [vKa], sT4), base[3], base[5] + 8)
        return S

    S0 = block(0, True)
    inst.append(("blk0", S0.emit()))
    if STAMP:
        T_ = Prog(); stamp(T_, 8, True); inst.append(("stb", T_.L))
    for j in range(1, 16):
        S = block(j, False)
        code = [I(f"{name}_aloop:")] + S.emit() + [I(f"s_add_u32 s{sCNT}, s{sCNT}, 1"), I(f"s_cmp_lt_u32 s{sCNT}, 15"),
                                                   I(f"s_cbranch_scc1 {name}_aloop")]
        inst.append(("aloop", code))
        if verbose and j == 1: print("k1 attention block est cycles", S.est(16), "ideal", 16 * len(S.m))

    E = Prog()
    E.ext(pv(6, False))
    stamp(E, 4, STAMP)
    E(f"v_lshlrev_b32 v2, 4, v{vL}")
    E("s_nop 7")
    tmp = 32
    for t in range(7):
        inv = 16 + 2 * (t & 1)
        E(f"v_accvgpr_read_b32 v{inv}, a{224+4*t}\ns_mov_b32 s{sT0}, {t*TS}\nv_rcp_f32 v{inv}, v{inv}")
        for g in range(4):
            r = tmp + 16 * ((t * 4 + g) % 8)
            for i in range(8): E(f"v_accvgpr_read_b32 v{r+i}, a{(t*8+2*g)*4+i}")
            for q in range(4): E(f"v_pk_mul_f32 v[{r+2*q}:{r+2*q+1}], v[{r+2*q}:{r+2*q+1}], v[{inv}:{inv+1}] op_sel_hi:[1,0]")
            for q in range(4): E(f"v_cvt_pk_bf16_f32 v{r+8+q}, v{r+2*q}, v{r+2*q+1}")
            E(f"buffer_store_dwordx4 v[{r+8}:{r+11}], v2, s[{SO}:{SO+3}], s{sT0} offen offset:{1024*g}")
    if STAMP:
        stamp(E, 5, True)
        stamp_store(E, 9 if not os.environ.get('DBG') else 6, sW, 20, (512, 0))
    E(f"{name}_done:\ns_endpgm")
    inst.append(("end", E.L))

    for t in range(7):
        sr = sregs(t)
        slow(f"""{name}_slow{t}:
v_mov_b32 v{vT}, v{vMX}
s_nop 1
v_permlane32_swap_b32 v{vT}, v{vMX}
v_max_f32 v{vMX}, v{vT}, v{vMX}
v_mov_b32 v{vT}, v{vMX}
s_nop 1
v_permlane16_swap_b32 v{vT}, v{vMX}
v_max_f32 v{vMX}, v{vT}, v{vMX}
v_max_f32 v{vMX}, 0, v{vMX}
v_exp_f32 v{vF}, -v{vMX}
""")
        for r in sr: slow(f"v_sub_f32 v{r}, v{r}, v{vMX}")
        for i in range(8): slow(f"v_exp_f32 v{Er[i]}, v{sr[i]}")
        for i in range(4): slow(f"v_sub_f32 v{Ci[t]+i}, v{Ci[t]+i}, v{vMX}")
        regs = [t * 32 + i for i in range(32)] + [224 + 4 * t + i for i in range(4)]
        for a in regs:
            slow(f"v_accvgpr_read_b32 v{vT}, a{a}\nv_mul_f32 v{vT}, v{vT}, v{vF}\nv_accvgpr_write_b32 a{a}, v{vT}")
        slow(f"s_nop 1\ns_branch {name}_back{t}")

    EXP = os.environ.get("EXP", "").split(",")
    def keep(key, i):
        if key == "aloop":
            if "a_nodma" in EXP and i.kind == "dma": return False
            if "a_nobar" in EXP and i.kind == "barrier": return False
            if "a_nods" in EXP and i.kind == "dsr": return False
            if "a_noexp" in EXP and i.op == "v_exp_f32": return False
            if "a_nomax" in EXP and (i.op.startswith("v_max") or i.op.startswith("v_cmp") or i.op == "s_cbranch_vccnz"): return False
            if "a_nobr" in EXP and (i.op == "s_cbranch_vccnz"): return False
            if "a_nocvt" in EXP and i.op.startswith("v_cvt"): return False
        if key == "qloop":
            if "q_nodma" in EXP and i.kind == "dma": return False
            if "q_nobar" in EXP and i.kind == "barrier": return False
            if "q_nods" in EXP and i.kind == "dsr": return False
        return True
    inst = [(k_, [i for i in c_ if keep(k_, i)]) for k_, c_ in inst]
    out, full, nfix = resolve_all2(inst)
    if verbose: print("k1 nops inserted:", nfix, "est aloop", est_code(out["aloop"]), "est qloop", est_code(out["qloop"]), "blk0", est_code(out["blk0"]))
    msgs = check_hazards(full, name) + check_hazards(slow.L, name + "_slow")
    seen = set()
    for m_ in msgs:
        key = m_.split("]")[1][:60] + m_.split("->")[-1][-50:]
        if key not in seen: print(m_); seen.add(key)
    order = []
    for key, _ in inst:
        if key not in order: order.append(key)
    text = "\n".join(str(i) for key in order for i in out[key]) + "\n" + slow.text()
    launch = f"; @launch kernel={name} grid=(256,1,1) block=(256,1,1) lds=163840"
    return launch, text, kd(name, 512, 256, 102)

def gen_k2(name="oproj_kernel", NS=4, STAMP=False, verbose=True):
    for Lp in range(126): assert (Lp * 57) >> 9 == Lp // 9
    KS = 4
    PB = KS * NS
    ACC = 16
    AF = 48
    BF = 80
    NV = BF + 8 * PB
    vLane16 = 2; vA = [3, 4, 5, 6]; vDma = [7, 8, 9, 10]; vOut = 11
    P = Prog()
    P(f"""
.globl {name}
.p2align 8
.type {name},@function
{name}:
s_cmp_ge_u32 s2, 256
s_cbranch_scc1 {name}_done
s_load_dwordx2 s[4:5], s[0:1], 32
s_load_dwordx2 s[6:7], s[0:1], 72
s_load_dwordx2 s[8:9], s[0:1], 80
s_load_dwordx2 s[10:11], s[0:1], 96
""")
    if STAMP: P("s_memtime s[80:81]\ns_memrealtime s[98:99]")
    P(f"""
s_and_b32 s20, s2, 7
s_lshr_b32 s21, s2, 3
s_and_b32 s22, s20, 1
s_mul_i32 s23, s22, 31
s_cmp_eq_u32 s23, 31
s_cselect_b32 s23, s21, 0
s_cmp_eq_u32 s23, 31
s_cbranch_scc1 {name}_done
s_mul_i32 s22, s20, 63
s_add_u32 s22, s22, 1
s_lshr_b32 s22, s22, 1
s_add_u32 s22, s22, s21
s_cmp_ge_u32 s22, 126
s_cselect_b32 s24, 1, 0
s_mul_i32 s25, s24, 126
s_sub_u32 s22, s22, s25
s_mul_i32 s26, s22, 57
s_lshr_b32 s26, s26, 9
s_mul_i32 s27, s26, 9
s_sub_u32 s27, s22, s27
v_and_b32 v1, 63, v0
v_lshrrev_b32 v12, 6, v0
v_lshlrev_b32 v{vLane16}, 4, v1
v_readfirstlane_b32 s28, v12
""")
    P(f"""
s_lshl_b32 s29, s26, 3
s_lshl_b32 s30, s28, 1
s_add_u32 s29, s29, s30
s_mul_i32 s30, s24, 112
s_add_u32 s30, s30, s29
s_mul_i32 s30, s30, {TS}
v_lshrrev_b32 v12, 3, v1
v_mul_u32_u24 v12, 1152, v12
v_bfe_u32 v13, v1, 4, 2
v_lshlrev_b32 v13, 1, v13
v_and_b32 v14, 7, v1
v_xor_b32 v13, v13, v14
v_lshl_add_u32 v{vDma[0]}, v13, 4, v12
v_add_u32 v{vDma[1]}, 8192, v{vDma[0]}
v_add_u32 v{vDma[2]}, 16384, v{vDma[0]}
v_add_u32 v{vDma[3]}, 24576, v{vDma[0]}
s_mul_i32 s44, s28, 36864
s_lshl_b32 s46, s27, 7
s_add_u32 s44, s44, s46
s_lshl_b32 s45, s28, 12
s_mov_b32 s47, 0
s_mov_b32 s48, {TS}
s_waitcnt lgkmcnt(0)
s_cmp_eq_u32 s24, 0
s_cselect_b32 s32, s4, s6
s_cselect_b32 s33, s5, s7
s_mov_b32 s34, 4718592
s_mov_b32 s35, 0x00020000
s_add_u32 s36, s10, s30
s_addc_u32 s37, s11, 0
s_mov_b32 s38, 131072
s_mov_b32 s39, 0x00020000
s_add_u32 s56, s36, {TS}
s_addc_u32 s57, s37, 0
s_mov_b32 s58, 131072
s_mov_b32 s59, 0x00020000
s_mov_b32 s40, s8
s_mov_b32 s41, s9
s_mov_b32 s42, 4128768
s_mov_b32 s43, 0x00020000
""")
    def dma(stage):
        slot = stage % NS
        out = [I(f"s_add_u32 m0, s45, {slot*16384}"), I("s_nop 0")]
        for i in range(4):
            d = I(f"buffer_load_dwordx4 v{vDma[i]}, s[32:35], s44 offen offset:{1024*i} lds")
            d.defs = {("lds", stage)}
            out.append(d)
        out.append(I("s_add_u32 s44, s44, 147456"))
        return out
    def bload(g):
        out = []
        for nt in range(2):
            r = BF + 8 * (g % PB) + 4 * nt
            srd = "s[36:39]" if nt == 0 else "s[56:59]"
            out.append(I(f"buffer_load_dwordx4 v[{r}:{r+3}], v{vLane16}, {srd}, s47 offen offset:{1024*(g%4)}"))
        if g % 4 == 3: out.append(I("s_add_u32 s47, s47, 4096"))
        return out
    def areads(g, mt):
        stage = g // KS; slot = stage % NS; ks = g % KS
        r = AF + 16 * (g % 2) + 4 * mt
        out = []
        for half in range(2):
            d = I(f"ds_read_b64_tr_b16 v[{r+2*half}:{r+2*half+1}], v{vA[mt]} offset:{slot*16384 + ks*4096 + half*2048}")
            d.defs |= {("ldsrd", stage)}
            out.append(d)
        return out
    def barrier(stage):
        b = I("s_barrier"); b.uses = {("lds", stage), ("ldsrd", stage - 1)}
        return b
    for st in range(NS - 1):
        P.ext(dma(st))
        for g in range(KS * st, KS * st + KS): P.ext(bload(g))
    for g in range(KS * (NS - 1), PB): P.ext(bload(g))
    P(f"""
v_lshrrev_b32 v12, 2, v1
v_bfe_u32 v13, v12, 1, 2
v_lshlrev_b32 v12, 7, v12
v_lshl_add_u32 v12, v13, 5, v12
v_and_b32 v13, 3, v1
v_lshl_add_u32 v{vA[0]}, v13, 3, v12
v_xor_b32 v{vA[1]}, 32, v{vA[0]}
v_xor_b32 v{vA[2]}, 64, v{vA[0]}
v_xor_b32 v{vA[3]}, 96, v{vA[0]}
""")
    P(f"""
s_lshl_b32 s50, s29, 4
v_and_b32 v12, 15, v1
v_add_u32 v12, s50, v12
v_mul_u32_u24 v12, 2304, v12
v_lshrrev_b32 v13, 4, v1
v_lshlrev_b32 v13, 3, v13
s_mul_i32 s53, s24, 1152
s_lshl_b32 s54, s27, 7
s_add_u32 s53, s53, s54
v_add3_u32 v{vOut}, v12, v13, s53
s_mov_b32 s55, 0
""")
    for i in range(32): P(f"v_mov_b32 v{ACC+i}, 0")
    P.ext([barrier(0)])
    P.ext(dma(NS - 1))
    for mt in range(4): P.ext(areads(0, mt))
    stamp(P, 1, STAMP)
    inst = [("pre", P.L)]
    NIT = 128 // PB
    for it in range(NIT):
        code = [I(f"{name}_loop:")]
        for gl in range(PB):
            g = it * PB + gl
            mf = []
            for mt in range(4):
                for nt in range(2):
                    c = R("v", ACC + 8 * mt + 4 * nt)
                    mf.append(m16(c, R("v", AF + 16 * (g % 2) + 4 * mt), R("v", BF + 8 * (g % PB) + 4 * nt), c))
            S = Sched2(mf)
            gn = g + 1
            lo = 0
            if gn % KS == 0:
                S.put(1, barrier(gn // KS)); lo = 1
            for mt in range(4): lo = S.stream(areads(gn, mt), lo, 6)
            if gn % KS == 0: S.stream(dma(gn // KS + NS - 1), 5, 7)
            S.put(7, bload(g + PB))
            code += S.emit()
        code += [I("s_add_u32 s55, s55, 1"), I(f"s_cmp_lt_u32 s55, {NIT}"), I(f"s_cbranch_scc1 {name}_loop")]
        inst.append(("loop", code))
    E = Prog()
    E("s_nop 7")
    stamp(E, 2, STAMP)
    for mt in range(4):
        for nt in range(2):
            c = ACC + 8 * mt + 4 * nt
            t = AF + 4 * mt + 2 * nt
            E(f"v_cvt_pk_bf16_f32 v{t}, v{c}, v{c+1}\nv_cvt_pk_bf16_f32 v{t+1}, v{c+2}, v{c+3}")
            if nt == 0:
                E(f"buffer_store_dwordx2 v[{t}:{t+1}], v{vOut}, s[40:43], 0 offen offset:{32*mt}")
            else:
                E(f"s_mov_b32 s50, {16*2304}\nbuffer_store_dwordx2 v[{t}:{t+1}], v{vOut}, s[40:43], s50 offen offset:{32*mt}")
    if STAMP:
        E("s_waitcnt vmcnt(0)")
        stamp(E, 3, True)
        E("s_add_u32 s10, s10, 0x100000\ns_addc_u32 s11, s11, 0")
        stamp_store(E, 4, 28, 10, (0, 32))
    E(f"{name}_done:\ns_endpgm")
    inst.append(("end", E.L))
    out, full, nfix = resolve_all2(inst)
    for m_ in check_hazards(full, name)[:10]: print(m_)
    text = "\n".join(str(i) for key in ("pre", "loop", "end") for i in out[key])
    launch = f"; @launch kernel={name} grid=(256,1,1) block=(256,1,1) lds={NS*16384}"
    return launch, text, kd(name, NV, ((NV + 3) // 4) * 4, 102)

def write(path, kernels, header=""):
    with open(path, "w") as f:
        f.write(header)
        for l, _, _ in kernels: f.write(l + "\n")
        f.write('.amdgcn_target "amdgcn-amd-amdhsa--gfx950"\n.text\n')
        for _, c, _ in kernels: f.write(c + "\n")
        f.write('.section .rodata,"a"\n')
        for _, _, k in kernels: f.write(".p2align 6\n" + k + "\n")

HEADER = """; Fused GQA block x2 (Q-proj + attention, then O-proj); generated by a hand-written generator script.
"""

if __name__ == "__main__":
    out = sys.argv[1] if len(sys.argv) > 1 else "full.s"
    st = bool(os.environ.get("STAMP"))
    kw = {}
    if "KVFLAG" in os.environ: kw["KVFLAG"] = os.environ["KVFLAG"]
    for k_ in ("MAPPING", "ROT", "TOUCH", "WOT", "TD"):
        if k_ in os.environ: kw[k_] = int(os.environ[k_])
    if "TFLAG" in os.environ: kw["TFLAG"] = os.environ["TFLAG"]
    write(out, [gen_k1(STAMP=st, **kw), gen_k2(STAMP=st)], HEADER)
```

```python
import os, sys, math, struct
from asmlib import *

TS = 131072
KVT = 8704
KVS = 4 * KVT
XB = [2 * KVS, KVS]
WB = 98304
CSCALE = math.log2(math.e) / math.sqrt(128.0)
THRESH = 8.0

def f2u(x): return struct.unpack("<I", struct.pack("<f", x))[0]

def kd(name, vgpr, acc, sgpr=96):
    return f""".amdhsa_kernel {name}
  .amdhsa_next_free_vgpr {vgpr}
  .amdhsa_next_free_sgpr {sgpr}
  .amdhsa_accum_offset {acc}
  .amdhsa_group_segment_fixed_size 0
  .amdhsa_kernarg_size 104
  .amdhsa_user_sgpr_count 2
  .amdhsa_user_sgpr_kernarg_segment_ptr 1
  .amdhsa_system_sgpr_workgroup_id_x 1
.end_amdhsa_kernel"""

def R(kind, base, n=4): return f"{kind}[{base}:{base+n-1}]"

def m16(d, a, b, c):
    return I(f"v_mfma_f32_16x16x32_bf16 {d}, {a}, {b}, {c}")

def stamp(P, idx, on):
    if on: P(f"s_memtime s[{80+2*idx}:{81+2*idx}]\ns_waitcnt lgkmcnt(0)")

def stamp_store(E, nst, swave, sws, dbgoff=None):
    E("s_waitcnt vmcnt(0)\ns_memrealtime s[76:77]\ns_waitcnt lgkmcnt(0)")
    DBG = os.environ.get("DBG")
    if DBG:
        wg = int(DBG)
        E(f"""s_load_dwordx2 s[72:73], s[0:1], 88
s_waitcnt lgkmcnt(0)
s_add_u32 s72, s72, {dbgoff[0]}
s_addc_u32 s73, s73, 0
s_mov_b32 s74, 64
s_mov_b32 s75, 0x00020000
s_xor_b32 s70, s2, {wg}
s_or_b32 s70, s70, s{swave}
s_lshl_b32 s70, s70, 8
s_add_u32 s70, s70, {dbgoff[1]}
v_mov_b32 v14, s70
v_mbcnt_lo_u32_b32 v15, -1, 0
v_mbcnt_hi_u32_b32 v15, -1, v15
v_cmp_eq_u32 vcc, 0, v15
s_and_saveexec_b64 s[78:79], vcc""")
        for i in range(1, nst):
            E(f"s_sub_u32 s71, s{80+2*i}, s80\nv_mov_b32 v10, s71\nbuffer_store_dword v10, v14, s[72:75], 0 offen offset:{4*(i+1)}\ns_nop 1")
        E(f"v_mov_b32 v10, s76\nbuffer_store_dword v10, v14, s[72:75], 0 offen offset:4\ns_nop 1")
        E(f"v_mov_b32 v10, s98\nbuffer_store_dword v10, v14, s[72:75], 0 offen offset:0\ns_nop 1")
        return
    E(f"""s_add_u32 s72, s{sws}, 0x4000000
s_addc_u32 s73, s{sws+1}, 0
s_mov_b32 s74, 0x100000
s_mov_b32 s75, 0x00020000
s_lshl_b32 s70, s2, 8
s_lshl_b32 s71, s{swave}, 6
s_add_u32 s70, s70, s71
v_mov_b32 v14, s70
v_mbcnt_lo_u32_b32 v15, -1, 0
v_mbcnt_hi_u32_b32 v15, -1, v15
v_cmp_eq_u32 vcc, 0, v15
s_and_saveexec_b64 s[78:79], vcc""")
    for i in range(1, nst):
        E(f"s_sub_u32 s71, s{80+2*i}, s80\nv_mov_b32 v10, s71\nbuffer_store_dword v10, v14, s[72:75], 0 offen offset:{4*i}\ns_nop 1")
    E(f"v_mov_b32 v10, s76\nbuffer_store_dword v10, v14, s[72:75], 0 offen offset:60\ns_nop 1")
    E(f"v_mov_b32 v10, s98\nbuffer_store_dword v10, v14, s[72:75], 0 offen offset:56\ns_nop 1")

def gen_k1(name="attn_kernel", STAMP=False, KVFLAG="", MAPPING=1, ROT=0, TOUCH=0, TFLAG="", WOT=1, TD=2, DLATE=0, DSTEP=5, KROT=0, PPS=4, TS0=5, TSTEP=3, TPK=1, verbose=True):
    sW = 40
    sBLK, sKVH, sBP, sBL, sHH = 41, 42, 43, 44, 45
    sWQoff, sXoff, sKVoff = 46, 47, 48
    sWQm0, sXm0, sKVm0 = 49, 50, 51
    sT0, sT1, sT2 = 52, 53, 54
    sCNT = 55
    sWrd, sXrd = 56, 57
    sTH = 58
    sC = 60
    sKd, sVd = 62, 63
    sKVw = 64
    sWQw = 65
    sK16, sKm48, sKKVS, sKm3KVS = 66, 67, 68, 69
    sT3, sT4 = 70, 71
    sWend, sXend, sTo = 72, 73, 74
    vTq, vTa, vDum = 13, 13, 0
    SX, SWQ, SKV, SO = 24, 28, 32, 36
    vL = 1
    vKVd = [2, 3, 4, 5]
    vKa = 6; vVa = [7, 8, 9, 10]; vMX = 11; vT = 12; vF = 19
    vWa = list(range(20, 28)); vXa = [28, 29]; vWd = [14, 15, 16, 17]; vXd = [30, 31]
    ACC0 = 32
    def grp(g, nt): return ACC0 + (g * 7 + nt) * 8
    def acc(mt, nt): return grp(mt >> 1, nt) + 4 * (mt & 1)
    def Q(nt, g): return R("v", grp(g, nt))
    holes = [grp(g, nt) + 4 for g in range(4) for nt in range(7)] + [20, 24, 28]
    Kf = [[holes[4 * s + g] for g in range(4)] for s in range(2)]
    Vf = [holes[8 + d] for d in range(8)]
    Sb = [[holes[16 + 2 * b + s] for s in range(2)] for b in range(3)]
    Ci = [holes[22 + t] for t in range(7)]
    Pf = holes[29]
    Er = [holes[30] + i for i in range(4)] + [14, 15, 16, 17]
    VGAPS = [0, 1, 2, 3, 4, 5, 6, 8, 10, 12, 14, 15, 16, 17, 18, 19]
    KGAPS = [9, 11, 13, 15, 16, 18, 20, 22]
    sbuf = lambda t: 2 if t == 6 else (t & 1)
    def O(t, d): return R("a", (t * 8 + d) * 4)
    def Lr(t): return R("a", 224 + 4 * t)
    ONES = R("a", 252)
    def Af(i): return 4 * (i % 4)
    def Bf(par, nt): return 16 + (par * 7 + nt) * 4

    OFLAG = (' ' + os.environ['OFLAG']) if os.environ.get('OFLAG') else ''
    kvf = (" " + KVFLAG) if KVFLAG else ""

    P = Prog()
    P(f"""
.globl {name}
.p2align 8
.type {name},@function
{name}:
s_cmp_ge_u32 s2, 256
s_cbranch_scc1 {name}_done
s_load_dwordx8 s[4:11], s[0:1], 0
s_load_dwordx8 s[12:19], s[0:1], 40
s_load_dwordx2 s[20:21], s[0:1], 96
s_load_dwordx2 s[22:23], s[0:1], 32
s_load_dwordx2 s[76:77], s[0:1], 72
""")
    if STAMP: P("s_memtime s[80:81]\ns_memrealtime s[98:99]")
    P(f"""
v_lshrrev_b32 v10, 6, v0
v_and_b32 v{vL}, 63, v0
s_and_b32 s{sT0}, s2, 7
v_readfirstlane_b32 s{sW}, v10
s_lshr_b32 s{sT1}, s2, 3
s_lshr_b32 s{sBLK}, s{sT0}, 2
s_and_b32 s{sT0}, s{sT0}, 3
""")
    if MAPPING == 1:
        P(f"""
s_lshl_b32 s{sKVH}, s{sT0}, 2
s_and_b32 s{sT2}, s{sT1}, 3
s_add_u32 s{sKVH}, s{sKVH}, s{sT2}
s_lshr_b32 s{sBP}, s{sT1}, 2
""")
    else:
        P(f"""
s_lshl_b32 s{sBP}, s{sT0}, 1
s_and_b32 s{sT2}, s{sT1}, 1
s_add_u32 s{sBP}, s{sBP}, s{sT2}
s_lshr_b32 s{sKVH}, s{sT1}, 1
""")
    P(f"""
s_lshr_b32 s{sBL}, s{sW}, 1
s_and_b32 s{sHH}, s{sW}, 1
""")
    P(f"""
v_lshrrev_b32 v10, 5, v{vL}
v_and_b32 v11, 31, v{vL}
s_lshl_b32 s{sT0}, s{sHH}, 3
v_lshlrev_b32 v12, 1, v10
v_or_b32 v12, s{sT0}, v12
v_xor_b32 v12, v12, v11
v_lshlrev_b32 v13, 13, v10
v_lshl_add_u32 v{vWd[0]}, v12, 4, v13
v_add_u32 v{vWd[2]}, {4*8192-2048}, v{vWd[0]}
v_xor_b32 v12, 4, v12
v_lshl_add_u32 v{vWd[1]}, v12, 4, v13
v_add_u32 v{vWd[1]}, {2*8192-1024}, v{vWd[1]}
v_add_u32 v{vWd[3]}, {4*8192-2048}, v{vWd[1]}
""")
    P(f"""
v_lshrrev_b32 v10, 3, v{vL}
v_mul_u32_u24 v10, 1152, v10
v_lshrrev_b32 v11, 4, v{vL}
v_and_b32 v12, 7, v{vL}
v_xor_b32 v11, v11, v12
s_lshl_b32 s{sT0}, s{sHH}, 2
v_xor_b32 v11, s{sT0}, v11
v_lshl_add_u32 v{vXd[0]}, v11, 4, v10
v_xor_b32 v11, 4, v11
v_lshl_add_u32 v{vXd[1]}, v11, 4, v10
""")
    krot_code = f"""s_lshr_b32 s{sT0}, s2, 3
s_mul_i32 s{sT0}, s{sT0}, 5
s_and_b32 s{sT1}, s2, 7
s_lshl_b32 s{sT1}, s{sT1}, 1
s_add_u32 s{sT0}, s{sT0}, s{sT1}
s_lshl_b32 s{sT1}, s{sBL}, 3
s_add_u32 s{sT0}, s{sT0}, s{sT1}
s_and_b32 s{sT0}, s{sT0}, 15
s_lshl_b32 s{sKVoff}, s{sT0}, 13""" if KROT else f"s_mov_b32 s{sKVoff}, 0"
    rot_code = f"""s_and_b32 s{sT0}, s{sKVH}, 3
s_lshl_b32 s{sT0}, s{sT0}, 1
s_add_u32 s{sT0}, s{sT0}, s{sBP}
s_cmp_ge_u32 s{sT0}, 9
s_cselect_b32 s{sT1}, 9, 0
s_sub_u32 s{sT0}, s{sT0}, s{sT1}
s_lshl_b32 s{sT1}, s{sT0}, 19
s_add_u32 s{sWQoff}, s{sWQoff}, s{sT1}
s_lshl_b32 s{sT1}, s{sT0}, 7
s_add_u32 s{sXoff}, s{sXoff}, s{sT1}""" if ROT else ""
    P(f"""
s_lshl_b32 s{sWQoff}, s{sW}, 16
s_lshl_b32 s{sT0}, s{sKVH}, 9
s_add_u32 s{sWQoff}, s{sWQoff}, s{sT0}
s_mul_i32 s{sXoff}, s{sW}, {56*1152}
s_lshl_b32 s{sWQm0}, s{sW}, 12
s_add_u32 s{sWQm0}, s{sWQm0}, {WB+32768}
s_mul_i32 s{sXm0}, s{sW}, {7*1024}
s_add_u32 s{sT0}, s{sXm0}, {XB[1]}
s_add_u32 s{sXm0}, s{sXm0}, {XB[0]}
s_xor_b32 s{sXrd}, s{sXm0}, s{sT0}
s_mul_i32 s{sKVm0}, s{sW}, {KVT}
s_add_u32 s{sWend}, s{sWQoff}, {576*8192}
s_add_u32 s{sXend}, s{sXoff}, 1152
{rot_code}
{krot_code}
s_mov_b32 s{sK16}, 16384
s_mov_b32 s{sKm48}, {(-3*16384) & 0xffffffff}
s_mov_b32 s{sKKVS}, {KVS}
s_mov_b32 s{sKm3KVS}, {(-3*KVS) & 0xffffffff}
s_mov_b32 s{sWQw}, 2
s_mov_b32 s{sKVw}, 0
s_waitcnt lgkmcnt(0)
s_cmp_eq_u32 s{sBLK}, 0
s_cselect_b64 s[4:5], s[4:5], s[12:13]
s_cselect_b64 s[6:7], s[6:7], s[14:15]
s_cselect_b64 s[8:9], s[8:9], s[16:17]
s_cselect_b64 s[10:11], s[10:11], s[18:19]
s_cselect_b64 s[22:23], s[22:23], s[76:77]
s_mul_i32 s{sT0}, s{sBP}, 258048
s_add_u32 s{SX}, s4, s{sT0}
s_addc_u32 s{SX+1}, s5, 0
s_mov_b32 s{SX+2}, 258048
s_mov_b32 s{SX+3}, 0x00020000
s_mov_b32 s{SWQ}, s10
s_mov_b32 s{SWQ+1}, s11
s_mov_b32 s{SWQ+2}, 4718592
s_mov_b32 s{SWQ+3}, 0x00020000
""")

    def flat(groups): return [i for g in groups for i in g]
    def dma_wq(stage):
        out = [[I(f"s_mov_b32 m0, s{sWQm0}"), I(f"s_add_u32 s{sWQw}, s{sWQw}, 1")]]
        for k in range(4):
            d = I(f"buffer_load_dwordx4 v{vWd[k]}, s[{SWQ}:{SWQ+3}], s{sWQoff} offen offset:{1024*k} lds")
            d.defs = {("wq", stage)}; out.append([d])
        out += [[I(f"s_add_u32 s{sWQoff}, s{sWQoff}, {32*8192}")],
                [I(f"s_and_b32 s{sWQw}, s{sWQw}, 3"),
                 I(f"s_cselect_b32 s{sT0}, s{sK16}, s{sKm48}")],
                [I(f"s_add_u32 s{sWQm0}, s{sWQm0}, s{sT0}")]]
        if ROT and stage % 2 == 1:
            out += [[I(f"s_cmp_ge_u32 s{sWQoff}, s{sWend}"), I(f"s_cselect_b32 s{sT0}, {576*8192}, 0")],
                    [I(f"s_sub_u32 s{sWQoff}, s{sWQoff}, s{sT0}")]]
        return out
    def dma_x(stage, part):
        out = [[I(f"s_add_u32 m0, s{sXm0}, {4096*part}")]]
        for i in (range(4) if part == 0 else range(4, 7)):
            d = I(f"buffer_load_dwordx4 v{vXd[i&1]}, s[{SX}:{SX+3}], s{sT1} offen offset:{1024*(i%4)} lds")
            d.defs = {("x", stage)}
            out.append([I(f"s_add_u32 s{sT1}, s{sXoff}, {i*9216 - 1024*(i%4)}"), d])
        if part == 1:
            out.append([I(f"s_add_u32 s{sXoff}, s{sXoff}, 128")])
            if ROT:
                out += [[I(f"s_cmp_ge_u32 s{sXoff}, s{sXend}"), I(f"s_cselect_b32 s{sT1}, 1152, 0")],
                        [I(f"s_sub_u32 s{sXoff}, s{sXoff}, s{sT1}")]]
            out.append([I(f"s_xor_b32 s{sXm0}, s{sXm0}, s{sXrd}")])
        return out
    def dma_kv(stage):
        out = []
        for half in range(2):
            out.append([I(f"s_add_u32 m0, s{sKVm0}, {4352*half}"),
                        I(f"s_add_u32 s{sKVw}, s{sKVw}, 1") if half == 0 else I(f"s_add_u32 s{sKVoff}, s{sKVoff}, 4096")])
            for k in range(4):
                d = I(f"buffer_load_dwordx4 v{vKVd[k]}, s[{SKV}:{SKV+3}], s{sKVoff} offen offset:{1088*k}{kvf} lds")
                d.defs = {("kv", stage)}; out.append([d])
        out += [[I(f"s_and_b32 s{sT0}, s{sKVw}, 3"), I(f"s_cselect_b32 s{sT0}, s{sKKVS}, s{sKm3KVS}")],
                [I(f"s_add_u32 s{sKVoff}, s{sKVoff}, 4096"), I(f"s_add_u32 s{sKVm0}, s{sKVm0}, s{sT0}")]]
        if KROT: out += [[I(f"s_and_b32 s{sKVoff}, s{sKVoff}, 0x1ffff")]]
        if stage >= 4:
            out += [[I(f"s_cmp_eq_u32 s{sKVw}, 16"), I(f"s_cselect_b64 s[{SKV}:{SKV+1}], s[12:13], s[{SKV}:{SKV+1}]"),
                     I(f"s_cselect_b32 s{SKV+2}, {9216+192 if WOT else 0}, s{SKV+2}"), I(f"s_cselect_b32 s{sKVoff}, 0, s{sKVoff}")]]
        return out

    tf = (" " + TFLAG) if TFLAG else ""
    def touch(vreg, step):
        d = I(f"buffer_load_dword v{vDum}, v{vreg}, s[{SKV}:{SKV+3}], s{sTo} offen{tf}")
        d.defs = set()
        return [[d], [I(f"s_add_u32 s{sTo}, s{sTo}, {step}")]]
    def qtouch():
        d = I(f"buffer_load_dword v{vDum}, v{vTq}, s[{SKV}:{SKV+3}], s{sTo} offen offset:192{tf}")
        d.defs = set()
        lg = {2: 1, 4: 2, 8: 3}[PPS]
        return [[I(f"s_lshr_b32 s{sTo}, s17, {lg}")], [I(f"s_mul_i32 s{sTo}, s{sTo}, {TSTEP*8192}")],
                [I(f"s_add_u32 s{sTo}, s{sTo}, s18")], [I(f"s_and_b32 s{sTo}, s{sTo}, 0x1ffff")],
                [I(f"s_and_b32 s19, s17, {PPS-1}")], [I(f"s_lshl_b32 s19, s19, {13-lg}")],
                [I(f"s_add_u32 s{sTo}, s{sTo}, s19"), d], [I("s_add_u32 s17, s17, 1")]]
    for gl in (dma_wq(0), dma_x(0, 0), dma_x(0, 1), dma_wq(1), dma_x(1, 0), dma_wq(2)): P.ext(flat(gl))
    P(f"""
s_cmp_eq_u32 s{sHH}, 0
s_cselect_b64 s[6:7], s[6:7], s[8:9]
s_lshl_b32 s{sT0}, s{sBP}, 1
s_add_u32 s{sT0}, s{sT0}, s{sBL}
s_lshl_b32 s{sT1}, s{sT0}, 4
s_add_u32 s{sT1}, s{sT1}, s{sKVH}
s_lshl_b32 s{sT1}, s{sT1}, 17
s_add_u32 s{SKV}, s6, s{sT1}
s_addc_u32 s{SKV+1}, s7, 0
s_sub_u32 s{SKV}, s{SKV}, 192
s_subb_u32 s{SKV+1}, s{SKV+1}, 0
s_mov_b32 s{SKV+2}, {131072+192}
s_mov_b32 s{SKV+3}, 0x00020000
s_lshl_b32 s{sT1}, s{sBLK}, 4
s_add_u32 s{sT0}, s{sT0}, s{sT1}
s_mul_i32 s{sT0}, s{sT0}, {7*TS}
s_lshl_b32 s{sT1}, s{sKVH}, 1
s_add_u32 s{sT1}, s{sT1}, s{sHH}
s_lshl_b32 s{sT1}, s{sT1}, 12
s_add_u32 s{sT0}, s{sT0}, s{sT1}
s_add_u32 s{SO}, s20, s{sT0}
s_addc_u32 s{SO+1}, s21, 0
s_mov_b32 s{SO+2}, {6*TS+4096}
s_mov_b32 s{SO+3}, 0x00020000
v_lshrrev_b32 v10, 4, v{vL}
v_and_b32 v11, 1, v10
v_lshlrev_b32 v11, 1, v11
v_lshrrev_b32 v12, 1, v10
v_lshl_or_b32 v11, v12, 3, v11
s_cmp_eq_u32 s{sHH}, 0
s_cselect_b64 vcc, -1, 0
v_cndmask_b32 v11, v11, v10, vcc
v_and_b32 v12, 15, v{vL}
v_xor_b32 v11, v11, v12
v_lshlrev_b32 v11, 4, v11
v_lshl_add_u32 v11, v10, 8, v11
v_add_u32 v{vKVd[0]}, 192, v11
v_add_u32 v{vKVd[1]}, 128, v11
v_add_u32 v{vKVd[2]}, 64, v11
v_mov_b32 v{vKVd[3]}, v11
""")
    P(f"v_lshlrev_b32 v{vTq}, {7 - {2: 1, 4: 2, 8: 3}[PPS]}, v{vL}\ns_mov_b32 s17, 0\ns_add_u32 s18, s{sKVoff}, {TS0*8192}")
    P(f"""
s_lshl_b32 s{sT0}, s{sKVH}, 3
s_add_u32 s{sT0}, s{sT0}, s{sBP}
s_lshl_b32 s{sT0}, s{sT0}, 2
s_add_u32 s{sT0}, s{sT0}, s{sW}
s_mul_i32 s{sT0}, s{sT0}, 9216
s_add_u32 s12, s22, s{sT0}
s_addc_u32 s13, s23, 0
s_sub_u32 s12, s12, 192
s_subb_u32 s13, s13, 0
""")
    P("s_mov_b32 s16, 0")
    def wo_touch():
        d = I(f"buffer_load_dword v{vDum}, v{vKVd[3]}, s[12:15], s16 offen"); d.defs = set()
        return [[d], [I("s_add_u32 s16, s16, 1024")]]
    P(f"""
v_lshrrev_b32 v32, 4, v{vL}
v_bfe_u32 v33, v{vL}, 2, 2
v_lshl_add_u32 v34, v32, 3, v33
v_lshlrev_b32 v34, 9, v34
v_and_b32 v35, 1, v32
v_lshl_or_b32 v35, v35, 2, v33
v_lshl_add_u32 v34, v35, 5, v34
v_and_b32 v35, 3, v{vL}
v_lshl_add_u32 v34, v35, 3, v34
s_lshl_b32 s{sT0}, s{sHH}, 8
s_add_u32 s{sT0}, s{sT0}, {WB+32768}
v_add_u32 v{vWa[0]}, s{sT0}, v34
""")
    for mt in range(1, 8): P(f"v_xor_b32 v{vWa[mt]}, {32*mt}, v{vWa[0]}")
    P(f"""
v_and_b32 v33, 15, v{vL}
v_lshrrev_b32 v34, 1, v33
v_xor_b32 v34, v34, v32
v_lshlrev_b32 v34, 4, v34
v_lshl_add_u32 v34, v33, 7, v34
s_mul_i32 s{sT0}, s{sBL}, {112*128}
s_add_u32 s{sT0}, s{sT0}, {XB[0]}
v_add_u32 v{vXa[0]}, s{sT0}, v34
v_xor_b32 v{vXa[1]}, 64, v{vXa[0]}
s_mov_b32 s{sC}, {f2u(CSCALE)}
s_mov_b32 s{sC+1}, {f2u(CSCALE)}
s_mov_b32 s{sTH}, {f2u(THRESH)}
s_mov_b32 s{sCNT}, 0
""")

    P(f"""
v_and_b32 v36, 15, v{vL}
v_lshrrev_b32 v37, 4, v{vL}
v_lshrrev_b32 v38, 2, v36
v_and_b32 v39, 3, v36
v_mul_u32_u24 v40, 1088, v38
v_lshl_add_u32 v40, v39, 8, v40
v_xor_b32 v41, v37, v39
v_lshl_add_u32 v40, v41, 4, v40
s_mul_i32 s{sT0}, s{sBL}, {2*KVT}
v_add_u32 v{vKa}, s{sT0}, v40
""")
    P(f"""
v_mul_u32_u24 v40, 1088, v37
v_lshl_add_u32 v40, v38, 8, v40
v_lshl_add_u32 v40, v39, 3, v40
s_add_u32 s{sT0}, s{sT0}, {KVT}
v_add_u32 v40, s{sT0}, v40
v_and_b32 v41, 1, v38
v_lshrrev_b32 v36, 1, v38
v_lshl_or_b32 v41, v36, 2, v41
""")
    for u in range(4):
        pat = (u & 1) | ((u >> 1) << 2)
        P(f"v_xor_b32 v36, {pat}, v41\nv_lshl_add_u32 v{vVa[u]}, v36, 5, v40")
    P(f"s_mov_b32 s{sKd}, 0\ns_mov_b32 s{sVd}, 0")
    P(f"v_mov_b32 v36, 0x3f803f80\nv_mov_b32 v37, 0")
    for i in range(4): P(f"v_accvgpr_write_b32 a{252+i}, v36")
    for i in range(32): P(f"v_accvgpr_write_b32 a{6*32+i}, v37")
    for i in range(4): P(f"v_accvgpr_write_b32 a{224+24+i}, v37")

    def a_reads(ks, mt):
        out = []
        for half in range(2):
            r = Af(mt) + 2 * half
            d = I(f"ds_read_b64_tr_b16 a[{r}:{r+1}], v{vWa[mt]} offset:{2048*half + 16384*(ks&1)}")
            d.defs |= {("wqrd", ks)}; out.append(d)
        return out
    def b_read(ks, nt):
        r = Bf(ks & 1, nt)
        d = I(f"ds_read_b128 a[{r}:{r+3}], v{vXa[ks&1]} offset:{2048*nt}")
        d.defs |= {("xrd", ks >> 1)}
        return d
    def qbarrier(i):
        b = I("s_barrier")
        b.uses = {("wq", i), ("wqrd", i - 1)}
        if i % 2 == 0: b.uses |= {("x", i // 2)}
        else: b.uses |= {("xrd", i // 2)}
        if i == 18: b.uses |= {("kv", 0)}
        return b

    P.ext([qbarrier(0)])
    P.ext(a_reads(0, 0)); P.ext([b_read(0, nt) for nt in range(7)]); P.ext(a_reads(0, 1))
    stamp(P, 1, STAMP)
    inst = [("pre", P.L)]

    def conv_group(g, nt):
        r = grp(g, nt)
        o = []
        for q in range(4): o.append(I(f"v_pk_mul_f32 v[{r+2*q}:{r+2*q+1}], v[{r+2*q}:{r+2*q+1}], s[{sC}:{sC+1}]"))
        for q in range(4): o.append(I(f"v_cvt_pk_bf16_f32 v{r+q}, v{r+2*q}, v{r+2*q+1}"))
        return o
    def swap_group(g, nt):
        r = grp(g, nt)
        return ([I(f"v_permlane32_swap_b32 v{r}, v{r+2}"), I(f"v_permlane32_swap_b32 v{r+1}, v{r+3}")],
                [I(f"v_permlane16_swap_b32 v{r}, v{r+2}"), I(f"v_permlane16_swap_b32 v{r+1}, v{r+3}")])

    sXdelta = 59
    inst[0][1].append(I(f"s_mov_b32 s{sXdelta}, {(XB[1]-XB[0]) & 0xffffffff}"))
    inst[0][1].append(I(f"s_mov_b32 s{sWrd}, {(-32768) & 0xffffffff}"))

    def dma_in(ks):
        lst = []
        k = ks // 2
        if ks % 2 == 0:
            if k + 1 <= 8: lst += dma_x(k + 1, 1)
            if ks + 3 <= 17: lst += dma_wq(ks + 3)
        else:
            if ks + 3 <= 17: lst += dma_wq(ks + 3)
            if k + 2 <= 8: lst += dma_x(k + 2, 0)
        if ks == 0: lst += dma_kv(0)
        if ks == 15: lst += dma_kv(1)
        if ks == 17: lst += dma_kv(2)
        if (TOUCH & 1) and 2 <= ks <= 17:
            for _ in range(TPK): lst += qtouch()
        return lst

    def qstep(ks):
        mf = []
        for mt in range(8):
            for nt in range(7):
                c = R("v", acc(mt, nt))
                mf.append(m16(c, R("a", Af(mt)), R("a", Bf(ks & 1, nt)), "0" if ks == 0 else c))
        S = Sched2(mf)
        for mt in range(6):
            S.stream(a_reads(ks, mt + 2), 7 * mt, 7 * mt + 3)
        nxt = ks + 1
        if ks % 2 == 0:
            S.stream([b_read(nxt, nt) for nt in range(7)], 2, 20)
        if nxt < 18:
            if nxt % 2 == 0:
                S.stream([I(f"v_add_u32 v{vXa[0]}, s{sXdelta}, v{vXa[0]}"), I(f"v_add_u32 v{vXa[1]}, s{sXdelta}, v{vXa[1]}"),
                          I(f"s_sub_u32 s{sXdelta}, 0, s{sXdelta}")], 20, 36)
                advs = [I(f"v_add_u32 v{vWa[mt]}, s{sWrd}, v{vWa[mt]}") for mt in range(8)]
                S.stream(advs[:7], 32, 40)
                S.put(40, advs[7])
                S.put(41, I(f"s_sub_u32 s{sWrd}, 0, s{sWrd}"))
            S.put(42, qbarrier(nxt))
            S.stream(a_reads(nxt, 0), 42, 45)
            if nxt % 2 == 0: S.stream([b_read(nxt, nt) for nt in range(7)], 43, 52)
            S.stream(a_reads(nxt, 1), 49, 53)
        items = dma_in(ks)
        nd = sum(1 for g_ in items for i_ in g_ if i_.kind in ("dma", "vload"))
        if nd: spaced(S, items, 1, 55, max(3, min(6, 52 // nd)))
        return S

    for k in range(9):
        Ss = [qstep(2 * k), qstep(2 * k + 1)]
        code = []
        key = "qloop" if 1 <= k <= 6 else f"q{k}"
        if key == "qloop": code.append(I(f"{name}_qloop:"))
        for S in Ss: code += S.emit()
        if key == "qloop":
            code += [I(f"s_add_u32 s{sCNT}, s{sCNT}, 1"), I(f"s_cmp_lt_u32 s{sCNT}, 6"), I(f"s_cbranch_scc1 {name}_qloop")]
        inst.append((key, code))
        if STAMP and k in (0, 6):
            T_ = Prog(); stamp(T_, 6 if k == 0 else 7, True); inst.append((f"st{k}", T_.L))

    C = Prog()
    C.ext([qbarrier(18)])
    if TOUCH & 2: C(f"v_lshlrev_b32 v{vTa}, 7, v{vL}")
    late = dma_kv(3)
    if TOUCH & 2:
        first_t = 5 if (TOUCH & 1) else 4
        late += [[I(f"s_mov_b32 s{sTo}, {first_t*8192+192}")]]
        for st_ in range(first_t, 4 + TD): late += touch(vTa, 8192)
    stamp(C, 2, STAMP)
    C(f"s_mov_b32 s{sCNT}, 0\ns_nop 4")
    groups = [(g, nt) for nt in range(7) for g in range(4)]
    prev = None
    for i, (g, nt) in enumerate(groups):
        if late: C.ext(late.pop(0))
        C.ext(conv_group(g, nt))
        if i >= 1: C.ext(swap_group(*groups[i - 1])[0])
        if i >= 2: C.ext(swap_group(*groups[i - 2])[1])
    C("s_nop 1")
    C.ext(swap_group(*groups[-1])[0]); C.ext(swap_group(*groups[-2])[1]); C("s_nop 1"); C.ext(swap_group(*groups[-1])[1])

    def k_read(j, sub, g):
        r = Kf[sub][g]
        d = I(f"ds_read_b128 v[{r}:{r+3}], v{vKa} offset:{64*g + 4352*sub}")
        d.defs |= {("krd", j)}
        return d
    def v_reads(j, dt):
        u = (dt & 1) | ((dt >> 2) << 1)
        out = []
        for half in range(2):
            r = Vf[dt] + 2 * half
            d = I(f"ds_read_b64_tr_b16 v[{r}:{r+1}], v{vVa[u]} offset:{64*((dt>>1)&1) + 4352*half}")
            d.defs |= {("vrd", j)}; out.append(d)
        return out
    def adv(sreg, vregs, st):
        return [[I(f"s_add_u32 s{sreg}, s{sreg}, 1")], [I(f"s_and_b32 s{sreg}, s{sreg}, 3"),
                I(f"s_cselect_b32 s{st}, s{sKKVS}, s{sKm3KVS}")]] + \
               [[I(f"v_add_u32 v{v}, s{st}, v{v}")] for v in vregs]
    def abarrier(j):
        b = I("s_barrier"); b.uses = {("kv", j + 1), ("krd", j), ("vrd", j)}
        return b
    def qk(t, zero):
        o = []
        for sub in range(2):
            d = R("v", Sb[sbuf(t)][sub])
            for g in range(4):
                c = d if g else ("0" if zero else R("v", Ci[t]))
                o.append(m16(d, R("v", Kf[sub][g]), Q(t, g), c))
        return o
    def pv(t, zero):
        o = [m16(O(t, d), R("v", Vf[d]), R("v", Pf), "0" if zero else O(t, d)) for d in range(8)]
        o.append(m16(Lr(t), ONES, R("v", Pf), "0" if zero else Lr(t)))
        return o
    def sregs(t): return [Sb[sbuf(t)][0] + i for i in range(4)] + [Sb[sbuf(t)][1] + i for i in range(4)]

    for sub in range(2):
        for g in range(4): C.ext([k_read(0, sub, g)])
    for dt in range(8): C.ext(v_reads(0, dt))
    C.ext(qk(0, True))
    stamp(C, 3, STAMP)
    inst.append(("conv", C.L))

    slow = Prog()
    def block(j, first):
        mf = []; base = []
        for s in range(7):
            base.append(len(mf))
            if not (first and s == 0): mf += pv((s - 1) % 7, first)
            mf += qk((s + 1) % 7, first and s < 6)
        base.append(len(mf))
        S = Sched2(mf)
        if not first:
            for n, gp in enumerate(VGAPS):
                dt = n // 2
                assert dt <= gp <= 17 + dt - 4
                S.put(gp, v_reads(j, dt)[n % 2])
        for i, gp in enumerate(KGAPS):
            assert 9 + i <= gp <= 17 + 9 + i - 4
            S.put(base[5] + gp, k_read(j + 1, i // 4, i % 4))
        gb = base[2] + 1
        S.put(gb, abarrier(j))
        for t in range(7):
            b0 = base[t]; sr = sregs(t); n = base[t + 1] - b0
            if first:
                ops = [f"v_max3_f32 v{vMX}, v{sr[0]}, v{sr[1]}, v{sr[2]}",
                       f"v_max3_f32 v{vMX}, v{vMX}, v{sr[3]}, v{sr[4]}",
                       f"v_max3_f32 v{vMX}, v{vMX}, v{sr[5]}, v{sr[6]}",
                       f"v_max_f32 v{vMX}, v{vMX}, v{sr[7]}",
                       f"v_mov_b32 v{vT}, v{vMX}", f"v_permlane32_swap_b32 v{vT}, v{vMX}",
                       f"v_max_f32 v{vMX}, v{vT}, v{vMX}",
                       f"v_mov_b32 v{vT}, v{vMX}", f"v_permlane16_swap_b32 v{vT}, v{vMX}",
                       f"v_max_f32 v{vMX}, v{vT}, v{vMX}"]
                ops += [f"v_sub_f32 v{r}, v{r}, v{vMX}" for r in sr]
                ops += [f"v_exp_f32 v{r}, v{r}" for r in sr]
                ops += [f"v_sub_f32 v{Ci[t]+i}, 0, v{vMX}" for i in range(4)]
                for i, o in enumerate(ops):
                    S.put(b0 + min(n - 2, 1 + (i * (n - 3)) // len(ops)), o)
                for q in range(4): S.put(b0 + n - 2, f"v_cvt_pk_bf16_f32 v{Pf+q}, v{sr[2*q]}, v{sr[2*q+1]}")
            else:
                g1 = S.place(f"v_max3_f32 v{vMX}, v{sr[0]}, v{sr[1]}, v{sr[2]}", b0, b0 + 5)
                g2 = S.place(f"v_max3_f32 v{vT}, v{sr[4]}, v{sr[5]}, v{sr[6]}", b0 + 3, b0 + 7)
                g3 = S.place(f"v_max3_f32 v{vMX}, v{vMX}, v{sr[3]}, v{sr[7]}", max(g1, b0 + 3), b0 + 8)
                g4 = S.place(f"v_max_f32 v{vMX}, v{vMX}, v{vT}", max(g2, g3), b0 + 9)
                g5 = S.place(f"v_cmp_lt_f32 vcc, s{sTH}, v{vMX}", g4, b0 + 10)
                gbr = S.place(f"s_cbranch_vccnz {name}_slow{t}\n{name}_back{t}:", g5 + 2, b0 + 12)
                ge = []
                for i in range(8):
                    ge.append(S.place(f"v_exp_f32 v{Er[i]}, v{sr[i]}", b0 + (3 if i >= 4 else 0), b0 + 14))
                for q in range(4):
                    S.place(f"v_cvt_pk_bf16_f32 v{Pf+q}, v{Er[2*q]}, v{Er[2*q+1]}", max(ge[2*q] + 1, ge[2*q+1] + 1, gbr + 1, b0 + 8), b0 + 15)
        spaced(S, dma_kv(j + 4) + (touch(vTa, 8192) if TOUCH & 2 else []), gb + 1 + DLATE, min(base[5] + 6 + DLATE, len(mf) - 2), DSTEP)
        S.stream(adv(sVd, vVa, sT3), base[2], base[6])
        S.stream(adv(sKd, [vKa], sT4), base[3], base[5] + 8)
        return S

    S0 = block(0, True)
    inst.append(("blk0", S0.emit()))
    if STAMP:
        T_ = Prog(); stamp(T_, 8, True); inst.append(("stb", T_.L))
    for j in range(1, 16):
        S = block(j, False)
        trace = [I("s_memtime s[76:77]"), I("s_memrealtime s[78:79]"), I("s_waitcnt lgkmcnt(0)"),
                 I(f"s_mov_b32 m0, s{sCNT}"), I("s_nop 1"), I(f"v_writelane_b32 v18, s76, m0"), I(f"v_writelane_b32 v19, s78, m0")] if os.environ.get("TRACE") else []
        code = [I(f"{name}_aloop:")] + trace + S.emit() + [I(f"s_add_u32 s{sCNT}, s{sCNT}, 1"), I(f"s_cmp_lt_u32 s{sCNT}, 15"),
                                                   I(f"s_cbranch_scc1 {name}_aloop")]
        inst.append(("aloop", code))
        if verbose and j == 1: print("k1 attention block est cycles", S.est(16), "ideal", 16 * len(S.m))

    E = Prog()
    E.ext(pv(6, False))
    stamp(E, 4, STAMP)
    if os.environ.get("TRACE"):
        E(f"""s_add_u32 s72, s20, 0x5000000
s_addc_u32 s73, s21, 0
s_mov_b32 s74, 0x100000
s_mov_b32 s75, 0x00020000
s_lshl_b32 s70, s2, 11
s_lshl_b32 s71, s{sW}, 9
s_add_u32 s70, s70, s71
v_lshlrev_b32 v2, 3, v{vL}
buffer_store_dwordx2 v[18:19], v2, s[72:75], s70 offen
s_waitcnt vmcnt(0)""")
    E(f"v_lshlrev_b32 v2, 4, v{vL}")
    E("s_nop 7")
    tmp = 32
    for t in range(7):
        inv = 16 + 2 * (t & 1)
        E(f"v_accvgpr_read_b32 v{inv}, a{224+4*t}\ns_mov_b32 s{sT0}, {t*TS}\nv_rcp_f32 v{inv}, v{inv}")
        for g in range(4):
            r = tmp + 16 * ((t * 4 + g) % 8)
            for i in range(8): E(f"v_accvgpr_read_b32 v{r+i}, a{(t*8+2*g)*4+i}")
            for q in range(4): E(f"v_pk_mul_f32 v[{r+2*q}:{r+2*q+1}], v[{r+2*q}:{r+2*q+1}], v[{inv}:{inv+1}] op_sel_hi:[1,0]")
            for q in range(4): E(f"v_cvt_pk_bf16_f32 v{r+8+q}, v{r+2*q}, v{r+2*q+1}")
            E(f"buffer_store_dwordx4 v[{r+8}:{r+11}], v2, s[{SO}:{SO+3}], s{sT0} offen offset:{1024*g}{OFLAG}")
    if STAMP:
        stamp(E, 5, True)
        stamp_store(E, 9 if not os.environ.get('DBG') else 6, sW, 20, (512, 0))
    E(f"{name}_done:\ns_endpgm")
    inst.append(("end", E.L))

    for t in range(7):
        sr = sregs(t)
        slow(f"""{name}_slow{t}:
v_mov_b32 v{vT}, v{vMX}
s_nop 1
v_permlane32_swap_b32 v{vT}, v{vMX}
v_max_f32 v{vMX}, v{vT}, v{vMX}
v_mov_b32 v{vT}, v{vMX}
s_nop 1
v_permlane16_swap_b32 v{vT}, v{vMX}
v_max_f32 v{vMX}, v{vT}, v{vMX}
v_max_f32 v{vMX}, 0, v{vMX}
v_exp_f32 v{vF}, -v{vMX}
""")
        for r in sr: slow(f"v_sub_f32 v{r}, v{r}, v{vMX}")
        for i in range(8): slow(f"v_exp_f32 v{Er[i]}, v{sr[i]}")
        for i in range(4): slow(f"v_sub_f32 v{Ci[t]+i}, v{Ci[t]+i}, v{vMX}")
        regs = [t * 32 + i for i in range(32)] + [224 + 4 * t + i for i in range(4)]
        for a in regs:
            slow(f"v_accvgpr_read_b32 v{vT}, a{a}\nv_mul_f32 v{vT}, v{vT}, v{vF}\nv_accvgpr_write_b32 a{a}, v{vT}")
        slow(f"s_nop 1\ns_branch {name}_back{t}")

    EXP = os.environ.get("EXP", "").split(",")
    def keep(key, i):
        if key == "aloop":
            if "a_nodma" in EXP and i.kind == "dma": return False
            if "a_nobar" in EXP and i.kind == "barrier": return False
            if "a_nods" in EXP and i.kind == "dsr": return False
            if "a_noexp" in EXP and i.op == "v_exp_f32": return False
            if "a_nomax" in EXP and (i.op.startswith("v_max") or i.op.startswith("v_cmp") or i.op == "s_cbranch_vccnz"): return False
            if "a_nobr" in EXP and (i.op == "s_cbranch_vccnz"): return False
            if "a_nocvt" in EXP and i.op.startswith("v_cvt"): return False
            if "a_nosum" in EXP and i.kind == "mfma" and "a[252:255]" in i.text: return False
            if "a_nopv" in EXP and i.kind == "mfma" and i.text.split()[1].startswith("a["): return False
        if key == "qloop":
            if "q_nodma" in EXP and i.kind == "dma": return False
            if "q_nobar" in EXP and i.kind == "barrier": return False
            if "q_nods" in EXP and i.kind == "dsr": return False
        return True
    inst = [(k_, [i for i in c_ if keep(k_, i)]) for k_, c_ in inst]
    out, full, nfix = resolve_all2(inst)
    if verbose: print("k1 nops inserted:", nfix, "est aloop", est_code(out["aloop"]), "est qloop", est_code(out["qloop"]), "blk0", est_code(out["blk0"]))
    msgs = check_hazards(full, name) + check_hazards(slow.L, name + "_slow")
    seen = set()
    for m_ in msgs:
        key = m_.split("]")[1][:60] + m_.split("->")[-1][-50:]
        if key not in seen: print(m_); seen.add(key)
    order = []
    for key, _ in inst:
        if key not in order: order.append(key)
    text = "\n".join(str(i) for key in order for i in out[key]) + "\n" + slow.text()
    launch = f"; @launch kernel={name} grid=(256,1,1) block=(256,1,1) lds=163840"
    return launch, text, kd(name, 512, 256, 102)

def gen_k2(name="oproj_kernel", NS=4, STAMP=False, WROT=1, verbose=True):
    for Lp in range(126): assert (Lp * 57) >> 9 == Lp // 9
    KS = 4
    PB = KS * NS
    ACC = 16
    AF = 48
    BF = 80
    NV = BF + 8 * PB
    vLane16 = 2; vA = [3, 4, 5, 6]; vDma = [7, 8, 9, 10]; vOut = 11
    P = Prog()
    P(f"""
.globl {name}
.p2align 8
.type {name},@function
{name}:
s_cmp_ge_u32 s2, 256
s_cbranch_scc1 {name}_done
s_load_dwordx2 s[4:5], s[0:1], 32
s_load_dwordx2 s[6:7], s[0:1], 72
s_load_dwordx2 s[8:9], s[0:1], 80
s_load_dwordx2 s[10:11], s[0:1], 96
""")
    if STAMP: P("s_memtime s[80:81]\ns_memrealtime s[98:99]")
    P(f"""
s_and_b32 s20, s2, 7
s_lshr_b32 s21, s2, 3
s_and_b32 s22, s20, 1
s_mul_i32 s23, s22, 31
s_cmp_eq_u32 s23, 31
s_cselect_b32 s23, s21, 0
s_cmp_eq_u32 s23, 31
s_cbranch_scc1 {name}_done
s_mul_i32 s22, s20, 63
s_add_u32 s22, s22, 1
s_lshr_b32 s22, s22, 1
s_add_u32 s22, s22, s21
s_cmp_ge_u32 s22, 126
s_cselect_b32 s24, 1, 0
s_mul_i32 s25, s24, 126
s_sub_u32 s22, s22, s25
s_mul_i32 s26, s22, 57
s_lshr_b32 s26, s26, 9
s_mul_i32 s27, s26, 9
s_sub_u32 s27, s22, s27
v_and_b32 v1, 63, v0
v_lshrrev_b32 v12, 6, v0
v_lshlrev_b32 v{vLane16}, 4, v1
v_readfirstlane_b32 s28, v12
""")
    P(f"""
s_lshl_b32 s29, s26, 3
s_lshl_b32 s30, s28, 1
s_add_u32 s29, s29, s30
s_mul_i32 s30, s24, 112
s_add_u32 s30, s30, s29
s_mul_i32 s30, s30, {TS}
v_lshrrev_b32 v12, 3, v1
v_mul_u32_u24 v12, 1152, v12
v_bfe_u32 v13, v1, 4, 2
v_lshlrev_b32 v13, 1, v13
v_and_b32 v14, 7, v1
v_xor_b32 v13, v13, v14
v_lshl_add_u32 v{vDma[0]}, v13, 4, v12
v_add_u32 v{vDma[1]}, 8192, v{vDma[0]}
v_add_u32 v{vDma[2]}, 16384, v{vDma[0]}
v_add_u32 v{vDma[3]}, 24576, v{vDma[0]}
s_mul_i32 s44, s28, 36864
s_lshl_b32 s46, s27, 7
s_add_u32 s44, s44, s46
s_lshl_b32 s45, s28, 12
s_mov_b32 s63, s44
s_mul_i32 s62, s26, 3
s_add_u32 s62, s62, s27
s_and_b32 s62, s62, {WROT-1}
s_mov_b32 s60, 0
s_mov_b32 s61, 0
s_mul_i32 s64, s62, 147456
s_add_u32 s44, s63, s64
s_lshl_b32 s47, s62, 12
s_waitcnt lgkmcnt(0)
s_cmp_eq_u32 s24, 0
s_cselect_b32 s32, s4, s6
s_cselect_b32 s33, s5, s7
s_mov_b32 s34, 4718592
s_mov_b32 s35, 0x00020000
s_add_u32 s36, s10, s30
s_addc_u32 s37, s11, 0
s_mov_b32 s38, 131072
s_mov_b32 s39, 0x00020000
s_add_u32 s56, s36, {TS}
s_addc_u32 s57, s37, 0
s_mov_b32 s58, 131072
s_mov_b32 s59, 0x00020000
s_mov_b32 s40, s8
s_mov_b32 s41, s9
s_mov_b32 s42, 4128768
s_mov_b32 s43, 0x00020000
""")
    def dma(stage):
        slot = stage % NS
        out = [I(f"s_add_u32 m0, s45, {slot*16384}"), I("s_nop 0")]
        for i in range(4):
            d = I(f"buffer_load_dwordx4 v{vDma[i]}, s[32:35], s44 offen offset:{1024*i} lds")
            d.defs = {("lds", stage)}
            out.append(d)
        out += [I("s_add_u32 s60, s60, 1"), I("s_add_u32 s64, s60, s62"), I(f"s_and_b32 s64, s64, {WROT-1}"),
                I(f"s_andn2_b32 s65, s60, {WROT-1}"), I("s_or_b32 s64, s64, s65"), I("s_mul_i32 s64, s64, 147456"), I("s_add_u32 s44, s63, s64")]
        return out
    def bload(g):
        out = []
        for nt in range(2):
            r = BF + 8 * (g % PB) + 4 * nt
            srd = "s[36:39]" if nt == 0 else "s[56:59]"
            out.append(I(f"buffer_load_dwordx4 v[{r}:{r+3}], v{vLane16}, {srd}, s47 offen offset:{1024*(g%4)}"))
        if g % 4 == 3:
            out += [I("s_add_u32 s61, s61, 1"), I("s_add_u32 s66, s61, s62"), I(f"s_and_b32 s66, s66, {WROT-1}"),
                    I(f"s_andn2_b32 s67, s61, {WROT-1}"), I("s_or_b32 s66, s66, s67"), I("s_lshl_b32 s47, s66, 12")]
        return out
    def areads(g, mt):
        stage = g // KS; slot = stage % NS; ks = g % KS
        r = AF + 16 * (g % 2) + 4 * mt
        out = []
        for half in range(2):
            d = I(f"ds_read_b64_tr_b16 v[{r+2*half}:{r+2*half+1}], v{vA[mt]} offset:{slot*16384 + ks*4096 + half*2048}")
            d.defs |= {("ldsrd", stage)}
            out.append(d)
        return out
    def barrier(stage):
        b = I("s_barrier"); b.uses = {("lds", stage), ("ldsrd", stage - 1)}
        return b
    for st in range(NS - 1):
        P.ext(dma(st))
        for g in range(KS * st, KS * st + KS): P.ext(bload(g))
    for g in range(KS * (NS - 1), PB): P.ext(bload(g))
    P(f"""
v_lshrrev_b32 v12, 2, v1
v_bfe_u32 v13, v12, 1, 2
v_lshlrev_b32 v12, 7, v12
v_lshl_add_u32 v12, v13, 5, v12
v_and_b32 v13, 3, v1
v_lshl_add_u32 v{vA[0]}, v13, 3, v12
v_xor_b32 v{vA[1]}, 32, v{vA[0]}
v_xor_b32 v{vA[2]}, 64, v{vA[0]}
v_xor_b32 v{vA[3]}, 96, v{vA[0]}
""")
    P(f"""
s_lshl_b32 s50, s29, 4
v_and_b32 v12, 15, v1
v_add_u32 v12, s50, v12
v_mul_u32_u24 v12, 2304, v12
v_lshrrev_b32 v13, 4, v1
v_lshlrev_b32 v13, 3, v13
s_mul_i32 s53, s24, 1152
s_lshl_b32 s54, s27, 7
s_add_u32 s53, s53, s54
v_add3_u32 v{vOut}, v12, v13, s53
s_mov_b32 s55, 0
""")
    for i in range(32): P(f"v_mov_b32 v{ACC+i}, 0")
    P.ext([barrier(0)])
    P.ext(dma(NS - 1))
    for mt in range(4): P.ext(areads(0, mt))
    stamp(P, 1, STAMP)
    inst = [("pre", P.L)]
    NIT = 128 // PB
    for it in range(NIT):
        code = [I(f"{name}_loop:")]
        for gl in range(PB):
            g = it * PB + gl
            mf = []
            for mt in range(4):
                for nt in range(2):
                    c = R("v", ACC + 8 * mt + 4 * nt)
                    mf.append(m16(c, R("v", AF + 16 * (g % 2) + 4 * mt), R("v", BF + 8 * (g % PB) + 4 * nt), c))
            S = Sched2(mf)
            gn = g + 1
            lo = 0
            if gn % KS == 0:
                S.put(1, barrier(gn // KS)); lo = 1
            for mt in range(4): lo = S.stream(areads(gn, mt), lo, 6)
            if gn % KS == 0: S.stream(dma(gn // KS + NS - 1), 5, 7)
            S.put(7, bload(g + PB))
            code += S.emit()
        code += [I("s_add_u32 s55, s55, 1"), I(f"s_cmp_lt_u32 s55, {NIT}"), I(f"s_cbranch_scc1 {name}_loop")]
        inst.append(("loop", code))
    E = Prog()
    E("s_nop 7")
    stamp(E, 2, STAMP)
    for mt in range(4):
        for nt in range(2):
            c = ACC + 8 * mt + 4 * nt
            t = AF + 4 * mt + 2 * nt
            E(f"v_cvt_pk_bf16_f32 v{t}, v{c}, v{c+1}\nv_cvt_pk_bf16_f32 v{t+1}, v{c+2}, v{c+3}")
            if nt == 0:
                E(f"buffer_store_dwordx2 v[{t}:{t+1}], v{vOut}, s[40:43], 0 offen offset:{32*mt}")
            else:
                E(f"s_mov_b32 s50, {16*2304}\nbuffer_store_dwordx2 v[{t}:{t+1}], v{vOut}, s[40:43], s50 offen offset:{32*mt}")
    if STAMP:
        E("s_waitcnt vmcnt(0)")
        stamp(E, 3, True)
        E("s_add_u32 s10, s10, 0x100000\ns_addc_u32 s11, s11, 0")
        stamp_store(E, 4, 28, 10, (0, 32))
    E(f"{name}_done:\ns_endpgm")
    inst.append(("end", E.L))
    out, full, nfix = resolve_all2(inst)
    for m_ in check_hazards(full, name)[:10]: print(m_)
    text = "\n".join(str(i) for key in ("pre", "loop", "end") for i in out[key])
    launch = f"; @launch kernel={name} grid=(256,1,1) block=(256,1,1) lds={NS*16384}"
    return launch, text, kd(name, NV, ((NV + 3) // 4) * 4, 102)

def write(path, kernels, header=""):
    with open(path, "w") as f:
        f.write(header)
        for l, _, _ in kernels: f.write(l + "\n")
        f.write('.amdgcn_target "amdgcn-amd-amdhsa--gfx950"\n.text\n')
        for _, c, _ in kernels: f.write(c + "\n")
        f.write('.section .rodata,"a"\n')
        for _, _, k in kernels: f.write(".p2align 6\n" + k + "\n")

HEADER = """; Fused GQA block x2 (Q-proj + attention, then O-proj); generated by a hand-written generator script.
"""

if __name__ == "__main__":
    out = sys.argv[1] if len(sys.argv) > 1 else "full.s"
    st = bool(os.environ.get("STAMP"))
    kw = {}; kw2 = {}
    for k_ in ("WROT", "NS"):
        if k_ in os.environ: kw2[k_] = int(os.environ[k_])
    if "KVFLAG" in os.environ: kw["KVFLAG"] = os.environ["KVFLAG"]
    for k_ in ("MAPPING", "ROT", "TOUCH", "WOT", "TD", "KROT", "DLATE", "DSTEP", "PPS", "TS0", "TSTEP", "TPK"):
        if k_ in os.environ: kw[k_] = int(os.environ[k_])
    if "TFLAG" in os.environ: kw["TFLAG"] = os.environ["TFLAG"]
    write(out, [gen_k1(STAMP=st, **kw), gen_k2(STAMP=st, **kw2)], HEADER)
```

```python
import os, sys, math, struct
from asmlib import *

TS = 131072
KVT = 8704
KVS = 4 * KVT
XB = [2 * KVS, KVS]
WB = 98304
CSCALE = math.log2(math.e) / math.sqrt(128.0)
THRESH = 8.0

def f2u(x): return struct.unpack("<I", struct.pack("<f", x))[0]

def kd(name, vgpr, acc, sgpr=96):
    return f""".amdhsa_kernel {name}
  .amdhsa_next_free_vgpr {vgpr}
  .amdhsa_next_free_sgpr {sgpr}
  .amdhsa_accum_offset {acc}
  .amdhsa_group_segment_fixed_size 0
  .amdhsa_kernarg_size 104
  .amdhsa_user_sgpr_count 2
  .amdhsa_user_sgpr_kernarg_segment_ptr 1
  .amdhsa_system_sgpr_workgroup_id_x 1
.end_amdhsa_kernel"""

def R(kind, base, n=4): return f"{kind}[{base}:{base+n-1}]"

def m16(d, a, b, c):
    return I(f"v_mfma_f32_16x16x32_bf16 {d}, {a}, {b}, {c}")

STMAP = None
if os.environ.get("PSTAMP"): STMAP = {20: 1, 21: 2, 1: 3, 6: 4, 7: 5, 2: 6, 3: 7, 5: 8}
def stamp(P, idx, on):
    import gen
    if gen.STMAP is not None:
        if idx not in gen.STMAP: return
        idx = gen.STMAP[idx]
    if on: P(f"s_memtime s[{80+2*idx}:{81+2*idx}]\ns_waitcnt lgkmcnt(0)")

def stamp_store(E, nst, swave, sws, dbgoff=None):
    E("s_waitcnt vmcnt(0)\ns_memrealtime s[76:77]\ns_waitcnt lgkmcnt(0)")
    DBG = os.environ.get("DBG")
    if DBG:
        wg = int(DBG)
        E(f"""s_load_dwordx2 s[72:73], s[0:1], 88
s_waitcnt lgkmcnt(0)
s_add_u32 s72, s72, {dbgoff[0]}
s_addc_u32 s73, s73, 0
s_mov_b32 s74, 64
s_mov_b32 s75, 0x00020000
s_xor_b32 s70, s2, {wg}
s_or_b32 s70, s70, s{swave}
s_lshl_b32 s70, s70, 8
s_add_u32 s70, s70, {dbgoff[1]}
v_mov_b32 v14, s70
v_mbcnt_lo_u32_b32 v15, -1, 0
v_mbcnt_hi_u32_b32 v15, -1, v15
v_cmp_eq_u32 vcc, 0, v15
s_and_saveexec_b64 s[78:79], vcc""")
        for i in range(1, nst):
            E(f"s_sub_u32 s71, s{80+2*i}, s80\nv_mov_b32 v10, s71\nbuffer_store_dword v10, v14, s[72:75], 0 offen offset:{4*(i+1)}\ns_nop 1")
        E(f"v_mov_b32 v10, s76\nbuffer_store_dword v10, v14, s[72:75], 0 offen offset:4\ns_nop 1")
        E(f"v_mov_b32 v10, s98\nbuffer_store_dword v10, v14, s[72:75], 0 offen offset:0\ns_nop 1")
        return
    E(f"""s_add_u32 s72, s{sws}, 0x4000000
s_addc_u32 s73, s{sws+1}, 0
s_mov_b32 s74, 0x100000
s_mov_b32 s75, 0x00020000
s_lshl_b32 s70, s2, 8
s_lshl_b32 s71, s{swave}, 6
s_add_u32 s70, s70, s71
v_mov_b32 v14, s70
v_mbcnt_lo_u32_b32 v15, -1, 0
v_mbcnt_hi_u32_b32 v15, -1, v15
v_cmp_eq_u32 vcc, 0, v15
s_and_saveexec_b64 s[78:79], vcc""")
    for i in range(1, nst):
        E(f"s_sub_u32 s71, s{80+2*i}, s80\nv_mov_b32 v10, s71\nbuffer_store_dword v10, v14, s[72:75], 0 offen offset:{4*i}\ns_nop 1")
    E(f"v_mov_b32 v10, s76\nbuffer_store_dword v10, v14, s[72:75], 0 offen offset:60\ns_nop 1")
    E(f"v_mov_b32 v10, s98\nbuffer_store_dword v10, v14, s[72:75], 0 offen offset:56\ns_nop 1")

def gen_k1(name="attn_kernel", STAMP=False, KVFLAG="", MAPPING=1, ROT=0, TOUCH=0, TFLAG="", WOT=1, TD=2, NPRO=6, KV0AT=0, FUSED=0, ZFLAG=0, SOFT=0, VSUM=0, CPF=3, DIST=3, DLATE=0, DSTEP=5, KROT=0, PPS=4, TS0=5, TSTEP=3, TPK=1, verbose=True):
    sW = 40
    sBLK, sKVH, sBP, sBL, sHH = 41, 42, 43, 44, 45
    sWQoff, sXoff, sKVoff = 46, 47, 48
    sWQm0, sXm0, sKVm0 = 49, 50, 51
    sT0, sT1, sT2 = 52, 53, 54
    sCNT = 55
    sWrd, sXrd = 56, 57
    sTH = 58
    sC = 60
    sKd, sVd = 62, 63
    sKVw = 64
    sWQw = 65
    sK16, sKm48, sKKVS, sKm3KVS = 66, 67, 68, 69
    sT3, sT4 = 70, 71
    sWend, sXend, sTo = 72, 73, 74
    vTq, vTa, vDum = 13, 13, 0
    vTS = 18; sNC = 75
    assert SOFT or not VSUM
    SX, SWQ, SKV, SO = 24, 28, 32, 36
    vL = 1
    vKVd = [2, 3, 4, 5]
    vKa = 6; vVa = [7, 8, 9, 10]; vMX = 11; vT = 12; vF = 19
    vWa = list(range(20, 28)); vXa = [28, 29]; vWd = [14, 15, 16, 17]; vXd = [30, 31]
    ACC0 = 32
    def grp(g, nt): return ACC0 + (g * 7 + nt) * 8
    def acc(mt, nt): return grp(mt >> 1, nt) + 4 * (mt & 1)
    def Q(nt, g): return R("v", grp(g, nt))
    holes = [grp(g, nt) + 4 for g in range(4) for nt in range(7)] + [20, 24, 28]
    Kf = [[holes[4 * s + g] for g in range(4)] for s in range(2)]
    Vf = [holes[8 + d] for d in range(8)]
    Sb = [[holes[16 + 2 * b + s] for s in range(2)] for b in range(3)]
    Ci = [holes[22 + t] for t in range(7)]
    Pf = holes[29]
    Er = [holes[30] + i for i in range(4)] + [14, 15, 16, 17]
    VGAPS = [0, 1, 2, 3, 4, 5, 6, 8, 10, 12, 14, 15, 16, 17, 18, 19]
    KGAPS = [9, 11, 13, 15, 16, 18, 20, 22]
    sbuf = lambda t: 2 if t == 6 else (t & 1)
    def O(t, d): return R("a", (t * 8 + d) * 4)
    def Lr(t): return R("a", 224 + 4 * t)
    ONES = R("a", 252)
    def Af(i): return 4 * (i % 4)
    def Bf(par, nt): return 16 + (par * 7 + nt) * 4

    OFLAG = (' ' + os.environ['OFLAG']) if os.environ.get('OFLAG') else ''
    if FUSED: OFLAG = ' sc1'
    kvf = (" " + KVFLAG) if KVFLAG else ""

    P = Prog()
    P(f"""
.globl {name}
.p2align 8
.type {name},@function
{name}:
s_cmp_ge_u32 s2, 256
s_cbranch_scc1 {name}_done
s_load_dwordx8 s[4:11], s[0:1], 0
s_load_dwordx8 s[12:19], s[0:1], 40
s_load_dwordx2 s[20:21], s[0:1], 96
s_load_dwordx2 s[22:23], s[0:1], 32
s_load_dwordx2 s[76:77], s[0:1], 72
""")
    if STAMP: P("s_memtime s[80:81]\ns_memrealtime s[98:99]")
    P(f"""
v_lshrrev_b32 v10, 6, v0
v_and_b32 v{vL}, 63, v0
s_and_b32 s{sT0}, s2, 7
v_readfirstlane_b32 s{sW}, v10
s_lshr_b32 s{sT1}, s2, 3
s_lshr_b32 s{sBLK}, s{sT0}, 2
s_and_b32 s{sT0}, s{sT0}, 3
""")
    if MAPPING == 1:
        P(f"""
s_lshl_b32 s{sKVH}, s{sT0}, 2
s_and_b32 s{sT2}, s{sT1}, 3
s_add_u32 s{sKVH}, s{sKVH}, s{sT2}
s_lshr_b32 s{sBP}, s{sT1}, 2
""")
    elif MAPPING == 3:
        for m_ in range(48): assert (m_ * 52) >> 8 == m_ // 5 and (m_ * 43) >> 8 == m_ // 6
        P(f"""
s_lshl_b32 s{sT0}, s{sT0}, 5
s_add_u32 s{sT0}, s{sT0}, s{sT1}
s_mov_b32 s{sT1}, 0
s_mov_b32 s{sT2}, 0
s_mov_b32 s{sT3}, 52
s_mov_b32 s{sT4}, 5
s_cmp_ge_u32 s{sT0}, 40
s_cselect_b32 s{sT1}, 40, s{sT1}
s_cselect_b32 s{sT2}, 5, s{sT2}
s_cselect_b32 s{sT3}, 43, s{sT3}
s_cselect_b32 s{sT4}, 6, s{sT4}
s_cmp_ge_u32 s{sT0}, 88
s_cselect_b32 s{sT1}, 88, s{sT1}
s_cselect_b32 s{sT2}, 11, s{sT2}
s_cselect_b32 s{sT3}, 52, s{sT3}
s_cselect_b32 s{sT4}, 5, s{sT4}
s_sub_u32 s{sT0}, s{sT0}, s{sT1}
s_mul_i32 s{sBP}, s{sT0}, s{sT3}
s_lshr_b32 s{sBP}, s{sBP}, 8
s_mul_i32 s{sT4}, s{sBP}, s{sT4}
s_sub_u32 s{sT0}, s{sT0}, s{sT4}
s_add_u32 s{sKVH}, s{sT0}, s{sT2}
""")
    else:
        P(f"""
s_lshl_b32 s{sBP}, s{sT0}, 1
s_and_b32 s{sT2}, s{sT1}, 1
s_add_u32 s{sBP}, s{sBP}, s{sT2}
s_lshr_b32 s{sKVH}, s{sT1}, 1
""")
    P(f"""
s_lshr_b32 s{sBL}, s{sW}, 1
s_and_b32 s{sHH}, s{sW}, 1
""")
    if CPF:
        P(f"""
s_getpc_b64 s[96:97]
{name}_pc:
s_sub_u32 s96, s96, {name}_pc-{name}
s_subb_u32 s97, s97, 0
s_lshr_b32 s{sT0}, s2, 3
s_lshl_b32 s{sT0}, s{sT0}, 2
s_add_u32 s{sT0}, s{sT0}, s{sW}
s_lshl_b32 s{sT0}, s{sT0}, 9
v_lshl_add_u32 v13, v{vL}, 3, s{sT0}
s_mov_b32 s{sT0}, code_end-{name}-4
v_min_u32 v13, s{sT0}, v13
""")
    def code_touch():
        d = I(f"global_load_dword v{vDum}, v13, s[96:97]"); d.defs = set()
        return [[d]]
    P(f"""
v_lshrrev_b32 v10, 5, v{vL}
v_and_b32 v11, 31, v{vL}
s_lshl_b32 s{sT0}, s{sHH}, 3
v_lshlrev_b32 v12, 1, v10
v_or_b32 v12, s{sT0}, v12
v_xor_b32 v12, v12, v11
v_lshlrev_b32 v18, 13, v10
v_lshl_add_u32 v{vWd[0]}, v12, 4, v18
v_add_u32 v{vWd[2]}, {4*8192-2048}, v{vWd[0]}
v_xor_b32 v12, 4, v12
v_lshl_add_u32 v{vWd[1]}, v12, 4, v18
v_add_u32 v{vWd[1]}, {2*8192-1024}, v{vWd[1]}
v_add_u32 v{vWd[3]}, {4*8192-2048}, v{vWd[1]}
""")
    P(f"""
v_lshrrev_b32 v10, 3, v{vL}
v_mul_u32_u24 v10, 1152, v10
v_lshrrev_b32 v11, 4, v{vL}
v_and_b32 v12, 7, v{vL}
v_xor_b32 v11, v11, v12
s_lshl_b32 s{sT0}, s{sHH}, 2
v_xor_b32 v11, s{sT0}, v11
v_lshl_add_u32 v{vXd[0]}, v11, 4, v10
v_xor_b32 v11, 4, v11
v_lshl_add_u32 v{vXd[1]}, v11, 4, v10
""")
    krot_code = f"""s_lshr_b32 s{sT0}, s2, 3
s_mul_i32 s{sT0}, s{sT0}, 5
s_and_b32 s{sT1}, s2, 7
s_lshl_b32 s{sT1}, s{sT1}, 1
s_add_u32 s{sT0}, s{sT0}, s{sT1}
s_lshl_b32 s{sT1}, s{sBL}, 3
s_add_u32 s{sT0}, s{sT0}, s{sT1}
s_and_b32 s{sT0}, s{sT0}, 15
s_lshl_b32 s{sKVoff}, s{sT0}, 13""" if KROT else f"s_mov_b32 s{sKVoff}, 0"
    rot_code = f"""s_and_b32 s{sT0}, s{sKVH}, 3
s_lshl_b32 s{sT0}, s{sT0}, 1
s_add_u32 s{sT0}, s{sT0}, s{sBP}
s_cmp_ge_u32 s{sT0}, 9
s_cselect_b32 s{sT1}, 9, 0
s_sub_u32 s{sT0}, s{sT0}, s{sT1}
s_lshl_b32 s{sT1}, s{sT0}, 19
s_add_u32 s{sWQoff}, s{sWQoff}, s{sT1}
s_lshl_b32 s{sT1}, s{sT0}, 7
s_add_u32 s{sXoff}, s{sXoff}, s{sT1}""" if ROT else ""
    P(f"""
s_lshl_b32 s{sWQoff}, s{sW}, 16
s_lshl_b32 s{sT0}, s{sKVH}, 9
s_add_u32 s{sWQoff}, s{sWQoff}, s{sT0}
s_mul_i32 s{sXoff}, s{sW}, {56*1152}
s_lshl_b32 s{sWQm0}, s{sW}, 12
s_add_u32 s{sWQm0}, s{sWQm0}, {WB+32768}
s_mul_i32 s{sXm0}, s{sW}, {7*1024}
s_add_u32 s{sT0}, s{sXm0}, {XB[1]}
s_add_u32 s{sXm0}, s{sXm0}, {XB[0]}
s_xor_b32 s{sXrd}, s{sXm0}, s{sT0}
s_mul_i32 s{sKVm0}, s{sW}, {KVT}
s_add_u32 s{sWend}, s{sWQoff}, {576*8192}
s_add_u32 s{sXend}, s{sXoff}, 1152
{rot_code}
{krot_code}
s_mov_b32 s{sK16}, 16384
s_mov_b32 s{sKm48}, {(-3*16384) & 0xffffffff}
s_mov_b32 s{sKKVS}, {KVS}
s_mov_b32 s{sKm3KVS}, {(-3*KVS) & 0xffffffff}
s_mov_b32 s{sWQw}, 2
s_mov_b32 s{sKVw}, 0
s_waitcnt lgkmcnt(0)
s_cmp_eq_u32 s{sBLK}, 0
s_cselect_b64 s[4:5], s[4:5], s[12:13]
s_cselect_b64 s[6:7], s[6:7], s[14:15]
s_cselect_b64 s[8:9], s[8:9], s[16:17]
s_cselect_b64 s[10:11], s[10:11], s[18:19]
s_cselect_b64 s[22:23], s[22:23], s[76:77]
s_mul_i32 s{sT0}, s{sBP}, 258048
s_add_u32 s{SX}, s4, s{sT0}
s_addc_u32 s{SX+1}, s5, 0
s_mov_b32 s{SX+2}, 258048
s_mov_b32 s{SX+3}, 0x00020000
s_mov_b32 s{SWQ}, s10
s_mov_b32 s{SWQ+1}, s11
s_mov_b32 s{SWQ+2}, 4718592
s_mov_b32 s{SWQ+3}, 0x00020000
""")

    stamp(P, 20, STAMP and bool(os.environ.get("PSTAMP")))
    def flat(groups): return [i for g in groups for i in g]
    def dma_wq(stage):
        out = [[I(f"s_mov_b32 m0, s{sWQm0}"), I(f"s_add_u32 s{sWQw}, s{sWQw}, 1")]]
        for k in range(4):
            d = I(f"buffer_load_dwordx4 v{vWd[k]}, s[{SWQ}:{SWQ+3}], s{sWQoff} offen offset:{1024*k} lds")
            d.defs = {("wq", stage)}; out.append([d])
        out += [[I(f"s_add_u32 s{sWQoff}, s{sWQoff}, {32*8192}")],
                [I(f"s_and_b32 s{sWQw}, s{sWQw}, 3"),
                 I(f"s_cselect_b32 s{sT0}, s{sK16}, s{sKm48}")],
                [I(f"s_add_u32 s{sWQm0}, s{sWQm0}, s{sT0}")]]
        if ROT and stage % 2 == 1:
            out += [[I(f"s_cmp_ge_u32 s{sWQoff}, s{sWend}"), I(f"s_cselect_b32 s{sT0}, {576*8192}, 0")],
                    [I(f"s_sub_u32 s{sWQoff}, s{sWQoff}, s{sT0}")]]
        return out
    def dma_x(stage, part):
        out = [[I(f"s_add_u32 m0, s{sXm0}, {4096*part}")]]
        for i in (range(4) if part == 0 else range(4, 7)):
            d = I(f"buffer_load_dwordx4 v{vXd[i&1]}, s[{SX}:{SX+3}], s{sT1} offen offset:{1024*(i%4)} lds")
            d.defs = {("x", stage)}
            out.append([I(f"s_add_u32 s{sT1}, s{sXoff}, {i*9216 - 1024*(i%4)}"), d])
        if part == 1:
            out.append([I(f"s_add_u32 s{sXoff}, s{sXoff}, 128")])
            if ROT:
                out += [[I(f"s_cmp_ge_u32 s{sXoff}, s{sXend}"), I(f"s_cselect_b32 s{sT1}, 1152, 0")],
                        [I(f"s_sub_u32 s{sXoff}, s{sXoff}, s{sT1}")]]
            out.append([I(f"s_xor_b32 s{sXm0}, s{sXm0}, s{sXrd}")])
        return out
    def dma_kv(stage):
        out = []
        for half in range(2):
            out.append([I(f"s_add_u32 m0, s{sKVm0}, {4352*half}"),
                        I(f"s_add_u32 s{sKVw}, s{sKVw}, 1") if half == 0 else I(f"s_add_u32 s{sKVoff}, s{sKVoff}, 4096")])
            for k in range(4):
                d = I(f"buffer_load_dwordx4 v{vKVd[k]}, s[{SKV}:{SKV+3}], s{sKVoff} offen offset:{1088*k}{kvf} lds")
                d.defs = {("kv", stage)}; out.append([d])
        out += [[I(f"s_and_b32 s{sT0}, s{sKVw}, 3"), I(f"s_cselect_b32 s{sT0}, s{sKKVS}, s{sKm3KVS}")],
                [I(f"s_add_u32 s{sKVoff}, s{sKVoff}, 4096"), I(f"s_add_u32 s{sKVm0}, s{sKVm0}, s{sT0}")]]
        if KROT: out += [[I(f"s_and_b32 s{sKVoff}, s{sKVoff}, 0x1ffff")]]
        if stage >= DIST:
            out += [[I(f"s_cmp_eq_u32 s{sKVw}, 16"), I(f"s_cselect_b64 s[{SKV}:{SKV+1}], s[12:13], s[{SKV}:{SKV+1}]"),
                     I(f"s_cselect_b32 s{SKV+2}, {9216+192 if WOT else 0}, s{SKV+2}"), I(f"s_cselect_b32 s{sKVoff}, 0, s{sKVoff}")]]
        return out

    tf = (" " + TFLAG) if TFLAG else ""
    def touch(vreg, step):
        d = I(f"buffer_load_dword v{vDum}, v{vreg}, s[{SKV}:{SKV+3}], s{sTo} offen{tf}")
        d.defs = set()
        return [[d], [I(f"s_add_u32 s{sTo}, s{sTo}, {step}")]]
    def qtouch():
        d = I(f"buffer_load_dword v{vDum}, v{vTq}, s[{SKV}:{SKV+3}], s{sTo} offen offset:192{tf}")
        d.defs = set()
        lg = {2: 1, 4: 2, 8: 3}[PPS]
        return [[I(f"s_lshr_b32 s{sTo}, s17, {lg}")], [I(f"s_mul_i32 s{sTo}, s{sTo}, {TSTEP*8192}")],
                [I(f"s_add_u32 s{sTo}, s{sTo}, s18")], [I(f"s_and_b32 s{sTo}, s{sTo}, 0x1ffff")],
                [I(f"s_and_b32 s19, s17, {PPS-1}")], [I(f"s_lshl_b32 s19, s19, {13-lg}")],
                [I(f"s_add_u32 s{sTo}, s{sTo}, s19"), d], [I("s_add_u32 s17, s17, 1")]]
    pre_list = [dma_wq(0), dma_x(0, 0), dma_x(0, 1), dma_wq(1), dma_x(1, 0), dma_wq(2)]
    for gl in pre_list[:NPRO]: P.ext(flat(gl))
    if CPF & 1: P.ext(flat(code_touch()))
    P(f"""
s_cmp_eq_u32 s{sHH}, 0
s_cselect_b64 s[6:7], s[6:7], s[8:9]
s_lshl_b32 s{sT0}, s{sBP}, 1
s_add_u32 s{sT0}, s{sT0}, s{sBL}
s_lshl_b32 s{sT1}, s{sT0}, 4
s_add_u32 s{sT1}, s{sT1}, s{sKVH}
s_lshl_b32 s{sT1}, s{sT1}, 17
s_add_u32 s{SKV}, s6, s{sT1}
s_addc_u32 s{SKV+1}, s7, 0
s_sub_u32 s{SKV}, s{SKV}, 192
s_subb_u32 s{SKV+1}, s{SKV+1}, 0
s_mov_b32 s{SKV+2}, {131072+192}
s_mov_b32 s{SKV+3}, 0x00020000
s_lshl_b32 s{sT1}, s{sBLK}, 4
s_add_u32 s{sT0}, s{sT0}, s{sT1}
s_mul_i32 s{sT0}, s{sT0}, {7*TS}
s_lshl_b32 s{sT1}, s{sKVH}, 1
s_add_u32 s{sT1}, s{sT1}, s{sHH}
s_lshl_b32 s{sT1}, s{sT1}, 12
s_add_u32 s{sT0}, s{sT0}, s{sT1}
s_add_u32 s{SO}, s20, s{sT0}
s_addc_u32 s{SO+1}, s21, 0
s_mov_b32 s{SO+2}, {6*TS+4096}
s_mov_b32 s{SO+3}, 0x00020000
v_lshrrev_b32 v10, 4, v{vL}
v_and_b32 v11, 1, v10
v_lshlrev_b32 v11, 1, v11
v_lshrrev_b32 v12, 1, v10
v_lshl_or_b32 v11, v12, 3, v11
s_cmp_eq_u32 s{sHH}, 0
s_cselect_b64 vcc, -1, 0
v_cndmask_b32 v11, v11, v10, vcc
v_and_b32 v12, 15, v{vL}
v_xor_b32 v11, v11, v12
v_lshlrev_b32 v11, 4, v11
v_lshl_add_u32 v11, v10, 8, v11
v_add_u32 v{vKVd[0]}, 192, v11
v_add_u32 v{vKVd[1]}, 128, v11
v_add_u32 v{vKVd[2]}, 64, v11
v_mov_b32 v{vKVd[3]}, v11
""")
    if TOUCH: P(f"v_lshlrev_b32 v{vTq}, {7 - {2: 1, 4: 2, 8: 3}[PPS]}, v{vL}\ns_mov_b32 s17, 0\ns_add_u32 s18, s{sKVoff}, {TS0*8192}")
    P(f"""
s_lshl_b32 s{sT0}, s{sKVH}, 3
s_add_u32 s{sT0}, s{sT0}, s{sBP}
s_lshl_b32 s{sT0}, s{sT0}, 2
s_add_u32 s{sT0}, s{sT0}, s{sW}
s_mul_i32 s{sT0}, s{sT0}, 9216
s_add_u32 s12, s22, s{sT0}
s_addc_u32 s13, s23, 0
s_sub_u32 s12, s12, 192
s_subb_u32 s13, s13, 0
""")
    P("s_mov_b32 s16, 0")
    if FUSED:
        P(f"""
s_lshl_b32 s90, s{sBLK}, 3
s_add_u32 s90, s90, s{sBP}
s_lshl_b32 s90, s90, 7
s_lshl_b32 s{sT0}, s{sKVH}, 2
s_add_u32 s90, s90, s{sT0}
s_add_u32 s90, s90, 32768
s_mov_b32 s91, s{sW}
s_load_dwordx2 s[92:93], s[0:1], 88
s_memrealtime s[18:19]
s_waitcnt lgkmcnt(0)
s_mov_b32 s94, 256
s_mov_b32 s95, 0x00020000
s_or_b32 s{sT0}, s2, s{sW}
s_cmp_lg_u32 s{sT0}, 0
s_cbranch_scc1 {name}_nn
s_or_b32 s18, s18, 1
v_mov_b32 v10, s18
v_mov_b32 v11, 0
s_mov_b64 exec, 1""")
        ns_ = I("buffer_store_dword v10, v11, s[92:95], 0 offen sc1"); ns_.kind = "misc"
        P.ext([ns_])
        P(f"s_mov_b64 exec, -1\n{name}_nn:")
    def wo_touch():
        d = I(f"buffer_load_dword v{vDum}, v{vKVd[3]}, s[12:15], s16 offen"); d.defs = set()
        return [[d], [I("s_add_u32 s16, s16, 1024")]]
    P(f"""
v_lshrrev_b32 v32, 4, v{vL}
v_bfe_u32 v33, v{vL}, 2, 2
v_lshl_add_u32 v34, v32, 3, v33
v_lshlrev_b32 v34, 9, v34
v_and_b32 v35, 1, v32
v_lshl_or_b32 v35, v35, 2, v33
v_lshl_add_u32 v34, v35, 5, v34
v_and_b32 v35, 3, v{vL}
v_lshl_add_u32 v34, v35, 3, v34
s_lshl_b32 s{sT0}, s{sHH}, 8
s_add_u32 s{sT0}, s{sT0}, {WB+32768}
v_add_u32 v{vWa[0]}, s{sT0}, v34
""")
    for mt in range(1, 8): P(f"v_xor_b32 v{vWa[mt]}, {32*mt}, v{vWa[0]}")
    P(f"""
v_and_b32 v33, 15, v{vL}
v_lshrrev_b32 v34, 1, v33
v_xor_b32 v34, v34, v32
v_lshlrev_b32 v34, 4, v34
v_lshl_add_u32 v34, v33, 7, v34
s_mul_i32 s{sT0}, s{sBL}, {112*128}
s_add_u32 s{sT0}, s{sT0}, {XB[0]}
v_add_u32 v{vXa[0]}, s{sT0}, v34
v_xor_b32 v{vXa[1]}, 64, v{vXa[0]}
s_mov_b32 s{sC}, {f2u(CSCALE)}
s_mov_b32 s{sC+1}, {f2u(CSCALE)}
s_mov_b32 s{sNC}, {f2u(-CSCALE)}
s_mov_b32 s{sTH}, {f2u(THRESH / CSCALE if SOFT else THRESH)}
s_mov_b32 s{sCNT}, 0
""")

    P(f"""
v_and_b32 v36, 15, v{vL}
v_lshrrev_b32 v37, 4, v{vL}
v_lshrrev_b32 v38, 2, v36
v_and_b32 v39, 3, v36
v_mul_u32_u24 v40, 1088, v38
v_lshl_add_u32 v40, v39, 8, v40
v_xor_b32 v41, v37, v39
v_lshl_add_u32 v40, v41, 4, v40
s_mul_i32 s{sT0}, s{sBL}, {2*KVT}
v_add_u32 v{vKa}, s{sT0}, v40
""")
    P(f"""
v_mul_u32_u24 v40, 1088, v37
v_lshl_add_u32 v40, v38, 8, v40
v_lshl_add_u32 v40, v39, 3, v40
s_add_u32 s{sT0}, s{sT0}, {KVT}
v_add_u32 v40, s{sT0}, v40
v_and_b32 v41, 1, v38
v_lshrrev_b32 v36, 1, v38
v_lshl_or_b32 v41, v36, 2, v41
""")
    for u in range(4):
        pat = (u & 1) | ((u >> 1) << 2)
        P(f"v_xor_b32 v36, {pat}, v41\nv_lshl_add_u32 v{vVa[u]}, v36, 5, v40")
    P(f"s_mov_b32 s{sKd}, 0\ns_mov_b32 s{sVd}, 0")
    P(f"v_mov_b32 v36, 0x3f803f80\nv_mov_b32 v37, 0")
    for i in range(4): P(f"v_accvgpr_write_b32 a{252+i}, v36")
    for i in range(32): P(f"v_accvgpr_write_b32 a{6*32+i}, v37")
    for i in range(4): P(f"v_accvgpr_write_b32 a{224+24+i}, v37")

    def a_reads(ks, mt):
        out = []
        for half in range(2):
            r = Af(mt) + 2 * half
            d = I(f"ds_read_b64_tr_b16 a[{r}:{r+1}], v{vWa[mt]} offset:{2048*half + 16384*(ks&1)}")
            d.defs |= {("wqrd", ks)}; out.append(d)
        return out
    def b_read(ks, nt):
        r = Bf(ks & 1, nt)
        d = I(f"ds_read_b128 a[{r}:{r+3}], v{vXa[ks&1]} offset:{2048*nt}")
        d.defs |= {("xrd", ks >> 1)}
        return d
    def qbarrier(i):
        b = I("s_barrier")
        b.uses = {("wq", i), ("wqrd", i - 1)}
        if i % 2 == 0: b.uses |= {("x", i // 2)}
        else: b.uses |= {("xrd", i // 2)}
        if i == 18: b.uses |= {("kv", 0)}
        return b

    stamp(P, 21, STAMP and bool(os.environ.get("PSTAMP")))
    P.ext([qbarrier(0)])
    P.ext(a_reads(0, 0)); P.ext([b_read(0, nt) for nt in range(7)]); P.ext(a_reads(0, 1))
    stamp(P, 1, STAMP)
    inst = [("pre", P.L)]

    def conv_group(g, nt):
        r = grp(g, nt)
        o = []
        if not SOFT:
            for q in range(4): o.append(I(f"v_pk_mul_f32 v[{r+2*q}:{r+2*q+1}], v[{r+2*q}:{r+2*q+1}], s[{sC}:{sC+1}]"))
        for q in range(4): o.append(I(f"v_cvt_pk_bf16_f32 v{r+q}, v{r+2*q}, v{r+2*q+1}"))
        return o
    def swap_group(g, nt):
        r = grp(g, nt)
        return ([I(f"v_permlane32_swap_b32 v{r}, v{r+2}"), I(f"v_permlane32_swap_b32 v{r+1}, v{r+3}")],
                [I(f"v_permlane16_swap_b32 v{r}, v{r+2}"), I(f"v_permlane16_swap_b32 v{r+1}, v{r+3}")])

    sXdelta = 59
    inst[0][1].append(I(f"s_mov_b32 s{sXdelta}, {(XB[1]-XB[0]) & 0xffffffff}"))
    inst[0][1].append(I(f"s_mov_b32 s{sWrd}, {(-32768) & 0xffffffff}"))

    def dma_in(ks):
        lst = []
        k = ks // 2
        if ks == 0:
            for gl in pre_list[NPRO:]: lst += gl
        if ks % 2 == 0:
            if k + 1 <= 8: lst += dma_x(k + 1, 1)
            if ks + 3 <= 17: lst += dma_wq(ks + 3)
        else:
            if ks + 3 <= 17: lst += dma_wq(ks + 3)
            if k + 2 <= 8: lst += dma_x(k + 2, 0)
        if ks == KV0AT: lst += dma_kv(0)
        if ks == 14 and (CPF & 2): lst += code_touch()
        if ks == 15: lst += dma_kv(1)
        if ks == 17 and DIST >= 3: lst += dma_kv(2)
        if (TOUCH & 1) and 2 <= ks <= 17:
            for _ in range(TPK): lst += qtouch()
        return lst

    def qstep(ks):
        mf = []
        for mt in range(8):
            for nt in range(7):
                c = R("v", acc(mt, nt))
                mf.append(m16(c, R("a", Af(mt)), R("a", Bf(ks & 1, nt)), "0" if ks == 0 else c))
        S = Sched2(mf)
        for mt in range(6):
            S.stream(a_reads(ks, mt + 2), 7 * mt, 7 * mt + 3)
        nxt = ks + 1
        if ks % 2 == 0:
            S.stream([b_read(nxt, nt) for nt in range(7)], 2, 20)
        if nxt < 18:
            if nxt % 2 == 0:
                S.stream([I(f"v_add_u32 v{vXa[0]}, s{sXdelta}, v{vXa[0]}"), I(f"v_add_u32 v{vXa[1]}, s{sXdelta}, v{vXa[1]}"),
                          I(f"s_sub_u32 s{sXdelta}, 0, s{sXdelta}")], 20, 36)
                advs = [I(f"v_add_u32 v{vWa[mt]}, s{sWrd}, v{vWa[mt]}") for mt in range(8)]
                S.stream(advs[:7], 32, 40)
                S.put(40, advs[7])
                S.put(41, I(f"s_sub_u32 s{sWrd}, 0, s{sWrd}"))
            S.put(42, qbarrier(nxt))
            S.stream(a_reads(nxt, 0), 42, 45)
            if nxt % 2 == 0: S.stream([b_read(nxt, nt) for nt in range(7)], 43, 52)
            S.stream(a_reads(nxt, 1), 49, 53)
        items = dma_in(ks)
        nd = sum(1 for g_ in items for i_ in g_ if i_.kind in ("dma", "vload"))
        if nd: spaced(S, items, 1, 55, max(2, min(6, 52 // nd)))
        return S

    for k in range(9):
        Ss = [qstep(2 * k), qstep(2 * k + 1)]
        code = []
        key = "qloop" if 1 <= k <= 6 else f"q{k}"
        if key == "qloop": code.append(I(f"{name}_qloop:"))
        for S in Ss: code += S.emit()
        if key == "qloop":
            code += [I(f"s_add_u32 s{sCNT}, s{sCNT}, 1"), I(f"s_cmp_lt_u32 s{sCNT}, 6"), I(f"s_cbranch_scc1 {name}_qloop")]
        inst.append((key, code))
        if STAMP and k in (0, 6):
            T_ = Prog(); stamp(T_, 6 if k == 0 else 7, True); inst.append((f"st{k}", T_.L))

    C = Prog()
    C.ext([qbarrier(18)])
    if TOUCH & 2: C(f"v_lshlrev_b32 v{vTa}, 7, v{vL}")
    late = dma_kv(3) if DIST >= 4 else []
    if TOUCH & 2:
        first_t = 5 if (TOUCH & 1) else 4
        late += [[I(f"s_mov_b32 s{sTo}, {first_t*8192+192}")]]
        for st_ in range(first_t, 4 + TD): late += touch(vTa, 8192)
    stamp(C, 2, STAMP)
    C(f"s_mov_b32 s{sCNT}, 0\ns_nop 4")
    groups = [(g, nt) for nt in range(7) for g in range(4)]
    prev = None
    for i, (g, nt) in enumerate(groups):
        if late: C.ext(late.pop(0))
        C.ext(conv_group(g, nt))
        if i >= 1: C.ext(swap_group(*groups[i - 1])[0])
        if i >= 2: C.ext(swap_group(*groups[i - 2])[1])
    C("s_nop 1")
    C.ext(swap_group(*groups[-1])[0]); C.ext(swap_group(*groups[-2])[1]); C("s_nop 1"); C.ext(swap_group(*groups[-1])[1])

    def k_read(j, sub, g):
        r = Kf[sub][g]
        d = I(f"ds_read_b128 v[{r}:{r+3}], v{vKa} offset:{64*g + 4352*sub}")
        d.defs |= {("krd", j)}
        return d
    def v_reads(j, dt):
        u = (dt & 1) | ((dt >> 2) << 1)
        out = []
        for half in range(2):
            r = Vf[dt] + 2 * half
            d = I(f"ds_read_b64_tr_b16 v[{r}:{r+1}], v{vVa[u]} offset:{64*((dt>>1)&1) + 4352*half}")
            d.defs |= {("vrd", j)}; out.append(d)
        return out
    def adv(sreg, vregs, st):
        return [[I(f"s_add_u32 s{sreg}, s{sreg}, 1")], [I(f"s_and_b32 s{sreg}, s{sreg}, 3"),
                I(f"s_cselect_b32 s{st}, s{sKKVS}, s{sKm3KVS}")]] + \
               [[I(f"v_add_u32 v{v}, s{st}, v{v}")] for v in vregs]
    def abarrier(j):
        b = I("s_barrier"); b.uses = {("kv", j + 1), ("krd", j), ("vrd", j)}
        return b
    def qk(t, zero):
        o = []
        for sub in range(2):
            d = R("v", Sb[sbuf(t)][sub])
            for g in range(4):
                c = d if g else ("0" if (zero or SOFT) else R("v", Ci[t]))
                o.append(m16(d, R("v", Kf[sub][g]), Q(t, g), c))
        return o
    def pv(t, zero):
        o = [m16(O(t, d), R("v", Vf[d]), R("v", Pf), "0" if zero else O(t, d)) for d in range(8)]
        if not VSUM: o.append(m16(Lr(t), ONES, R("v", Pf), "0" if zero else Lr(t)))
        return o
    def sregs(t): return [Sb[sbuf(t)][0] + i for i in range(4)] + [Sb[sbuf(t)][1] + i for i in range(4)]

    for sub in range(2):
        for g in range(4): C.ext([k_read(0, sub, g)])
    for dt in range(8): C.ext(v_reads(0, dt))
    C.ext(qk(0, True))
    stamp(C, 3, STAMP)
    inst.append(("conv", C.L))

    slow = Prog()
    def block(j, first):
        mf = []; base = []
        for s in range(7):
            base.append(len(mf))
            if not (first and s == 0): mf += pv((s - 1) % 7, first)
            mf += qk((s + 1) % 7, first and s < 6)
        base.append(len(mf))
        S = Sched2(mf)
        NPV = 8 if VSUM else 9; SL = NPV + 8
        if not first:
            for n, gp in enumerate(VGAPS):
                dt = n // 2
                gp = min(gp, SL + dt - 4)
                assert dt <= gp
                S.put(gp, v_reads(j, dt)[n % 2])
        for i, gp in enumerate(KGAPS):
            gp = gp - 9 + NPV
            assert NPV + i <= gp <= SL + NPV + i - 4
            S.put(base[5] + gp, k_read(j + 1, i // 4, i % 4))
        gb = base[2] + 1
        S.put(gb, abarrier(j))
        for t in range(7):
            b0 = base[t]; sr = sregs(t); n = base[t + 1] - b0
            NM, TH, LS = Ci[t], Ci[t] + 1, Ci[t] + 2
            if first:
                ops = [f"v_max3_f32 v{vMX}, v{sr[0]}, v{sr[1]}, v{sr[2]}",
                       f"v_max3_f32 v{vMX}, v{vMX}, v{sr[3]}, v{sr[4]}",
                       f"v_max3_f32 v{vMX}, v{vMX}, v{sr[5]}, v{sr[6]}",
                       f"v_max_f32 v{vMX}, v{vMX}, v{sr[7]}",
                       f"v_mov_b32 v{vT}, v{vMX}", f"v_permlane32_swap_b32 v{vT}, v{vMX}",
                       f"v_max_f32 v{vMX}, v{vT}, v{vMX}",
                       f"v_mov_b32 v{vT}, v{vMX}", f"v_permlane16_swap_b32 v{vT}, v{vMX}",
                       f"v_max_f32 v{vMX}, v{vT}, v{vMX}"]
                if SOFT:
                    ops += [f"v_mul_f32 v{NM}, s{sNC}, v{vMX}"]
                    ops += [f"v_fma_f32 v{r}, v{r}, s{sC}, v{NM}" for r in sr]
                    ops += [f"v_add_f32 v{TH}, s{sTH}, v{vMX}"]
                else:
                    ops += [f"v_sub_f32 v{r}, v{r}, v{vMX}" for r in sr]
                ops += [f"v_exp_f32 v{r}, v{r}" for r in sr]
                if not SOFT: ops += [f"v_sub_f32 v{Ci[t]+i}, 0, v{vMX}" for i in range(4)]
                if VSUM:
                    ops += [f"v_add_f32 v{LS}, v{sr[0]}, v{sr[1]}"] + [f"v_add_f32 v{LS}, v{LS}, v{sr[i]}" for i in range(2, 8)]
                for i, o in enumerate(ops):
                    S.put(b0 + min(n - 2, 1 + (i * (n - 3)) // len(ops)), o)
                for q in range(4): S.put(b0 + n - 2, f"v_cvt_pk_bf16_f32 v{Pf+q}, v{sr[2*q]}, v{sr[2*q+1]}")
            elif SOFT:
                e0 = b0 + SL - 1
                gbr = S.put(e0, f"s_cbranch_vccnz {name}_slow{t}\n{name}_back{t}:")
                if VSUM: S.put(e0, f"v_add_f32 v{LS}, v{LS}, v{vTS}")
                ge = []
                for i in range(8):
                    tgt = b0 + (i * (SL - 4)) // 8 + (0 if i < 4 else 0)
                    gf = S.place(f"v_fma_f32 v{Er[i]}, v{sr[i]}, s{sC}, v{NM}", max(tgt, b0 + (3 if i >= 4 else 0)), max(tgt, b0 + 3) + 1)
                    ge.append(S.place(f"v_exp_f32 v{Er[i]}, v{Er[i]}", gf + 1, gf + 2))
                g1 = S.place(f"v_max3_f32 v{vMX}, v{sr[0]}, v{sr[1]}, v{sr[2]}", b0, b0 + 6)
                g2 = S.place(f"v_max3_f32 v{vT}, v{sr[4]}, v{sr[5]}, v{sr[6]}", b0 + 3, b0 + 8)
                g3 = S.place(f"v_max3_f32 v{vMX}, v{vMX}, v{sr[3]}, v{sr[7]}", max(g1, b0 + 3), b0 + 10)
                g4 = S.place(f"v_max_f32 v{vMX}, v{vMX}, v{vT}", max(g2, g3), b0 + 11)
                g5 = S.place(f"v_cmp_lt_f32 vcc, v{TH}, v{vMX}", g4, e0 - 2)
                for q in range(4):
                    S.place(f"v_cvt_pk_bf16_f32 v{Pf+q}, v{Er[2*q]}, v{Er[2*q+1]}", max(ge[2*q] + 1, ge[2*q+1] + 1, b0 + NPV - 1), e0 - 1)
                if VSUM:
                    ga = S.place(f"v_add_f32 v{vTS}, v{Er[0]}, v{Er[1]}", ge[1] + 1, e0 - 1)
                    for i in range(2, 8):
                        ga = S.place(f"v_add_f32 v{vTS}, v{vTS}, v{Er[i]}", max(ga, ge[i] + 1), min(max(ga, ge[i] + 1) + 3, e0 - 1))
            else:
                g1 = S.place(f"v_max3_f32 v{vMX}, v{sr[0]}, v{sr[1]}, v{sr[2]}", b0, b0 + 5)
                g2 = S.place(f"v_max3_f32 v{vT}, v{sr[4]}, v{sr[5]}, v{sr[6]}", b0 + 3, b0 + 7)
                g3 = S.place(f"v_max3_f32 v{vMX}, v{vMX}, v{sr[3]}, v{sr[7]}", max(g1, b0 + 3), b0 + 8)
                g4 = S.place(f"v_max_f32 v{vMX}, v{vMX}, v{vT}", max(g2, g3), b0 + 9)
                g5 = S.place(f"v_cmp_lt_f32 vcc, s{sTH}, v{vMX}", g4, b0 + 10)
                gbr = S.place(f"s_cbranch_vccnz {name}_slow{t}\n{name}_back{t}:", g5 + 2, b0 + 12)
                ge = []
                for i in range(8):
                    ge.append(S.place(f"v_exp_f32 v{Er[i]}, v{sr[i]}", b0 + (3 if i >= 4 else 0), b0 + 14))
                for q in range(4):
                    S.place(f"v_cvt_pk_bf16_f32 v{Pf+q}, v{Er[2*q]}, v{Er[2*q+1]}", max(ge[2*q] + 1, ge[2*q+1] + 1, gbr + 1, b0 + 8), b0 + 15)
        spaced(S, dma_kv(j + DIST) + (touch(vTa, 8192) if TOUCH & 2 else []), gb + 1 + DLATE, min(base[5] + 6 + DLATE, len(mf) - 2), DSTEP)
        S.stream(adv(sVd, vVa, sT3), base[2], base[6])
        S.stream(adv(sKd, [vKa], sT4), base[3], base[5] + NPV - 1)
        return S

    S0 = block(0, True)
    inst.append(("blk0", S0.emit()))
    if STAMP:
        T_ = Prog(); stamp(T_, 8, True); inst.append(("stb", T_.L))
    for j in range(1, 16):
        S = block(j, False)
        trace = [I("s_memtime s[76:77]"), I("s_memrealtime s[78:79]"), I("s_waitcnt lgkmcnt(0)"),
                 I(f"s_mov_b32 m0, s{sCNT}"), I("s_nop 1"), I(f"v_writelane_b32 v18, s76, m0"), I(f"v_writelane_b32 v19, s78, m0")] if os.environ.get("TRACE") else []
        code = [I(f"{name}_aloop:")] + trace + S.emit() + [I(f"s_add_u32 s{sCNT}, s{sCNT}, 1"), I(f"s_cmp_lt_u32 s{sCNT}, 15"),
                                                   I(f"s_cbranch_scc1 {name}_aloop")]
        inst.append(("aloop", code))
        if verbose and j == 1: print("k1 attention block est cycles", S.est(16), "ideal", 16 * len(S.m))

    E = Prog()
    E.ext(pv(6, False))
    stamp(E, 4, STAMP)
    if os.environ.get("TRACE"):
        E(f"""s_add_u32 s72, s20, 0x5000000
s_addc_u32 s73, s21, 0
s_mov_b32 s74, 0x100000
s_mov_b32 s75, 0x00020000
s_lshl_b32 s70, s2, 11
s_lshl_b32 s71, s{sW}, 9
s_add_u32 s70, s70, s71
v_lshlrev_b32 v2, 3, v{vL}
buffer_store_dwordx2 v[18:19], v2, s[72:75], s70 offen
s_waitcnt vmcnt(0)""")
    if FUSED:
        E(f"s_waitcnt vmcnt(0)\ns_barrier\nv_mov_b32 v24, 0\nbuffer_load_dword v25, v24, s[92:95], 0 offen sc1")
    if ZFLAG:
        E(f"""s_add_u32 s72, s20, {ZFLAG}
s_addc_u32 s73, s21, 0
s_mov_b32 s74, 32768
s_mov_b32 s75, 0x00020000
s_lshl_b32 s70, s2, 7
v_and_b32 v2, 31, v{vL}
v_lshlrev_b32 v2, 2, v2
v_mov_b32 v10, 0
buffer_store_dword v10, v2, s[72:75], s70 offen""")
    E(f"v_lshlrev_b32 v2, 4, v{vL}")
    E("s_nop 7")
    tmp = 32
    if VSUM:
        for t in range(7): E(f"v_mov_b32 v{3+t}, v{Ci[t]+2}\nv_mov_b32 v{11+t}, v{Ci[t]+2}")
        E("s_nop 1")
        for t in range(7): E(f"v_permlane32_swap_b32 v{3+t}, v{11+t}")
        for t in range(7): E(f"v_add_f32 v{3+t}, v{3+t}, v{11+t}")
        for t in range(7): E(f"v_mov_b32 v{11+t}, v{3+t}")
        E("s_nop 1")
        for t in range(7): E(f"v_permlane16_swap_b32 v{3+t}, v{11+t}")
        for t in range(7): E(f"v_add_f32 v{3+t}, v{3+t}, v{11+t}")
    for t in range(7):
        inv = 20 + 2 * (t & 1)
        if VSUM: E(f"s_mov_b32 s{sT0}, {t*TS}\nv_rcp_f32 v{inv}, v{3+t}")
        else: E(f"v_accvgpr_read_b32 v{inv}, a{224+4*t}\ns_mov_b32 s{sT0}, {t*TS}\nv_rcp_f32 v{inv}, v{inv}")
        for g in range(4):
            r = tmp + 16 * ((t * 4 + g) % 8)
            for i in range(8): E(f"v_accvgpr_read_b32 v{r+i}, a{(t*8+2*g)*4+i}")
            for q in range(4): E(f"v_pk_mul_f32 v[{r+2*q}:{r+2*q+1}], v[{r+2*q}:{r+2*q+1}], v[{inv}:{inv+1}] op_sel_hi:[1,0]")
            for q in range(4): E(f"v_cvt_pk_bf16_f32 v{r+8+q}, v{r+2*q}, v{r+2*q+1}")
            E(f"buffer_store_dwordx4 v[{r+8}:{r+11}], v2, s[{SO}:{SO+3}], s{sT0} offen offset:{1024*g}{OFLAG}")
            E.L[-1].defs = {("ostore", 0)}
    if STAMP and not FUSED:
        stamp(E, 5, True)
        stamp_store(E, 9 if not os.environ.get('DBG') else 6, sW, 20, (512, 0))
    if not FUSED: E(f"{name}_done:\ns_endpgm")
    inst.append(("end", E.L))

    for t in range(7):
        sr = sregs(t)
        slow(f"""{name}_slow{t}:
v_mov_b32 v{vT}, v{vMX}
s_nop 1
v_permlane32_swap_b32 v{vT}, v{vMX}
v_max_f32 v{vMX}, v{vT}, v{vMX}
v_mov_b32 v{vT}, v{vMX}
s_nop 1
v_permlane16_swap_b32 v{vT}, v{vMX}
v_max_f32 v{vMX}, v{vT}, v{vMX}
""")
        NM, TH, LS = Ci[t], Ci[t] + 1, Ci[t] + 2
        if SOFT:
            slow(f"""v_subrev_f32 v{vT}, s{sTH}, v{TH}
v_max_f32 v{vMX}, v{vT}, v{vMX}
v_mul_f32 v{vT}, s{sNC}, v{vMX}
v_sub_f32 v{vF}, v{vT}, v{NM}
v_exp_f32 v{vF}, v{vF}
v_mov_b32 v{NM}, v{vT}
v_add_f32 v{TH}, s{sTH}, v{vMX}""")
            for i in range(8): slow(f"v_fma_f32 v{Er[i]}, v{sr[i]}, s{sC}, v{NM}")
            for i in range(8): slow(f"v_exp_f32 v{Er[i]}, v{Er[i]}")
            slow("s_nop 0")
            for q in range(4): slow(f"v_cvt_pk_bf16_f32 v{Pf+q}, v{Er[2*q]}, v{Er[2*q+1]}")
            if VSUM:
                slow(f"v_add_f32 v{vTS}, v{Er[0]}, v{Er[1]}")
                for i in range(2, 8): slow(f"v_add_f32 v{vTS}, v{vTS}, v{Er[i]}")
                slow(f"v_mul_f32 v{LS}, v{LS}, v{vF}")
        else:
            slow(f"v_max_f32 v{vMX}, 0, v{vMX}\nv_exp_f32 v{vF}, -v{vMX}")
            for r in sr: slow(f"v_sub_f32 v{r}, v{r}, v{vMX}")
            for i in range(8): slow(f"v_exp_f32 v{Er[i]}, v{sr[i]}")
            for i in range(4): slow(f"v_sub_f32 v{Ci[t]+i}, v{Ci[t]+i}, v{vMX}")
        regs = [t * 32 + i for i in range(32)] + ([] if VSUM else [224 + 4 * t + i for i in range(4)])
        for a in regs:
            slow(f"v_accvgpr_read_b32 v{vT}, a{a}\nv_mul_f32 v{vT}, v{vT}, v{vF}\nv_accvgpr_write_b32 a{a}, v{vT}")
        slow(f"s_nop 1\ns_branch {name}_back{t}")

    EXP = os.environ.get("EXP", "").split(",")
    def keep(key, i):
        if key == "aloop":
            if "a_nodma" in EXP and i.kind == "dma": return False
            if "a_nobar" in EXP and i.kind == "barrier": return False
            if "a_nods" in EXP and i.kind == "dsr": return False
            if "a_noexp" in EXP and i.op == "v_exp_f32": return False
            if "a_nomax" in EXP and (i.op.startswith("v_max") or i.op.startswith("v_cmp") or i.op == "s_cbranch_vccnz"): return False
            if "a_nobr" in EXP and (i.op == "s_cbranch_vccnz"): return False
            if "a_nocvt" in EXP and i.op.startswith("v_cvt"): return False
            if "a_nosum" in EXP and i.kind == "mfma" and "a[252:255]" in i.text: return False
            if "a_nopv" in EXP and i.kind == "mfma" and i.text.split()[1].startswith("a["): return False
        if key == "qloop":
            if "q_nodma" in EXP and i.kind == "dma": return False
            if "q_nobar" in EXP and i.kind == "barrier": return False
            if "q_nods" in EXP and i.kind == "dsr": return False
        return True
    inst = [(k_, [i for i in c_ if keep(k_, i)]) for k_, c_ in inst]
    PADN = int(os.environ.get("PADN", 0))
    if PADN:
        def pad(c_):
            o_ = []; n_ = 0
            for i in c_:
                if i.kind == "mfma":
                    n_ += 1
                    if n_ % PADN == 0: o_.append(I("s_nop 7"))
                o_.append(i)
            return o_
        inst = [(k_, pad(c_) if k_ == "aloop" else c_) for k_, c_ in inst]
    if FUSED: return inst, slow
    out, full, nfix = resolve_all2(inst)
    if verbose: print("k1 nops inserted:", nfix, "est aloop", est_code(out["aloop"]), "est qloop", est_code(out["qloop"]), "blk0", est_code(out["blk0"]))
    msgs = check_hazards(full, name) + check_hazards(slow.L, name + "_slow")
    seen = set()
    for m_ in msgs:
        key = m_.split("]")[1][:60] + m_.split("->")[-1][-50:]
        if key not in seen: print(m_); seen.add(key)
    order = []
    for key, _ in inst:
        if key not in order: order.append(key)
    text = "\n".join(str(i) for key in order for i in out[key]) + "\n" + slow.text()
    launch = f"; @launch kernel={name} grid=(256,1,1) block=(256,1,1) lds=163840"
    return launch, text, kd(name, 512, 256, 102)

def gen_k2(name="oproj_kernel", NS=4, STAMP=False, WROT=1, verbose=True):
    for Lp in range(126): assert (Lp * 57) >> 9 == Lp // 9
    KS = 4
    PB = KS * NS
    ACC = 16
    AF = 48
    BF = 80
    NV = BF + 8 * PB
    vLane16 = 2; vA = [3, 4, 5, 6]; vDma = [7, 8, 9, 10]; vOut = 11
    P = Prog()
    P(f"""
.globl {name}
.p2align 8
.type {name},@function
{name}:
s_cmp_ge_u32 s2, 256
s_cbranch_scc1 {name}_done
s_load_dwordx2 s[4:5], s[0:1], 32
s_load_dwordx2 s[6:7], s[0:1], 72
s_load_dwordx2 s[8:9], s[0:1], 80
s_load_dwordx2 s[10:11], s[0:1], 96
""")
    if STAMP: P("s_memtime s[80:81]\ns_memrealtime s[98:99]")
    P(f"""
s_and_b32 s20, s2, 7
s_lshr_b32 s21, s2, 3
s_and_b32 s22, s20, 1
s_mul_i32 s23, s22, 31
s_cmp_eq_u32 s23, 31
s_cselect_b32 s23, s21, 0
s_cmp_eq_u32 s23, 31
s_cbranch_scc1 {name}_done
s_mul_i32 s22, s20, 63
s_add_u32 s22, s22, 1
s_lshr_b32 s22, s22, 1
s_add_u32 s22, s22, s21
s_cmp_ge_u32 s22, 126
s_cselect_b32 s24, 1, 0
s_mul_i32 s25, s24, 126
s_sub_u32 s22, s22, s25
s_mul_i32 s26, s22, 57
s_lshr_b32 s26, s26, 9
s_mul_i32 s27, s26, 9
s_sub_u32 s27, s22, s27
v_and_b32 v1, 63, v0
v_lshrrev_b32 v12, 6, v0
v_lshlrev_b32 v{vLane16}, 4, v1
v_readfirstlane_b32 s28, v12
""")
    P(f"""
s_lshl_b32 s29, s26, 3
s_lshl_b32 s30, s28, 1
s_add_u32 s29, s29, s30
s_mul_i32 s30, s24, 112
s_add_u32 s30, s30, s29
s_mul_i32 s30, s30, {TS}
v_lshrrev_b32 v12, 3, v1
v_mul_u32_u24 v12, 1152, v12
v_bfe_u32 v13, v1, 4, 2
v_lshlrev_b32 v13, 1, v13
v_and_b32 v14, 7, v1
v_xor_b32 v13, v13, v14
v_lshl_add_u32 v{vDma[0]}, v13, 4, v12
v_add_u32 v{vDma[1]}, 8192, v{vDma[0]}
v_add_u32 v{vDma[2]}, 16384, v{vDma[0]}
v_add_u32 v{vDma[3]}, 24576, v{vDma[0]}
s_mul_i32 s44, s28, 36864
s_lshl_b32 s46, s27, 7
s_add_u32 s44, s44, s46
s_lshl_b32 s45, s28, 12
s_mov_b32 s63, s44
s_mul_i32 s62, s26, 3
s_add_u32 s62, s62, s27
s_and_b32 s62, s62, {WROT-1}
s_mov_b32 s60, 0
s_mov_b32 s61, 0
s_mul_i32 s64, s62, 147456
s_add_u32 s44, s63, s64
s_lshl_b32 s47, s62, 12
s_waitcnt lgkmcnt(0)
s_cmp_eq_u32 s24, 0
s_cselect_b32 s32, s4, s6
s_cselect_b32 s33, s5, s7
s_mov_b32 s34, 4718592
s_mov_b32 s35, 0x00020000
s_add_u32 s36, s10, s30
s_addc_u32 s37, s11, 0
s_mov_b32 s38, 131072
s_mov_b32 s39, 0x00020000
s_add_u32 s56, s36, {TS}
s_addc_u32 s57, s37, 0
s_mov_b32 s58, 131072
s_mov_b32 s59, 0x00020000
s_mov_b32 s40, s8
s_mov_b32 s41, s9
s_mov_b32 s42, 4128768
s_mov_b32 s43, 0x00020000
""")
    def dma(stage):
        slot = stage % NS
        out = [I(f"s_add_u32 m0, s45, {slot*16384}"), I("s_nop 0")]
        for i in range(4):
            d = I(f"buffer_load_dwordx4 v{vDma[i]}, s[32:35], s44 offen offset:{1024*i} lds")
            d.defs = {("lds", stage)}
            out.append(d)
        out += [I("s_add_u32 s60, s60, 1"), I("s_add_u32 s64, s60, s62"), I(f"s_and_b32 s64, s64, {WROT-1}"),
                I(f"s_andn2_b32 s65, s60, {WROT-1}"), I("s_or_b32 s64, s64, s65"), I("s_mul_i32 s64, s64, 147456"), I("s_add_u32 s44, s63, s64")]
        return out
    def bload(g):
        out = []
        for nt in range(2):
            r = BF + 8 * (g % PB) + 4 * nt
            srd = "s[36:39]" if nt == 0 else "s[56:59]"
            out.append(I(f"buffer_load_dwordx4 v[{r}:{r+3}], v{vLane16}, {srd}, s47 offen offset:{1024*(g%4)}"))
        if g % 4 == 3:
            out += [I("s_add_u32 s61, s61, 1"), I("s_add_u32 s66, s61, s62"), I(f"s_and_b32 s66, s66, {WROT-1}"),
                    I(f"s_andn2_b32 s67, s61, {WROT-1}"), I("s_or_b32 s66, s66, s67"), I("s_lshl_b32 s47, s66, 12")]
        return out
    def areads(g, mt):
        stage = g // KS; slot = stage % NS; ks = g % KS
        r = AF + 16 * (g % 2) + 4 * mt
        out = []
        for half in range(2):
            d = I(f"ds_read_b64_tr_b16 v[{r+2*half}:{r+2*half+1}], v{vA[mt]} offset:{slot*16384 + ks*4096 + half*2048}")
            d.defs |= {("ldsrd", stage)}
            out.append(d)
        return out
    def barrier(stage):
        b = I("s_barrier"); b.uses = {("lds", stage), ("ldsrd", stage - 1)}
        return b
    for st in range(NS - 1):
        P.ext(dma(st))
        for g in range(KS * st, KS * st + KS): P.ext(bload(g))
    for g in range(KS * (NS - 1), PB): P.ext(bload(g))
    P(f"""
v_lshrrev_b32 v12, 2, v1
v_bfe_u32 v13, v12, 1, 2
v_lshlrev_b32 v12, 7, v12
v_lshl_add_u32 v12, v13, 5, v12
v_and_b32 v13, 3, v1
v_lshl_add_u32 v{vA[0]}, v13, 3, v12
v_xor_b32 v{vA[1]}, 32, v{vA[0]}
v_xor_b32 v{vA[2]}, 64, v{vA[0]}
v_xor_b32 v{vA[3]}, 96, v{vA[0]}
""")
    P(f"""
s_lshl_b32 s50, s29, 4
v_and_b32 v12, 15, v1
v_add_u32 v12, s50, v12
v_mul_u32_u24 v12, 2304, v12
v_lshrrev_b32 v13, 4, v1
v_lshlrev_b32 v13, 3, v13
s_mul_i32 s53, s24, 1152
s_lshl_b32 s54, s27, 7
s_add_u32 s53, s53, s54
v_add3_u32 v{vOut}, v12, v13, s53
s_mov_b32 s55, 0
""")
    for i in range(32): P(f"v_mov_b32 v{ACC+i}, 0")
    P.ext([barrier(0)])
    P.ext(dma(NS - 1))
    for mt in range(4): P.ext(areads(0, mt))
    stamp(P, 1, STAMP)
    inst = [("pre", P.L)]
    NIT = 128 // PB
    for it in range(NIT):
        code = [I(f"{name}_loop:")]
        for gl in range(PB):
            g = it * PB + gl
            mf = []
            for mt in range(4):
                for nt in range(2):
                    c = R("v", ACC + 8 * mt + 4 * nt)
                    mf.append(m16(c, R("v", AF + 16 * (g % 2) + 4 * mt), R("v", BF + 8 * (g % PB) + 4 * nt), c))
            S = Sched2(mf)
            gn = g + 1
            lo = 0
            if gn % KS == 0:
                S.put(1, barrier(gn // KS)); lo = 1
            for mt in range(4): lo = S.stream(areads(gn, mt), lo, 6)
            if gn % KS == 0: S.stream(dma(gn // KS + NS - 1), 5, 7)
            S.put(7, bload(g + PB))
            code += S.emit()
        code += [I("s_add_u32 s55, s55, 1"), I(f"s_cmp_lt_u32 s55, {NIT}"), I(f"s_cbranch_scc1 {name}_loop")]
        inst.append(("loop", code))
    E = Prog()
    E("s_nop 7")
    stamp(E, 2, STAMP)
    for mt in range(4):
        for nt in range(2):
            c = ACC + 8 * mt + 4 * nt
            t = AF + 4 * mt + 2 * nt
            E(f"v_cvt_pk_bf16_f32 v{t}, v{c}, v{c+1}\nv_cvt_pk_bf16_f32 v{t+1}, v{c+2}, v{c+3}")
            if nt == 0:
                E(f"buffer_store_dwordx2 v[{t}:{t+1}], v{vOut}, s[40:43], 0 offen offset:{32*mt}")
            else:
                E(f"s_mov_b32 s50, {16*2304}\nbuffer_store_dwordx2 v[{t}:{t+1}], v{vOut}, s[40:43], s50 offen offset:{32*mt}")
    if STAMP:
        E("s_waitcnt vmcnt(0)")
        stamp(E, 3, True)
        E("s_add_u32 s10, s10, 0x100000\ns_addc_u32 s11, s11, 0")
        stamp_store(E, 4, 28, 10, (0, 32))
    E(f"{name}_done:\ns_endpgm")
    inst.append(("end", E.L))
    out, full, nfix = resolve_all2(inst)
    for m_ in check_hazards(full, name)[:10]: print(m_)
    text = "\n".join(str(i) for key in ("pre", "loop", "end") for i in out[key])
    launch = f"; @launch kernel={name} grid=(256,1,1) block=(256,1,1) lds={NS*16384}"
    return launch, text, kd(name, NV, ((NV + 3) // 4) * 4, 102)

def write(path, kernels, header=""):
    with open(path, "w") as f:
        f.write(header)
        for l, _, _ in kernels: f.write(l + "\n")
        f.write('.amdgcn_target "amdgcn-amd-amdhsa--gfx950"\n.text\n')
        for _, c, _ in kernels: f.write(c + "\n")
        f.write('code_end:\n.section .rodata,"a"\n')
        for _, _, k in kernels: f.write(".p2align 6\n" + k + "\n")

HEADER = """; Fused GQA block x2 (Q-proj + attention, then O-proj); generated by a hand-written generator script.
"""

if __name__ == "__main__":
    out = sys.argv[1] if len(sys.argv) > 1 else "full.s"
    st = bool(os.environ.get("STAMP"))
    kw = {}; kw2 = {}
    for k_ in ("WROT", "NS"):
        if k_ in os.environ: kw2[k_] = int(os.environ[k_])
    if "KVFLAG" in os.environ: kw["KVFLAG"] = os.environ["KVFLAG"]
    for k_ in ("MAPPING", "ROT", "TOUCH", "WOT", "TD", "KROT", "DLATE", "DSTEP", "DIST", "CPF", "SOFT", "VSUM", "PPS", "TS0", "TSTEP", "TPK"):
        if k_ in os.environ: kw[k_] = int(os.environ[k_])
    if "TFLAG" in os.environ: kw["TFLAG"] = os.environ["TFLAG"]
    write(out, [gen_k1(STAMP=st, **kw), gen_k2(STAMP=st, **kw2)], HEADER)
```

```python
from gen import *

XOFF = 0x2000000
FOFF = 0x3000000

def gen_k2r(name="oproj_kernel", STAMP=False, NSL=8, FLAGST=5, LA=2, RX=8, LEAD=2, LOOKU=5, PACE=3, PERM=0, FUSED=0, verbose=True):
    for L in range(252): assert (L * 171) >> 9 == L // 3
    for L in range(126): assert (L * 781) >> 15 == L // 42
    NK = 44; KS = 4; NST = NK // KS
    ACC = [32, 64, 32]
    AF = 96
    def Bf(g, nt):
        n = 2 * g + nt
        return R("a", 4 * n) if n < 64 else R("v", 160 + 4 * (n - 64))
    vLane16 = 2; vA = [3, 4, 5, 6]; vAh = [7, 8, 9, 10]; vDma = [11, 12, 13, 14]; vOut = 15
    sBLK, sNG, sMQ, sS, sW, sL, sTAU = 24, 26, 27, 25, 28, 22, 23
    P = Prog()
    if not FUSED:
        P(f"""
.globl {name}
.p2align 8
.type {name},@function
{name}:
s_cmp_ge_u32 s2, 256
s_cbranch_scc1 {name}_done""")
    P(f"""
s_load_dwordx2 s[4:5], s[0:1], 32
s_load_dwordx2 s[6:7], s[0:1], 72
s_load_dwordx2 s[8:9], s[0:1], 80
s_load_dwordx2 s[10:11], s[0:1], 96
""")
    if STAMP and not FUSED: P("s_memtime s[80:81]\ns_memrealtime s[98:99]")
    sc = " sc1" if FUSED else ((" " + os.environ["BFLAG"]) if os.environ.get("BFLAG") else "")
    af = (" " + os.environ["AFLAG"]) if os.environ.get("AFLAG") else ""
    P(f"""
s_and_b32 s20, s2, 7
s_lshr_b32 s21, s2, 3
s_and_b32 s22, s20, 1
s_mul_i32 s23, s22, 31
s_cmp_eq_u32 s23, 31
s_cselect_b32 s23, s21, 0
s_cmp_eq_u32 s23, 31
s_cbranch_scc1 {name + ("_notile" if FUSED else "_done")}
s_mul_i32 s22, s20, 63
s_add_u32 s22, s22, 1
s_lshr_b32 s22, s22, 1
s_add_u32 s{sL}, s22, s21
s_cmp_ge_u32 s{sL}, 126
s_cselect_b32 s{sBLK}, 1, 0
s_mul_i32 s20, s{sBLK}, 126
s_sub_u32 s20, s{sL}, s20
s_mul_i32 s{sS}, s20, 781
s_lshr_b32 s{sS}, s{sS}, 15
s_mul_i32 s21, s{sS}, 42
s_sub_u32 s20, s20, s21
s_mul_i32 s{sNG}, s20, 171
s_lshr_b32 s{sNG}, s{sNG}, 9
s_mul_i32 s21, s{sNG}, 3
s_sub_u32 s{sMQ}, s20, s21
s_mul_i32 s{sTAU}, s{sBLK}, 42
s_add_u32 s{sTAU}, s{sTAU}, s20
s_mul_i32 s{sL}, s{sTAU}, 3
s_add_u32 s{sL}, s{sL}, s{sS}
{"s_mov_b32 s24, 0" + chr(10) + "s_mov_b32 s26, 0" + chr(10) + "s_mov_b32 s27, 0" if "same" in os.environ.get("EXP2", "") else ""}
{"v_and_b32 v1, 63, v0" + chr(10) + "v_lshrrev_b32 v16, 6, v0" if not FUSED else ""}
v_lshlrev_b32 v{vLane16}, 4, v1
{f"v_readfirstlane_b32 s{sW}, v16" if not FUSED else f"s_mov_b32 s{sW}, s91"}
s_lshl_b32 s29, s{sNG}, 3
s_add_u32 s51, s{sS}, 1
s_cmp_ge_u32 s51, 3
s_cselect_b32 s52, 3, 0
s_sub_u32 s51, s51, s52
s_add_u32 s52, s{sS}, 2
s_cmp_ge_u32 s52, 3
s_cselect_b32 s53, 3, 0
s_sub_u32 s52, s52, s53
s_lshl_b32 s30, s{sW}, 1
s_add_u32 s29, s29, s30
s_mul_i32 s30, s{sBLK}, 112
s_add_u32 s30, s30, s29
s_mul_i32 s30, s30, {TS}
v_lshrrev_b32 v16, 3, v1
v_mul_u32_u24 v16, 1152, v16
v_bfe_u32 v17, v1, 4, 2
v_lshlrev_b32 v17, 1, v17
v_and_b32 v18, 7, v1
v_xor_b32 v17, v17, v18
v_lshl_add_u32 v{vDma[0]}, v17, 4, v16
v_add_u32 v{vDma[1]}, 8192, v{vDma[0]}
v_add_u32 v{vDma[2]}, 16384, v{vDma[0]}
v_add_u32 v{vDma[3]}, 24576, v{vDma[0]}
s_mul_i32 s46, s{sS}, {NK*32*1152}
s_mul_i32 s47, s{sW}, {32*1152}
s_add_u32 s46, s46, s47
s_mul_i32 s47, s{sMQ}, 384
s_add_u32 s46, s46, s47
s_lshl_b32 s47, s51, 7
s_add_u32 s60, s46, s47
s_lshl_b32 s47, s52, 7
s_add_u32 s61, s46, s47
s_lshl_b32 s47, s{sS}, 7
s_add_u32 s62, s46, s47
s_lshl_b32 s45, s{sW}, 12
s_mul_i32 s48, s{sS}, {NK*1024}
s_add_u32 s49, s{sMQ}, s{sNG}
s_mul_i32 s50, s49, 171
s_lshr_b32 s50, s50, 9
s_mul_i32 s50, s50, 3
s_sub_u32 s49, s49, s50
{"" if PERM else "s_mov_b32 s49, 0"}
s_mul_i32 s12, s49, 147456
s_lshl_b32 s15, s49, 12
s_add_u32 s49, s49, 1
s_cmp_eq_u32 s49, 3
s_cselect_b32 s49, 0, s49
s_mul_i32 s13, s49, 147456
s_lshl_b32 s16, s49, 12
s_add_u32 s49, s49, 1
s_cmp_eq_u32 s49, 3
s_cselect_b32 s49, 0, s49
s_mul_i32 s14, s49, 147456
s_lshl_b32 s17, s49, 12
s_add_u32 s15, s15, s48
s_add_u32 s16, s16, s48
s_add_u32 s17, s17, s48
s_waitcnt lgkmcnt(0)
s_cmp_eq_u32 s{sBLK}, 0
s_cselect_b32 s32, s4, s6
s_cselect_b32 s33, s5, s7
s_mov_b32 s34, 4718592
s_mov_b32 s35, 0x00020000
s_add_u32 s36, s10, s30
s_addc_u32 s37, s11, 0
s_mov_b32 s38, 131072
s_mov_b32 s39, 0x00020000
s_add_u32 s56, s36, {TS}
s_addc_u32 s57, s37, 0
s_mov_b32 s58, 131072
s_mov_b32 s59, 0x00020000
""")
    units = []
    for k in range(NST + LEAD):
        if k < NST: units.append((0, k))
        if k >= LEAD: units.append((1, k - LEAD))
    units += [(2, k) for k in range(NST)]
    NU = len(units)
    def dma(u):
        p, k = units[u]
        if k < 9:
            out = [[I(f"s_add_u32 s44, s{60+p}, s{12+k%3}")], [I(f"s_add_u32 m0, s45, {(u % NSL)*16384}"), I(f"s_add_u32 s44, s44, {(k//3)*3*128*1152}")]]
        else:
            out = [[I(f"s_add_u32 m0, s45, {(u % NSL)*16384}"), I(f"s_add_u32 s44, s{60+p}, {k*128*1152}")]]
        for i in range(4):
            d = I(f"buffer_load_dwordx4 v{vDma[i]}, s[32:35], s44 offen offset:{1024*i}{af} lds")
            d.defs = {("lds", u)}
            out.append([d])
        return out
    def bload(g):
        out = []
        k = g // 4
        if g % 4 == 0:
            out.append([I(f"s_add_u32 s47, s{15+k%3}, {(k//3)*3*4096}") if k < 9 else I(f"s_add_u32 s47, s48, {k*4096}")])
        for nt in range(2):
            srd = "s[36:39]" if nt == 0 else "s[56:59]"
            out.append([I(f"buffer_load_dwordx4 {Bf(g, nt)}, v{vLane16}, {srd}, s47 offen offset:{1024*(g%4)}{sc}")])
        return out
    def aread(G, mt, half):
        u = G // KS; slot = u % NSL; ks = G % KS
        r = AF + 16 * (G % 4) + 4 * mt + 2 * half
        va = vA[mt] if slot < 4 else vAh[mt]
        d = I(f"ds_read_b64_tr_b16 v[{r}:{r+1}], v{va} offset:{(slot % 4)*16384 + ks*4096 + half*2048}")
        d.defs |= {("ldsrd", u)}
        return d
    def barrier(u):
        b = I("s_barrier"); b.uses = {("lds", u), ("ldsrd", u - 1)}
        return b
    flat = lambda gs: [i for g_ in gs for i in g_]
    LOOK = 4
    def loads_for(u):
        o = dma(u)
        p, k = units[u]
        if p == 0:
            for g in range(KS * k, KS * k + KS): o += bload(g)
        return o
    NPRE = LOOKU if FUSED else 0
    if FUSED:
        for u in range(2): P.ext(flat(dma(u)))
    else: P.ext(flat(loads_for(0)))
    P(f"""
v_lshrrev_b32 v16, 2, v1
v_bfe_u32 v17, v16, 1, 2
v_lshlrev_b32 v16, 7, v16
v_lshl_add_u32 v16, v17, 5, v16
v_and_b32 v17, 3, v1
v_lshl_add_u32 v{vA[0]}, v17, 3, v16
v_xor_b32 v{vA[1]}, 32, v{vA[0]}
v_xor_b32 v{vA[2]}, 64, v{vA[0]}
v_xor_b32 v{vA[3]}, 96, v{vA[0]}
""")
    for u in range(4): P(f"v_add_u32 v{vAh[u]}, 0x10000, v{vA[u]}")
    if FUSED:
        for u in range(2, NPRE): P.ext(flat(dma(u)))
    else: P.ext(flat(loads_for(1)))
    P(f"""
s_mov_b32 s40, s8
s_mov_b32 s41, s9
s_mov_b32 s42, 4128768
s_mov_b32 s43, 0x00020000
s_lshl_b32 s50, s29, 4
v_and_b32 v16, 15, v1
v_add_u32 v16, s50, v16
v_mul_u32_u24 v16, 2304, v16
v_lshrrev_b32 v17, 4, v1
v_lshlrev_b32 v17, 3, v17
s_mul_i32 s53, s{sBLK}, 1152
s_mul_i32 s54, s{sMQ}, 384
s_add_u32 s53, s53, s54
s_lshl_b32 s54, s{sS}, 7
s_add_u32 s53, s53, s54
v_add3_u32 v{vOut}, v16, v17, s53
s_add_u32 s68, s10, {XOFF}
s_addc_u32 s69, s11, 0
s_mov_b32 s70, 0x1100000
s_mov_b32 s71, 0x00020000
s_add_u32 s72, s10, {FOFF}
s_addc_u32 s73, s11, 0
s_mov_b32 s74, 65536
s_mov_b32 s75, 0x00020000
s_mul_i32 s50, s{sTAU}, {6*16384}
s_lshl_b32 s53, s{sW}, 12
s_add_u32 s50, s50, s53
s_lshl_b32 s53, s51, 15
s_add_u32 s63, s53, s50
s_lshl_b32 s54, s52, 15
s_add_u32 s64, s54, s50
s_add_u32 s64, s64, 16384
s_lshl_b32 s55, s{sS}, 15
s_add_u32 s65, s55, s50
s_mul_i32 s50, s{sTAU}, 3
s_add_u32 s51, s51, s50
s_add_u32 s52, s52, s50
s_lshl_b32 s51, s51, 7
s_lshl_b32 s52, s52, 7
s_lshl_b32 s50, s{sL}, 7
v_mov_b32 v20, s52
v_mov_b32 v21, s51
v_and_b32 v16, 1, v1
v_cmp_eq_u32 vcc, 0, v16
s_nop 1
v_cndmask_b32 v20, v21, v20, vcc
v_mov_b32 v22, s50
""")
    if not FUSED:
        P(f"""
v_mov_b32 v23, 1
s_getpc_b64 s[96:97]
{name}_pc:
s_sub_u32 s96, s96, {name}_pc-{name}
s_subb_u32 s97, s97, 0
s_lshr_b32 s50, s2, 3
s_lshl_b32 s50, s50, 2
s_add_u32 s50, s50, s{sW}
s_lshl_b32 s50, s50, 8
v_lshl_add_u32 v16, v1, 2, s50
s_mov_b32 s50, code_end-{name}-4
v_min_u32 v16, s50, v16
global_load_dword v0, v16, s[96:97]
""")
    polls = Prog()
    if FUSED:
        for T_ in range(112): assert (T_ * 147) >> 11 == T_ // 14
        P(f"""
s_mul_i32 s50, s29, 147
s_lshr_b32 s50, s50, 11
s_lshl_b32 s51, s{sBLK}, 3
s_add_u32 s50, s50, s51
s_lshl_b32 s50, s50, 7
s_add_u32 s50, s50, 32768
s_mul_i32 s51, s{sS}, 11
s_lshr_b32 s51, s51, 1
s_add_u32 s52, s51, 5
s_min_u32 s52, s52, 15
v_max_u32 v26, s51, v1
v_min_u32 v26, s52, v26
v_lshl_add_u32 v26, v26, 2, s50
v_mov_b32 v27, s90
""")
        pub = I("s_barrier"); pub.uses = {("ostore", 0), ("v", 25)}
        P.ext([pub])
        fs = I("buffer_store_dword v25, v27, s[72:75], 0 offen sc1"); fs.kind = "misc"
        P(f"v_cmp_eq_u32 vcc, 0, v25\ns_cbranch_vccnz {name}_nonce\n{name}_nb:\ns_cmp_lg_u32 s{sW}, 0\ns_cbranch_scc1 {name}_nf0\ns_mov_b64 exec, 1")
        P.ext([fs])
        P(f"s_mov_b64 exec, -1\n{name}_nf0:\nv_mov_b32 v23, v25\ns_mov_b32 s78, 0\n{name}_ow:")
        pl = I("buffer_load_dword v24, v26, s[72:75], 0 offen sc1"); pl.kind = "misc"; pl.defs = set()
        P.ext([pl])
        P(f"""s_waitcnt vmcnt(0)
v_cmp_ne_u32 vcc, v25, v24
s_add_u32 s78, s78, 1
s_cmp_lt_u32 s78, 0x40000
s_cbranch_scc0 {name}_od
s_cbranch_vccnz {name}_ow
{name}_od:""")
        stamp(P, 16, STAMP)
        for g in range(2 * KS): P.ext(flat(bload(g)))
        polls(f"""{name}_nonce:
s_mov_b32 s78, 0
{name}_nl:
v_mov_b32 v24, 0
buffer_load_dword v25, v24, s[92:95], 0 offen sc1
s_waitcnt vmcnt(0)
v_cmp_eq_u32 vcc, 0, v25
s_add_u32 s78, s78, 1
s_cmp_lt_u32 s78, 0x40000
s_cbranch_scc0 {name}_nb
s_cbranch_vccnz {name}_nl
s_branch {name}_nb
{name}_notile:
s_waitcnt vmcnt(0) lgkmcnt(0)
s_add_u32 s72, s10, {FOFF}
s_addc_u32 s73, s11, 0
s_mov_b32 s74, 65536
s_mov_b32 s75, 0x00020000
v_mov_b32 v27, s90
s_barrier
s_cmp_lg_u32 s91, 0
s_cbranch_scc1 {name}_done
s_mov_b32 s78, 0
{name}_ntl:
v_cmp_ne_u32 vcc, 0, v25
s_cbranch_vccnz {name}_nts
v_mov_b32 v24, 0
buffer_load_dword v25, v24, s[92:95], 0 offen sc1
s_waitcnt vmcnt(0)
s_add_u32 s78, s78, 1
s_cmp_lt_u32 s78, 0x40000
s_cbranch_scc1 {name}_ntl
{name}_nts:
s_mov_b64 exec, 1
buffer_store_dword v25, v27, s[72:75], 0 offen sc1
s_endpgm""")
    P.ext([barrier(0)])
    for G in range(LA):
        for mt in range(4):
            for half in range(2): P.ext([aread(G, mt, half)])
    stamp(P, 1 if not FUSED else 17, STAMP)
    code = P.L
    NG = NU * KS
    lq = []
    for v in range(NU):
        p_, k_ = units[v]
        if v >= max(2, NPRE): lq += [(v, gr) for gr in dma(v)]
        if p_ == 0 and k_ >= 2:
            for g in range(KS * k_, KS * k_ + KS): lq += [(v, gr) for gr in bload(g)]
    gap_carry = 0
    def sends(p):
        o = []
        for i in range(4):
            c = ACC[p] + 8 * i
            for q in range(4): o.append([I(f"v_cvt_pk_bf16_f32 v{c+q}, v{c+2*q}, v{c+2*q+1}")])
            d = I(f"buffer_store_dwordx4 v[{c}:{c+3}], v{vLane16}, s[68:71], s{63+p} offen offset:{1024*i} sc1")
            d.defs = {("sent", p)}
            o.append([d])
        return o
    def recvs():
        o = []
        for sl in range(2):
            for i in range(4):
                o.append([I(f"buffer_load_dwordx4 a[{16*sl+4*i}:{16*sl+4*i+3}], v{vLane16}, s[68:71], s65 offen offset:{1024*i} sc1")])
            if sl == 0: o.append([I(f"s_add_u32 s65, s65, 16384")])
        return o
    flag_load = lambda: I(f"buffer_load_dword v24, v20, s[72:75], 0 offen sc1")
    def flag_check():
        polls(f"""{name}_poll:
s_mov_b32 s78, 0
{name}_pl:
buffer_load_dword v24, v20, s[72:75], 0 offen sc1
s_waitcnt vmcnt(0)
v_cmp_ne_u32 vcc, v23, v24
s_add_u32 s78, s78, 1
s_cmp_lt_u32 s78, 0x40000
s_cbranch_scc0 {name}_pb
s_cbranch_vccnz {name}_pl
s_branch {name}_pb""")
        return [I(f"v_cmp_ne_u32 vcc, v23, v24"), I(f"s_cbranch_vccnz {name}_poll"), I(f"{name}_pb:")]
    U2 = 2 * NST
    for u in range(NU):
        p, k = units[u]
        mf = []
        for ks in range(KS):
            G = KS * u + ks; g = KS * k + ks
            for mt in range(4):
                for nt in range(2):
                    c = R("v", ACC[p] + (mt * 2 + nt) * 4)
                    mf.append(m16(c, R("v", AF + 16 * (G % 4) + 4 * mt), Bf(g, nt), "0" if g == 0 else c))
        S = Sched2(mf)
        for ks in range(KS):
            Gn = KS * u + ks + LA
            if Gn >= NG: continue
            lo = 8 * ks
            if Gn % KS == 0:
                b = barrier(Gn // KS)
                pub = (u == U2 + FLAGST)
                if pub: b.uses |= {("sent", 0), ("sent", 1)}
                S.put(lo, b)
                if pub:
                    fs = I(f"buffer_store_dword v23, v22, s[72:75], 0 offen sc1")
                    fs.kind = "misc"
                    S.put(lo + 1, [I(f"s_cmp_lg_u32 s{sW}, 0"), I(f"s_cbranch_scc1 {name}_nf"), I("s_mov_b64 exec, 1"),
                                   fs, I("s_mov_b64 exec, -1"), I(f"{name}_nf:")])
            n = 0
            for mt in range(4):
                for half in range(2):
                    S.put(lo + n, aread(Gn, mt, half)); n += 1
        gp = gap_carry
        while gp < 32 and lq:
            v, gr = lq[0]
            if v - NSL > u or v > u + LOOKU: break
            if v - NSL == u and gp <= 8 * (KS - LA): gp = 8 * (KS - LA) + 1
            lq.pop(0)
            S.put(gp, gr)
            if any(is_mem(i_) for i_ in gr): gp += PACE
        gap_carry = max(0, gp - 32)
        items = []
        if u == U2 + RX: items += [[flag_load()]]
        if u == U2 + RX + 1: items += [flag_check()] + recvs()
        if items: spaced(S, items, 2, 31, 3)
        if u > 0 and units[u - 1][1] == NST - 1 and units[u - 1][0] < 2:
            S.stream(sends(units[u - 1][0]), 4, 31)
        code += S.emit()
        if STAMP and u == U2 - 1 and not FUSED:
            T_ = Prog(); stamp(T_, 4, True); stamp(T_, 5, True); code += T_.L
    E = Prog()
    stamp(E, 2 if not FUSED else 18, STAMP)
    E(f"s_mov_b32 s50, {16*2304}\ns_mov_b32 s51, 0xffff0000\ns_nop 7")
    for i in range(8):
        mt, nt = i // 2, i % 2
        c = ACC[2] + i * 4
        for sl in range(2):
            for h in range(2):
                t = 96 + 16 * i + 8 * sl + 4 * h
                E(f"v_accvgpr_read_b32 v{t}, a{16*sl + 2*i + h}")
        for sl in range(2):
            for h in range(2):
                t = 96 + 16 * i + 8 * sl + 4 * h
                E(f"v_lshlrev_b32 v{t+1}, 16, v{t}\nv_and_b32 v{t+2}, s51, v{t}")
        for sl in range(2):
            for h in range(2):
                t = 96 + 16 * i + 8 * sl + 4 * h
                E(f"v_add_f32 v{c+2*h}, v{c+2*h}, v{t+1}\nv_add_f32 v{c+2*h+1}, v{c+2*h+1}, v{t+2}")
        t = 64 + 2 * i
        E(f"v_cvt_pk_bf16_f32 v{t}, v{c}, v{c+1}\nv_cvt_pk_bf16_f32 v{t+1}, v{c+2}, v{c+3}")
        E(f"buffer_store_dwordx2 v[{t}:{t+1}], v{vOut}, s[40:43], {'0' if nt == 0 else 's50'} offen offset:{32*mt}")
    if STAMP:
        E("s_waitcnt vmcnt(0)")
        if FUSED:
            stamp(E, 19, True)
            stamp_store(E, 5, sW, 10, (0, 0))
        else:
            stamp(E, 3, True)
            E("s_add_u32 s10, s10, 0x100000\ns_addc_u32 s11, s11, 0")
            stamp_store(E, 6 if not os.environ.get("DBG") else 4, sW, 10, (0, 32))
    E(f"{name}_done:\ns_endpgm")
    EXP = os.environ.get("EXP2", "").split(",")
    if "nosend" in EXP: code = [i for i in code if not (i.kind == "vstore")]
    if "norecv" in EXP: code = [i for i in code if not ("sc1" in i.text and i.kind == "vload") and "poll" not in i.text]
    if "nobar" in EXP: code = [i for i in code if i.kind != "barrier"]
    if "nomfma" in EXP: code = [i for i in code if i.kind != "mfma"]
    if "nob" in EXP: code = [i for i in code if not (i.kind == "vload" and "sc1" not in i.text and "buffer" in i.text)]
    if "nods" in EXP: code = [i for i in code if i.kind != "dsr"]
    if FUSED: return [("k2main", code), ("k2end", E.L)], polls
    out, full, nfix = resolve_all2([("main", code), ("end", E.L)])
    for m_ in check_hazards(full, name)[:10]: print(m_)
    if verbose: print("k2r est", est_code(out["main"]), "ideal", 3 * NK * 128, "nops", nfix)
    text = "\n".join(str(i) for key in ("main", "end") for i in out[key]) + "\n" + polls.text()
    launch = f"; @launch kernel={name} grid=(256,1,1) block=(256,1,1) lds={NSL*16384}"
    return launch, text, kd(name, 512, 256, 102)

if __name__ == "__main__":
    out = sys.argv[1]
    st = bool(os.environ.get("STAMP"))
    kw = {}; kw2 = {}
    if "KVFLAG" in os.environ: kw["KVFLAG"] = os.environ["KVFLAG"]
    for k_ in ("MAPPING", "ROT", "TOUCH", "WOT", "TD", "KROT", "DLATE", "DSTEP", "DIST", "CPF", "SOFT", "VSUM", "NPRO", "KV0AT", "GMAJ", "PEEL"):
        if k_ in os.environ: kw[k_] = int(os.environ[k_])
    for k_ in ("FLAGST", "LA", "RX", "LEAD", "LOOKU", "PACE", "PERM"):
        if k_ in os.environ: kw2[k_] = int(os.environ[k_])
    write(out, [gen_k1(STAMP=st, ZFLAG=FOFF, **kw), gen_k2r(STAMP=st, **kw2)], HEADER)
```

```python
import os, sys, math, struct
from asmlib import *

TS = 131072
KVT = 8704
KVS = 4 * KVT
XB = [2 * KVS, KVS]
WB = 98304
CSCALE = math.log2(math.e) / math.sqrt(128.0)
THRESH = 8.0

def f2u(x): return struct.unpack("<I", struct.pack("<f", x))[0]

def kd(name, vgpr, acc, sgpr=96):
    return f""".amdhsa_kernel {name}
  .amdhsa_next_free_vgpr {vgpr}
  .amdhsa_next_free_sgpr {sgpr}
  .amdhsa_accum_offset {acc}
  .amdhsa_group_segment_fixed_size 0
  .amdhsa_kernarg_size 104
  .amdhsa_user_sgpr_count 2
  .amdhsa_user_sgpr_kernarg_segment_ptr 1
  .amdhsa_system_sgpr_workgroup_id_x 1
.end_amdhsa_kernel"""

def R(kind, base, n=4): return f"{kind}[{base}:{base+n-1}]"

def m16(d, a, b, c):
    return I(f"v_mfma_f32_16x16x32_bf16 {d}, {a}, {b}, {c}")

STMAP = None
if os.environ.get("PSTAMP"): STMAP = {20: 1, 21: 2, 1: 3, 6: 4, 7: 5, 2: 6, 3: 7, 5: 8}
def stamp(P, idx, on):
    import gen
    if gen.STMAP is not None:
        if idx not in gen.STMAP: return
        idx = gen.STMAP[idx]
    if on: P(f"s_memtime s[{80+2*idx}:{81+2*idx}]\ns_waitcnt lgkmcnt(0)")

def stamp_store(E, nst, swave, sws, dbgoff=None):
    E("s_waitcnt vmcnt(0)\ns_memrealtime s[76:77]\ns_waitcnt lgkmcnt(0)")
    DBG = os.environ.get("DBG")
    if DBG:
        wg = int(DBG)
        E(f"""s_load_dwordx2 s[72:73], s[0:1], 88
s_waitcnt lgkmcnt(0)
s_add_u32 s72, s72, {dbgoff[0]}
s_addc_u32 s73, s73, 0
s_mov_b32 s74, 64
s_mov_b32 s75, 0x00020000
s_xor_b32 s70, s2, {wg}
s_or_b32 s70, s70, s{swave}
s_lshl_b32 s70, s70, 8
s_add_u32 s70, s70, {dbgoff[1]}
v_mov_b32 v14, s70
v_mbcnt_lo_u32_b32 v15, -1, 0
v_mbcnt_hi_u32_b32 v15, -1, v15
v_cmp_eq_u32 vcc, 0, v15
s_and_saveexec_b64 s[78:79], vcc""")
        for i in range(1, nst):
            E(f"s_sub_u32 s71, s{80+2*i}, s80\nv_mov_b32 v10, s71\nbuffer_store_dword v10, v14, s[72:75], 0 offen offset:{4*(i+1)}\ns_nop 1")
        E(f"v_mov_b32 v10, s76\nbuffer_store_dword v10, v14, s[72:75], 0 offen offset:4\ns_nop 1")
        E(f"v_mov_b32 v10, s98\nbuffer_store_dword v10, v14, s[72:75], 0 offen offset:0\ns_nop 1")
        return
    E(f"""s_add_u32 s72, s{sws}, 0x4000000
s_addc_u32 s73, s{sws+1}, 0
s_mov_b32 s74, 0x100000
s_mov_b32 s75, 0x00020000
s_lshl_b32 s70, s2, 8
s_lshl_b32 s71, s{swave}, 6
s_add_u32 s70, s70, s71
v_mov_b32 v14, s70
v_mbcnt_lo_u32_b32 v15, -1, 0
v_mbcnt_hi_u32_b32 v15, -1, v15
v_cmp_eq_u32 vcc, 0, v15
s_and_saveexec_b64 s[78:79], vcc""")
    for i in range(1, nst):
        E(f"s_sub_u32 s71, s{80+2*i}, s80\nv_mov_b32 v10, s71\nbuffer_store_dword v10, v14, s[72:75], 0 offen offset:{4*i}\ns_nop 1")
    E(f"v_mov_b32 v10, s76\nbuffer_store_dword v10, v14, s[72:75], 0 offen offset:60\ns_nop 1")
    E(f"v_mov_b32 v10, s98\nbuffer_store_dword v10, v14, s[72:75], 0 offen offset:56\ns_nop 1")

def gen_k1(name="attn_kernel", STAMP=False, KVFLAG="", MAPPING=1, ROT=0, TOUCH=0, TFLAG="", WOT=1, TD=2, PEEL=0, GMAJ=0, NPRO=6, KV0AT=0, FUSED=0, ZFLAG=0, SOFT=0, VSUM=0, CPF=3, DIST=3, DLATE=0, DSTEP=5, KROT=0, PPS=4, TS0=5, TSTEP=3, TPK=1, verbose=True):
    sW = 40
    sBLK, sKVH, sBP, sBL, sHH = 41, 42, 43, 44, 45
    sWQoff, sXoff, sKVoff = 46, 47, 48
    sWQm0, sXm0, sKVm0 = 49, 50, 51
    sT0, sT1, sT2 = 52, 53, 54
    sCNT = 55
    sWrd, sXrd = 56, 57
    sTH = 58
    sC = 60
    sKd, sVd = 62, 63
    sKVw = 64
    sWQw = 65
    sK16, sKm48, sKKVS, sKm3KVS = 66, 67, 68, 69
    sT3, sT4 = 70, 71
    sWend, sXend, sTo = 72, 73, 74
    vTq, vTa, vDum = 13, 13, 0
    vTS = 18; sNC = 75
    assert SOFT or not VSUM
    SX, SWQ, SKV, SO = 24, 28, 32, 36
    vL = 1
    vKVd = [2, 3, 4, 5]
    vKa = 6; vVa = [7, 8, 9, 10]; vMX = 11; vT = 12; vF = 19
    vWa = list(range(20, 28)); vXa = [28, 29]; vWd = [14, 15, 16, 17]; vXd = [30, 31]
    ACC0 = 32
    def grp(g, nt): return ACC0 + (g * 7 + nt) * 8
    def acc(mt, nt): return grp(mt >> 1, nt) + 4 * (mt & 1)
    def Q(nt, g): return R("v", grp(g, nt))
    holes = [grp(g, nt) + 4 for g in range(4) for nt in range(7)] + [20, 24, 28]
    Kf = [[holes[4 * s + g] for g in range(4)] for s in range(2)]
    Vf = [holes[8 + d] for d in range(8)]
    Sb = [[holes[16 + 2 * b + s] for s in range(2)] for b in range(3)]
    Ci = [holes[22 + t] for t in range(7)]
    Pf = holes[29]
    Er = [holes[30] + i for i in range(4)] + [14, 15, 16, 17]
    VGAPS = [0, 1, 2, 3, 4, 5, 6, 8, 10, 12, 14, 15, 16, 17, 18, 19]
    KGAPS = [9, 11, 13, 15, 16, 18, 20, 22]
    sbuf = lambda t: 2 if t == 6 else (t & 1)
    def O(t, d): return R("a", (t * 8 + d) * 4)
    def Lr(t): return R("a", 224 + 4 * t)
    ONES = R("a", 252)
    def Af(i): return 4 * (i % 4)
    def Bf(par, nt): return 16 + (par * 7 + nt) * 4

    OFLAG = (' ' + os.environ['OFLAG']) if os.environ.get('OFLAG') else ''
    if FUSED: OFLAG = ' sc1'
    kvf = (" " + KVFLAG) if KVFLAG else ""

    P = Prog()
    P(f"""
.globl {name}
.p2align 8
.type {name},@function
{name}:
s_cmp_ge_u32 s2, 256
s_cbranch_scc1 {name}_done
s_load_dwordx8 s[4:11], s[0:1], 0
s_load_dwordx8 s[12:19], s[0:1], 40
s_load_dwordx2 s[20:21], s[0:1], 96
s_load_dwordx2 s[22:23], s[0:1], 32
s_load_dwordx2 s[76:77], s[0:1], 72
""")
    if STAMP: P("s_memtime s[80:81]\ns_memrealtime s[98:99]")
    P(f"""
v_lshrrev_b32 v10, 6, v0
v_and_b32 v{vL}, 63, v0
s_and_b32 s{sT0}, s2, 7
v_readfirstlane_b32 s{sW}, v10
s_lshr_b32 s{sT1}, s2, 3
s_lshr_b32 s{sBLK}, s{sT0}, 2
s_and_b32 s{sT0}, s{sT0}, 3
""")
    if MAPPING == 1:
        P(f"""
s_lshl_b32 s{sKVH}, s{sT0}, 2
s_and_b32 s{sT2}, s{sT1}, 3
s_add_u32 s{sKVH}, s{sKVH}, s{sT2}
s_lshr_b32 s{sBP}, s{sT1}, 2
""")
    elif MAPPING == 3:
        for m_ in range(48): assert (m_ * 52) >> 8 == m_ // 5 and (m_ * 43) >> 8 == m_ // 6
        P(f"""
s_lshl_b32 s{sT0}, s{sT0}, 5
s_add_u32 s{sT0}, s{sT0}, s{sT1}
s_mov_b32 s{sT1}, 0
s_mov_b32 s{sT2}, 0
s_mov_b32 s{sT3}, 52
s_mov_b32 s{sT4}, 5
s_cmp_ge_u32 s{sT0}, 40
s_cselect_b32 s{sT1}, 40, s{sT1}
s_cselect_b32 s{sT2}, 5, s{sT2}
s_cselect_b32 s{sT3}, 43, s{sT3}
s_cselect_b32 s{sT4}, 6, s{sT4}
s_cmp_ge_u32 s{sT0}, 88
s_cselect_b32 s{sT1}, 88, s{sT1}
s_cselect_b32 s{sT2}, 11, s{sT2}
s_cselect_b32 s{sT3}, 52, s{sT3}
s_cselect_b32 s{sT4}, 5, s{sT4}
s_sub_u32 s{sT0}, s{sT0}, s{sT1}
s_mul_i32 s{sBP}, s{sT0}, s{sT3}
s_lshr_b32 s{sBP}, s{sBP}, 8
s_mul_i32 s{sT4}, s{sBP}, s{sT4}
s_sub_u32 s{sT0}, s{sT0}, s{sT4}
s_add_u32 s{sKVH}, s{sT0}, s{sT2}
""")
    else:
        P(f"""
s_lshl_b32 s{sBP}, s{sT0}, 1
s_and_b32 s{sT2}, s{sT1}, 1
s_add_u32 s{sBP}, s{sBP}, s{sT2}
s_lshr_b32 s{sKVH}, s{sT1}, 1
""")
    P(f"""
s_lshr_b32 s{sBL}, s{sW}, 1
s_and_b32 s{sHH}, s{sW}, 1
""")
    if CPF:
        P(f"""
s_getpc_b64 s[96:97]
{name}_pc:
s_sub_u32 s96, s96, {name}_pc-{name}
s_subb_u32 s97, s97, 0
s_lshr_b32 s{sT0}, s2, 3
s_lshl_b32 s{sT0}, s{sT0}, 2
s_add_u32 s{sT0}, s{sT0}, s{sW}
s_lshl_b32 s{sT0}, s{sT0}, 9
v_lshl_add_u32 v13, v{vL}, 3, s{sT0}
s_mov_b32 s{sT0}, code_end-{name}-4
v_min_u32 v13, s{sT0}, v13
""")
    def code_touch():
        d = I(f"global_load_dword v{vDum}, v13, s[96:97]"); d.defs = set()
        return [[d]]
    P(f"""
v_lshrrev_b32 v10, 5, v{vL}
v_and_b32 v11, 31, v{vL}
s_lshl_b32 s{sT0}, s{sHH}, 3
v_lshlrev_b32 v12, 1, v10
v_or_b32 v12, s{sT0}, v12
v_xor_b32 v12, v12, v11
v_lshlrev_b32 v18, 13, v10
v_lshl_add_u32 v{vWd[0]}, v12, 4, v18
v_add_u32 v{vWd[2]}, {4*8192-2048}, v{vWd[0]}
v_xor_b32 v12, 4, v12
v_lshl_add_u32 v{vWd[1]}, v12, 4, v18
v_add_u32 v{vWd[1]}, {2*8192-1024}, v{vWd[1]}
v_add_u32 v{vWd[3]}, {4*8192-2048}, v{vWd[1]}
""")
    P(f"""
v_lshrrev_b32 v10, 3, v{vL}
v_mul_u32_u24 v10, 1152, v10
v_lshrrev_b32 v11, 4, v{vL}
v_and_b32 v12, 7, v{vL}
v_xor_b32 v11, v11, v12
s_lshl_b32 s{sT0}, s{sHH}, 2
v_xor_b32 v11, s{sT0}, v11
v_lshl_add_u32 v{vXd[0]}, v11, 4, v10
v_xor_b32 v11, 4, v11
v_lshl_add_u32 v{vXd[1]}, v11, 4, v10
""")
    krot_code = f"""s_lshr_b32 s{sT0}, s2, 3
s_mul_i32 s{sT0}, s{sT0}, 5
s_and_b32 s{sT1}, s2, 7
s_lshl_b32 s{sT1}, s{sT1}, 1
s_add_u32 s{sT0}, s{sT0}, s{sT1}
s_lshl_b32 s{sT1}, s{sBL}, 3
s_add_u32 s{sT0}, s{sT0}, s{sT1}
s_and_b32 s{sT0}, s{sT0}, 15
s_lshl_b32 s{sKVoff}, s{sT0}, 13""" if KROT else f"s_mov_b32 s{sKVoff}, 0"
    rot_code = f"""s_and_b32 s{sT0}, s{sKVH}, 3
s_lshl_b32 s{sT0}, s{sT0}, 1
s_add_u32 s{sT0}, s{sT0}, s{sBP}
s_cmp_ge_u32 s{sT0}, 9
s_cselect_b32 s{sT1}, 9, 0
s_sub_u32 s{sT0}, s{sT0}, s{sT1}
s_lshl_b32 s{sT1}, s{sT0}, 19
s_add_u32 s{sWQoff}, s{sWQoff}, s{sT1}
s_lshl_b32 s{sT1}, s{sT0}, 7
s_add_u32 s{sXoff}, s{sXoff}, s{sT1}""" if ROT else ""
    P(f"""
s_lshl_b32 s{sWQoff}, s{sW}, 16
s_lshl_b32 s{sT0}, s{sKVH}, 9
s_add_u32 s{sWQoff}, s{sWQoff}, s{sT0}
s_mul_i32 s{sXoff}, s{sW}, {56*1152}
s_lshl_b32 s{sWQm0}, s{sW}, 12
s_add_u32 s{sWQm0}, s{sWQm0}, {WB+32768}
s_mul_i32 s{sXm0}, s{sW}, {7*1024}
s_add_u32 s{sT0}, s{sXm0}, {XB[1]}
s_add_u32 s{sXm0}, s{sXm0}, {XB[0]}
s_xor_b32 s{sXrd}, s{sXm0}, s{sT0}
s_mul_i32 s{sKVm0}, s{sW}, {KVT}
s_add_u32 s{sWend}, s{sWQoff}, {576*8192}
s_add_u32 s{sXend}, s{sXoff}, 1152
{rot_code}
{krot_code}
s_mov_b32 s{sK16}, 16384
s_mov_b32 s{sKm48}, {(-3*16384) & 0xffffffff}
s_mov_b32 s{sKKVS}, {KVS}
s_mov_b32 s{sKm3KVS}, {(-3*KVS) & 0xffffffff}
s_mov_b32 s{sWQw}, 2
s_mov_b32 s{sKVw}, 0
s_waitcnt lgkmcnt(0)
s_cmp_eq_u32 s{sBLK}, 0
s_cselect_b64 s[4:5], s[4:5], s[12:13]
s_cselect_b64 s[6:7], s[6:7], s[14:15]
s_cselect_b64 s[8:9], s[8:9], s[16:17]
s_cselect_b64 s[10:11], s[10:11], s[18:19]
s_cselect_b64 s[22:23], s[22:23], s[76:77]
s_mul_i32 s{sT0}, s{sBP}, 258048
s_add_u32 s{SX}, s4, s{sT0}
s_addc_u32 s{SX+1}, s5, 0
s_mov_b32 s{SX+2}, 258048
s_mov_b32 s{SX+3}, 0x00020000
s_mov_b32 s{SWQ}, s10
s_mov_b32 s{SWQ+1}, s11
s_mov_b32 s{SWQ+2}, 4718592
s_mov_b32 s{SWQ+3}, 0x00020000
""")

    stamp(P, 20, STAMP and bool(os.environ.get("PSTAMP")))
    def flat(groups): return [i for g in groups for i in g]
    def dma_wq(stage):
        out = [[I(f"s_mov_b32 m0, s{sWQm0}"), I(f"s_add_u32 s{sWQw}, s{sWQw}, 1")]]
        for k in range(4):
            d = I(f"buffer_load_dwordx4 v{vWd[k]}, s[{SWQ}:{SWQ+3}], s{sWQoff} offen offset:{1024*k} lds")
            d.defs = {("wq", stage)}; out.append([d])
        out += [[I(f"s_add_u32 s{sWQoff}, s{sWQoff}, {32*8192}")],
                [I(f"s_and_b32 s{sWQw}, s{sWQw}, 3"),
                 I(f"s_cselect_b32 s{sT0}, s{sK16}, s{sKm48}")],
                [I(f"s_add_u32 s{sWQm0}, s{sWQm0}, s{sT0}")]]
        if ROT and stage % 2 == 1:
            out += [[I(f"s_cmp_ge_u32 s{sWQoff}, s{sWend}"), I(f"s_cselect_b32 s{sT0}, {576*8192}, 0")],
                    [I(f"s_sub_u32 s{sWQoff}, s{sWQoff}, s{sT0}")]]
        return out
    def dma_x(stage, part):
        out = [[I(f"s_add_u32 m0, s{sXm0}, {4096*part}")]]
        for i in (range(4) if part == 0 else range(4, 7)):
            d = I(f"buffer_load_dwordx4 v{vXd[i&1]}, s[{SX}:{SX+3}], s{sT1} offen offset:{1024*(i%4)} lds")
            d.defs = {("x", stage)}
            out.append([I(f"s_add_u32 s{sT1}, s{sXoff}, {i*9216 - 1024*(i%4)}"), d])
        if part == 1:
            out.append([I(f"s_add_u32 s{sXoff}, s{sXoff}, 128")])
            if ROT:
                out += [[I(f"s_cmp_ge_u32 s{sXoff}, s{sXend}"), I(f"s_cselect_b32 s{sT1}, 1152, 0")],
                        [I(f"s_sub_u32 s{sXoff}, s{sXoff}, s{sT1}")]]
            out.append([I(f"s_xor_b32 s{sXm0}, s{sXm0}, s{sXrd}")])
        return out
    def dma_kv(stage):
        out = []
        for half in range(2):
            out.append([I(f"s_add_u32 m0, s{sKVm0}, {4352*half}"),
                        I(f"s_add_u32 s{sKVw}, s{sKVw}, 1") if half == 0 else I(f"s_add_u32 s{sKVoff}, s{sKVoff}, 4096")])
            for k in range(4):
                d = I(f"buffer_load_dwordx4 v{vKVd[k]}, s[{SKV}:{SKV+3}], s{sKVoff} offen offset:{1088*k}{kvf} lds")
                d.defs = {("kv", stage)}; out.append([d])
        out += [[I(f"s_and_b32 s{sT0}, s{sKVw}, 3"), I(f"s_cselect_b32 s{sT0}, s{sKKVS}, s{sKm3KVS}")],
                [I(f"s_add_u32 s{sKVoff}, s{sKVoff}, 4096"), I(f"s_add_u32 s{sKVm0}, s{sKVm0}, s{sT0}")]]
        if KROT: out += [[I(f"s_and_b32 s{sKVoff}, s{sKVoff}, 0x1ffff")]]
        if stage >= DIST:
            out += [[I(f"s_cmp_eq_u32 s{sKVw}, 16"), I(f"s_cselect_b64 s[{SKV}:{SKV+1}], s[12:13], s[{SKV}:{SKV+1}]"),
                     I(f"s_cselect_b32 s{SKV+2}, {9216+192 if WOT else 0}, s{SKV+2}"), I(f"s_cselect_b32 s{sKVoff}, 0, s{sKVoff}")]]
        return out

    tf = (" " + TFLAG) if TFLAG else ""
    def touch(vreg, step):
        d = I(f"buffer_load_dword v{vDum}, v{vreg}, s[{SKV}:{SKV+3}], s{sTo} offen{tf}")
        d.defs = set()
        return [[d], [I(f"s_add_u32 s{sTo}, s{sTo}, {step}")]]
    def qtouch():
        d = I(f"buffer_load_dword v{vDum}, v{vTq}, s[{SKV}:{SKV+3}], s{sTo} offen offset:192{tf}")
        d.defs = set()
        lg = {2: 1, 4: 2, 8: 3}[PPS]
        return [[I(f"s_lshr_b32 s{sTo}, s17, {lg}")], [I(f"s_mul_i32 s{sTo}, s{sTo}, {TSTEP*8192}")],
                [I(f"s_add_u32 s{sTo}, s{sTo}, s18")], [I(f"s_and_b32 s{sTo}, s{sTo}, 0x1ffff")],
                [I(f"s_and_b32 s19, s17, {PPS-1}")], [I(f"s_lshl_b32 s19, s19, {13-lg}")],
                [I(f"s_add_u32 s{sTo}, s{sTo}, s19"), d], [I("s_add_u32 s17, s17, 1")]]
    pre_list = [dma_wq(0), dma_x(0, 0), dma_x(0, 1), dma_wq(1), dma_x(1, 0), dma_wq(2)]
    for gl in pre_list[:NPRO]: P.ext(flat(gl))
    if CPF & 1: P.ext(flat(code_touch()))
    P(f"""
s_cmp_eq_u32 s{sHH}, 0
s_cselect_b64 s[6:7], s[6:7], s[8:9]
s_lshl_b32 s{sT0}, s{sBP}, 1
s_add_u32 s{sT0}, s{sT0}, s{sBL}
s_lshl_b32 s{sT1}, s{sT0}, 4
s_add_u32 s{sT1}, s{sT1}, s{sKVH}
s_lshl_b32 s{sT1}, s{sT1}, 17
s_add_u32 s{SKV}, s6, s{sT1}
s_addc_u32 s{SKV+1}, s7, 0
s_sub_u32 s{SKV}, s{SKV}, 192
s_subb_u32 s{SKV+1}, s{SKV+1}, 0
s_mov_b32 s{SKV+2}, {131072+192}
s_mov_b32 s{SKV+3}, 0x00020000
s_lshl_b32 s{sT1}, s{sBLK}, 4
s_add_u32 s{sT0}, s{sT0}, s{sT1}
s_mul_i32 s{sT0}, s{sT0}, {7*TS}
s_lshl_b32 s{sT1}, s{sKVH}, 1
s_add_u32 s{sT1}, s{sT1}, s{sHH}
s_lshl_b32 s{sT1}, s{sT1}, 12
s_add_u32 s{sT0}, s{sT0}, s{sT1}
s_add_u32 s{SO}, s20, s{sT0}
s_addc_u32 s{SO+1}, s21, 0
s_mov_b32 s{SO+2}, {6*TS+4096}
s_mov_b32 s{SO+3}, 0x00020000
v_lshrrev_b32 v10, 4, v{vL}
v_and_b32 v11, 1, v10
v_lshlrev_b32 v11, 1, v11
v_lshrrev_b32 v12, 1, v10
v_lshl_or_b32 v11, v12, 3, v11
s_cmp_eq_u32 s{sHH}, 0
s_cselect_b64 vcc, -1, 0
v_cndmask_b32 v11, v11, v10, vcc
v_and_b32 v12, 15, v{vL}
v_xor_b32 v11, v11, v12
v_lshlrev_b32 v11, 4, v11
v_lshl_add_u32 v11, v10, 8, v11
v_add_u32 v{vKVd[0]}, 192, v11
v_add_u32 v{vKVd[1]}, 128, v11
v_add_u32 v{vKVd[2]}, 64, v11
v_mov_b32 v{vKVd[3]}, v11
""")
    if TOUCH: P(f"v_lshlrev_b32 v{vTq}, {7 - {2: 1, 4: 2, 8: 3}[PPS]}, v{vL}\ns_mov_b32 s17, 0\ns_add_u32 s18, s{sKVoff}, {TS0*8192}")
    P(f"""
s_lshl_b32 s{sT0}, s{sKVH}, 3
s_add_u32 s{sT0}, s{sT0}, s{sBP}
s_lshl_b32 s{sT0}, s{sT0}, 2
s_add_u32 s{sT0}, s{sT0}, s{sW}
s_mul_i32 s{sT0}, s{sT0}, 9216
s_add_u32 s12, s22, s{sT0}
s_addc_u32 s13, s23, 0
s_sub_u32 s12, s12, 192
s_subb_u32 s13, s13, 0
""")
    P("s_mov_b32 s16, 0")
    if FUSED:
        P(f"""
s_lshl_b32 s90, s{sBLK}, 3
s_add_u32 s90, s90, s{sBP}
s_lshl_b32 s90, s90, 7
s_lshl_b32 s{sT0}, s{sKVH}, 2
s_add_u32 s90, s90, s{sT0}
s_add_u32 s90, s90, 32768
s_mov_b32 s91, s{sW}
s_load_dwordx2 s[92:93], s[0:1], 88
s_memrealtime s[18:19]
s_waitcnt lgkmcnt(0)
s_mov_b32 s94, 256
s_mov_b32 s95, 0x00020000
s_or_b32 s{sT0}, s2, s{sW}
s_cmp_lg_u32 s{sT0}, 0
s_cbranch_scc1 {name}_nn
s_or_b32 s18, s18, 1
v_mov_b32 v10, s18
v_mov_b32 v11, 0
s_mov_b64 exec, 1""")
        ns_ = I("buffer_store_dword v10, v11, s[92:95], 0 offen sc1"); ns_.kind = "misc"
        P.ext([ns_])
        P(f"s_mov_b64 exec, -1\n{name}_nn:")
    def wo_touch():
        d = I(f"buffer_load_dword v{vDum}, v{vKVd[3]}, s[12:15], s16 offen"); d.defs = set()
        return [[d], [I("s_add_u32 s16, s16, 1024")]]
    P(f"""
v_lshrrev_b32 v32, 4, v{vL}
v_bfe_u32 v33, v{vL}, 2, 2
v_lshl_add_u32 v34, v32, 3, v33
v_lshlrev_b32 v34, 9, v34
v_and_b32 v35, 1, v32
v_lshl_or_b32 v35, v35, 2, v33
v_lshl_add_u32 v34, v35, 5, v34
v_and_b32 v35, 3, v{vL}
v_lshl_add_u32 v34, v35, 3, v34
s_lshl_b32 s{sT0}, s{sHH}, 8
s_add_u32 s{sT0}, s{sT0}, {WB+32768}
v_add_u32 v{vWa[0]}, s{sT0}, v34
""")
    for mt in range(1, 8): P(f"v_xor_b32 v{vWa[mt]}, {32*mt}, v{vWa[0]}")
    P(f"""
v_and_b32 v33, 15, v{vL}
v_lshrrev_b32 v34, 1, v33
v_xor_b32 v34, v34, v32
v_lshlrev_b32 v34, 4, v34
v_lshl_add_u32 v34, v33, 7, v34
s_mul_i32 s{sT0}, s{sBL}, {112*128}
s_add_u32 s{sT0}, s{sT0}, {XB[0]}
v_add_u32 v{vXa[0]}, s{sT0}, v34
v_xor_b32 v{vXa[1]}, 64, v{vXa[0]}
s_mov_b32 s{sC}, {f2u(CSCALE)}
s_mov_b32 s{sC+1}, {f2u(CSCALE)}
s_mov_b32 s{sNC}, {f2u(-CSCALE)}
s_mov_b32 s{sTH}, {f2u(THRESH / CSCALE if SOFT else THRESH)}
s_mov_b32 s{sCNT}, 0
""")

    P(f"""
v_and_b32 v36, 15, v{vL}
v_lshrrev_b32 v37, 4, v{vL}
v_lshrrev_b32 v38, 2, v36
v_and_b32 v39, 3, v36
v_mul_u32_u24 v40, 1088, v38
v_lshl_add_u32 v40, v39, 8, v40
v_xor_b32 v41, v37, v39
v_lshl_add_u32 v40, v41, 4, v40
s_mul_i32 s{sT0}, s{sBL}, {2*KVT}
v_add_u32 v{vKa}, s{sT0}, v40
""")
    P(f"""
v_mul_u32_u24 v40, 1088, v37
v_lshl_add_u32 v40, v38, 8, v40
v_lshl_add_u32 v40, v39, 3, v40
s_add_u32 s{sT0}, s{sT0}, {KVT}
v_add_u32 v40, s{sT0}, v40
v_and_b32 v41, 1, v38
v_lshrrev_b32 v36, 1, v38
v_lshl_or_b32 v41, v36, 2, v41
""")
    for u in range(4):
        pat = (u & 1) | ((u >> 1) << 2)
        P(f"v_xor_b32 v36, {pat}, v41\nv_lshl_add_u32 v{vVa[u]}, v36, 5, v40")
    P(f"s_mov_b32 s{sKd}, 0\ns_mov_b32 s{sVd}, 0")
    P(f"v_mov_b32 v36, 0x3f803f80\nv_mov_b32 v37, 0")
    for i in range(4): P(f"v_accvgpr_write_b32 a{252+i}, v36")
    for i in range(32): P(f"v_accvgpr_write_b32 a{6*32+i}, v37")
    for i in range(4): P(f"v_accvgpr_write_b32 a{224+24+i}, v37")

    def a_reads(ks, mt, slot=None):
        out = []
        for half in range(2):
            r = Af(mt if slot is None else slot) + 2 * half
            d = I(f"ds_read_b64_tr_b16 a[{r}:{r+1}], v{vWa[mt]} offset:{2048*half + 16384*(ks&1)}")
            d.defs |= {("wqrd", ks)}; out.append(d)
        return out
    def b_read(ks, nt):
        r = Bf(ks & 1, nt)
        d = I(f"ds_read_b128 a[{r}:{r+3}], v{vXa[ks&1]} offset:{2048*nt}")
        d.defs |= {("xrd", ks >> 1)}
        return d
    def qbarrier(i):
        b = I("s_barrier")
        b.uses = {("wq", i), ("wqrd", i - 1)}
        if i % 2 == 0: b.uses |= {("x", i // 2)}
        else: b.uses |= {("xrd", i // 2)}
        if i == 18: b.uses |= {("kv", 0)}
        if i == 16 and GMAJ: b.uses |= {("wq", 17), ("kv", 0)}
        return b

    stamp(P, 21, STAMP and bool(os.environ.get("PSTAMP")))
    P.ext([qbarrier(0)])
    P.ext(a_reads(0, 0)); P.ext([b_read(0, nt) for nt in range(7)]); P.ext(a_reads(0, 1))
    stamp(P, 1, STAMP)
    inst = [("pre", P.L)]

    def conv_group(g, nt):
        r = grp(g, nt)
        o = []
        if not SOFT:
            for q in range(4): o.append(I(f"v_pk_mul_f32 v[{r+2*q}:{r+2*q+1}], v[{r+2*q}:{r+2*q+1}], s[{sC}:{sC+1}]"))
        for q in range(4): o.append(I(f"v_cvt_pk_bf16_f32 v{r+q}, v{r+2*q}, v{r+2*q+1}"))
        return o
    def swap_group(g, nt):
        r = grp(g, nt)
        return ([I(f"v_permlane32_swap_b32 v{r}, v{r+2}"), I(f"v_permlane32_swap_b32 v{r+1}, v{r+3}")],
                [I(f"v_permlane16_swap_b32 v{r}, v{r+2}"), I(f"v_permlane16_swap_b32 v{r+1}, v{r+3}")])

    sXdelta = 59
    inst[0][1].append(I(f"s_mov_b32 s{sXdelta}, {(XB[1]-XB[0]) & 0xffffffff}"))
    inst[0][1].append(I(f"s_mov_b32 s{sWrd}, {(-32768) & 0xffffffff}"))

    def dma_in(ks):
        lst = []
        k = ks // 2
        if ks == 0:
            for gl in pre_list[NPRO:]: lst += gl
        if ks % 2 == 0:
            if k + 1 <= 8: lst += dma_x(k + 1, 1)
            if ks + 3 <= 17: lst += dma_wq(ks + 3)
        else:
            if ks + 3 <= 17: lst += dma_wq(ks + 3)
            if k + 2 <= 8: lst += dma_x(k + 2, 0)
        if ks == KV0AT: lst += dma_kv(0)
        if ks == 14 and (CPF & 2): lst += code_touch()
        if ks == 15: lst += dma_kv(1)
        if ks == 17 and DIST >= 3: lst += dma_kv(2)
        if (TOUCH & 1) and 2 <= ks <= 17:
            for _ in range(TPK): lst += qtouch()
        return lst

    def k_read(j, sub, g):
        r = Kf[sub][g]
        d = I(f"ds_read_b128 v[{r}:{r+3}], v{vKa} offset:{64*g + 4352*sub}")
        d.defs |= {("krd", j)}
        return d
    def v_reads(j, dt):
        u = (dt & 1) | ((dt >> 2) << 1)
        out = []
        for half in range(2):
            r = Vf[dt] + 2 * half
            d = I(f"ds_read_b64_tr_b16 v[{r}:{r+1}], v{vVa[u]} offset:{64*((dt>>1)&1) + 4352*half}")
            d.defs |= {("vrd", j)}; out.append(d)
        return out
    def qlast():
        F = [(16 + (i >> 1 & 1), 2 * (i >> 2) + (i & 1)) for i in range(16)]
        mf = []
        for i, (ks, mt) in enumerate(F):
            for nt in range(7):
                c = R("v", acc(mt, nt))
                mf.append(m16(c, R("a", Af(i)), R("a", Bf(ks & 1, nt)), c))
        S = Sched2(mf)
        for i in range(14): S.stream(a_reads(*F[i + 2], slot=i + 2), 7 * i, 7 * i + 3)
        S.stream([b_read(17, nt) for nt in range(7)], 2, 10)
        b = I("s_barrier"); b.uses = {("xrd", 8)}
        S.put(20, b)
        if DIST >= 3: spaced(S, dma_kv(2), 21, 80, 6)
        done = {}
        for g in range(3):
            for nt in range(7):
                lo = 28 * g + 21 + nt + 4
                lo = S.stream(conv_group(g, nt), lo, 111)
                done[(g, nt)] = lo
                s0, s1 = swap_group(g, nt)
                lo = S.stream(s0, min(lo + 2, 111), 111)
                S.stream(s1, min(lo + 2, 111), 111)
        hole_owner = [(g, nt) for g in range(4) for nt in range(7)]
        lo = 60
        for sub in range(2):
            for g in range(4): lo = S.place(k_read(0, sub, g), max(lo, done[hole_owner[4 * sub + g]] + 1), 111)
        for dt in range(8):
            for d in v_reads(0, dt): lo = S.place(d, max(lo, done[hole_owner[8 + dt]] + 1), 111)
        return S

    def qstep(ks):
        mf = []
        for mt in range(8):
            for nt in range(7):
                c = R("v", acc(mt, nt))
                mf.append(m16(c, R("a", Af(mt)), R("a", Bf(ks & 1, nt)), "0" if ks == 0 else c))
        S = Sched2(mf)
        for mt in range(6):
            S.stream(a_reads(ks, mt + 2), 7 * mt, 7 * mt + 3)
        nxt = ks + 1
        if ks % 2 == 0:
            S.stream([b_read(nxt, nt) for nt in range(7)], 2, 20)
        if nxt < 18:
            if nxt % 2 == 0:
                S.stream([I(f"v_add_u32 v{vXa[0]}, s{sXdelta}, v{vXa[0]}"), I(f"v_add_u32 v{vXa[1]}, s{sXdelta}, v{vXa[1]}"),
                          I(f"s_sub_u32 s{sXdelta}, 0, s{sXdelta}")], 20, 36)
                advs = [I(f"v_add_u32 v{vWa[mt]}, s{sWrd}, v{vWa[mt]}") for mt in range(8)]
                S.stream(advs[:7], 32, 40)
                S.put(40, advs[7])
                S.put(41, I(f"s_sub_u32 s{sWrd}, 0, s{sWrd}"))
            S.put(42, qbarrier(nxt))
            S.stream(a_reads(nxt, 0), 42, 45)
            if nxt % 2 == 0: S.stream([b_read(nxt, nt) for nt in range(7)], 43, 52)
            S.stream(a_reads(nxt, 1), 49, 53)
        items = dma_in(ks)
        nd = sum(1 for g_ in items for i_ in g_ if i_.kind in ("dma", "vload"))
        if nd: spaced(S, items, 1, 55, max(2, min(6, 52 // nd)))
        return S

    for k in range(9):
        Ss = [qlast()] if (k == 8 and GMAJ) else [qstep(2 * k), qstep(2 * k + 1)]
        if k == 8 and verbose: print('q8 est', sum(S.est() for S in Ss))
        code = []
        key = "qloop" if 1 <= k <= 6 else f"q{k}"
        if key == "qloop": code.append(I(f"{name}_qloop:"))
        for S in Ss: code += S.emit()
        if key == "qloop":
            code += [I(f"s_add_u32 s{sCNT}, s{sCNT}, 1"), I(f"s_cmp_lt_u32 s{sCNT}, 6"), I(f"s_cbranch_scc1 {name}_qloop")]
        inst.append((key, code))
        if STAMP and k in (0, 6):
            T_ = Prog(); stamp(T_, 6 if k == 0 else 7, True); inst.append((f"st{k}", T_.L))

    C = Prog()
    if not GMAJ: C.ext([qbarrier(18)])
    assert not GMAJ or (DIST == 3 and SOFT)
    if TOUCH & 2: C(f"v_lshlrev_b32 v{vTa}, 7, v{vL}")
    late = dma_kv(3) if DIST >= 4 else []
    if TOUCH & 2:
        first_t = 5 if (TOUCH & 1) else 4
        late += [[I(f"s_mov_b32 s{sTo}, {first_t*8192+192}")]]
        for st_ in range(first_t, 4 + TD): late += touch(vTa, 8192)
    stamp(C, 2, STAMP)
    C(f"s_mov_b32 s{sCNT}, 0\ns_nop 4")
    groups = [(g, nt) for nt in range(7) for g in range(4) if (g == 3 or not GMAJ)]
    prev = None
    for i, (g, nt) in enumerate(groups):
        if late: C.ext(late.pop(0))
        C.ext(conv_group(g, nt))
        if i >= 1: C.ext(swap_group(*groups[i - 1])[0])
        if i >= 2: C.ext(swap_group(*groups[i - 2])[1])
    C("s_nop 1")
    C.ext(swap_group(*groups[-1])[0]); C.ext(swap_group(*groups[-2])[1]); C("s_nop 1"); C.ext(swap_group(*groups[-1])[1])

    def adv(sreg, vregs, st):
        return [[I(f"s_add_u32 s{sreg}, s{sreg}, 1")], [I(f"s_and_b32 s{sreg}, s{sreg}, 3"),
                I(f"s_cselect_b32 s{st}, s{sKKVS}, s{sKm3KVS}")]] + \
               [[I(f"v_add_u32 v{v}, s{st}, v{v}")] for v in vregs]
    def abarrier(j):
        b = I("s_barrier"); b.uses = {("kv", j + 1), ("krd", j), ("vrd", j), ("wqrd", 16), ("wqrd", 17)}
        return b
    def qk(t, zero):
        o = []
        for sub in range(2):
            d = R("v", Sb[sbuf(t)][sub])
            for g in range(4):
                c = d if g else ("0" if (zero or SOFT) else R("v", Ci[t]))
                o.append(m16(d, R("v", Kf[sub][g]), Q(t, g), c))
        return o
    def pv(t, zero):
        o = [m16(O(t, d), R("v", Vf[d]), R("v", Pf), "0" if zero else O(t, d)) for d in range(8)]
        if not VSUM: o.append(m16(Lr(t), ONES, R("v", Pf), "0" if zero else Lr(t)))
        return o
    def sregs(t): return [Sb[sbuf(t)][0] + i for i in range(4)] + [Sb[sbuf(t)][1] + i for i in range(4)]

    if not GMAJ:
        for sub in range(2):
            for g in range(4): C.ext([k_read(0, sub, g)])
        for dt in range(8): C.ext(v_reads(0, dt))
    C.ext(qk(0, True))
    stamp(C, 3, STAMP)
    inst.append(("conv", C.L))

    slow = Prog()
    def epi_tile(t, U, sfx):
        LS = Ci[t] + 2; X = Ci[t] + 3; INV = Ci[t]
        o = [f"v_mov_b32 v{X}, v{LS}", "s_nop 1", f"v_permlane32_swap_b32 v{X}, v{LS}", f"v_add_f32 v{LS}, v{LS}, v{X}",
             f"v_mov_b32 v{X}, v{LS}", "s_nop 1", f"v_permlane16_swap_b32 v{X}, v{LS}", f"v_add_f32 v{LS}, v{LS}, v{X}",
             f"v_rcp_f32 v{INV}, v{LS}"]
        o = [[I(x)] for x in o]
        for g in range(4):
            val = [U[0] + i for i in range(4)] + [U[1] + i for i in range(4)]
            out = U[2 + (g & 1)]
            for i in range(8): o.append([I(f"v_accvgpr_read_b32 v{val[i]}, a{(t*8+2*g)*4+i}")])
            for i in range(8): o.append([I(f"v_mul_f32 v{val[i]}, v{val[i]}, v{INV}")])
            for q in range(4): o.append([I(f"v_cvt_pk_bf16_f32 v{out+q}, v{val[2*q]}, v{val[2*q+1]}")])
            st = I(f"buffer_store_dwordx4 v[{out}:{out+3}], v{vKa}, s[{SO}:{SO+3}], s{sT3} offen offset:{1024*g}{OFLAG}")
            st.defs = {("ostore", 0)}
            o.append(([I(f"s_mov_b32 s{sT3}, {t*TS}")] if g == 0 else []) + [st])
        return o
    def block(j, first, last=False):
        mf = []; base = []
        for s in range(7):
            base.append(len(mf))
            if not (first and s == 0): mf += pv((s - 1) % 7, first)
            if not (last and s == 6): mf += qk((s + 1) % 7, first and s < 6)
        base.append(len(mf))
        if last: mf += pv(6, False)
        S = Sched2(mf)
        NPV = 8 if VSUM else 9; SL = NPV + 8
        if not first:
            for n, gp in enumerate(VGAPS):
                dt = n // 2
                gp = min(gp, SL + dt - 4)
                assert dt <= gp
                S.put(gp, v_reads(j, dt)[n % 2])
        for i, gp in enumerate(KGAPS if not last else []):
            gp = gp - 9 + NPV
            assert NPV + i <= gp <= SL + NPV + i - 4
            S.put(base[5] + gp, k_read(j + 1, i // 4, i % 4))
        gb = base[2] + 1
        if not last: S.put(gb, abarrier(j))
        for t in range(7):
            b0 = base[t]; sr = sregs(t); n = base[t + 1] - b0
            NM, TH, LS = Ci[t], Ci[t] + 1, Ci[t] + 2
            if first:
                ops = [f"v_max3_f32 v{vMX}, v{sr[0]}, v{sr[1]}, v{sr[2]}",
                       f"v_max3_f32 v{vMX}, v{vMX}, v{sr[3]}, v{sr[4]}",
                       f"v_max3_f32 v{vMX}, v{vMX}, v{sr[5]}, v{sr[6]}",
                       f"v_max_f32 v{vMX}, v{vMX}, v{sr[7]}",
                       f"v_mov_b32 v{vT}, v{vMX}", f"v_permlane32_swap_b32 v{vT}, v{vMX}",
                       f"v_max_f32 v{vMX}, v{vT}, v{vMX}",
                       f"v_mov_b32 v{vT}, v{vMX}", f"v_permlane16_swap_b32 v{vT}, v{vMX}",
                       f"v_max_f32 v{vMX}, v{vT}, v{vMX}"]
                if SOFT:
                    ops += [f"v_mul_f32 v{NM}, s{sNC}, v{vMX}"]
                    ops += [f"v_fma_f32 v{r}, v{r}, s{sC}, v{NM}" for r in sr]
                    ops += [f"v_add_f32 v{TH}, s{sTH}, v{vMX}"]
                else:
                    ops += [f"v_sub_f32 v{r}, v{r}, v{vMX}" for r in sr]
                ops += [f"v_exp_f32 v{r}, v{r}" for r in sr]
                if not SOFT: ops += [f"v_sub_f32 v{Ci[t]+i}, 0, v{vMX}" for i in range(4)]
                if VSUM:
                    ops += [f"v_add_f32 v{LS}, v{sr[0]}, v{sr[1]}"] + [f"v_add_f32 v{LS}, v{LS}, v{sr[i]}" for i in range(2, 8)]
                for i, o in enumerate(ops):
                    S.put(b0 + min(n - 2, 1 + (i * (n - 3)) // len(ops)), o)
                for q in range(4): S.put(b0 + n - 2, f"v_cvt_pk_bf16_f32 v{Pf+q}, v{sr[2*q]}, v{sr[2*q+1]}")
            elif SOFT:
                e0 = b0 + n - 1
                sx = "L" if last else ""
                gbr = S.put(e0, f"s_cbranch_vccnz {name}_slow{sx}{t}\n{name}_back{sx}{t}:")
                if VSUM: S.put(e0, f"v_add_f32 v{LS}, v{LS}, v{vTS}")
                ge = []
                for i in range(8):
                    tgt = b0 + (i * (n - 4)) // 8
                    gf = S.place(f"v_fma_f32 v{Er[i]}, v{sr[i]}, s{sC}, v{NM}", max(tgt, b0 + (3 if i >= 4 else 0)), min(max(tgt, b0 + 3) + 1, e0 - 3) if n > 8 else b0 + 3)
                    ge.append(S.place(f"v_exp_f32 v{Er[i]}, v{Er[i]}", gf + 1, min(gf + 2, e0 - 2)))
                cap = lambda x: min(x, e0 - 3)
                g1 = S.place(f"v_max3_f32 v{vMX}, v{sr[0]}, v{sr[1]}, v{sr[2]}", b0, cap(b0 + 6))
                g2 = S.place(f"v_max3_f32 v{vT}, v{sr[4]}, v{sr[5]}, v{sr[6]}", b0 + 3, cap(b0 + 8))
                g3 = S.place(f"v_max3_f32 v{vMX}, v{vMX}, v{sr[3]}, v{sr[7]}", max(g1, b0 + 3), cap(b0 + 10))
                g4 = S.place(f"v_max_f32 v{vMX}, v{vMX}, v{vT}", max(g2, g3), cap(b0 + 11))
                g5 = S.place(f"v_cmp_lt_f32 vcc, v{TH}, v{vMX}", g4, e0 - 2)
                for q in range(4):
                    S.place(f"v_cvt_pk_bf16_f32 v{Pf+q}, v{Er[2*q]}, v{Er[2*q+1]}", max(ge[2*q] + 1, ge[2*q+1] + 1, b0 + NPV - 1), max(e0 - 1, b0 + NPV - 1))
                if VSUM:
                    ga = S.place(f"v_add_f32 v{vTS}, v{Er[0]}, v{Er[1]}", ge[1] + 1, e0 - 1)
                    for i in range(2, 8):
                        ga = S.place(f"v_add_f32 v{vTS}, v{vTS}, v{Er[i]}", max(ga, ge[i] + 1), min(max(ga, ge[i] + 1) + 3, e0 - 1))
            else:
                g1 = S.place(f"v_max3_f32 v{vMX}, v{sr[0]}, v{sr[1]}, v{sr[2]}", b0, b0 + 5)
                g2 = S.place(f"v_max3_f32 v{vT}, v{sr[4]}, v{sr[5]}, v{sr[6]}", b0 + 3, b0 + 7)
                g3 = S.place(f"v_max3_f32 v{vMX}, v{vMX}, v{sr[3]}, v{sr[7]}", max(g1, b0 + 3), b0 + 8)
                g4 = S.place(f"v_max_f32 v{vMX}, v{vMX}, v{vT}", max(g2, g3), b0 + 9)
                g5 = S.place(f"v_cmp_lt_f32 vcc, s{sTH}, v{vMX}", g4, b0 + 10)
                gbr = S.place(f"s_cbranch_vccnz {name}_slow{t}\n{name}_back{t}:", g5 + 2, b0 + 12)
                ge = []
                for i in range(8):
                    ge.append(S.place(f"v_exp_f32 v{Er[i]}, v{sr[i]}", b0 + (3 if i >= 4 else 0), b0 + 14))
                for q in range(4):
                    S.place(f"v_cvt_pk_bf16_f32 v{Pf+q}, v{Er[2*q]}, v{Er[2*q+1]}", max(ge[2*q] + 1, ge[2*q+1] + 1, gbr + 1, b0 + 8), b0 + 15)
        if last:
            S.put(0, f"v_lshlrev_b32 v{vKa}, 4, v{vL}")
            for t in range(5):
                lo = base[t + 1] + NPV + 3; hi = min(base[t + 2] + NPV + 2, len(mf) - 1)
                ops = epi_tile(t, [grp(g, t) for g in range(4)], "")
                for i, o_ in enumerate(ops): S.put(lo + (i * (hi - lo + 1)) // len(ops), o_)
            return S
        spaced(S, dma_kv(j + DIST) + (touch(vTa, 8192) if TOUCH & 2 else []), gb + 1 + DLATE, min(base[5] + 6 + DLATE, len(mf) - 2), DSTEP)
        S.stream(adv(sVd, vVa, sT3), base[2], base[6])
        S.stream(adv(sKd, [vKa], sT4), base[3], base[5] + NPV - 1)
        return S

    S0 = block(0, True)
    inst.append(("blk0", S0.emit()))
    if STAMP:
        T_ = Prog(); stamp(T_, 8, True); inst.append(("stb", T_.L))
    for j in range(1, 15 if PEEL else 16):
        S = block(j, False)
        trace = [I("s_memtime s[76:77]"), I("s_memrealtime s[78:79]"), I("s_waitcnt lgkmcnt(0)"),
                 I(f"s_mov_b32 m0, s{sCNT}"), I("s_nop 1"), I(f"v_writelane_b32 v18, s76, m0"), I(f"v_writelane_b32 v19, s78, m0")] if os.environ.get("TRACE") else []
        code = [I(f"{name}_aloop:")] + trace + S.emit() + [I(f"s_add_u32 s{sCNT}, s{sCNT}, 1"), I(f"s_cmp_lt_u32 s{sCNT}, {14 if PEEL else 15}"),
                                                   I(f"s_cbranch_scc1 {name}_aloop")]
        inst.append(("aloop", code))
        if verbose and j == 1: print("k1 attention block est cycles", S.est(16), "ideal", 16 * len(S.m))

    E = Prog()
    if PEEL:
        assert SOFT and VSUM and not FUSED
        SL_ = block(15, False, last=True)
        if verbose: print("last block est", SL_.est())
        inst.append(("blkL", SL_.emit()))
    else: E.ext(pv(6, False))
    stamp(E, 4, STAMP)
    if os.environ.get("TRACE"):
        E(f"""s_add_u32 s72, s20, 0x5000000
s_addc_u32 s73, s21, 0
s_mov_b32 s74, 0x100000
s_mov_b32 s75, 0x00020000
s_lshl_b32 s70, s2, 11
s_lshl_b32 s71, s{sW}, 9
s_add_u32 s70, s70, s71
v_lshlrev_b32 v2, 3, v{vL}
buffer_store_dwordx2 v[18:19], v2, s[72:75], s70 offen
s_waitcnt vmcnt(0)""")
    if FUSED:
        E(f"s_waitcnt vmcnt(0)\ns_barrier\nv_mov_b32 v24, 0\nbuffer_load_dword v25, v24, s[92:95], 0 offen sc1")
    if ZFLAG:
        E(f"""s_add_u32 s72, s20, {ZFLAG}
s_addc_u32 s73, s21, 0
s_mov_b32 s74, 32768
s_mov_b32 s75, 0x00020000
s_lshl_b32 s70, s2, 7
v_and_b32 v2, 31, v{vL}
v_lshlrev_b32 v2, 2, v2
v_mov_b32 v10, 0
buffer_store_dword v10, v2, s[72:75], s70 offen""")
    E(f"v_lshlrev_b32 v2, 4, v{vL}")
    E("s_nop 7")
    tmp = 32
    if VSUM:
        ET = range(5, 7) if PEEL else range(7)
        for t in ET: E(f"v_mov_b32 v{3+t}, v{Ci[t]+2}\nv_mov_b32 v{11+t}, v{Ci[t]+2}")
        E("s_nop 1")
        for t in ET: E(f"v_permlane32_swap_b32 v{3+t}, v{11+t}")
        for t in ET: E(f"v_add_f32 v{3+t}, v{3+t}, v{11+t}")
        for t in ET: E(f"v_mov_b32 v{11+t}, v{3+t}")
        E("s_nop 1")
        for t in ET: E(f"v_permlane16_swap_b32 v{3+t}, v{11+t}")
        for t in ET: E(f"v_add_f32 v{3+t}, v{3+t}, v{11+t}")
    for t in (range(5, 7) if PEEL else range(7)):
        inv = 20 + 2 * (t & 1)
        if VSUM: E(f"s_mov_b32 s{sT0}, {t*TS}\nv_rcp_f32 v{inv}, v{3+t}")
        else: E(f"v_accvgpr_read_b32 v{inv}, a{224+4*t}\ns_mov_b32 s{sT0}, {t*TS}\nv_rcp_f32 v{inv}, v{inv}")
        for g in range(4):
            r = tmp + 16 * ((t * 4 + g) % 8)
            for i in range(8): E(f"v_accvgpr_read_b32 v{r+i}, a{(t*8+2*g)*4+i}")
            for q in range(4): E(f"v_pk_mul_f32 v[{r+2*q}:{r+2*q+1}], v[{r+2*q}:{r+2*q+1}], v[{inv}:{inv+1}] op_sel_hi:[1,0]")
            for q in range(4): E(f"v_cvt_pk_bf16_f32 v{r+8+q}, v{r+2*q}, v{r+2*q+1}")
            E(f"buffer_store_dwordx4 v[{r+8}:{r+11}], v2, s[{SO}:{SO+3}], s{sT0} offen offset:{1024*g}{OFLAG}")
            E.L[-1].defs = {("ostore", 0)}
    if STAMP and not FUSED:
        stamp(E, 5, True)
        stamp_store(E, 9 if not os.environ.get('DBG') else 6, sW, 20, (512, 0))
    if not FUSED: E(f"{name}_done:\ns_endpgm")
    inst.append(("end", E.L))

    for t, sx in [(t, sx) for sx in (("", "L") if PEEL else ("",)) for t in range(7)]:
        sr = sregs(t)
        slow(f"""{name}_slow{sx}{t}:
v_mov_b32 v{vT}, v{vMX}
s_nop 1
v_permlane32_swap_b32 v{vT}, v{vMX}
v_max_f32 v{vMX}, v{vT}, v{vMX}
v_mov_b32 v{vT}, v{vMX}
s_nop 1
v_permlane16_swap_b32 v{vT}, v{vMX}
v_max_f32 v{vMX}, v{vT}, v{vMX}
""")
        NM, TH, LS = Ci[t], Ci[t] + 1, Ci[t] + 2
        if SOFT:
            slow(f"""v_subrev_f32 v{vT}, s{sTH}, v{TH}
v_max_f32 v{vMX}, v{vT}, v{vMX}
v_mul_f32 v{vT}, s{sNC}, v{vMX}
v_sub_f32 v{vF}, v{vT}, v{NM}
v_exp_f32 v{vF}, v{vF}
v_mov_b32 v{NM}, v{vT}
v_add_f32 v{TH}, s{sTH}, v{vMX}""")
            for i in range(8): slow(f"v_fma_f32 v{Er[i]}, v{sr[i]}, s{sC}, v{NM}")
            for i in range(8): slow(f"v_exp_f32 v{Er[i]}, v{Er[i]}")
            slow("s_nop 0")
            for q in range(4): slow(f"v_cvt_pk_bf16_f32 v{Pf+q}, v{Er[2*q]}, v{Er[2*q+1]}")
            if VSUM:
                slow(f"v_add_f32 v{vTS}, v{Er[0]}, v{Er[1]}")
                for i in range(2, 8): slow(f"v_add_f32 v{vTS}, v{vTS}, v{Er[i]}")
                slow(f"v_mul_f32 v{LS}, v{LS}, v{vF}")
        else:
            slow(f"v_max_f32 v{vMX}, 0, v{vMX}\nv_exp_f32 v{vF}, -v{vMX}")
            for r in sr: slow(f"v_sub_f32 v{r}, v{r}, v{vMX}")
            for i in range(8): slow(f"v_exp_f32 v{Er[i]}, v{sr[i]}")
            for i in range(4): slow(f"v_sub_f32 v{Ci[t]+i}, v{Ci[t]+i}, v{vMX}")
        regs = [t * 32 + i for i in range(32)] + ([] if VSUM else [224 + 4 * t + i for i in range(4)])
        for a in regs:
            slow(f"v_accvgpr_read_b32 v{vT}, a{a}\nv_mul_f32 v{vT}, v{vT}, v{vF}\nv_accvgpr_write_b32 a{a}, v{vT}")
        slow(f"s_nop 1\ns_branch {name}_back{sx}{t}")

    EXP = os.environ.get("EXP", "").split(",")
    def keep(key, i):
        if key == "aloop":
            if "a_nodma" in EXP and i.kind == "dma": return False
            if "a_nobar" in EXP and i.kind == "barrier": return False
            if "a_nods" in EXP and i.kind == "dsr": return False
            if "a_noexp" in EXP and i.op == "v_exp_f32": return False
            if "a_nomax" in EXP and (i.op.startswith("v_max") or i.op.startswith("v_cmp") or i.op == "s_cbranch_vccnz"): return False
            if "a_nobr" in EXP and (i.op == "s_cbranch_vccnz"): return False
            if "a_nocvt" in EXP and i.op.startswith("v_cvt"): return False
            if "a_nosum" in EXP and i.kind == "mfma" and "a[252:255]" in i.text: return False
            if "a_nopv" in EXP and i.kind == "mfma" and i.text.split()[1].startswith("a["): return False
        if key == "qloop":
            if "q_nodma" in EXP and i.kind == "dma": return False
            if "q_nobar" in EXP and i.kind == "barrier": return False
            if "q_nods" in EXP and i.kind == "dsr": return False
        return True
    inst = [(k_, [i for i in c_ if keep(k_, i)]) for k_, c_ in inst]
    PADN = int(os.environ.get("PADN", 0))
    if PADN:
        def pad(c_):
            o_ = []; n_ = 0
            for i in c_:
                if i.kind == "mfma":
                    n_ += 1
                    if n_ % PADN == 0: o_.append(I("s_nop 7"))
                o_.append(i)
            return o_
        inst = [(k_, pad(c_) if k_ == "aloop" else c_) for k_, c_ in inst]
    if FUSED: return inst, slow
    out, full, nfix = resolve_all2(inst)
    if verbose: print("k1 nops inserted:", nfix, "est aloop", est_code(out["aloop"]), "est qloop", est_code(out["qloop"]), "blk0", est_code(out["blk0"]))
    msgs = check_hazards(full, name) + check_hazards(slow.L, name + "_slow")
    seen = set()
    for m_ in msgs:
        key = m_.split("]")[1][:60] + m_.split("->")[-1][-50:]
        if key not in seen: print(m_); seen.add(key)
    order = []
    for key, _ in inst:
        if key not in order: order.append(key)
    text = "\n".join(str(i) for key in order for i in out[key]) + "\n" + slow.text()
    launch = f"; @launch kernel={name} grid=(256,1,1) block=(256,1,1) lds=163840"
    return launch, text, kd(name, 512, 256, 102)

def gen_k2(name="oproj_kernel", NS=4, STAMP=False, WROT=1, verbose=True):
    for Lp in range(126): assert (Lp * 57) >> 9 == Lp // 9
    KS = 4
    PB = KS * NS
    ACC = 16
    AF = 48
    BF = 80
    NV = BF + 8 * PB
    vLane16 = 2; vA = [3, 4, 5, 6]; vDma = [7, 8, 9, 10]; vOut = 11
    P = Prog()
    P(f"""
.globl {name}
.p2align 8
.type {name},@function
{name}:
s_cmp_ge_u32 s2, 256
s_cbranch_scc1 {name}_done
s_load_dwordx2 s[4:5], s[0:1], 32
s_load_dwordx2 s[6:7], s[0:1], 72
s_load_dwordx2 s[8:9], s[0:1], 80
s_load_dwordx2 s[10:11], s[0:1], 96
""")
    if STAMP: P("s_memtime s[80:81]\ns_memrealtime s[98:99]")
    P(f"""
s_and_b32 s20, s2, 7
s_lshr_b32 s21, s2, 3
s_and_b32 s22, s20, 1
s_mul_i32 s23, s22, 31
s_cmp_eq_u32 s23, 31
s_cselect_b32 s23, s21, 0
s_cmp_eq_u32 s23, 31
s_cbranch_scc1 {name}_done
s_mul_i32 s22, s20, 63
s_add_u32 s22, s22, 1
s_lshr_b32 s22, s22, 1
s_add_u32 s22, s22, s21
s_cmp_ge_u32 s22, 126
s_cselect_b32 s24, 1, 0
s_mul_i32 s25, s24, 126
s_sub_u32 s22, s22, s25
s_mul_i32 s26, s22, 57
s_lshr_b32 s26, s26, 9
s_mul_i32 s27, s26, 9
s_sub_u32 s27, s22, s27
v_and_b32 v1, 63, v0
v_lshrrev_b32 v12, 6, v0
v_lshlrev_b32 v{vLane16}, 4, v1
v_readfirstlane_b32 s28, v12
""")
    P(f"""
s_lshl_b32 s29, s26, 3
s_lshl_b32 s30, s28, 1
s_add_u32 s29, s29, s30
s_mul_i32 s30, s24, 112
s_add_u32 s30, s30, s29
s_mul_i32 s30, s30, {TS}
v_lshrrev_b32 v12, 3, v1
v_mul_u32_u24 v12, 1152, v12
v_bfe_u32 v13, v1, 4, 2
v_lshlrev_b32 v13, 1, v13
v_and_b32 v14, 7, v1
v_xor_b32 v13, v13, v14
v_lshl_add_u32 v{vDma[0]}, v13, 4, v12
v_add_u32 v{vDma[1]}, 8192, v{vDma[0]}
v_add_u32 v{vDma[2]}, 16384, v{vDma[0]}
v_add_u32 v{vDma[3]}, 24576, v{vDma[0]}
s_mul_i32 s44, s28, 36864
s_lshl_b32 s46, s27, 7
s_add_u32 s44, s44, s46
s_lshl_b32 s45, s28, 12
s_mov_b32 s63, s44
s_mul_i32 s62, s26, 3
s_add_u32 s62, s62, s27
s_and_b32 s62, s62, {WROT-1}
s_mov_b32 s60, 0
s_mov_b32 s61, 0
s_mul_i32 s64, s62, 147456
s_add_u32 s44, s63, s64
s_lshl_b32 s47, s62, 12
s_waitcnt lgkmcnt(0)
s_cmp_eq_u32 s24, 0
s_cselect_b32 s32, s4, s6
s_cselect_b32 s33, s5, s7
s_mov_b32 s34, 4718592
s_mov_b32 s35, 0x00020000
s_add_u32 s36, s10, s30
s_addc_u32 s37, s11, 0
s_mov_b32 s38, 131072
s_mov_b32 s39, 0x00020000
s_add_u32 s56, s36, {TS}
s_addc_u32 s57, s37, 0
s_mov_b32 s58, 131072
s_mov_b32 s59, 0x00020000
s_mov_b32 s40, s8
s_mov_b32 s41, s9
s_mov_b32 s42, 4128768
s_mov_b32 s43, 0x00020000
""")
    def dma(stage):
        slot = stage % NS
        out = [I(f"s_add_u32 m0, s45, {slot*16384}"), I("s_nop 0")]
        for i in range(4):
            d = I(f"buffer_load_dwordx4 v{vDma[i]}, s[32:35], s44 offen offset:{1024*i} lds")
            d.defs = {("lds", stage)}
            out.append(d)
        out += [I("s_add_u32 s60, s60, 1"), I("s_add_u32 s64, s60, s62"), I(f"s_and_b32 s64, s64, {WROT-1}"),
                I(f"s_andn2_b32 s65, s60, {WROT-1}"), I("s_or_b32 s64, s64, s65"), I("s_mul_i32 s64, s64, 147456"), I("s_add_u32 s44, s63, s64")]
        return out
    def bload(g):
        out = []
        for nt in range(2):
            r = BF + 8 * (g % PB) + 4 * nt
            srd = "s[36:39]" if nt == 0 else "s[56:59]"
            out.append(I(f"buffer_load_dwordx4 v[{r}:{r+3}], v{vLane16}, {srd}, s47 offen offset:{1024*(g%4)}"))
        if g % 4 == 3:
            out += [I("s_add_u32 s61, s61, 1"), I("s_add_u32 s66, s61, s62"), I(f"s_and_b32 s66, s66, {WROT-1}"),
                    I(f"s_andn2_b32 s67, s61, {WROT-1}"), I("s_or_b32 s66, s66, s67"), I("s_lshl_b32 s47, s66, 12")]
        return out
    def areads(g, mt):
        stage = g // KS; slot = stage % NS; ks = g % KS
        r = AF + 16 * (g % 2) + 4 * mt
        out = []
        for half in range(2):
            d = I(f"ds_read_b64_tr_b16 v[{r+2*half}:{r+2*half+1}], v{vA[mt]} offset:{slot*16384 + ks*4096 + half*2048}")
            d.defs |= {("ldsrd", stage)}
            out.append(d)
        return out
    def barrier(stage):
        b = I("s_barrier"); b.uses = {("lds", stage), ("ldsrd", stage - 1)}
        return b
    for st in range(NS - 1):
        P.ext(dma(st))
        for g in range(KS * st, KS * st + KS): P.ext(bload(g))
    for g in range(KS * (NS - 1), PB): P.ext(bload(g))
    P(f"""
v_lshrrev_b32 v12, 2, v1
v_bfe_u32 v13, v12, 1, 2
v_lshlrev_b32 v12, 7, v12
v_lshl_add_u32 v12, v13, 5, v12
v_and_b32 v13, 3, v1
v_lshl_add_u32 v{vA[0]}, v13, 3, v12
v_xor_b32 v{vA[1]}, 32, v{vA[0]}
v_xor_b32 v{vA[2]}, 64, v{vA[0]}
v_xor_b32 v{vA[3]}, 96, v{vA[0]}
""")
    P(f"""
s_lshl_b32 s50, s29, 4
v_and_b32 v12, 15, v1
v_add_u32 v12, s50, v12
v_mul_u32_u24 v12, 2304, v12
v_lshrrev_b32 v13, 4, v1
v_lshlrev_b32 v13, 3, v13
s_mul_i32 s53, s24, 1152
s_lshl_b32 s54, s27, 7
s_add_u32 s53, s53, s54
v_add3_u32 v{vOut}, v12, v13, s53
s_mov_b32 s55, 0
""")
    for i in range(32): P(f"v_mov_b32 v{ACC+i}, 0")
    P.ext([barrier(0)])
    P.ext(dma(NS - 1))
    for mt in range(4): P.ext(areads(0, mt))
    stamp(P, 1, STAMP)
    inst = [("pre", P.L)]
    NIT = 128 // PB
    for it in range(NIT):
        code = [I(f"{name}_loop:")]
        for gl in range(PB):
            g = it * PB + gl
            mf = []
            for mt in range(4):
                for nt in range(2):
                    c = R("v", ACC + 8 * mt + 4 * nt)
                    mf.append(m16(c, R("v", AF + 16 * (g % 2) + 4 * mt), R("v", BF + 8 * (g % PB) + 4 * nt), c))
            S = Sched2(mf)
            gn = g + 1
            lo = 0
            if gn % KS == 0:
                S.put(1, barrier(gn // KS)); lo = 1
            for mt in range(4): lo = S.stream(areads(gn, mt), lo, 6)
            if gn % KS == 0: S.stream(dma(gn // KS + NS - 1), 5, 7)
            S.put(7, bload(g + PB))
            code += S.emit()
        code += [I("s_add_u32 s55, s55, 1"), I(f"s_cmp_lt_u32 s55, {NIT}"), I(f"s_cbranch_scc1 {name}_loop")]
        inst.append(("loop", code))
    E = Prog()
    E("s_nop 7")
    stamp(E, 2, STAMP)
    for mt in range(4):
        for nt in range(2):
            c = ACC + 8 * mt + 4 * nt
            t = AF + 4 * mt + 2 * nt
            E(f"v_cvt_pk_bf16_f32 v{t}, v{c}, v{c+1}\nv_cvt_pk_bf16_f32 v{t+1}, v{c+2}, v{c+3}")
            if nt == 0:
                E(f"buffer_store_dwordx2 v[{t}:{t+1}], v{vOut}, s[40:43], 0 offen offset:{32*mt}")
            else:
                E(f"s_mov_b32 s50, {16*2304}\nbuffer_store_dwordx2 v[{t}:{t+1}], v{vOut}, s[40:43], s50 offen offset:{32*mt}")
    if STAMP:
        E("s_waitcnt vmcnt(0)")
        stamp(E, 3, True)
        E("s_add_u32 s10, s10, 0x100000\ns_addc_u32 s11, s11, 0")
        stamp_store(E, 4, 28, 10, (0, 32))
    E(f"{name}_done:\ns_endpgm")
    inst.append(("end", E.L))
    out, full, nfix = resolve_all2(inst)
    for m_ in check_hazards(full, name)[:10]: print(m_)
    text = "\n".join(str(i) for key in ("pre", "loop", "end") for i in out[key])
    launch = f"; @launch kernel={name} grid=(256,1,1) block=(256,1,1) lds={NS*16384}"
    return launch, text, kd(name, NV, ((NV + 3) // 4) * 4, 102)

def write(path, kernels, header=""):
    with open(path, "w") as f:
        f.write(header)
        for l, _, _ in kernels: f.write(l + "\n")
        f.write('.amdgcn_target "amdgcn-amd-amdhsa--gfx950"\n.text\n')
        for _, c, _ in kernels: f.write(c + "\n")
        f.write('code_end:\n.section .rodata,"a"\n')
        for _, _, k in kernels: f.write(".p2align 6\n" + k + "\n")

HEADER = """; Fused GQA block x2 (Q-proj + attention, then O-proj); generated by a hand-written generator script.
"""

if __name__ == "__main__":
    out = sys.argv[1] if len(sys.argv) > 1 else "full.s"
    st = bool(os.environ.get("STAMP"))
    kw = {}; kw2 = {}
    for k_ in ("WROT", "NS"):
        if k_ in os.environ: kw2[k_] = int(os.environ[k_])
    if "KVFLAG" in os.environ: kw["KVFLAG"] = os.environ["KVFLAG"]
    for k_ in ("MAPPING", "ROT", "TOUCH", "WOT", "TD", "KROT", "DLATE", "DSTEP", "DIST", "CPF", "SOFT", "VSUM", "PPS", "TS0", "TSTEP", "TPK"):
        if k_ in os.environ: kw[k_] = int(os.environ[k_])
    if "TFLAG" in os.environ: kw["TFLAG"] = os.environ["TFLAG"]
    write(out, [gen_k1(STAMP=st, **kw), gen_k2(STAMP=st, **kw2)], HEADER)
```

```python
import os, sys, math, struct
from asmlib import *

TS = 131072
KVT = 8704
KVS = 4 * KVT
XB = [2 * KVS, KVS]
WB = 98304
CSCALE = math.log2(math.e) / math.sqrt(128.0)
THRESH = 8.0

def f2u(x): return struct.unpack("<I", struct.pack("<f", x))[0]

def kd(name, vgpr, acc, sgpr=96):
    return f""".amdhsa_kernel {name}
  .amdhsa_next_free_vgpr {vgpr}
  .amdhsa_next_free_sgpr {sgpr}
  .amdhsa_accum_offset {acc}
  .amdhsa_group_segment_fixed_size 0
  .amdhsa_kernarg_size 104
  .amdhsa_user_sgpr_count 2
  .amdhsa_user_sgpr_kernarg_segment_ptr 1
  .amdhsa_system_sgpr_workgroup_id_x 1
.end_amdhsa_kernel"""

def R(kind, base, n=4): return f"{kind}[{base}:{base+n-1}]"

def m16(d, a, b, c):
    return I(f"v_mfma_f32_16x16x32_bf16 {d}, {a}, {b}, {c}")

STMAP = None
if os.environ.get("PSTAMP"): STMAP = {20: 1, 21: 2, 1: 3, 6: 4, 7: 5, 2: 6, 3: 7, 5: 8}
def stamp(P, idx, on):
    import gen
    if gen.STMAP is not None:
        if idx not in gen.STMAP: return
        idx = gen.STMAP[idx]
    if on: P(f"s_memtime s[{80+2*idx}:{81+2*idx}]\ns_waitcnt lgkmcnt(0)")

def stamp_store(E, nst, swave, sws, dbgoff=None):
    E("s_waitcnt vmcnt(0)\ns_memrealtime s[76:77]\ns_waitcnt lgkmcnt(0)")
    DBG = os.environ.get("DBG")
    if DBG:
        wg = int(DBG)
        E(f"""s_load_dwordx2 s[72:73], s[0:1], 88
s_waitcnt lgkmcnt(0)
s_add_u32 s72, s72, {dbgoff[0]}
s_addc_u32 s73, s73, 0
s_mov_b32 s74, 64
s_mov_b32 s75, 0x00020000
s_xor_b32 s70, s2, {wg}
s_or_b32 s70, s70, s{swave}
s_lshl_b32 s70, s70, 8
s_add_u32 s70, s70, {dbgoff[1]}
v_mov_b32 v14, s70
v_mbcnt_lo_u32_b32 v15, -1, 0
v_mbcnt_hi_u32_b32 v15, -1, v15
v_cmp_eq_u32 vcc, 0, v15
s_and_saveexec_b64 s[78:79], vcc""")
        for i in range(1, nst):
            E(f"s_sub_u32 s71, s{80+2*i}, s80\nv_mov_b32 v10, s71\nbuffer_store_dword v10, v14, s[72:75], 0 offen offset:{4*(i+1)}\ns_nop 1")
        E(f"v_mov_b32 v10, s76\nbuffer_store_dword v10, v14, s[72:75], 0 offen offset:4\ns_nop 1")
        E(f"v_mov_b32 v10, s98\nbuffer_store_dword v10, v14, s[72:75], 0 offen offset:0\ns_nop 1")
        return
    E(f"""s_add_u32 s72, s{sws}, 0x4000000
s_addc_u32 s73, s{sws+1}, 0
s_mov_b32 s74, 0x100000
s_mov_b32 s75, 0x00020000
s_lshl_b32 s70, s2, 8
s_lshl_b32 s71, s{swave}, 6
s_add_u32 s70, s70, s71
v_mov_b32 v14, s70
v_mbcnt_lo_u32_b32 v15, -1, 0
v_mbcnt_hi_u32_b32 v15, -1, v15
v_cmp_eq_u32 vcc, 0, v15
s_and_saveexec_b64 s[78:79], vcc""")
    for i in range(1, nst):
        E(f"s_sub_u32 s71, s{80+2*i}, s80\nv_mov_b32 v10, s71\nbuffer_store_dword v10, v14, s[72:75], 0 offen offset:{4*i}\ns_nop 1")
    E(f"v_mov_b32 v10, s76\nbuffer_store_dword v10, v14, s[72:75], 0 offen offset:60\ns_nop 1")
    E(f"v_mov_b32 v10, s98\nbuffer_store_dword v10, v14, s[72:75], 0 offen offset:56\ns_nop 1")

def gen_k1(name="attn_kernel", STAMP=False, KVFLAG="", MAPPING=1, ROT=0, TOUCH=0, TFLAG="", WOT=1, TD=2, THIN=0, TLBW=0, LATEKV=0, KV2D=0, QSTEP=6, PEEL=0, GMAJ=0, NPRO=6, KV0AT=0, FUSED=0, ZFLAG=0, SOFT=0, VSUM=0, CPF=3, DIST=3, DLATE=0, DSTEP=5, KROT=0, PPS=4, TS0=5, TSTEP=3, TPK=1, verbose=True):
    sW = 40
    sBLK, sKVH, sBP, sBL, sHH = 41, 42, 43, 44, 45
    sWQoff, sXoff, sKVoff = 46, 47, 48
    sWQm0, sXm0, sKVm0 = 49, 50, 51
    sT0, sT1, sT2 = 52, 53, 54
    sCNT = 55
    sWrd, sXrd = 56, 57
    sTH = 58
    sC = 60
    sKd, sVd = 62, 63
    sKVw = 64
    sWQw = 65
    sK16, sKm48, sKKVS, sKm3KVS = 66, 67, 68, 69
    sT3, sT4 = 70, 71
    sWend, sXend, sTo = 72, 73, 74
    vTq, vTa, vDum = 13, 13, 0
    vTS = 18; sNC = 75
    assert SOFT or not VSUM
    SX, SWQ, SKV, SO = 24, 28, 32, 36
    vL = 1
    vKVd = [2, 3, 4, 5]
    vKa = 6; vVa = [7, 8, 9, 10]; vMX = 11; vT = 12; vF = 19
    vWa = list(range(20, 28)); vXa = [28, 29]; vWd = [14, 15, 16, 17]; vXd = [30, 31]
    ACC0 = 32
    def grp(g, nt): return ACC0 + (g * 7 + nt) * 8
    def acc(mt, nt): return grp(mt >> 1, nt) + 4 * (mt & 1)
    def Q(nt, g): return R("v", grp(g, nt))
    holes = [grp(g, nt) + 4 for g in range(4) for nt in range(7)] + [20, 24, 28]
    Kf = [[holes[4 * s + g] for g in range(4)] for s in range(2)]
    Vf = [holes[8 + d] for d in range(8)]
    Sb = [[holes[16 + 2 * b + s] for s in range(2)] for b in range(3)]
    Ci = [holes[22 + t] for t in range(7)]
    Pf = holes[29]
    Er = [holes[30] + i for i in range(4)] + [14, 15, 16, 17]
    VGAPS = [0, 1, 2, 3, 4, 5, 6, 8, 10, 12, 14, 15, 16, 17, 18, 19]
    KGAPS = [9, 11, 13, 15, 16, 18, 20, 22]
    sbuf = lambda t: 2 if t == 6 else (t & 1)
    def O(t, d): return R("a", (t * 8 + d) * 4)
    def Lr(t): return R("a", 224 + 4 * t)
    ONES = R("a", 252)
    def Af(i): return 4 * (i % 4)
    def Bf(par, nt): return 16 + (par * 7 + nt) * 4

    OFLAG = (' ' + os.environ['OFLAG']) if os.environ.get('OFLAG') else ''
    if FUSED: OFLAG = ' sc1'
    kvf = (" " + KVFLAG) if KVFLAG else ""

    P = Prog()
    P(f"""
.globl {name}
.p2align 8
.type {name},@function
{name}:
s_cmp_ge_u32 s2, 256
s_cbranch_scc1 {name}_done
s_load_dwordx8 s[4:11], s[0:1], 0
s_load_dwordx8 s[12:19], s[0:1], 40
s_load_dwordx2 s[20:21], s[0:1], 96
s_load_dwordx2 s[22:23], s[0:1], 32
s_load_dwordx2 s[76:77], s[0:1], 72
""")
    if STAMP: P("s_memtime s[80:81]\ns_memrealtime s[98:99]")
    P(f"""
v_lshrrev_b32 v10, 6, v0
v_and_b32 v{vL}, 63, v0
s_and_b32 s{sT0}, s2, 7
v_readfirstlane_b32 s{sW}, v10
s_lshr_b32 s{sT1}, s2, 3
s_lshr_b32 s{sBLK}, s{sT0}, 2
s_and_b32 s{sT0}, s{sT0}, 3
""")
    if MAPPING == 1:
        P(f"""
s_lshl_b32 s{sKVH}, s{sT0}, 2
s_and_b32 s{sT2}, s{sT1}, 3
s_add_u32 s{sKVH}, s{sKVH}, s{sT2}
s_lshr_b32 s{sBP}, s{sT1}, 2
""")
    elif MAPPING == 3:
        for m_ in range(48): assert (m_ * 52) >> 8 == m_ // 5 and (m_ * 43) >> 8 == m_ // 6
        P(f"""
s_lshl_b32 s{sT0}, s{sT0}, 5
s_add_u32 s{sT0}, s{sT0}, s{sT1}
s_mov_b32 s{sT1}, 0
s_mov_b32 s{sT2}, 0
s_mov_b32 s{sT3}, 52
s_mov_b32 s{sT4}, 5
s_cmp_ge_u32 s{sT0}, 40
s_cselect_b32 s{sT1}, 40, s{sT1}
s_cselect_b32 s{sT2}, 5, s{sT2}
s_cselect_b32 s{sT3}, 43, s{sT3}
s_cselect_b32 s{sT4}, 6, s{sT4}
s_cmp_ge_u32 s{sT0}, 88
s_cselect_b32 s{sT1}, 88, s{sT1}
s_cselect_b32 s{sT2}, 11, s{sT2}
s_cselect_b32 s{sT3}, 52, s{sT3}
s_cselect_b32 s{sT4}, 5, s{sT4}
s_sub_u32 s{sT0}, s{sT0}, s{sT1}
s_mul_i32 s{sBP}, s{sT0}, s{sT3}
s_lshr_b32 s{sBP}, s{sBP}, 8
s_mul_i32 s{sT4}, s{sBP}, s{sT4}
s_sub_u32 s{sT0}, s{sT0}, s{sT4}
s_add_u32 s{sKVH}, s{sT0}, s{sT2}
""")
    else:
        P(f"""
s_lshl_b32 s{sBP}, s{sT0}, 1
s_and_b32 s{sT2}, s{sT1}, 1
s_add_u32 s{sBP}, s{sBP}, s{sT2}
s_lshr_b32 s{sKVH}, s{sT1}, 1
""")
    P(f"""
s_lshr_b32 s{sBL}, s{sW}, 1
s_and_b32 s{sHH}, s{sW}, 1
""")
    if CPF:
        P(f"""
s_getpc_b64 s[96:97]
{name}_pc:
s_sub_u32 s96, s96, {name}_pc-{name}
s_subb_u32 s97, s97, 0
s_lshr_b32 s{sT0}, s2, 3
s_lshl_b32 s{sT0}, s{sT0}, 2
s_add_u32 s{sT0}, s{sT0}, s{sW}
s_lshl_b32 s{sT0}, s{sT0}, 9
v_lshl_add_u32 v13, v{vL}, 3, s{sT0}
s_mov_b32 s{sT0}, code_end-{name}-4
v_min_u32 v13, s{sT0}, v13
""")
    def code_touch():
        d = I(f"global_load_dword v{vDum}, v13, s[96:97]"); d.defs = set()
        return [[d]]
    P(f"""
v_lshrrev_b32 v10, 5, v{vL}
v_and_b32 v11, 31, v{vL}
s_lshl_b32 s{sT0}, s{sHH}, 3
v_lshlrev_b32 v12, 1, v10
v_or_b32 v12, s{sT0}, v12
v_xor_b32 v12, v12, v11
v_lshlrev_b32 v18, 13, v10
v_lshl_add_u32 v{vWd[0]}, v12, 4, v18
v_add_u32 v{vWd[2]}, {4*8192-2048}, v{vWd[0]}
v_xor_b32 v12, 4, v12
v_lshl_add_u32 v{vWd[1]}, v12, 4, v18
v_add_u32 v{vWd[1]}, {2*8192-1024}, v{vWd[1]}
v_add_u32 v{vWd[3]}, {4*8192-2048}, v{vWd[1]}
""")
    P(f"""
v_lshrrev_b32 v10, 3, v{vL}
v_mul_u32_u24 v10, 1152, v10
v_lshrrev_b32 v11, 4, v{vL}
v_and_b32 v12, 7, v{vL}
v_xor_b32 v11, v11, v12
s_lshl_b32 s{sT0}, s{sHH}, 2
v_xor_b32 v11, s{sT0}, v11
v_lshl_add_u32 v{vXd[0]}, v11, 4, v10
v_xor_b32 v11, 4, v11
v_lshl_add_u32 v{vXd[1]}, v11, 4, v10
""")
    krot_code = f"""s_lshr_b32 s{sT0}, s2, 3
s_mul_i32 s{sT0}, s{sT0}, 5
s_and_b32 s{sT1}, s2, 7
s_lshl_b32 s{sT1}, s{sT1}, 1
s_add_u32 s{sT0}, s{sT0}, s{sT1}
s_lshl_b32 s{sT1}, s{sBL}, 3
s_add_u32 s{sT0}, s{sT0}, s{sT1}
s_and_b32 s{sT0}, s{sT0}, 15
s_lshl_b32 s{sKVoff}, s{sT0}, 13""" if KROT else f"s_mov_b32 s{sKVoff}, 0"
    rot_code = f"""s_and_b32 s{sT0}, s{sKVH}, 3
s_lshl_b32 s{sT0}, s{sT0}, 1
s_add_u32 s{sT0}, s{sT0}, s{sBP}
s_cmp_ge_u32 s{sT0}, 9
s_cselect_b32 s{sT1}, 9, 0
s_sub_u32 s{sT0}, s{sT0}, s{sT1}
s_lshl_b32 s{sT1}, s{sT0}, 19
s_add_u32 s{sWQoff}, s{sWQoff}, s{sT1}
s_lshl_b32 s{sT1}, s{sT0}, 7
s_add_u32 s{sXoff}, s{sXoff}, s{sT1}""" if ROT else ""
    P(f"""
s_lshl_b32 s{sWQoff}, s{sW}, 16
s_lshl_b32 s{sT0}, s{sKVH}, 9
s_add_u32 s{sWQoff}, s{sWQoff}, s{sT0}
s_mul_i32 s{sXoff}, s{sW}, {56*1152}
s_lshl_b32 s{sWQm0}, s{sW}, 12
s_add_u32 s{sWQm0}, s{sWQm0}, {WB+32768}
s_mul_i32 s{sXm0}, s{sW}, {7*1024}
s_add_u32 s{sT0}, s{sXm0}, {XB[1]}
s_add_u32 s{sXm0}, s{sXm0}, {XB[0]}
s_xor_b32 s{sXrd}, s{sXm0}, s{sT0}
s_mul_i32 s{sKVm0}, s{sW}, {KVT}
s_add_u32 s{sWend}, s{sWQoff}, {576*8192}
s_add_u32 s{sXend}, s{sXoff}, 1152
{rot_code}
{krot_code}
s_mov_b32 s{sK16}, 16384
s_mov_b32 s{sKm48}, {(-3*16384) & 0xffffffff}
s_mov_b32 s{sKKVS}, {KVS}
s_mov_b32 s{sKm3KVS}, {(-3*KVS) & 0xffffffff}
s_mov_b32 s{sWQw}, 2
s_mov_b32 s{sKVw}, 0
s_waitcnt lgkmcnt(0)
s_cmp_eq_u32 s{sBLK}, 0
s_cselect_b64 s[4:5], s[4:5], s[12:13]
s_cselect_b64 s[6:7], s[6:7], s[14:15]
s_cselect_b64 s[8:9], s[8:9], s[16:17]
s_cselect_b64 s[10:11], s[10:11], s[18:19]
s_cselect_b64 s[22:23], s[22:23], s[76:77]
s_mul_i32 s{sT0}, s{sBP}, 258048
s_add_u32 s{SX}, s4, s{sT0}
s_addc_u32 s{SX+1}, s5, 0
s_mov_b32 s{SX+2}, 258048
s_mov_b32 s{SX+3}, 0x00020000
s_mov_b32 s{SWQ}, s10
s_mov_b32 s{SWQ+1}, s11
s_mov_b32 s{SWQ+2}, 4718592
s_mov_b32 s{SWQ+3}, 0x00020000
""")

    stamp(P, 20, STAMP and bool(os.environ.get("PSTAMP")))
    def flat(groups): return [i for g in groups for i in g]
    def dma_wq(stage):
        out = [[I(f"s_mov_b32 m0, s{sWQm0}"), I(f"s_add_u32 s{sWQw}, s{sWQw}, 1")]]
        for k in range(4):
            d = I(f"buffer_load_dwordx4 v{vWd[k]}, s[{SWQ}:{SWQ+3}], s{sWQoff} offen offset:{1024*k} lds")
            d.defs = {("wq", stage)}; out.append([d])
        out += [[I(f"s_add_u32 s{sWQoff}, s{sWQoff}, {32*8192}")],
                [I(f"s_and_b32 s{sWQw}, s{sWQw}, 3"),
                 I(f"s_cselect_b32 s{sT0}, s{sK16}, s{sKm48}")],
                [I(f"s_add_u32 s{sWQm0}, s{sWQm0}, s{sT0}")]]
        if ROT and stage % 2 == 1:
            out += [[I(f"s_cmp_ge_u32 s{sWQoff}, s{sWend}"), I(f"s_cselect_b32 s{sT0}, {576*8192}, 0")],
                    [I(f"s_sub_u32 s{sWQoff}, s{sWQoff}, s{sT0}")]]
        return out
    def dma_x(stage, part):
        out = [[I(f"s_add_u32 m0, s{sXm0}, {4096*part}")]]
        for i in (range(4) if part == 0 else range(4, 7)):
            d = I(f"buffer_load_dwordx4 v{vXd[i&1]}, s[{SX}:{SX+3}], s{sT1} offen offset:{1024*(i%4)} lds")
            d.defs = {("x", stage)}
            out.append([I(f"s_add_u32 s{sT1}, s{sXoff}, {i*9216 - 1024*(i%4)}"), d])
        if part == 1:
            out.append([I(f"s_add_u32 s{sXoff}, s{sXoff}, 128")])
            if ROT:
                out += [[I(f"s_cmp_ge_u32 s{sXoff}, s{sXend}"), I(f"s_cselect_b32 s{sT1}, 1152, 0")],
                        [I(f"s_sub_u32 s{sXoff}, s{sXoff}, s{sT1}")]]
            out.append([I(f"s_xor_b32 s{sXm0}, s{sXm0}, s{sXrd}")])
        return out
    def dma_kv(stage):
        out = []
        for half in range(2):
            out.append([I(f"s_add_u32 m0, s{sKVm0}, {4352*half}"),
                        I(f"s_add_u32 s{sKVw}, s{sKVw}, 1") if half == 0 else I(f"s_add_u32 s{sKVoff}, s{sKVoff}, 4096")])
            for k in range(4):
                d = I(f"buffer_load_dwordx4 v{vKVd[k]}, s[{SKV}:{SKV+3}], s{sKVoff} offen offset:{1088*k}{kvf} lds")
                d.defs = {("kv", stage)}; out.append([d])
        out += [[I(f"s_and_b32 s{sT0}, s{sKVw}, 3"), I(f"s_cselect_b32 s{sT0}, s{sKKVS}, s{sKm3KVS}")],
                [I(f"s_add_u32 s{sKVoff}, s{sKVoff}, 4096"), I(f"s_add_u32 s{sKVm0}, s{sKVm0}, s{sT0}")]]
        if KROT: out += [[I(f"s_and_b32 s{sKVoff}, s{sKVoff}, 0x1ffff")]]
        if stage >= DIST:
            out += [[I(f"s_cmp_eq_u32 s{sKVw}, 16"), I(f"s_cselect_b64 s[{SKV}:{SKV+1}], s[12:13], s[{SKV}:{SKV+1}]"),
                     I(f"s_cselect_b32 s{SKV+2}, {9216+192 if WOT else 0}, s{SKV+2}"), I(f"s_cselect_b32 s{sKVoff}, 0, s{sKVoff}")]]
        return out

    def kv0_piece():
        d = I(f"buffer_load_dwordx4 v{vKVd[0]}, s[{SKV}:{SKV+3}], s19 offen{kvf} lds"); d.defs = {("kv", 0)}
        o = [[I("s_mov_b32 m0, s17"), I("s_add_u32 s17, s17, 1088")], [d], [I("s_add_u32 s19, s19, 1024")]]
        if THIN:
            t = I(f"buffer_load_dword v{vDum}, v12, s[{SKV}:{SKV+3}], s18 offen offset:192"); t.defs = set()
            o[1].append(t)
            o.append([I(f"s_add_u32 s18, s18, {64 << THIN}")])
        return o
    tf = (" " + TFLAG) if TFLAG else ""
    def touch(vreg, step):
        d = I(f"buffer_load_dword v{vDum}, v{vreg}, s[{SKV}:{SKV+3}], s{sTo} offen{tf}")
        d.defs = set()
        return [[d], [I(f"s_add_u32 s{sTo}, s{sTo}, {step}")]]
    def qtouch():
        d = I(f"buffer_load_dword v{vDum}, v{vTq}, s[{SKV}:{SKV+3}], s{sTo} offen offset:192{tf}")
        d.defs = set()
        lg = {2: 1, 4: 2, 8: 3}[PPS]
        return [[I(f"s_lshr_b32 s{sTo}, s17, {lg}")], [I(f"s_mul_i32 s{sTo}, s{sTo}, {TSTEP*8192}")],
                [I(f"s_add_u32 s{sTo}, s{sTo}, s18")], [I(f"s_and_b32 s{sTo}, s{sTo}, 0x1ffff")],
                [I(f"s_and_b32 s19, s17, {PPS-1}")], [I(f"s_lshl_b32 s19, s19, {13-lg}")],
                [I(f"s_add_u32 s{sTo}, s{sTo}, s19"), d], [I("s_add_u32 s17, s17, 1")]]
    pre_list = [dma_wq(0), dma_x(0, 0), dma_x(0, 1), dma_wq(1), dma_x(1, 0), dma_wq(2)]
    for gl in pre_list[:NPRO]: P.ext(flat(gl))
    if CPF & 1: P.ext(flat(code_touch()))
    P(f"""
s_cmp_eq_u32 s{sHH}, 0
s_cselect_b64 s[6:7], s[6:7], s[8:9]
s_lshl_b32 s{sT0}, s{sBP}, 1
s_add_u32 s{sT0}, s{sT0}, s{sBL}
s_lshl_b32 s{sT1}, s{sT0}, 4
s_add_u32 s{sT1}, s{sT1}, s{sKVH}
s_lshl_b32 s{sT1}, s{sT1}, 17
s_add_u32 s{SKV}, s6, s{sT1}
s_addc_u32 s{SKV+1}, s7, 0
s_sub_u32 s{SKV}, s{SKV}, 192
s_subb_u32 s{SKV+1}, s{SKV+1}, 0
s_mov_b32 s{SKV+2}, {131072+192}
s_mov_b32 s{SKV+3}, 0x00020000
s_lshl_b32 s{sT1}, s{sBLK}, 4
s_add_u32 s{sT0}, s{sT0}, s{sT1}
s_mul_i32 s{sT0}, s{sT0}, {7*TS}
s_lshl_b32 s{sT1}, s{sKVH}, 1
s_add_u32 s{sT1}, s{sT1}, s{sHH}
s_lshl_b32 s{sT1}, s{sT1}, 12
s_add_u32 s{sT0}, s{sT0}, s{sT1}
s_add_u32 s{SO}, s20, s{sT0}
s_addc_u32 s{SO+1}, s21, 0
s_mov_b32 s{SO+2}, {6*TS+4096}
s_mov_b32 s{SO+3}, 0x00020000
v_lshrrev_b32 v10, 4, v{vL}
v_and_b32 v11, 1, v10
v_lshlrev_b32 v11, 1, v11
v_lshrrev_b32 v12, 1, v10
v_lshl_or_b32 v11, v12, 3, v11
s_cmp_eq_u32 s{sHH}, 0
s_cselect_b64 vcc, -1, 0
v_cndmask_b32 v11, v11, v10, vcc
v_and_b32 v12, 15, v{vL}
v_xor_b32 v11, v11, v12
v_lshlrev_b32 v11, 4, v11
v_lshl_add_u32 v11, v10, 8, v11
v_add_u32 v{vKVd[0]}, 192, v11
v_add_u32 v{vKVd[1]}, 128, v11
v_add_u32 v{vKVd[2]}, 64, v11
v_mov_b32 v{vKVd[3]}, v11
""")
    if TOUCH: P(f"v_lshlrev_b32 v{vTq}, {7 - {2: 1, 4: 2, 8: 3}[PPS]}, v{vL}\ns_mov_b32 s17, 0\ns_add_u32 s18, s{sKVoff}, {TS0*8192}")
    P(f"""
s_lshl_b32 s{sT0}, s{sKVH}, 3
s_add_u32 s{sT0}, s{sT0}, s{sBP}
s_lshl_b32 s{sT0}, s{sT0}, 2
s_add_u32 s{sT0}, s{sT0}, s{sW}
s_mul_i32 s{sT0}, s{sT0}, 9216
s_add_u32 s12, s22, s{sT0}
s_addc_u32 s13, s23, 0
s_sub_u32 s12, s12, 192
s_subb_u32 s13, s13, 0
""")
    P("s_mov_b32 s16, 0")
    if KV0AT < 0:
        assert not KROT and not TOUCH and not FUSED
        P(f"s_mov_b32 s17, s{sKVm0}\ns_mov_b32 s19, 0\ns_add_u32 s{sKVm0}, s{sKVm0}, {KVS}\ns_mov_b32 s{sKVoff}, 8192\ns_mov_b32 s{sKVw}, 1")
        if THIN: P(f"s_mov_b32 s18, {TS0*8192}\nv_lshlrev_b32 v12, {THIN}, v{vL}")
    if TLBW:
        P(f"s_mov_b32 s14, {9216+192}\ns_mov_b32 s15, 0x00020000\nv_mov_b32 v12, 192")
        for srd in ((SKV, 12, SO) if TLBW > 1 else (SKV,)):
            d = I(f"buffer_load_dword v{vDum}, v12, s[{srd}:{srd+3}], 0 offen"); d.defs = set(); P.ext([d])
    if FUSED:
        P(f"""
s_lshl_b32 s90, s{sBLK}, 3
s_add_u32 s90, s90, s{sBP}
s_lshl_b32 s90, s90, 7
s_lshl_b32 s{sT0}, s{sKVH}, 2
s_add_u32 s90, s90, s{sT0}
s_add_u32 s90, s90, 32768
s_mov_b32 s91, s{sW}
s_load_dwordx2 s[92:93], s[0:1], 88
s_memrealtime s[18:19]
s_waitcnt lgkmcnt(0)
s_mov_b32 s94, 256
s_mov_b32 s95, 0x00020000
s_or_b32 s{sT0}, s2, s{sW}
s_cmp_lg_u32 s{sT0}, 0
s_cbranch_scc1 {name}_nn
s_or_b32 s18, s18, 1
v_mov_b32 v10, s18
v_mov_b32 v11, 0
s_mov_b64 exec, 1""")
        ns_ = I("buffer_store_dword v10, v11, s[92:95], 0 offen sc1"); ns_.kind = "misc"
        P.ext([ns_])
        P(f"s_mov_b64 exec, -1\n{name}_nn:")
    def wo_touch():
        d = I(f"buffer_load_dword v{vDum}, v{vKVd[3]}, s[12:15], s16 offen"); d.defs = set()
        return [[d], [I("s_add_u32 s16, s16, 1024")]]
    P(f"""
v_lshrrev_b32 v32, 4, v{vL}
v_bfe_u32 v33, v{vL}, 2, 2
v_lshl_add_u32 v34, v32, 3, v33
v_lshlrev_b32 v34, 9, v34
v_and_b32 v35, 1, v32
v_lshl_or_b32 v35, v35, 2, v33
v_lshl_add_u32 v34, v35, 5, v34
v_and_b32 v35, 3, v{vL}
v_lshl_add_u32 v34, v35, 3, v34
s_lshl_b32 s{sT0}, s{sHH}, 8
s_add_u32 s{sT0}, s{sT0}, {WB+32768}
v_add_u32 v{vWa[0]}, s{sT0}, v34
""")
    for mt in range(1, 8): P(f"v_xor_b32 v{vWa[mt]}, {32*mt}, v{vWa[0]}")
    P(f"""
v_and_b32 v33, 15, v{vL}
v_lshrrev_b32 v34, 1, v33
v_xor_b32 v34, v34, v32
v_lshlrev_b32 v34, 4, v34
v_lshl_add_u32 v34, v33, 7, v34
s_mul_i32 s{sT0}, s{sBL}, {112*128}
s_add_u32 s{sT0}, s{sT0}, {XB[0]}
v_add_u32 v{vXa[0]}, s{sT0}, v34
v_xor_b32 v{vXa[1]}, 64, v{vXa[0]}
s_mov_b32 s{sC}, {f2u(CSCALE)}
s_mov_b32 s{sC+1}, {f2u(CSCALE)}
s_mov_b32 s{sNC}, {f2u(-CSCALE)}
s_mov_b32 s{sTH}, {f2u(THRESH / CSCALE if SOFT else THRESH)}
s_mov_b32 s{sCNT}, 0
""")

    P(f"""
v_and_b32 v36, 15, v{vL}
v_lshrrev_b32 v37, 4, v{vL}
v_lshrrev_b32 v38, 2, v36
v_and_b32 v39, 3, v36
v_mul_u32_u24 v40, 1088, v38
v_lshl_add_u32 v40, v39, 8, v40
v_xor_b32 v41, v37, v39
v_lshl_add_u32 v40, v41, 4, v40
s_mul_i32 s{sT0}, s{sBL}, {2*KVT}
v_add_u32 v{vKa}, s{sT0}, v40
""")
    P(f"""
v_mul_u32_u24 v40, 1088, v37
v_lshl_add_u32 v40, v38, 8, v40
v_lshl_add_u32 v40, v39, 3, v40
s_add_u32 s{sT0}, s{sT0}, {KVT}
v_add_u32 v40, s{sT0}, v40
v_and_b32 v41, 1, v38
v_lshrrev_b32 v36, 1, v38
v_lshl_or_b32 v41, v36, 2, v41
""")
    for u in range(4):
        pat = (u & 1) | ((u >> 1) << 2)
        P(f"v_xor_b32 v36, {pat}, v41\nv_lshl_add_u32 v{vVa[u]}, v36, 5, v40")
    P(f"s_mov_b32 s{sKd}, 0\ns_mov_b32 s{sVd}, 0")
    P(f"v_mov_b32 v36, 0x3f803f80\nv_mov_b32 v37, 0")
    for i in range(4): P(f"v_accvgpr_write_b32 a{252+i}, v36")
    for i in range(32): P(f"v_accvgpr_write_b32 a{6*32+i}, v37")
    for i in range(4): P(f"v_accvgpr_write_b32 a{224+24+i}, v37")

    def a_reads(ks, mt, slot=None):
        out = []
        for half in range(2):
            r = Af(mt if slot is None else slot) + 2 * half
            d = I(f"ds_read_b64_tr_b16 a[{r}:{r+1}], v{vWa[mt]} offset:{2048*half + 16384*(ks&1)}")
            d.defs |= {("wqrd", ks)}; out.append(d)
        return out
    def b_read(ks, nt):
        r = Bf(ks & 1, nt)
        d = I(f"ds_read_b128 a[{r}:{r+3}], v{vXa[ks&1]} offset:{2048*nt}")
        d.defs |= {("xrd", ks >> 1)}
        return d
    def qbarrier(i):
        b = I("s_barrier")
        b.uses = {("wq", i), ("wqrd", i - 1)}
        if i % 2 == 0: b.uses |= {("x", i // 2)}
        else: b.uses |= {("xrd", i // 2)}
        if i == 18: b.uses |= {("kv", 0)}
        if i == 16 and GMAJ: b.uses |= {("wq", 17)} | (set() if LATEKV else {("kv", 0)})
        return b

    stamp(P, 21, STAMP and bool(os.environ.get("PSTAMP")))
    P.ext([qbarrier(0)])
    P.ext(a_reads(0, 0)); P.ext([b_read(0, nt) for nt in range(7)]); P.ext(a_reads(0, 1))
    stamp(P, 1, STAMP)
    inst = [("pre", P.L)]

    def conv_group(g, nt):
        r = grp(g, nt)
        o = []
        if not SOFT:
            for q in range(4): o.append(I(f"v_pk_mul_f32 v[{r+2*q}:{r+2*q+1}], v[{r+2*q}:{r+2*q+1}], s[{sC}:{sC+1}]"))
        for q in range(4): o.append(I(f"v_cvt_pk_bf16_f32 v{r+q}, v{r+2*q}, v{r+2*q+1}"))
        return o
    def swap_group(g, nt):
        r = grp(g, nt)
        return ([I(f"v_permlane32_swap_b32 v{r}, v{r+2}"), I(f"v_permlane32_swap_b32 v{r+1}, v{r+3}")],
                [I(f"v_permlane16_swap_b32 v{r}, v{r+2}"), I(f"v_permlane16_swap_b32 v{r+1}, v{r+3}")])

    sXdelta = 59
    inst[0][1].append(I(f"s_mov_b32 s{sXdelta}, {(XB[1]-XB[0]) & 0xffffffff}"))
    inst[0][1].append(I(f"s_mov_b32 s{sWrd}, {(-32768) & 0xffffffff}"))

    def dma_in(ks):
        lst = []
        k = ks // 2
        if ks == 0:
            for gl in pre_list[NPRO:]: lst += gl
        if ks % 2 == 0:
            if k + 1 <= 8: lst += dma_x(k + 1, 1)
            if ks + 3 <= 17: lst += dma_wq(ks + 3)
        else:
            if ks + 3 <= 17: lst += dma_wq(ks + 3)
            if k + 2 <= 8: lst += dma_x(k + 2, 0)
        if KV0AT >= 0:
            if ks == KV0AT: lst += dma_kv(0)
        elif ks % 2 == 1 and ks <= 13 or ks == 14: lst += kv0_piece()
        if ks == 14 and (CPF & 2): lst += code_touch()
        if ks == 15: lst += dma_kv(1)
        if ks == 17 and DIST >= 3: lst += dma_kv(2)
        if (TOUCH & 1) and 2 <= ks <= 17:
            for _ in range(TPK): lst += qtouch()
        return lst

    def k_read(j, sub, g):
        r = Kf[sub][g]
        d = I(f"ds_read_b128 v[{r}:{r+3}], v{vKa} offset:{64*g + 4352*sub}")
        d.defs |= {("krd", j)}
        return d
    def v_reads(j, dt):
        u = (dt & 1) | ((dt >> 2) << 1)
        out = []
        for half in range(2):
            r = Vf[dt] + 2 * half
            d = I(f"ds_read_b64_tr_b16 v[{r}:{r+1}], v{vVa[u]} offset:{64*((dt>>1)&1) + 4352*half}")
            d.defs |= {("vrd", j)}; out.append(d)
        return out
    def qlast():
        F = [(16 + (i >> 1 & 1), 2 * (i >> 2) + (i & 1)) for i in range(16)]
        mf = []
        for i, (ks, mt) in enumerate(F):
            for nt in range(7):
                c = R("v", acc(mt, nt))
                mf.append(m16(c, R("a", Af(i)), R("a", Bf(ks & 1, nt)), c))
        S = Sched2(mf)
        for i in range(14): S.stream(a_reads(*F[i + 2], slot=i + 2), 7 * i, 7 * i + 3)
        S.stream([b_read(17, nt) for nt in range(7)], 2, 10)
        b = I("s_barrier"); b.uses = {("xrd", 8)}
        S.put(20, b)
        if DIST >= 3: spaced(S, dma_kv(2), 21 + KV2D, 105, 6)
        if LATEKV:
            b = I("s_barrier"); b.uses = {("kv", 0)}
            S.put(LATEKV, b)
        done = {}
        for g in range(3):
            for nt in range(7):
                lo = 28 * g + 21 + nt + 4
                lo = S.stream(conv_group(g, nt), lo, 111)
                done[(g, nt)] = lo
                s0, s1 = swap_group(g, nt)
                lo = S.stream(s0, min(lo + 2, 111), 111)
                S.stream(s1, min(lo + 2, 111), 111)
        hole_owner = [(g, nt) for g in range(4) for nt in range(7)]
        lo = max(60, LATEKV + 1)
        for sub in range(2):
            for g in range(4): lo = S.place(k_read(0, sub, g), max(lo, done[hole_owner[4 * sub + g]] + 1), 111)
        for dt in range(8):
            for d in v_reads(0, dt): lo = S.place(d, max(lo, done[hole_owner[8 + dt]] + 1), 111)
        return S

    def qstep(ks):
        mf = []
        for mt in range(8):
            for nt in range(7):
                c = R("v", acc(mt, nt))
                mf.append(m16(c, R("a", Af(mt)), R("a", Bf(ks & 1, nt)), "0" if ks == 0 else c))
        S = Sched2(mf)
        for mt in range(6):
            S.stream(a_reads(ks, mt + 2), 7 * mt, 7 * mt + 3)
        nxt = ks + 1
        if ks % 2 == 0:
            S.stream([b_read(nxt, nt) for nt in range(7)], 2, 20)
        if nxt < 18:
            if nxt % 2 == 0:
                S.stream([I(f"v_add_u32 v{vXa[0]}, s{sXdelta}, v{vXa[0]}"), I(f"v_add_u32 v{vXa[1]}, s{sXdelta}, v{vXa[1]}"),
                          I(f"s_sub_u32 s{sXdelta}, 0, s{sXdelta}")], 20, 36)
                advs = [I(f"v_add_u32 v{vWa[mt]}, s{sWrd}, v{vWa[mt]}") for mt in range(8)]
                S.stream(advs[:7], 32, 40)
                S.put(40, advs[7])
                S.put(41, I(f"s_sub_u32 s{sWrd}, 0, s{sWrd}"))
            S.put(42, qbarrier(nxt))
            S.stream(a_reads(nxt, 0), 42, 45)
            if nxt % 2 == 0: S.stream([b_read(nxt, nt) for nt in range(7)], 43, 52)
            S.stream(a_reads(nxt, 1), 49, 53)
        items = dma_in(ks)
        nd = sum(1 for g_ in items for i_ in g_ if i_.kind in ("dma", "vload"))
        if nd: spaced(S, items, 1, 55, max(2, min(QSTEP, 52 // nd)))
        return S

    for k in range(9):
        Ss = [qlast()] if (k == 8 and GMAJ) else [qstep(2 * k), qstep(2 * k + 1)]
        if k == 8 and verbose: print('q8 est', sum(S.est() for S in Ss))
        code = []
        key = "qloop" if 1 <= k <= 6 else f"q{k}"
        if key == "qloop": code.append(I(f"{name}_qloop:"))
        for S in Ss: code += S.emit()
        if key == "qloop":
            code += [I(f"s_add_u32 s{sCNT}, s{sCNT}, 1"), I(f"s_cmp_lt_u32 s{sCNT}, 6"), I(f"s_cbranch_scc1 {name}_qloop")]
        inst.append((key, code))
        if STAMP and k in (0, 6):
            T_ = Prog(); stamp(T_, 6 if k == 0 else 7, True); inst.append((f"st{k}", T_.L))

    C = Prog()
    if not GMAJ: C.ext([qbarrier(18)])
    assert not GMAJ or (DIST == 3 and SOFT)
    if TOUCH & 2: C(f"v_lshlrev_b32 v{vTa}, 7, v{vL}")
    late = dma_kv(3) if DIST >= 4 else []
    if TOUCH & 2:
        first_t = 5 if (TOUCH & 1) else 4
        late += [[I(f"s_mov_b32 s{sTo}, {first_t*8192+192}")]]
        for st_ in range(first_t, 4 + TD): late += touch(vTa, 8192)
    stamp(C, 2, STAMP)
    C(f"s_mov_b32 s{sCNT}, 0\ns_nop 4")
    groups = [(g, nt) for nt in range(7) for g in range(4) if (g == 3 or not GMAJ)]
    prev = None
    for i, (g, nt) in enumerate(groups):
        if late: C.ext(late.pop(0))
        C.ext(conv_group(g, nt))
        if i >= 1: C.ext(swap_group(*groups[i - 1])[0])
        if i >= 2: C.ext(swap_group(*groups[i - 2])[1])
    C("s_nop 1")
    C.ext(swap_group(*groups[-1])[0]); C.ext(swap_group(*groups[-2])[1]); C("s_nop 1"); C.ext(swap_group(*groups[-1])[1])

    def adv(sreg, vregs, st):
        return [[I(f"s_add_u32 s{sreg}, s{sreg}, 1")], [I(f"s_and_b32 s{sreg}, s{sreg}, 3"),
                I(f"s_cselect_b32 s{st}, s{sKKVS}, s{sKm3KVS}")]] + \
               [[I(f"v_add_u32 v{v}, s{st}, v{v}")] for v in vregs]
    def abarrier(j):
        b = I("s_barrier"); b.uses = {("kv", j + 1), ("krd", j), ("vrd", j), ("wqrd", 16), ("wqrd", 17)}
        return b
    def qk(t, zero):
        o = []
        for sub in range(2):
            d = R("v", Sb[sbuf(t)][sub])
            for g in range(4):
                c = d if g else ("0" if (zero or SOFT) else R("v", Ci[t]))
                o.append(m16(d, R("v", Kf[sub][g]), Q(t, g), c))
        return o
    def pv(t, zero):
        o = [m16(O(t, d), R("v", Vf[d]), R("v", Pf), "0" if zero else O(t, d)) for d in range(8)]
        if not VSUM: o.append(m16(Lr(t), ONES, R("v", Pf), "0" if zero else Lr(t)))
        return o
    def sregs(t): return [Sb[sbuf(t)][0] + i for i in range(4)] + [Sb[sbuf(t)][1] + i for i in range(4)]

    if not GMAJ:
        for sub in range(2):
            for g in range(4): C.ext([k_read(0, sub, g)])
        for dt in range(8): C.ext(v_reads(0, dt))
    C.ext(qk(0, True))
    stamp(C, 3, STAMP)
    inst.append(("conv", C.L))

    slow = Prog()
    def epi_tile(t, U, sfx):
        LS = Ci[t] + 2; X = Ci[t] + 3; INV = Ci[t]
        o = [f"v_mov_b32 v{X}, v{LS}", "s_nop 1", f"v_permlane32_swap_b32 v{X}, v{LS}", f"v_add_f32 v{LS}, v{LS}, v{X}",
             f"v_mov_b32 v{X}, v{LS}", "s_nop 1", f"v_permlane16_swap_b32 v{X}, v{LS}", f"v_add_f32 v{LS}, v{LS}, v{X}",
             f"v_rcp_f32 v{INV}, v{LS}"]
        o = [[I(x)] for x in o]
        for g in range(4):
            val = [U[0] + i for i in range(4)] + [U[1] + i for i in range(4)]
            out = U[2 + (g & 1)]
            for i in range(8): o.append([I(f"v_accvgpr_read_b32 v{val[i]}, a{(t*8+2*g)*4+i}")])
            for i in range(8): o.append([I(f"v_mul_f32 v{val[i]}, v{val[i]}, v{INV}")])
            for q in range(4): o.append([I(f"v_cvt_pk_bf16_f32 v{out+q}, v{val[2*q]}, v{val[2*q+1]}")])
            st = I(f"buffer_store_dwordx4 v[{out}:{out+3}], v{vKa}, s[{SO}:{SO+3}], s{sT3} offen offset:{1024*g}{OFLAG}")
            st.defs = {("ostore", 0)}
            o.append(([I(f"s_mov_b32 s{sT3}, {t*TS}")] if g == 0 else []) + [st])
        return o
    def block(j, first, last=False):
        mf = []; base = []
        for s in range(7):
            base.append(len(mf))
            if not (first and s == 0): mf += pv((s - 1) % 7, first)
            if not (last and s == 6): mf += qk((s + 1) % 7, first and s < 6)
        base.append(len(mf))
        if last: mf += pv(6, False)
        S = Sched2(mf)
        NPV = 8 if VSUM else 9; SL = NPV + 8
        if not first:
            for n, gp in enumerate(VGAPS):
                dt = n // 2
                gp = min(gp, SL + dt - 4)
                assert dt <= gp
                S.put(gp, v_reads(j, dt)[n % 2])
        for i, gp in enumerate(KGAPS if not last else []):
            gp = gp - 9 + NPV
            assert NPV + i <= gp <= SL + NPV + i - 4
            S.put(base[5] + gp, k_read(j + 1, i // 4, i % 4))
        gb = base[2] + 1
        if not last: S.put(gb, abarrier(j))
        elif FUSED:
            b_ = abarrier(j); b_.uses |= {("kv", j + 2), ("kv", j + 3)}
            S.put(gb, b_)
            S.put(gb + 1, "v_mov_b32 v13, 0")
            S.put(gb + 3, "buffer_load_dword v13, v13, s[92:95], 0 offen sc1")
        for t in range(7):
            b0 = base[t]; sr = sregs(t); n = base[t + 1] - b0
            NM, TH, LS = Ci[t], Ci[t] + 1, Ci[t] + 2
            if first:
                ops = [f"v_max3_f32 v{vMX}, v{sr[0]}, v{sr[1]}, v{sr[2]}",
                       f"v_max3_f32 v{vMX}, v{vMX}, v{sr[3]}, v{sr[4]}",
                       f"v_max3_f32 v{vMX}, v{vMX}, v{sr[5]}, v{sr[6]}",
                       f"v_max_f32 v{vMX}, v{vMX}, v{sr[7]}",
                       f"v_mov_b32 v{vT}, v{vMX}", f"v_permlane32_swap_b32 v{vT}, v{vMX}",
                       f"v_max_f32 v{vMX}, v{vT}, v{vMX}",
                       f"v_mov_b32 v{vT}, v{vMX}", f"v_permlane16_swap_b32 v{vT}, v{vMX}",
                       f"v_max_f32 v{vMX}, v{vT}, v{vMX}"]
                if SOFT:
                    ops += [f"v_mul_f32 v{NM}, s{sNC}, v{vMX}"]
                    ops += [f"v_fma_f32 v{r}, v{r}, s{sC}, v{NM}" for r in sr]
                    ops += [f"v_add_f32 v{TH}, s{sTH}, v{vMX}"]
                else:
                    ops += [f"v_sub_f32 v{r}, v{r}, v{vMX}" for r in sr]
                ops += [f"v_exp_f32 v{r}, v{r}" for r in sr]
                if not SOFT: ops += [f"v_sub_f32 v{Ci[t]+i}, 0, v{vMX}" for i in range(4)]
                if VSUM:
                    ops += [f"v_add_f32 v{LS}, v{sr[0]}, v{sr[1]}"] + [f"v_add_f32 v{LS}, v{LS}, v{sr[i]}" for i in range(2, 8)]
                for i, o in enumerate(ops):
                    S.put(b0 + min(n - 2, 1 + (i * (n - 3)) // len(ops)), o)
                for q in range(4): S.put(b0 + n - 2, f"v_cvt_pk_bf16_f32 v{Pf+q}, v{sr[2*q]}, v{sr[2*q+1]}")
            elif SOFT:
                e0 = b0 + n - 1
                sx = "L" if last else ""
                gbr = S.put(e0, f"s_cbranch_vccnz {name}_slow{sx}{t}\n{name}_back{sx}{t}:")
                if VSUM: S.put(e0, f"v_add_f32 v{LS}, v{LS}, v{vTS}")
                ge = []
                for i in range(8):
                    tgt = b0 + (i * (n - 4)) // 8
                    gf = S.place(f"v_fma_f32 v{Er[i]}, v{sr[i]}, s{sC}, v{NM}", max(tgt, b0 + (3 if i >= 4 else 0)), min(max(tgt, b0 + 3) + 1, e0 - 3) if n > 8 else b0 + 3)
                    ge.append(S.place(f"v_exp_f32 v{Er[i]}, v{Er[i]}", gf + 1, min(gf + 2, e0 - 2)))
                cap = lambda x: min(x, e0 - 3)
                g1 = S.place(f"v_max3_f32 v{vMX}, v{sr[0]}, v{sr[1]}, v{sr[2]}", b0, cap(b0 + 6))
                g2 = S.place(f"v_max3_f32 v{vT}, v{sr[4]}, v{sr[5]}, v{sr[6]}", b0 + 3, cap(b0 + 8))
                g3 = S.place(f"v_max3_f32 v{vMX}, v{vMX}, v{sr[3]}, v{sr[7]}", max(g1, b0 + 3), cap(b0 + 10))
                g4 = S.place(f"v_max_f32 v{vMX}, v{vMX}, v{vT}", max(g2, g3), cap(b0 + 11))
                g5 = S.place(f"v_cmp_lt_f32 vcc, v{TH}, v{vMX}", g4, e0 - 2)
                for q in range(4):
                    S.place(f"v_cvt_pk_bf16_f32 v{Pf+q}, v{Er[2*q]}, v{Er[2*q+1]}", max(ge[2*q] + 1, ge[2*q+1] + 1, b0 + NPV - 1), max(e0 - 1, b0 + NPV - 1))
                if VSUM:
                    ga = S.place(f"v_add_f32 v{vTS}, v{Er[0]}, v{Er[1]}", ge[1] + 1, e0 - 1)
                    for i in range(2, 8):
                        ga = S.place(f"v_add_f32 v{vTS}, v{vTS}, v{Er[i]}", max(ga, ge[i] + 1), min(max(ga, ge[i] + 1) + 3, e0 - 1))
            else:
                g1 = S.place(f"v_max3_f32 v{vMX}, v{sr[0]}, v{sr[1]}, v{sr[2]}", b0, b0 + 5)
                g2 = S.place(f"v_max3_f32 v{vT}, v{sr[4]}, v{sr[5]}, v{sr[6]}", b0 + 3, b0 + 7)
                g3 = S.place(f"v_max3_f32 v{vMX}, v{vMX}, v{sr[3]}, v{sr[7]}", max(g1, b0 + 3), b0 + 8)
                g4 = S.place(f"v_max_f32 v{vMX}, v{vMX}, v{vT}", max(g2, g3), b0 + 9)
                g5 = S.place(f"v_cmp_lt_f32 vcc, s{sTH}, v{vMX}", g4, b0 + 10)
                gbr = S.place(f"s_cbranch_vccnz {name}_slow{t}\n{name}_back{t}:", g5 + 2, b0 + 12)
                ge = []
                for i in range(8):
                    ge.append(S.place(f"v_exp_f32 v{Er[i]}, v{sr[i]}", b0 + (3 if i >= 4 else 0), b0 + 14))
                for q in range(4):
                    S.place(f"v_cvt_pk_bf16_f32 v{Pf+q}, v{Er[2*q]}, v{Er[2*q+1]}", max(ge[2*q] + 1, ge[2*q+1] + 1, gbr + 1, b0 + 8), b0 + 15)
        if last:
            S.put(0, f"v_lshlrev_b32 v{vKa}, 4, v{vL}")
            for t in range(5):
                lo = base[t + 1] + NPV + 3; hi = min(base[t + 2] + NPV + 2, len(mf) - 1)
                ops = epi_tile(t, [grp(g, t) for g in range(4)], "")
                for i, o_ in enumerate(ops): S.put(lo + (i * (hi - lo + 1)) // len(ops), o_)
            return S
        spaced(S, dma_kv(j + DIST) + (touch(vTa, 8192) if TOUCH & 2 else []), gb + 1 + DLATE, min(base[5] + 6 + DLATE, len(mf) - 2), DSTEP)
        S.stream(adv(sVd, vVa, sT3), base[2], base[6])
        S.stream(adv(sKd, [vKa], sT4), base[3], base[5] + NPV - 1)
        return S

    S0 = block(0, True)
    inst.append(("blk0", S0.emit()))
    if STAMP:
        T_ = Prog(); stamp(T_, 8, True); inst.append(("stb", T_.L))
    for j in range(1, 15 if PEEL else 16):
        S = block(j, False)
        trace = [I("s_memtime s[76:77]"), I("s_memrealtime s[78:79]"), I("s_waitcnt lgkmcnt(0)"),
                 I(f"s_mov_b32 m0, s{sCNT}"), I("s_nop 1"), I(f"v_writelane_b32 v18, s76, m0"), I(f"v_writelane_b32 v19, s78, m0")] if os.environ.get("TRACE") else []
        code = [I(f"{name}_aloop:")] + trace + S.emit() + [I(f"s_add_u32 s{sCNT}, s{sCNT}, 1"), I(f"s_cmp_lt_u32 s{sCNT}, {14 if PEEL else 15}"),
                                                   I(f"s_cbranch_scc1 {name}_aloop")]
        inst.append(("aloop", code))
        if verbose and j == 1: print("k1 attention block est cycles", S.est(16), "ideal", 16 * len(S.m))

    E = Prog()
    if PEEL:
        assert SOFT and VSUM
        SL_ = block(15, False, last=True)
        if verbose: print("last block est", SL_.est())
        inst.append(("blkL", SL_.emit()))
    else: E.ext(pv(6, False))
    stamp(E, 4, STAMP)
    if os.environ.get("TRACE"):
        E(f"""s_add_u32 s72, s20, 0x5000000
s_addc_u32 s73, s21, 0
s_mov_b32 s74, 0x100000
s_mov_b32 s75, 0x00020000
s_lshl_b32 s70, s2, 11
s_lshl_b32 s71, s{sW}, 9
s_add_u32 s70, s70, s71
v_lshlrev_b32 v2, 3, v{vL}
buffer_store_dwordx2 v[18:19], v2, s[72:75], s70 offen
s_waitcnt vmcnt(0)""")
    if FUSED:
        if PEEL: E("v_mov_b32 v25, v13")
        else: E(f"s_waitcnt vmcnt(0)\ns_barrier\nv_mov_b32 v24, 0\nbuffer_load_dword v25, v24, s[92:95], 0 offen sc1")
    if ZFLAG:
        E(f"""s_add_u32 s72, s20, {ZFLAG}
s_addc_u32 s73, s21, 0
s_mov_b32 s74, 32768
s_mov_b32 s75, 0x00020000
s_lshl_b32 s70, s2, 7
v_and_b32 v2, 31, v{vL}
v_lshlrev_b32 v2, 2, v2
v_mov_b32 v10, 0
buffer_store_dword v10, v2, s[72:75], s70 offen""")
    E(f"v_lshlrev_b32 v2, 4, v{vL}")
    E("s_nop 7")
    tmp = 32
    if VSUM:
        ET = range(5, 7) if PEEL else range(7)
        for t in ET: E(f"v_mov_b32 v{3+t}, v{Ci[t]+2}\nv_mov_b32 v{11+t}, v{Ci[t]+2}")
        E("s_nop 1")
        for t in ET: E(f"v_permlane32_swap_b32 v{3+t}, v{11+t}")
        for t in ET: E(f"v_add_f32 v{3+t}, v{3+t}, v{11+t}")
        for t in ET: E(f"v_mov_b32 v{11+t}, v{3+t}")
        E("s_nop 1")
        for t in ET: E(f"v_permlane16_swap_b32 v{3+t}, v{11+t}")
        for t in ET: E(f"v_add_f32 v{3+t}, v{3+t}, v{11+t}")
    for t in (range(5, 7) if PEEL else range(7)):
        inv = 20 + 2 * (t & 1)
        if VSUM: E(f"s_mov_b32 s{sT0}, {t*TS}\nv_rcp_f32 v{inv}, v{3+t}")
        else: E(f"v_accvgpr_read_b32 v{inv}, a{224+4*t}\ns_mov_b32 s{sT0}, {t*TS}\nv_rcp_f32 v{inv}, v{inv}")
        for g in range(4):
            r = tmp + 16 * ((t * 4 + g) % 8)
            for i in range(8): E(f"v_accvgpr_read_b32 v{r+i}, a{(t*8+2*g)*4+i}")
            for q in range(4): E(f"v_pk_mul_f32 v[{r+2*q}:{r+2*q+1}], v[{r+2*q}:{r+2*q+1}], v[{inv}:{inv+1}] op_sel_hi:[1,0]")
            for q in range(4): E(f"v_cvt_pk_bf16_f32 v{r+8+q}, v{r+2*q}, v{r+2*q+1}")
            E(f"buffer_store_dwordx4 v[{r+8}:{r+11}], v2, s[{SO}:{SO+3}], s{sT0} offen offset:{1024*g}{OFLAG}")
            E.L[-1].defs = {("ostore", 0)}
    if STAMP and not FUSED:
        stamp(E, 5, True)
        stamp_store(E, 9 if not os.environ.get('DBG') else 6, sW, 20, (512, 0))
    if not FUSED: E(f"{name}_done:\ns_endpgm")
    inst.append(("end", E.L))

    for t, sx in [(t, sx) for sx in (("", "L") if PEEL else ("",)) for t in range(7)]:
        sr = sregs(t)
        slow(f"""{name}_slow{sx}{t}:
v_mov_b32 v{vT}, v{vMX}
s_nop 1
v_permlane32_swap_b32 v{vT}, v{vMX}
v_max_f32 v{vMX}, v{vT}, v{vMX}
v_mov_b32 v{vT}, v{vMX}
s_nop 1
v_permlane16_swap_b32 v{vT}, v{vMX}
v_max_f32 v{vMX}, v{vT}, v{vMX}
""")
        NM, TH, LS = Ci[t], Ci[t] + 1, Ci[t] + 2
        if SOFT:
            slow(f"""v_subrev_f32 v{vT}, s{sTH}, v{TH}
v_max_f32 v{vMX}, v{vT}, v{vMX}
v_mul_f32 v{vT}, s{sNC}, v{vMX}
v_sub_f32 v{vF}, v{vT}, v{NM}
v_exp_f32 v{vF}, v{vF}
v_mov_b32 v{NM}, v{vT}
v_add_f32 v{TH}, s{sTH}, v{vMX}""")
            for i in range(8): slow(f"v_fma_f32 v{Er[i]}, v{sr[i]}, s{sC}, v{NM}")
            for i in range(8): slow(f"v_exp_f32 v{Er[i]}, v{Er[i]}")
            slow("s_nop 0")
            for q in range(4): slow(f"v_cvt_pk_bf16_f32 v{Pf+q}, v{Er[2*q]}, v{Er[2*q+1]}")
            if VSUM:
                slow(f"v_add_f32 v{vTS}, v{Er[0]}, v{Er[1]}")
                for i in range(2, 8): slow(f"v_add_f32 v{vTS}, v{vTS}, v{Er[i]}")
                slow(f"v_mul_f32 v{LS}, v{LS}, v{vF}")
        else:
            slow(f"v_max_f32 v{vMX}, 0, v{vMX}\nv_exp_f32 v{vF}, -v{vMX}")
            for r in sr: slow(f"v_sub_f32 v{r}, v{r}, v{vMX}")
            for i in range(8): slow(f"v_exp_f32 v{Er[i]}, v{sr[i]}")
            for i in range(4): slow(f"v_sub_f32 v{Ci[t]+i}, v{Ci[t]+i}, v{vMX}")
        regs = [t * 32 + i for i in range(32)] + ([] if VSUM else [224 + 4 * t + i for i in range(4)])
        for a in regs:
            slow(f"v_accvgpr_read_b32 v{vT}, a{a}\nv_mul_f32 v{vT}, v{vT}, v{vF}\nv_accvgpr_write_b32 a{a}, v{vT}")
        slow(f"s_nop 1\ns_branch {name}_back{sx}{t}")

    EXP = os.environ.get("EXP", "").split(",")
    def keep(key, i):
        if key == "aloop":
            if "a_nodma" in EXP and i.kind == "dma": return False
            if "a_nobar" in EXP and i.kind == "barrier": return False
            if "a_nods" in EXP and i.kind == "dsr": return False
            if "a_noexp" in EXP and i.op == "v_exp_f32": return False
            if "a_nomax" in EXP and (i.op.startswith("v_max") or i.op.startswith("v_cmp") or i.op == "s_cbranch_vccnz"): return False
            if "a_nobr" in EXP and (i.op == "s_cbranch_vccnz"): return False
            if "a_nocvt" in EXP and i.op.startswith("v_cvt"): return False
            if "a_nosum" in EXP and i.kind == "mfma" and "a[252:255]" in i.text: return False
            if "a_nopv" in EXP and i.kind == "mfma" and i.text.split()[1].startswith("a["): return False
        if key == "qloop":
            if "q_nodma" in EXP and i.kind == "dma": return False
            if "q_nobar" in EXP and i.kind == "barrier": return False
            if "q_nods" in EXP and i.kind == "dsr": return False
        return True
    inst = [(k_, [i for i in c_ if keep(k_, i)]) for k_, c_ in inst]
    PADN = int(os.environ.get("PADN", 0))
    if PADN:
        def pad(c_):
            o_ = []; n_ = 0
            for i in c_:
                if i.kind == "mfma":
                    n_ += 1
                    if n_ % PADN == 0: o_.append(I("s_nop 7"))
                o_.append(i)
            return o_
        inst = [(k_, pad(c_) if k_ == "aloop" else c_) for k_, c_ in inst]
    if FUSED: return inst, slow
    out, full, nfix = resolve_all2(inst)
    if verbose: print("k1 nops inserted:", nfix, "est aloop", est_code(out["aloop"]), "est qloop", est_code(out["qloop"]), "blk0", est_code(out["blk0"]))
    msgs = check_hazards(full, name) + check_hazards(slow.L, name + "_slow")
    seen = set()
    for m_ in msgs:
        key = m_.split("]")[1][:60] + m_.split("->")[-1][-50:]
        if key not in seen: print(m_); seen.add(key)
    order = []
    for key, _ in inst:
        if key not in order: order.append(key)
    text = "\n".join(str(i) for key in order for i in out[key]) + "\n" + slow.text()
    launch = f"; @launch kernel={name} grid=(256,1,1) block=(256,1,1) lds=163840"
    return launch, text, kd(name, 512, 256, 102)

def gen_k2(name="oproj_kernel", NS=4, STAMP=False, WROT=1, verbose=True):
    for Lp in range(126): assert (Lp * 57) >> 9 == Lp // 9
    KS = 4
    PB = KS * NS
    ACC = 16
    AF = 48
    BF = 80
    NV = BF + 8 * PB
    vLane16 = 2; vA = [3, 4, 5, 6]; vDma = [7, 8, 9, 10]; vOut = 11
    P = Prog()
    P(f"""
.globl {name}
.p2align 8
.type {name},@function
{name}:
s_cmp_ge_u32 s2, 256
s_cbranch_scc1 {name}_done
s_load_dwordx2 s[4:5], s[0:1], 32
s_load_dwordx2 s[6:7], s[0:1], 72
s_load_dwordx2 s[8:9], s[0:1], 80
s_load_dwordx2 s[10:11], s[0:1], 96
""")
    if STAMP: P("s_memtime s[80:81]\ns_memrealtime s[98:99]")
    P(f"""
s_and_b32 s20, s2, 7
s_lshr_b32 s21, s2, 3
s_and_b32 s22, s20, 1
s_mul_i32 s23, s22, 31
s_cmp_eq_u32 s23, 31
s_cselect_b32 s23, s21, 0
s_cmp_eq_u32 s23, 31
s_cbranch_scc1 {name}_done
s_mul_i32 s22, s20, 63
s_add_u32 s22, s22, 1
s_lshr_b32 s22, s22, 1
s_add_u32 s22, s22, s21
s_cmp_ge_u32 s22, 126
s_cselect_b32 s24, 1, 0
s_mul_i32 s25, s24, 126
s_sub_u32 s22, s22, s25
s_mul_i32 s26, s22, 57
s_lshr_b32 s26, s26, 9
s_mul_i32 s27, s26, 9
s_sub_u32 s27, s22, s27
v_and_b32 v1, 63, v0
v_lshrrev_b32 v12, 6, v0
v_lshlrev_b32 v{vLane16}, 4, v1
v_readfirstlane_b32 s28, v12
""")
    P(f"""
s_lshl_b32 s29, s26, 3
s_lshl_b32 s30, s28, 1
s_add_u32 s29, s29, s30
s_mul_i32 s30, s24, 112
s_add_u32 s30, s30, s29
s_mul_i32 s30, s30, {TS}
v_lshrrev_b32 v12, 3, v1
v_mul_u32_u24 v12, 1152, v12
v_bfe_u32 v13, v1, 4, 2
v_lshlrev_b32 v13, 1, v13
v_and_b32 v14, 7, v1
v_xor_b32 v13, v13, v14
v_lshl_add_u32 v{vDma[0]}, v13, 4, v12
v_add_u32 v{vDma[1]}, 8192, v{vDma[0]}
v_add_u32 v{vDma[2]}, 16384, v{vDma[0]}
v_add_u32 v{vDma[3]}, 24576, v{vDma[0]}
s_mul_i32 s44, s28, 36864
s_lshl_b32 s46, s27, 7
s_add_u32 s44, s44, s46
s_lshl_b32 s45, s28, 12
s_mov_b32 s63, s44
s_mul_i32 s62, s26, 3
s_add_u32 s62, s62, s27
s_and_b32 s62, s62, {WROT-1}
s_mov_b32 s60, 0
s_mov_b32 s61, 0
s_mul_i32 s64, s62, 147456
s_add_u32 s44, s63, s64
s_lshl_b32 s47, s62, 12
s_waitcnt lgkmcnt(0)
s_cmp_eq_u32 s24, 0
s_cselect_b32 s32, s4, s6
s_cselect_b32 s33, s5, s7
s_mov_b32 s34, 4718592
s_mov_b32 s35, 0x00020000
s_add_u32 s36, s10, s30
s_addc_u32 s37, s11, 0
s_mov_b32 s38, 131072
s_mov_b32 s39, 0x00020000
s_add_u32 s56, s36, {TS}
s_addc_u32 s57, s37, 0
s_mov_b32 s58, 131072
s_mov_b32 s59, 0x00020000
s_mov_b32 s40, s8
s_mov_b32 s41, s9
s_mov_b32 s42, 4128768
s_mov_b32 s43, 0x00020000
""")
    def dma(stage):
        slot = stage % NS
        out = [I(f"s_add_u32 m0, s45, {slot*16384}"), I("s_nop 0")]
        for i in range(4):
            d = I(f"buffer_load_dwordx4 v{vDma[i]}, s[32:35], s44 offen offset:{1024*i} lds")
            d.defs = {("lds", stage)}
            out.append(d)
        out += [I("s_add_u32 s60, s60, 1"), I("s_add_u32 s64, s60, s62"), I(f"s_and_b32 s64, s64, {WROT-1}"),
                I(f"s_andn2_b32 s65, s60, {WROT-1}"), I("s_or_b32 s64, s64, s65"), I("s_mul_i32 s64, s64, 147456"), I("s_add_u32 s44, s63, s64")]
        return out
    def bload(g):
        out = []
        for nt in range(2):
            r = BF + 8 * (g % PB) + 4 * nt
            srd = "s[36:39]" if nt == 0 else "s[56:59]"
            out.append(I(f"buffer_load_dwordx4 v[{r}:{r+3}], v{vLane16}, {srd}, s47 offen offset:{1024*(g%4)}"))
        if g % 4 == 3:
            out += [I("s_add_u32 s61, s61, 1"), I("s_add_u32 s66, s61, s62"), I(f"s_and_b32 s66, s66, {WROT-1}"),
                    I(f"s_andn2_b32 s67, s61, {WROT-1}"), I("s_or_b32 s66, s66, s67"), I("s_lshl_b32 s47, s66, 12")]
        return out
    def areads(g, mt):
        stage = g // KS; slot = stage % NS; ks = g % KS
        r = AF + 16 * (g % 2) + 4 * mt
        out = []
        for half in range(2):
            d = I(f"ds_read_b64_tr_b16 v[{r+2*half}:{r+2*half+1}], v{vA[mt]} offset:{slot*16384 + ks*4096 + half*2048}")
            d.defs |= {("ldsrd", stage)}
            out.append(d)
        return out
    def barrier(stage):
        b = I("s_barrier"); b.uses = {("lds", stage), ("ldsrd", stage - 1)}
        return b
    for st in range(NS - 1):
        P.ext(dma(st))
        for g in range(KS * st, KS * st + KS): P.ext(bload(g))
    for g in range(KS * (NS - 1), PB): P.ext(bload(g))
    P(f"""
v_lshrrev_b32 v12, 2, v1
v_bfe_u32 v13, v12, 1, 2
v_lshlrev_b32 v12, 7, v12
v_lshl_add_u32 v12, v13, 5, v12
v_and_b32 v13, 3, v1
v_lshl_add_u32 v{vA[0]}, v13, 3, v12
v_xor_b32 v{vA[1]}, 32, v{vA[0]}
v_xor_b32 v{vA[2]}, 64, v{vA[0]}
v_xor_b32 v{vA[3]}, 96, v{vA[0]}
""")
    P(f"""
s_lshl_b32 s50, s29, 4
v_and_b32 v12, 15, v1
v_add_u32 v12, s50, v12
v_mul_u32_u24 v12, 2304, v12
v_lshrrev_b32 v13, 4, v1
v_lshlrev_b32 v13, 3, v13
s_mul_i32 s53, s24, 1152
s_lshl_b32 s54, s27, 7
s_add_u32 s53, s53, s54
v_add3_u32 v{vOut}, v12, v13, s53
s_mov_b32 s55, 0
""")
    for i in range(32): P(f"v_mov_b32 v{ACC+i}, 0")
    P.ext([barrier(0)])
    P.ext(dma(NS - 1))
    for mt in range(4): P.ext(areads(0, mt))
    stamp(P, 1, STAMP)
    inst = [("pre", P.L)]
    NIT = 128 // PB
    for it in range(NIT):
        code = [I(f"{name}_loop:")]
        for gl in range(PB):
            g = it * PB + gl
            mf = []
            for mt in range(4):
                for nt in range(2):
                    c = R("v", ACC + 8 * mt + 4 * nt)
                    mf.append(m16(c, R("v", AF + 16 * (g % 2) + 4 * mt), R("v", BF + 8 * (g % PB) + 4 * nt), c))
            S = Sched2(mf)
            gn = g + 1
            lo = 0
            if gn % KS == 0:
                S.put(1, barrier(gn // KS)); lo = 1
            for mt in range(4): lo = S.stream(areads(gn, mt), lo, 6)
            if gn % KS == 0: S.stream(dma(gn // KS + NS - 1), 5, 7)
            S.put(7, bload(g + PB))
            code += S.emit()
        code += [I("s_add_u32 s55, s55, 1"), I(f"s_cmp_lt_u32 s55, {NIT}"), I(f"s_cbranch_scc1 {name}_loop")]
        inst.append(("loop", code))
    E = Prog()
    E("s_nop 7")
    stamp(E, 2, STAMP)
    for mt in range(4):
        for nt in range(2):
            c = ACC + 8 * mt + 4 * nt
            t = AF + 4 * mt + 2 * nt
            E(f"v_cvt_pk_bf16_f32 v{t}, v{c}, v{c+1}\nv_cvt_pk_bf16_f32 v{t+1}, v{c+2}, v{c+3}")
            if nt == 0:
                E(f"buffer_store_dwordx2 v[{t}:{t+1}], v{vOut}, s[40:43], 0 offen offset:{32*mt}")
            else:
                E(f"s_mov_b32 s50, {16*2304}\nbuffer_store_dwordx2 v[{t}:{t+1}], v{vOut}, s[40:43], s50 offen offset:{32*mt}")
    if STAMP:
        E("s_waitcnt vmcnt(0)")
        stamp(E, 3, True)
        E("s_add_u32 s10, s10, 0x100000\ns_addc_u32 s11, s11, 0")
        stamp_store(E, 4, 28, 10, (0, 32))
    E(f"{name}_done:\ns_endpgm")
    inst.append(("end", E.L))
    out, full, nfix = resolve_all2(inst)
    for m_ in check_hazards(full, name)[:10]: print(m_)
    text = "\n".join(str(i) for key in ("pre", "loop", "end") for i in out[key])
    launch = f"; @launch kernel={name} grid=(256,1,1) block=(256,1,1) lds={NS*16384}"
    return launch, text, kd(name, NV, ((NV + 3) // 4) * 4, 102)

def write(path, kernels, header=""):
    with open(path, "w") as f:
        f.write(header)
        for l, _, _ in kernels: f.write(l + "\n")
        f.write('.amdgcn_target "amdgcn-amd-amdhsa--gfx950"\n.text\n')
        for _, c, _ in kernels: f.write(c + "\n")
        f.write('code_end:\n.section .rodata,"a"\n')
        for _, _, k in kernels: f.write(".p2align 6\n" + k + "\n")

HEADER = """; Fused GQA block x2 (Q-proj + attention, then O-proj); generated by a hand-written generator script.
"""

if __name__ == "__main__":
    out = sys.argv[1] if len(sys.argv) > 1 else "full.s"
    st = bool(os.environ.get("STAMP"))
    kw = {}; kw2 = {}
    for k_ in ("WROT", "NS"):
        if k_ in os.environ: kw2[k_] = int(os.environ[k_])
    if "KVFLAG" in os.environ: kw["KVFLAG"] = os.environ["KVFLAG"]
    for k_ in ("MAPPING", "ROT", "TOUCH", "WOT", "TD", "KROT", "DLATE", "DSTEP", "DIST", "CPF", "SOFT", "VSUM", "PPS", "TS0", "TSTEP", "TPK"):
        if k_ in os.environ: kw[k_] = int(os.environ[k_])
    if "TFLAG" in os.environ: kw["TFLAG"] = os.environ["TFLAG"]
    write(out, [gen_k1(STAMP=st, **kw), gen_k2(STAMP=st, **kw2)], HEADER)
```

```python
from gen import *

XOFF = 0x2000000
FOFF = 0x3000000

def gen_k2r(name="oproj_kernel", STAMP=False, NSL=8, FLAGST=5, LA=2, RX=8, LEAD=2, LOOKU=5, PACE=3, PERM=0, FUSED=0, verbose=True):
    for L in range(252): assert (L * 171) >> 9 == L // 3
    for L in range(126): assert (L * 781) >> 15 == L // 42
    NK = 44; KS = 4; NST = NK // KS
    ACC = [32, 64, 32]
    AF = 96
    def Bf(g, nt):
        n = 2 * g + nt
        return R("a", 4 * n) if n < 64 else R("v", 160 + 4 * (n - 64))
    vLane16 = 2; vA = [3, 4, 5, 6]; vAh = [7, 8, 9, 10]; vDma = [11, 12, 13, 14]; vOut = 15
    sBLK, sNG, sMQ, sS, sW, sL, sTAU = 24, 26, 27, 25, 28, 22, 23
    P = Prog()
    if not FUSED:
        P(f"""
.globl {name}
.p2align 8
.type {name},@function
{name}:
s_cmp_ge_u32 s2, 256
s_cbranch_scc1 {name}_done""")
    P(f"""
s_load_dwordx2 s[4:5], s[0:1], 32
s_load_dwordx2 s[6:7], s[0:1], 72
s_load_dwordx2 s[8:9], s[0:1], 80
s_load_dwordx2 s[10:11], s[0:1], 96
""")
    if STAMP and not FUSED: P("s_memtime s[80:81]\ns_memrealtime s[98:99]")
    sc = " sc1" if FUSED else ((" " + os.environ["BFLAG"]) if os.environ.get("BFLAG") else "")
    af = (" " + os.environ["AFLAG"]) if os.environ.get("AFLAG") else ""
    P(f"""
s_and_b32 s20, s2, 7
s_lshr_b32 s21, s2, 3
s_and_b32 s22, s20, 1
s_mul_i32 s23, s22, 31
s_cmp_eq_u32 s23, 31
s_cselect_b32 s23, s21, 0
s_cmp_eq_u32 s23, 31
s_cbranch_scc1 {name + ("_notile" if FUSED else "_done")}
s_mul_i32 s22, s20, 63
s_add_u32 s22, s22, 1
s_lshr_b32 s22, s22, 1
s_add_u32 s{sL}, s22, s21
s_cmp_ge_u32 s{sL}, 126
s_cselect_b32 s{sBLK}, 1, 0
s_mul_i32 s20, s{sBLK}, 126
s_sub_u32 s20, s{sL}, s20
s_mul_i32 s{sS}, s20, 781
s_lshr_b32 s{sS}, s{sS}, 15
s_mul_i32 s21, s{sS}, 42
s_sub_u32 s20, s20, s21
s_mul_i32 s{sNG}, s20, 171
s_lshr_b32 s{sNG}, s{sNG}, 9
s_mul_i32 s21, s{sNG}, 3
s_sub_u32 s{sMQ}, s20, s21
s_mul_i32 s{sTAU}, s{sBLK}, 42
s_add_u32 s{sTAU}, s{sTAU}, s20
s_mul_i32 s{sL}, s{sTAU}, 3
s_add_u32 s{sL}, s{sL}, s{sS}
{"s_mov_b32 s24, 0" + chr(10) + "s_mov_b32 s26, 0" + chr(10) + "s_mov_b32 s27, 0" if "same" in os.environ.get("EXP2", "") else ""}
{"v_and_b32 v1, 63, v0" + chr(10) + "v_lshrrev_b32 v16, 6, v0" if not FUSED else ""}
v_lshlrev_b32 v{vLane16}, 4, v1
{f"v_readfirstlane_b32 s{sW}, v16" if not FUSED else f"s_mov_b32 s{sW}, s91"}
s_lshl_b32 s29, s{sNG}, 3
s_add_u32 s51, s{sS}, 1
s_cmp_ge_u32 s51, 3
s_cselect_b32 s52, 3, 0
s_sub_u32 s51, s51, s52
s_add_u32 s52, s{sS}, 2
s_cmp_ge_u32 s52, 3
s_cselect_b32 s53, 3, 0
s_sub_u32 s52, s52, s53
s_lshl_b32 s30, s{sW}, 1
s_add_u32 s29, s29, s30
s_mul_i32 s30, s{sBLK}, 112
s_add_u32 s30, s30, s29
s_mul_i32 s30, s30, {TS}
v_lshrrev_b32 v16, 3, v1
v_mul_u32_u24 v16, 1152, v16
v_bfe_u32 v17, v1, 4, 2
v_lshlrev_b32 v17, 1, v17
v_and_b32 v18, 7, v1
v_xor_b32 v17, v17, v18
v_lshl_add_u32 v{vDma[0]}, v17, 4, v16
v_add_u32 v{vDma[1]}, 8192, v{vDma[0]}
v_add_u32 v{vDma[2]}, 16384, v{vDma[0]}
v_add_u32 v{vDma[3]}, 24576, v{vDma[0]}
s_mul_i32 s46, s{sS}, {NK*32*1152}
s_mul_i32 s47, s{sW}, {32*1152}
s_add_u32 s46, s46, s47
s_mul_i32 s47, s{sMQ}, 384
s_add_u32 s46, s46, s47
s_lshl_b32 s47, s51, 7
s_add_u32 s60, s46, s47
s_lshl_b32 s47, s52, 7
s_add_u32 s61, s46, s47
s_lshl_b32 s47, s{sS}, 7
s_add_u32 s62, s46, s47
s_lshl_b32 s45, s{sW}, 12
s_mul_i32 s48, s{sS}, {NK*1024}
s_add_u32 s49, s{sMQ}, s{sNG}
s_mul_i32 s50, s49, 171
s_lshr_b32 s50, s50, 9
s_mul_i32 s50, s50, 3
s_sub_u32 s49, s49, s50
{"" if PERM else "s_mov_b32 s49, 0"}
s_mul_i32 s12, s49, 147456
s_lshl_b32 s15, s49, 12
s_add_u32 s49, s49, 1
s_cmp_eq_u32 s49, 3
s_cselect_b32 s49, 0, s49
s_mul_i32 s13, s49, 147456
s_lshl_b32 s16, s49, 12
s_add_u32 s49, s49, 1
s_cmp_eq_u32 s49, 3
s_cselect_b32 s49, 0, s49
s_mul_i32 s14, s49, 147456
s_lshl_b32 s17, s49, 12
s_add_u32 s15, s15, s48
s_add_u32 s16, s16, s48
s_add_u32 s17, s17, s48
s_waitcnt lgkmcnt(0)
s_cmp_eq_u32 s{sBLK}, 0
s_cselect_b32 s32, s4, s6
s_cselect_b32 s33, s5, s7
s_mov_b32 s34, 4718592
s_mov_b32 s35, 0x00020000
s_add_u32 s36, s10, s30
s_addc_u32 s37, s11, 0
s_mov_b32 s38, 131072
s_mov_b32 s39, 0x00020000
s_add_u32 s56, s36, {TS}
s_addc_u32 s57, s37, 0
s_mov_b32 s58, 131072
s_mov_b32 s59, 0x00020000
""")
    units = []
    for k in range(NST + LEAD):
        if k < NST: units.append((0, k))
        if k >= LEAD: units.append((1, k - LEAD))
    units += [(2, k) for k in range(NST)]
    NU = len(units)
    def dma(u):
        p, k = units[u]
        if k < 9:
            out = [[I(f"s_add_u32 s44, s{60+p}, s{12+k%3}")], [I(f"s_add_u32 m0, s45, {(u % NSL)*16384}"), I(f"s_add_u32 s44, s44, {(k//3)*3*128*1152}")]]
        else:
            out = [[I(f"s_add_u32 m0, s45, {(u % NSL)*16384}"), I(f"s_add_u32 s44, s{60+p}, {k*128*1152}")]]
        for i in range(4):
            d = I(f"buffer_load_dwordx4 v{vDma[i]}, s[32:35], s44 offen offset:{1024*i}{af} lds")
            d.defs = {("lds", u)}
            out.append([d])
        return out
    def bload(g):
        out = []
        k = g // 4
        if g % 4 == 0:
            out.append([I(f"s_add_u32 s47, s{15+k%3}, {(k//3)*3*4096}") if k < 9 else I(f"s_add_u32 s47, s48, {k*4096}")])
        for nt in range(2):
            srd = "s[36:39]" if nt == 0 else "s[56:59]"
            out.append([I(f"buffer_load_dwordx4 {Bf(g, nt)}, v{vLane16}, {srd}, s47 offen offset:{1024*(g%4)}{sc}")])
        return out
    def aread(G, mt, half):
        u = G // KS; slot = u % NSL; ks = G % KS
        r = AF + 16 * (G % 4) + 4 * mt + 2 * half
        va = vA[mt] if slot < 4 else vAh[mt]
        d = I(f"ds_read_b64_tr_b16 v[{r}:{r+1}], v{va} offset:{(slot % 4)*16384 + ks*4096 + half*2048}")
        d.defs |= {("ldsrd", u)}
        return d
    def barrier(u):
        b = I("s_barrier"); b.uses = {("lds", u), ("ldsrd", u - 1)}
        return b
    flat = lambda gs: [i for g_ in gs for i in g_]
    LOOK = 4
    def loads_for(u):
        o = dma(u)
        p, k = units[u]
        if p == 0:
            for g in range(KS * k, KS * k + KS): o += bload(g)
        return o
    NPRE = LOOKU if FUSED else 0
    if FUSED:
        for u in range(2): P.ext(flat(dma(u)))
    else: P.ext(flat(loads_for(0)))
    P(f"""
v_lshrrev_b32 v16, 2, v1
v_bfe_u32 v17, v16, 1, 2
v_lshlrev_b32 v16, 7, v16
v_lshl_add_u32 v16, v17, 5, v16
v_and_b32 v17, 3, v1
v_lshl_add_u32 v{vA[0]}, v17, 3, v16
v_xor_b32 v{vA[1]}, 32, v{vA[0]}
v_xor_b32 v{vA[2]}, 64, v{vA[0]}
v_xor_b32 v{vA[3]}, 96, v{vA[0]}
""")
    for u in range(4): P(f"v_add_u32 v{vAh[u]}, 0x10000, v{vA[u]}")
    if FUSED:
        for u in range(2, NPRE): P.ext(flat(dma(u)))
    else: P.ext(flat(loads_for(1)))
    P(f"""
s_mov_b32 s40, s8
s_mov_b32 s41, s9
s_mov_b32 s42, 4128768
s_mov_b32 s43, 0x00020000
s_lshl_b32 s50, s29, 4
v_and_b32 v16, 15, v1
v_add_u32 v16, s50, v16
v_mul_u32_u24 v16, 2304, v16
v_lshrrev_b32 v17, 4, v1
v_lshlrev_b32 v17, 3, v17
s_mul_i32 s53, s{sBLK}, 1152
s_mul_i32 s54, s{sMQ}, 384
s_add_u32 s53, s53, s54
s_lshl_b32 s54, s{sS}, 7
s_add_u32 s53, s53, s54
v_add3_u32 v{vOut}, v16, v17, s53
s_add_u32 s68, s10, {XOFF}
s_addc_u32 s69, s11, 0
s_mov_b32 s70, 0x1100000
s_mov_b32 s71, 0x00020000
s_add_u32 s72, s10, {FOFF}
s_addc_u32 s73, s11, 0
s_mov_b32 s74, 65536
s_mov_b32 s75, 0x00020000
s_mul_i32 s50, s{sTAU}, {6*16384}
s_lshl_b32 s53, s{sW}, 12
s_add_u32 s50, s50, s53
s_lshl_b32 s53, s51, 15
s_add_u32 s63, s53, s50
s_lshl_b32 s54, s52, 15
s_add_u32 s64, s54, s50
s_add_u32 s64, s64, 16384
s_lshl_b32 s55, s{sS}, 15
s_add_u32 s65, s55, s50
s_mul_i32 s50, s{sTAU}, 3
s_add_u32 s51, s51, s50
s_add_u32 s52, s52, s50
s_lshl_b32 s51, s51, 7
s_lshl_b32 s52, s52, 7
s_lshl_b32 s50, s{sL}, 7
v_mov_b32 v20, s52
v_mov_b32 v21, s51
v_and_b32 v16, 1, v1
v_cmp_eq_u32 vcc, 0, v16
s_nop 1
v_cndmask_b32 v20, v21, v20, vcc
v_mov_b32 v22, s50
""")
    if not FUSED:
        P(f"""
v_mov_b32 v23, 1
s_getpc_b64 s[96:97]
{name}_pc:
s_sub_u32 s96, s96, {name}_pc-{name}
s_subb_u32 s97, s97, 0
s_lshr_b32 s50, s2, 3
s_lshl_b32 s50, s50, 2
s_add_u32 s50, s50, s{sW}
s_lshl_b32 s50, s50, 8
v_lshl_add_u32 v16, v1, 2, s50
s_mov_b32 s50, code_end-{name}-4
v_min_u32 v16, s50, v16
global_load_dword v0, v16, s[96:97]
""")
    polls = Prog()
    if FUSED:
        for T_ in range(112): assert (T_ * 147) >> 11 == T_ // 14
        P(f"""
s_lshl_b32 s53, s{sNG}, 3
s_mul_i32 s50, s53, 147
s_lshr_b32 s50, s50, 11
s_add_u32 s53, s53, 7
s_mul_i32 s53, s53, 147
s_lshr_b32 s53, s53, 11
s_lshl_b32 s51, s{sBLK}, 3
s_add_u32 s50, s50, s51
s_add_u32 s53, s53, s51
s_lshl_b32 s50, s50, 7
s_lshl_b32 s53, s53, 7
s_add_u32 s50, s50, 32768
s_add_u32 s53, s53, 32768
s_mul_i32 s51, s{sS}, 11
s_lshr_b32 s51, s51, 1
s_add_u32 s52, s51, 5
s_min_u32 s52, s52, 15
v_and_b32 v26, 15, v1
v_max_u32 v26, s51, v26
v_min_u32 v26, s52, v26
v_mov_b32 v27, s50
v_mov_b32 v28, s53
v_cmp_gt_u32 vcc, 16, v1
s_nop 1
v_cndmask_b32 v27, v28, v27, vcc
v_lshl_add_u32 v26, v26, 2, v27
v_mov_b32 v27, s90
""")
        pub = I("s_barrier"); pub.uses = {("ostore", 0), ("v", 25)}
        P.ext([pub])
        fs = I("buffer_store_dword v25, v27, s[72:75], 0 offen sc1"); fs.kind = "misc"
        P(f"v_cmp_eq_u32 vcc, 0, v25\ns_cbranch_vccnz {name}_nonce\n{name}_nb:\nv_mov_b32 v23, v25\ns_cmp_lg_u32 s{sW}, 0\ns_cbranch_scc1 {name}_od\ns_mov_b64 exec, 1")
        P.ext([fs])
        P(f"s_mov_b64 exec, -1\ns_mov_b32 s78, 0\n{name}_ow:")
        pl = I("buffer_load_dword v24, v26, s[72:75], 0 offen sc1"); pl.kind = "misc"; pl.defs = set()
        P.ext([pl])
        w0 = I("s_waitcnt vmcnt(0)"); w0.kind = "misc"
        P.ext([w0])
        P(f"""v_cmp_ne_u32 vcc, v25, v24
s_add_u32 s78, s78, 1
s_cmp_lt_u32 s78, 0x40000
s_cbranch_scc0 {name}_od
s_cbranch_vccnz {name}_ow
{name}_od:
s_barrier""")
        stamp(P, 16, STAMP)
        for g in range(2 * KS): P.ext(flat(bload(g)))
        polls(f"""{name}_nonce:
s_mov_b32 s78, 0
{name}_nl:
v_mov_b32 v24, 0
buffer_load_dword v25, v24, s[92:95], 0 offen sc1
s_waitcnt vmcnt(0)
v_cmp_eq_u32 vcc, 0, v25
s_add_u32 s78, s78, 1
s_cmp_lt_u32 s78, 0x40000
s_cbranch_scc0 {name}_nb
s_cbranch_vccnz {name}_nl
s_branch {name}_nb
{name}_notile:
s_waitcnt vmcnt(0) lgkmcnt(0)
s_add_u32 s72, s10, {FOFF}
s_addc_u32 s73, s11, 0
s_mov_b32 s74, 65536
s_mov_b32 s75, 0x00020000
v_mov_b32 v27, s90
s_barrier
s_cmp_lg_u32 s91, 0
s_cbranch_scc1 {name}_done
s_mov_b32 s78, 0
{name}_ntl:
v_cmp_ne_u32 vcc, 0, v25
s_cbranch_vccnz {name}_nts
v_mov_b32 v24, 0
buffer_load_dword v25, v24, s[92:95], 0 offen sc1
s_waitcnt vmcnt(0)
s_add_u32 s78, s78, 1
s_cmp_lt_u32 s78, 0x40000
s_cbranch_scc1 {name}_ntl
{name}_nts:
s_mov_b64 exec, 1
buffer_store_dword v25, v27, s[72:75], 0 offen sc1
s_endpgm""")
    P.ext([barrier(0)])
    for G in range(LA):
        for mt in range(4):
            for half in range(2): P.ext([aread(G, mt, half)])
    stamp(P, 1 if not FUSED else 17, STAMP)
    code = P.L
    NG = NU * KS
    lq = []
    for v in range(NU):
        p_, k_ = units[v]
        if v >= max(2, NPRE): lq += [(v, gr) for gr in dma(v)]
        if p_ == 0 and k_ >= 2:
            for g in range(KS * k_, KS * k_ + KS): lq += [(v, gr) for gr in bload(g)]
    gap_carry = 0
    def sends(p):
        o = []
        for i in range(4):
            c = ACC[p] + 8 * i
            for q in range(4): o.append([I(f"v_cvt_pk_bf16_f32 v{c+q}, v{c+2*q}, v{c+2*q+1}")])
            d = I(f"buffer_store_dwordx4 v[{c}:{c+3}], v{vLane16}, s[68:71], s{63+p} offen offset:{1024*i} sc1")
            d.defs = {("sent", p)}
            o.append([d])
        return o
    def recvs():
        o = []
        for sl in range(2):
            for i in range(4):
                o.append([I(f"buffer_load_dwordx4 a[{16*sl+4*i}:{16*sl+4*i+3}], v{vLane16}, s[68:71], s65 offen offset:{1024*i} sc1")])
            if sl == 0: o.append([I(f"s_add_u32 s65, s65, 16384")])
        return o
    flag_load = lambda: I(f"buffer_load_dword v24, v20, s[72:75], 0 offen sc1")
    def flag_check():
        polls(f"""{name}_poll:
s_mov_b32 s78, 0
{name}_pl:
buffer_load_dword v24, v20, s[72:75], 0 offen sc1
s_waitcnt vmcnt(0)
v_cmp_ne_u32 vcc, v23, v24
s_add_u32 s78, s78, 1
s_cmp_lt_u32 s78, 0x40000
s_cbranch_scc0 {name}_pb
s_cbranch_vccnz {name}_pl
s_branch {name}_pb""")
        return [I(f"v_cmp_ne_u32 vcc, v23, v24"), I(f"s_cbranch_vccnz {name}_poll"), I(f"{name}_pb:")]
    U2 = 2 * NST
    for u in range(NU):
        p, k = units[u]
        mf = []
        for ks in range(KS):
            G = KS * u + ks; g = KS * k + ks
            for mt in range(4):
                for nt in range(2):
                    c = R("v", ACC[p] + (mt * 2 + nt) * 4)
                    mf.append(m16(c, R("v", AF + 16 * (G % 4) + 4 * mt), Bf(g, nt), "0" if g == 0 else c))
        S = Sched2(mf)
        for ks in range(KS):
            Gn = KS * u + ks + LA
            if Gn >= NG: continue
            lo = 8 * ks
            if Gn % KS == 0:
                b = barrier(Gn // KS)
                pub = (u == U2 + FLAGST)
                if pub: b.uses |= {("sent", 0), ("sent", 1)}
                S.put(lo, b)
                if pub:
                    fs = I(f"buffer_store_dword v23, v22, s[72:75], 0 offen sc1")
                    fs.kind = "misc"
                    S.put(lo + 1, [I(f"s_cmp_lg_u32 s{sW}, 0"), I(f"s_cbranch_scc1 {name}_nf"), I("s_mov_b64 exec, 1"),
                                   fs, I("s_mov_b64 exec, -1"), I(f"{name}_nf:")])
            n = 0
            for mt in range(4):
                for half in range(2):
                    S.put(lo + n, aread(Gn, mt, half)); n += 1
        gp = gap_carry
        while gp < 32 and lq:
            v, gr = lq[0]
            if v - NSL > u or v > u + LOOKU: break
            if v - NSL == u and gp <= 8 * (KS - LA): gp = 8 * (KS - LA) + 1
            lq.pop(0)
            S.put(gp, gr)
            if any(is_mem(i_) for i_ in gr): gp += PACE
        gap_carry = max(0, gp - 32)
        items = []
        if u == U2 + RX: items += [[flag_load()]]
        if u == U2 + RX + 1: items += [flag_check()] + recvs()
        if items: spaced(S, items, 2, 31, 3)
        if u > 0 and units[u - 1][1] == NST - 1 and units[u - 1][0] < 2:
            S.stream(sends(units[u - 1][0]), 4, 31)
        code += S.emit()
        if STAMP and u == U2 - 1 and not FUSED:
            T_ = Prog(); stamp(T_, 4, True); stamp(T_, 5, True); code += T_.L
    E = Prog()
    stamp(E, 2 if not FUSED else 18, STAMP)
    E(f"s_mov_b32 s50, {16*2304}\ns_mov_b32 s51, 0xffff0000\ns_nop 7")
    for i in range(8):
        mt, nt = i // 2, i % 2
        c = ACC[2] + i * 4
        for sl in range(2):
            for h in range(2):
                t = 96 + 16 * i + 8 * sl + 4 * h
                E(f"v_accvgpr_read_b32 v{t}, a{16*sl + 2*i + h}")
        for sl in range(2):
            for h in range(2):
                t = 96 + 16 * i + 8 * sl + 4 * h
                E(f"v_lshlrev_b32 v{t+1}, 16, v{t}\nv_and_b32 v{t+2}, s51, v{t}")
        for sl in range(2):
            for h in range(2):
                t = 96 + 16 * i + 8 * sl + 4 * h
                E(f"v_add_f32 v{c+2*h}, v{c+2*h}, v{t+1}\nv_add_f32 v{c+2*h+1}, v{c+2*h+1}, v{t+2}")
        t = 64 + 2 * i
        E(f"v_cvt_pk_bf16_f32 v{t}, v{c}, v{c+1}\nv_cvt_pk_bf16_f32 v{t+1}, v{c+2}, v{c+3}")
        E(f"buffer_store_dwordx2 v[{t}:{t+1}], v{vOut}, s[40:43], {'0' if nt == 0 else 's50'} offen offset:{32*mt}{(' ' + os.environ['OUTFLAG']) if os.environ.get('OUTFLAG') else ''}")
    if STAMP:
        E("s_waitcnt vmcnt(0)")
        if FUSED:
            stamp(E, 19, True)
            stamp_store(E, 5, sW, 10, (0, 0))
        else:
            stamp(E, 3, True)
            E("s_add_u32 s10, s10, 0x100000\ns_addc_u32 s11, s11, 0")
            stamp_store(E, 6 if not os.environ.get("DBG") else 4, sW, 10, (0, 32))
    E(f"{name}_done:\ns_endpgm")
    EXP = os.environ.get("EXP2", "").split(",")
    if "nosend" in EXP: code = [i for i in code if not (i.kind == "vstore")]
    if "norecv" in EXP: code = [i for i in code if not ("sc1" in i.text and i.kind == "vload") and "poll" not in i.text]
    if "nobar" in EXP: code = [i for i in code if i.kind != "barrier"]
    if "nomfma" in EXP: code = [i for i in code if i.kind != "mfma"]
    if "nob" in EXP: code = [i for i in code if not (i.kind == "vload" and "sc1" not in i.text and "buffer" in i.text)]
    if "nods" in EXP: code = [i for i in code if i.kind != "dsr"]
    if FUSED: return [("k2main", code), ("k2end", E.L)], polls
    out, full, nfix = resolve_all2([("main", code), ("end", E.L)])
    for m_ in check_hazards(full, name)[:10]: print(m_)
    if verbose: print("k2r est", est_code(out["main"]), "ideal", 3 * NK * 128, "nops", nfix)
    text = "\n".join(str(i) for key in ("main", "end") for i in out[key]) + "\n" + polls.text()
    launch = f"; @launch kernel={name} grid=(256,1,1) block=(256,1,1) lds={NSL*16384}"
    return launch, text, kd(name, 512, 256, 102)

if __name__ == "__main__":
    out = sys.argv[1]
    st = bool(os.environ.get("STAMP"))
    kw = {}; kw2 = {}
    if "KVFLAG" in os.environ: kw["KVFLAG"] = os.environ["KVFLAG"]
    for k_ in ("MAPPING", "ROT", "TOUCH", "WOT", "TD", "KROT", "DLATE", "DSTEP", "DIST", "CPF", "SOFT", "VSUM", "NPRO", "KV0AT", "GMAJ", "PEEL", "QSTEP", "LATEKV", "KV2D", "TLBW", "THIN", "TS0", "PAIR"):
        if k_ in os.environ: kw[k_] = int(os.environ[k_])
    for k_ in ("FLAGST", "LA", "RX", "LEAD", "LOOKU", "PACE", "PERM"):
        if k_ in os.environ: kw2[k_] = int(os.environ[k_])
    write(out, [gen_k1(STAMP=st, ZFLAG=FOFF, **kw), gen_k2r(STAMP=st, **kw2)], HEADER)
```

```python
import re

REG_RE = re.compile(r'\b([vas])\[(\d+):(\d+)\]|\b([vas])(\d+)\b|\b(vcc|exec|m0|scc)\b')

def regs_of(text):
    out = []
    for m in REG_RE.finditer(text):
        if m.group(1):
            out += [(m.group(1), i) for i in range(int(m.group(2)), int(m.group(3)) + 1)]
        elif m.group(4):
            out.append((m.group(4), int(m.group(5))))
        else:
            out.append((m.group(6), 0))
    return out

TRANS = ("v_exp_f32", "v_log_f32", "v_rcp_f32", "v_rsq_f32", "v_sqrt_f32", "v_sin_f32", "v_cos_f32")

class I:
    __slots__ = ("text", "op", "defs", "uses", "kind", "srcc", "passes", "tag", "srcab")
    def __init__(self, text, tag=None):
        self.text = text.strip()
        self.tag = tag
        t = self.text.split(";")[0].strip()
        self.defs = set(); self.uses = set(); self.srcc = set(); self.srcab = set(); self.passes = 0
        if not t or t.endswith(":") or t.startswith("."):
            self.op = ""; self.kind = "label"; return
        parts = t.split(None, 1)
        op = parts[0]; self.op = op
        rest = parts[1] if len(parts) > 1 else ""
        ops = [o.strip() for o in rest.split(",")] if rest else []
        R = [regs_of(o) for o in ops]
        allr = lambda lst: set(r for x in lst for r in x)
        if op.startswith("v_mfma"):
            self.kind = "mfma"
            self.defs = set(R[0]); self.srcab = set(R[1]) | set(R[2]); self.srcc = set(R[3])
            self.uses = self.srcab | self.srcc
            self.passes = 8 if "32x32x16" in op else (4 if "16x16x32" in op else (2 if "4x4x4" in op else 16))
        elif op.startswith("ds_read") :
            self.kind = "dsr"; self.defs = set(R[0]); self.uses = allr(R[1:])
        elif op.startswith("ds_bpermute") or op.startswith("ds_permute") or op.startswith("ds_swizzle"):
            self.kind = "dsr"; self.defs = set(R[0]); self.uses = allr(R[1:])
        elif op.startswith("ds_write"):
            self.kind = "dsw"; self.uses = allr(R)
        elif op.startswith("buffer_load") or op.startswith("global_load"):
            if re.search(r'\blds\b', rest) or "_lds_" in op:
                self.kind = "dma"; self.uses = allr(R) | {("m0", 0)}
            else:
                self.kind = "vload"; self.defs = set(R[0]); self.uses = allr(R[1:])
        elif op.startswith("buffer_store") or op.startswith("global_store"):
            self.kind = "vstore"; self.uses = allr(R)
        elif op.startswith("buffer_atomic") or op.startswith("global_atomic"):
            self.kind = "vstore"; self.uses = allr(R)
        elif op.startswith("s_load") or op.startswith("s_memtime") or op.startswith("s_memrealtime"):
            self.kind = "smem"; self.defs = set(R[0]); self.uses = allr(R[1:])
        elif op == "s_waitcnt": self.kind = "wait"
        elif op == "s_barrier": self.kind = "barrier"
        elif op == "s_nop": self.kind = "nop"
        elif op.startswith("s_cbranch") or op == "s_branch" or op == "s_endpgm" or op == "s_setprio" or op == "s_sleep":
            self.kind = "branch" if "branch" in op else "misc"
            if "vcc" in op: self.uses = {("vcc", 0)}
            if "scc" in op: self.uses = {("scc", 0)}
        elif op.startswith("s_cmp"):
            self.kind = "salu"; self.uses = allr(R); self.defs = {("scc", 0)}
        elif op.startswith("s_"):
            self.kind = "salu"; self.defs = set(R[0]) if R else set(); self.uses = allr(R[1:])
            if "saveexec" in op: self.defs |= {("exec", 0)}
            if op.startswith("s_cselect") or op.startswith("s_addc"): self.uses |= {("scc", 0)}
            if not op.startswith("s_mov") and not op.startswith("s_cselect"): self.defs |= {("scc", 0)}
        elif op.startswith("v_"):
            self.kind = "valu"
            if op.startswith("v_permlane") and "swap" in op:
                self.defs = set(R[0]) | set(R[1]); self.uses = set(self.defs)
            elif op.startswith("v_cmp"):
                self.defs = set(R[0]); self.uses = allr(R[1:])
            elif op.startswith("v_add_co") or op.startswith("v_sub_co") or op.startswith("v_addc_co"):
                self.defs = set(R[0]) | set(R[1]); self.uses = allr(R[2:])
            else:
                self.defs = set(R[0]); self.uses = allr(R[1:])
                if op.startswith("v_fmac") or op.startswith("v_pk_fmac"): self.uses |= self.defs
                if op.startswith("v_cndmask") and len(ops) == 3: self.uses |= {("vcc", 0)}
        else:
            raise ValueError("unknown instruction: " + text)
    def states(self):
        if self.kind == "label": return 0
        if self.kind == "nop": return int(self.text.split()[1], 0) + 1
        return 1
    def __str__(self):
        return self.text if self.kind == "label" else "  " + self.text

def parse_wait(ins):
    vm = re.search(r'vmcnt\((\d+)\)', ins.text); lg = re.search(r'lgkmcnt\((\d+)\)', ins.text)
    return (int(vm.group(1)) if vm else None, int(lg.group(1)) if lg else None)

def auto_wait(seq, init_lgkm=None, init_vm=None):
    lg = list(init_lgkm or [])
    vm = list(init_vm or [])
    need = {}
    for idx, ins in enumerate(seq):
        if ins.kind == "label": continue
        if ins.kind == "wait":
            v, l = parse_wait(ins)
            if v is not None: vm = vm[len(vm) - v:] if v < len(vm) else vm
            if l is not None: lg = lg[len(lg) - l:] if l < len(lg) else lg
            if v == 0: vm = []
            if l == 0: lg = []
            continue
        touched = ins.uses | {r for r in ins.defs if r[0] in ('v','a','s')}
        nl = nv = None
        for k in range(len(lg) - 1, -1, -1):
            if lg[k] & touched:
                nl = len(lg) - 1 - k; break
        for k in range(len(vm) - 1, -1, -1):
            if vm[k] & touched:
                nv = len(vm) - 1 - k; break
        if nl is not None or nv is not None:
            need[idx] = (nv, nl)
            if nl is not None: lg = lg[len(lg) - nl:] if nl else []
            if nv is not None: vm = vm[len(vm) - nv:] if nv else []
        if ins.kind in ("dsr", "dsw"): lg.append(set(ins.defs))
        elif ins.kind == "smem": lg.append(set(ins.defs)); lg.append(set(ins.defs))
        elif ins.kind in ("vload", "dma", "vstore"): vm.append(set(ins.defs))
    return need, lg, vm

def wait_ins(nv, nl):
    s = "s_waitcnt"
    if nv is not None: s += f" vmcnt({min(nv,63)})"
    if nl is not None: s += f" lgkmcnt({min(nl,15)})"
    return I(s)

def apply_waits(seq, need):
    out = []
    for idx, ins in enumerate(seq):
        if idx in need: out.append(wait_ins(*need[idx]))
        out.append(ins)
    return out

def merge_need(a, b):
    out = dict(a)
    for k, (v, l) in b.items():
        if k in out:
            v0, l0 = out[k]
            v = v if v0 is None else (v0 if v is None else min(v, v0))
            l = l if l0 is None else (l0 if l is None else min(l, l0))
        out[k] = (v, l)
    return out

def waits_linear(seq):
    need, _, _ = auto_wait(seq)
    return apply_waits(seq, need)

def waits_loop(pre, body, post):
    n0, lg, vm = auto_wait(pre)
    pre2 = apply_waits(pre, n0)
    need = {}
    for _ in range(6):
        b2 = apply_waits(body, need)
        idxmap = []
        for idx, ins in enumerate(body):
            if idx in need: idxmap.append(None)
            idxmap.append(idx)
        n1, lg1, vm1 = auto_wait(b2, lg, vm)
        n2, lg2, vm2 = auto_wait(apply_waits(b2, n1), lg1, vm1)
        if not n1 and not n2: break
        add = {}
        for k, v in n1.items(): add[idxmap[k]] = v
        if not n1:
            for k, v in n2.items(): add[idxmap[k]] = v
        need = merge_need(need, add)
    else:
        raise RuntimeError("waits_loop did not converge")
    b2 = apply_waits(body, need)
    _, lgA, vmA = auto_wait(b2, lg, vm)
    _, lgB, vmB = auto_wait(b2, lgA, vmA)
    nA, _, _ = auto_wait(post, lgA, vmA)
    nB, _, _ = auto_wait(post, lgB, vmB)
    post2 = apply_waits(post, merge_need(nA, nB))
    return pre2, b2, post2

def check_hazards(seq, name=""):
    msgs = []
    n = len(seq)
    for i, p in enumerate(seq):
        if p.kind in ("label",): continue
        dist = 0
        for j in range(i + 1, min(n, i + 40)):
            c = seq[j]
            if c.kind == "label": continue
            req = 0; why = ""
            vdefs = {r for r in p.defs if r[0] in "va"}
            sdefs = {r for r in p.defs if r[0] == "s" or r[0] == "vcc"}
            if p.kind == "valu":
                if c.kind == "mfma" and (vdefs & c.uses): req, why = 2, "valu->mfma"
                if c.kind == "valu" and c.op.startswith("v_permlane") and (vdefs & c.uses): req, why = max(req, 2), "valu->permlane"
                if c.kind == "valu" and (c.op.startswith("v_readfirstlane") or c.op.startswith("v_readlane")) and (vdefs & c.uses): req, why = max(req, 1), "valu->readlane"
                if p.op in TRANS and c.kind in ("valu", "mfma", "vstore", "dsw") and c.op not in TRANS and (vdefs & c.uses): req, why = max(req, 1), "trans->valu"
                if sdefs and c.kind == "valu" and (sdefs & c.uses): req, why = max(req, 2), "valu sgpr->valu"
                if sdefs and c.kind in ("vload", "dma", "vstore") and (sdefs & c.uses): req, why = max(req, 5), "valu sgpr->vmem"
                if ("exec", 0) in p.defs and c.kind == "mfma": req, why = max(req, 4), "exec->mfma"
                if "dpp" in c.text and (vdefs & c.uses): req, why = max(req, 2), "valu->dpp"
            if p.kind == "mfma":
                tbl = {2: 5, 4: 8, 8: 12, 16: 20}[p.passes]
                if c.kind == "mfma":
                    if p.defs & c.srcab: req, why = tbl, "mfma D->mfma AB"
                    if p.defs & c.srcc:
                        if p.defs == c.srcc and p.passes == c.passes:
                            r2 = 2 if p.passes == 2 else 0
                        else: r2 = {2: 4, 4: 6, 8: 10, 16: 18}[p.passes]
                        if r2 > req: req, why = r2, "mfma D->mfma C overlap"
                    elif p.defs & c.defs:
                        r2 = {2: 4, 4: 6, 8: 10, 16: 18}[p.passes]
                        if r2 > req: req, why = r2, "mfma D->mfma D waw"
                elif c.kind in ("valu", "dsr", "dsw", "vload", "vstore", "dma"):
                    if p.defs & (c.uses | c.defs): req, why = tbl, "mfma D->valu/mem"
                    if c.kind in ("valu", "dsr", "vload") and (p.srcc & c.defs):
                        r2 = {2: 1, 4: 3, 8: 7, 16: 15}[p.passes]
                        if r2 > req: req, why = r2, "mfma C WAR"
            if p.kind == "salu" and ("m0", 0) in p.defs and c.kind == "dma": req, why = max(req, 1), "m0->dma"
            if p.kind == "vstore" and ("x4" in p.op or "x3" in p.op):
                data = set(regs_of(p.text.split(None,1)[1].split(",")[0 if p.op.startswith("buffer") else 1]))
                if data & c.defs: req, why = max(req, 2 if c.kind == "valu" else 1), "store data WAR"
            if req > dist:
                msgs.append(f"{name}: hazard {why}: need {req} have {dist}: [{i}] {p.text}  ->  [{j}] {c.text}")
            dist += c.states()
            if dist > 20: break
    return msgs

class Prog:
    def __init__(self): self.L = []
    def __call__(self, text, tag=None):
        for line in text.strip().split("\n"):
            line = line.strip()
            if line: self.L.append(I(line, tag))
        return self
    def ext(self, lst): self.L.extend(lst)
    def text(self): return "\n".join(str(i) for i in self.L)

def cost(ins):
    if ins.kind == "label": return 0
    if ins.op in TRANS: return 8
    if ins.kind == "mfma": return 8
    return 4

def interleave(mfmas, fillers, start=0, budget=24):
    raise NotImplementedError

def resolve_waits(instances):
    need = {}
    for key, _ in instances: need.setdefault(key, {})
    for _ in range(12):
        lg, vm = [], []
        changed = False
        for key, code in instances:
            nd = need[key]
            c2 = apply_waits(code, nd)
            idxmap = []
            for idx in range(len(code)):
                if idx in nd: idxmap.append(None)
                idxmap.append(idx)
            n1, lg, vm = auto_wait(c2, lg, vm)
            if n1:
                changed = True
                need[key] = merge_need(nd, {idxmap[k]: v for k, v in n1.items()})
        if not changed: break
    else:
        raise RuntimeError("resolve_waits did not converge")
    out = {}; full = []
    for key, code in instances:
        c2 = apply_waits(code, need[key])
        if key not in out: out[key] = c2
        else:
            assert [i.text for i in out[key]] == [i.text for i in c2], f"loop instances differ in text for {key}"
        full += c2
    return out, full

class Sched:
    def __init__(self, mfmas, budget):
        self.m = mfmas; self.g = [[] for _ in mfmas]; self.budget = budget
    def c(self, i): return sum(cost(x) for x in self.g[i])
    def put(self, i, ins):
        if isinstance(ins, str): ins = [I(x) for x in ins.strip().split("\n")]
        elif isinstance(ins, I): ins = [ins]
        self.g[i].extend(ins); return i
    def place(self, ins, lo, hi):
        if isinstance(ins, str): ins = [I(x) for x in ins.strip().split("\n")]
        elif isinstance(ins, I): ins = [ins]
        need = sum(cost(x) for x in ins)
        hi = min(hi, len(self.m) - 1); lo = max(lo, 0)
        assert lo <= hi, (lo, hi, ins[0].text)
        for i in range(lo, hi + 1):
            if self.c(i) + need <= self.budget: return self.put(i, ins)
        best = min(range(lo, hi + 1), key=lambda i: (self.c(i), i))
        return self.put(best, ins)
    def stream(self, items, lo, hi):
        for it in items:
            lo = self.place(it, lo, hi)
        return lo
    def emit(self):
        out = []
        for m, g in zip(self.m, self.g):
            out.append(m); out.extend(g)
        return out
    def est(self, per):
        return sum(max(per, 8 + self.c(i)) for i in range(len(self.m)))

def hazard_list(seq):
    res = []
    for m in check_hazards(seq):
        mm = re.search(r"need (\d+) have (\d+): \[(\d+)\].*->  \[(\d+)\]", m)
        res.append((int(mm.group(3)), int(mm.group(4)), int(mm.group(1)) - int(mm.group(2))))
    return res

def resolve_all(instances):
    inst = [(k, list(c)) for k, c in instances]
    nfix = 0
    for _ in range(20):
        out, full = resolve_waits(inst)
        hz = hazard_list(full)
        if not hz: return out, full, nfix
        fixes = {}
        pos = 0; owner = []
        for n, (key, code) in enumerate(inst):
            ln = len(out[key])
            owner.append((pos, pos + ln, n)); pos += ln
        for (i, j, miss) in hz:
            for (a, b, n) in owner:
                if a <= j < b:
                    key, code = inst[n]
                    obj = full[j]
                    idx = next(x for x, o in enumerate(code) if o is obj)
                    fixes[(key, idx)] = max(fixes.get((key, idx), 0), miss)
        bykey = {}
        for (key, idx), miss in fixes.items(): bykey.setdefault(key, []).append((idx, miss))
        for key, lst in bykey.items():
            lst.sort()
            chosen = []; last = -100
            for idx, miss in lst:
                if idx - last > 12: chosen.append((idx, miss)); last = idx
            for n, (k2, code) in enumerate(inst):
                if k2 == key:
                    for idx, miss in sorted(chosen, reverse=True):
                        code.insert(idx, I(f"s_nop {miss-1}"))
            nfix += len(chosen)
    raise RuntimeError("hazard fixing did not converge")

def is_scalar(i): return i.kind in ("salu", "wait", "nop", "misc", "barrier", "smem")
def is_mem(i): return i.kind in ("dsr", "dsw", "dma", "vload", "vstore")

def gap_over(g):
    g = [i for i in g if i.kind != "label"]
    port = 0; pen = 0; seen_valu = False; nmem = 0
    for n, i in enumerate(g):
        if is_scalar(i):
            st = i.states() if i.kind == "nop" else 1
            port += st - (1 if n == 0 else 0)
        elif i.kind == "branch": port += 2; pen += 2
        elif is_mem(i):
            port += 1; nmem += 1
            if seen_valu: pen += 8
            if nmem > 1: pen += 4
        else:
            seen_valu = True
            port += 2 if i.op in TRANS else (5 if i.op.startswith("v_pk_") else 1)
    return max(0, port - 2) * 4 + pen

def dep(a, b):
    return bool((a.defs & (b.uses | b.defs)) or (a.uses & b.defs))

def order_gap(groups):
    def rank(gr):
        k = [i for i in gr if i.kind != "label"]
        if not k: return 3
        if any(i.kind == "branch" for i in k): return 0
        if all(is_scalar(i) for i in k): return 0
        if any(is_mem(i) for i in k): return 1
        return 2
    out = []
    for gr in groups:
        pos = len(out)
        r = rank(gr)
        while pos > 0 and rank(out[pos - 1]) > r and rank(out[pos-1]) != 3 and not any(dep(a, b) for a in out[pos - 1] for b in gr) \
                and not any(x.kind in ("barrier", "branch") for x in gr + out[pos - 1]):
            pos -= 1
        out.insert(pos, gr)
    return out

class Sched2:
    def __init__(self, mfmas):
        self.m = mfmas; self.g = [[] for _ in mfmas]
    @staticmethod
    def norm(ins):
        if isinstance(ins, str): return [I(x) for x in ins.strip().split("\n")]
        if isinstance(ins, I): return [ins]
        return list(ins)
    def flat(self, groups): return [i for gr in order_gap(groups) for i in gr]
    def over(self, i, extra=None):
        return gap_over(self.flat(self.g[i] + ([extra] if extra else [])))
    def put(self, i, ins):
        self.g[i].append(self.norm(ins)); return i
    def place(self, ins, lo, hi, late=False):
        ins = self.norm(ins)
        hi = min(hi, len(self.m) - 1); lo = max(lo, 0)
        assert lo <= hi, (lo, hi, ins[0].text)
        rng = range(hi, lo - 1, -1) if late else range(lo, hi + 1)
        best = min(rng, key=lambda i: self.over(i, ins) - self.over(i))
        return self.put(best, ins)
    def stream(self, items, lo, hi):
        for it in items: lo = self.place(it, lo, hi)
        return lo
    def emit(self):
        out = []
        for m, g in zip(self.m, self.g):
            out.append(m); out.extend(self.flat(g))
        return out
    def est(self, per=16):
        return sum(per + self.over(i) for i in range(len(self.m)))

def hoist_waits(code):
    code = list(code)
    i = 0
    while i < len(code) - 1:
        w = code[i]
        if w.kind == "wait" and code[i + 1].kind == "mfma":
            v, l = parse_wait(w)
            p = i
            ok = True
            while p > 0 and code[p - 1].kind != "mfma":
                x = code[p - 1]
                if x.kind in ("label", "branch", "barrier", "smem"): ok = False; break
                if x.kind in ("dsr", "dsw") and l is not None:
                    if l == 0: ok = False; break
                    l -= 1
                if x.kind in ("vload", "dma", "vstore") and v is not None:
                    if v == 0: ok = False; break
                    v -= 1
                p -= 1
            if ok and p > 0 and p < i:
                del code[i]
                if code[p].kind == "wait":
                    v0, l0 = parse_wait(code[p])
                    v = v0 if v is None else (v if v0 is None else min(v, v0))
                    l = l0 if l is None else (l if l0 is None else min(l, l0))
                    code[p] = wait_ins(v, l)
                    continue
                code.insert(p, wait_ins(v, l))
        i += 1
    return code

def est_code(code, per=16):
    tot = 0; gap = None
    for i in code:
        if i.kind == "mfma":
            if gap is not None: tot += per + gap_over(gap)
            gap = []
        elif gap is not None: gap.append(i)
    if gap is not None: tot += per + gap_over(gap)
    return tot

def resolve_all2(instances, hoist=True):
    out, full = resolve_waits(instances)
    need_inst = []
    pos = 0
    for key, code in instances:
        ln = len(out[key])
        c = full[pos:pos + ln]; pos += ln
        need_inst.append((key, hoist_waits(c) if hoist else c))
    return resolve_all(need_inst)

def spaced(S, groups, lo, hi, step):
    cur = lo; nxt = lo
    for gi, gr in enumerate(groups):
        gr = Sched2.norm(gr)
        if any(i.kind in ("dma", "vload", "vstore") for i in gr):
            a = min(max(cur, nxt), hi)
            cur = S.place(gr, a, min(a + 2, hi))
            nxt = cur + step
        else:
            cur = S.place(gr, cur, min(max(cur, nxt), hi))
    return cur

def pair_mfmas(S, every, phase=0):
    n = 0
    for i in range(phase, len(S.m) - 1, every):
        fl = [x for gr in S.g[i] for x in gr]
        if not fl: continue
        if any(x.kind in ("label", "branch", "barrier") for x in fl): continue
        if any(dep(x, S.m[i + 1]) for x in fl): continue
        S.g[i + 1] = S.g[i] + S.g[i + 1]; S.g[i] = []
        n += 1
    return n

def group_mfmas(S, k):
    for i0 in range(0, len(S.m) - 1, k):
        for i in range(i0, min(i0 + k - 1, len(S.m) - 1)):
            fl = [x for gr in S.g[i] for x in gr]
            if not fl: continue
            if any(x.kind in ("label", "branch", "barrier") for x in fl): continue
            if any(dep(x, S.m[i + 1]) for x in fl): continue
            S.g[i + 1] = S.g[i] + S.g[i + 1]; S.g[i] = []
```

```python
import os, sys, math, struct
from asmlib import *

TS = 131072
KVT = 8704
KVS = 4 * KVT
XB = [2 * KVS, KVS]
WB = 98304
CSCALE = math.log2(math.e) / math.sqrt(128.0)
THRESH = 8.0

def f2u(x): return struct.unpack("<I", struct.pack("<f", x))[0]

def kd(name, vgpr, acc, sgpr=96):
    return f""".amdhsa_kernel {name}
  .amdhsa_next_free_vgpr {vgpr}
  .amdhsa_next_free_sgpr {sgpr}
  .amdhsa_accum_offset {acc}
  .amdhsa_group_segment_fixed_size 0
  .amdhsa_kernarg_size 104
  .amdhsa_user_sgpr_count 2
  .amdhsa_user_sgpr_kernarg_segment_ptr 1
  .amdhsa_system_sgpr_workgroup_id_x 1
.end_amdhsa_kernel"""

def R(kind, base, n=4): return f"{kind}[{base}:{base+n-1}]"

def m16(d, a, b, c):
    return I(f"v_mfma_f32_16x16x32_bf16 {d}, {a}, {b}, {c}")

STMAP = None
if os.environ.get("PSTAMP"): STMAP = {20: 1, 21: 2, 1: 3, 6: 4, 7: 5, 2: 6, 3: 7, 5: 8}
def stamp(P, idx, on):
    import gen
    if gen.STMAP is not None:
        if idx not in gen.STMAP: return
        idx = gen.STMAP[idx]
    if on: P(f"s_memtime s[{80+2*idx}:{81+2*idx}]\ns_waitcnt lgkmcnt(0)")

def stamp_store(E, nst, swave, sws, dbgoff=None):
    E("s_waitcnt vmcnt(0)\ns_memrealtime s[76:77]\ns_waitcnt lgkmcnt(0)")
    DBG = os.environ.get("DBG")
    if DBG:
        wg = int(DBG)
        E(f"""s_load_dwordx2 s[72:73], s[0:1], 88
s_waitcnt lgkmcnt(0)
s_add_u32 s72, s72, {dbgoff[0]}
s_addc_u32 s73, s73, 0
s_mov_b32 s74, 64
s_mov_b32 s75, 0x00020000
s_xor_b32 s70, s2, {wg}
s_or_b32 s70, s70, s{swave}
s_lshl_b32 s70, s70, 8
s_add_u32 s70, s70, {dbgoff[1]}
v_mov_b32 v14, s70
v_mbcnt_lo_u32_b32 v15, -1, 0
v_mbcnt_hi_u32_b32 v15, -1, v15
v_cmp_eq_u32 vcc, 0, v15
s_and_saveexec_b64 s[78:79], vcc""")
        for i in range(1, nst):
            E(f"s_sub_u32 s71, s{80+2*i}, s80\nv_mov_b32 v10, s71\nbuffer_store_dword v10, v14, s[72:75], 0 offen offset:{4*(i+1)}\ns_nop 1")
        E(f"v_mov_b32 v10, s76\nbuffer_store_dword v10, v14, s[72:75], 0 offen offset:4\ns_nop 1")
        E(f"v_mov_b32 v10, s98\nbuffer_store_dword v10, v14, s[72:75], 0 offen offset:0\ns_nop 1")
        return
    E(f"""s_add_u32 s72, s{sws}, 0x4000000
s_addc_u32 s73, s{sws+1}, 0
s_mov_b32 s74, 0x100000
s_mov_b32 s75, 0x00020000
s_lshl_b32 s70, s2, 8
s_lshl_b32 s71, s{swave}, 6
s_add_u32 s70, s70, s71
v_mov_b32 v14, s70
v_mbcnt_lo_u32_b32 v15, -1, 0
v_mbcnt_hi_u32_b32 v15, -1, v15
v_cmp_eq_u32 vcc, 0, v15
s_and_saveexec_b64 s[78:79], vcc""")
    for i in range(1, nst):
        E(f"s_sub_u32 s71, s{80+2*i}, s80\nv_mov_b32 v10, s71\nbuffer_store_dword v10, v14, s[72:75], 0 offen offset:{4*i}\ns_nop 1")
    E(f"v_mov_b32 v10, s76\nbuffer_store_dword v10, v14, s[72:75], 0 offen offset:60\ns_nop 1")
    E(f"v_mov_b32 v10, s98\nbuffer_store_dword v10, v14, s[72:75], 0 offen offset:56\ns_nop 1")

def gen_k1(name="attn_kernel", STAMP=False, KVFLAG="", MAPPING=1, ROT=0, TOUCH=0, TFLAG="", WOT=1, TD=2, PAIR=0, THIN=0, TLBW=0, LATEKV=0, KV2D=0, QSTEP=6, PEEL=0, GMAJ=0, NPRO=6, KV0AT=0, FUSED=0, ZFLAG=0, SOFT=0, VSUM=0, CPF=3, DIST=3, DLATE=0, DSTEP=5, KROT=0, PPS=4, TS0=5, TSTEP=3, TPK=1, verbose=True):
    sW = 40
    sBLK, sKVH, sBP, sBL, sHH = 41, 42, 43, 44, 45
    sWQoff, sXoff, sKVoff = 46, 47, 48
    sWQm0, sXm0, sKVm0 = 49, 50, 51
    sT0, sT1, sT2 = 52, 53, 54
    sCNT = 55
    sWrd, sXrd = 56, 57
    sTH = 58
    sC = 60
    sKd, sVd = 62, 63
    sKVw = 64
    sWQw = 65
    sK16, sKm48, sKKVS, sKm3KVS = 66, 67, 68, 69
    sT3, sT4 = 70, 71
    sWend, sXend, sTo = 72, 73, 74
    vTq, vTa, vDum = 13, 13, 0
    vTS = 18; sNC = 75
    assert SOFT or not VSUM
    SX, SWQ, SKV, SO = 24, 28, 32, 36
    vL = 1
    vKVd = [2, 3, 4, 5]
    vKa = 6; vVa = [7, 8, 9, 10]; vMX = 11; vT = 12; vF = 19
    vWa = list(range(20, 28)); vXa = [28, 29]; vWd = [14, 15, 16, 17]; vXd = [30, 31]
    ACC0 = 32
    def grp(g, nt): return ACC0 + (g * 7 + nt) * 8
    def acc(mt, nt): return grp(mt >> 1, nt) + 4 * (mt & 1)
    def Q(nt, g): return R("v", grp(g, nt))
    holes = [grp(g, nt) + 4 for g in range(4) for nt in range(7)] + [20, 24, 28]
    Kf = [[holes[4 * s + g] for g in range(4)] for s in range(2)]
    Vf = [holes[8 + d] for d in range(8)]
    Sb = [[holes[16 + 2 * b + s] for s in range(2)] for b in range(3)]
    Ci = [holes[22 + t] for t in range(7)]
    Pf = holes[29]
    Er = [holes[30] + i for i in range(4)] + [14, 15, 16, 17]
    VGAPS = [0, 1, 2, 3, 4, 5, 6, 8, 10, 12, 14, 15, 16, 17, 18, 19]
    KGAPS = [9, 11, 13, 15, 16, 18, 20, 22]
    sbuf = lambda t: 2 if t == 6 else (t & 1)
    def O(t, d): return R("a", (t * 8 + d) * 4)
    def Lr(t): return R("a", 224 + 4 * t)
    ONES = R("a", 252)
    def Af(i): return 4 * (i % 4)
    def Bf(par, nt): return 16 + (par * 7 + nt) * 4

    OFLAG = (' ' + os.environ['OFLAG']) if os.environ.get('OFLAG') else ''
    if FUSED: OFLAG = ' sc1'
    kvf = (" " + KVFLAG) if KVFLAG else ""

    P = Prog()
    P(f"""
.globl {name}
.p2align 8
.type {name},@function
{name}:
s_cmp_ge_u32 s2, 256
s_cbranch_scc1 {name}_done
s_load_dwordx8 s[4:11], s[0:1], 0
s_load_dwordx8 s[12:19], s[0:1], 40
s_load_dwordx2 s[20:21], s[0:1], 96
s_load_dwordx2 s[22:23], s[0:1], 32
s_load_dwordx2 s[76:77], s[0:1], 72
""")
    if STAMP: P("s_memtime s[80:81]\ns_memrealtime s[98:99]")
    P(f"""
v_lshrrev_b32 v10, 6, v0
v_and_b32 v{vL}, 63, v0
s_and_b32 s{sT0}, s2, 7
v_readfirstlane_b32 s{sW}, v10
s_lshr_b32 s{sT1}, s2, 3
s_lshr_b32 s{sBLK}, s{sT0}, 2
s_and_b32 s{sT0}, s{sT0}, 3
""")
    if MAPPING == 1:
        P(f"""
s_lshl_b32 s{sKVH}, s{sT0}, 2
s_and_b32 s{sT2}, s{sT1}, 3
s_add_u32 s{sKVH}, s{sKVH}, s{sT2}
s_lshr_b32 s{sBP}, s{sT1}, 2
""")
    elif MAPPING == 3:
        for m_ in range(48): assert (m_ * 52) >> 8 == m_ // 5 and (m_ * 43) >> 8 == m_ // 6
        P(f"""
s_lshl_b32 s{sT0}, s{sT0}, 5
s_add_u32 s{sT0}, s{sT0}, s{sT1}
s_mov_b32 s{sT1}, 0
s_mov_b32 s{sT2}, 0
s_mov_b32 s{sT3}, 52
s_mov_b32 s{sT4}, 5
s_cmp_ge_u32 s{sT0}, 40
s_cselect_b32 s{sT1}, 40, s{sT1}
s_cselect_b32 s{sT2}, 5, s{sT2}
s_cselect_b32 s{sT3}, 43, s{sT3}
s_cselect_b32 s{sT4}, 6, s{sT4}
s_cmp_ge_u32 s{sT0}, 88
s_cselect_b32 s{sT1}, 88, s{sT1}
s_cselect_b32 s{sT2}, 11, s{sT2}
s_cselect_b32 s{sT3}, 52, s{sT3}
s_cselect_b32 s{sT4}, 5, s{sT4}
s_sub_u32 s{sT0}, s{sT0}, s{sT1}
s_mul_i32 s{sBP}, s{sT0}, s{sT3}
s_lshr_b32 s{sBP}, s{sBP}, 8
s_mul_i32 s{sT4}, s{sBP}, s{sT4}
s_sub_u32 s{sT0}, s{sT0}, s{sT4}
s_add_u32 s{sKVH}, s{sT0}, s{sT2}
""")
    else:
        P(f"""
s_lshl_b32 s{sBP}, s{sT0}, 1
s_and_b32 s{sT2}, s{sT1}, 1
s_add_u32 s{sBP}, s{sBP}, s{sT2}
s_lshr_b32 s{sKVH}, s{sT1}, 1
""")
    P(f"""
s_lshr_b32 s{sBL}, s{sW}, 1
s_and_b32 s{sHH}, s{sW}, 1
""")
    if CPF:
        P(f"""
s_getpc_b64 s[96:97]
{name}_pc:
s_sub_u32 s96, s96, {name}_pc-{name}
s_subb_u32 s97, s97, 0
s_lshr_b32 s{sT0}, s2, 3
s_lshl_b32 s{sT0}, s{sT0}, 2
s_add_u32 s{sT0}, s{sT0}, s{sW}
s_lshl_b32 s{sT0}, s{sT0}, 9
v_lshl_add_u32 v13, v{vL}, 3, s{sT0}
s_mov_b32 s{sT0}, code_end-{name}-4
v_min_u32 v13, s{sT0}, v13
""")
    def code_touch():
        d = I(f"global_load_dword v{vDum}, v13, s[96:97]"); d.defs = set()
        return [[d]]
    P(f"""
v_lshrrev_b32 v10, 5, v{vL}
v_and_b32 v11, 31, v{vL}
s_lshl_b32 s{sT0}, s{sHH}, 3
v_lshlrev_b32 v12, 1, v10
v_or_b32 v12, s{sT0}, v12
v_xor_b32 v12, v12, v11
v_lshlrev_b32 v18, 13, v10
v_lshl_add_u32 v{vWd[0]}, v12, 4, v18
v_add_u32 v{vWd[2]}, {4*8192-2048}, v{vWd[0]}
v_xor_b32 v12, 4, v12
v_lshl_add_u32 v{vWd[1]}, v12, 4, v18
v_add_u32 v{vWd[1]}, {2*8192-1024}, v{vWd[1]}
v_add_u32 v{vWd[3]}, {4*8192-2048}, v{vWd[1]}
""")
    P(f"""
v_lshrrev_b32 v10, 3, v{vL}
v_mul_u32_u24 v10, 1152, v10
v_lshrrev_b32 v11, 4, v{vL}
v_and_b32 v12, 7, v{vL}
v_xor_b32 v11, v11, v12
s_lshl_b32 s{sT0}, s{sHH}, 2
v_xor_b32 v11, s{sT0}, v11
v_lshl_add_u32 v{vXd[0]}, v11, 4, v10
v_xor_b32 v11, 4, v11
v_lshl_add_u32 v{vXd[1]}, v11, 4, v10
""")
    krot_code = f"""s_lshr_b32 s{sT0}, s2, 3
s_mul_i32 s{sT0}, s{sT0}, 5
s_and_b32 s{sT1}, s2, 7
s_lshl_b32 s{sT1}, s{sT1}, 1
s_add_u32 s{sT0}, s{sT0}, s{sT1}
s_lshl_b32 s{sT1}, s{sBL}, 3
s_add_u32 s{sT0}, s{sT0}, s{sT1}
s_and_b32 s{sT0}, s{sT0}, 15
s_lshl_b32 s{sKVoff}, s{sT0}, 13""" if KROT else f"s_mov_b32 s{sKVoff}, 0"
    rot_code = f"""s_and_b32 s{sT0}, s{sKVH}, 3
s_lshl_b32 s{sT0}, s{sT0}, 1
s_add_u32 s{sT0}, s{sT0}, s{sBP}
s_cmp_ge_u32 s{sT0}, 9
s_cselect_b32 s{sT1}, 9, 0
s_sub_u32 s{sT0}, s{sT0}, s{sT1}
s_lshl_b32 s{sT1}, s{sT0}, 19
s_add_u32 s{sWQoff}, s{sWQoff}, s{sT1}
s_lshl_b32 s{sT1}, s{sT0}, 7
s_add_u32 s{sXoff}, s{sXoff}, s{sT1}""" if ROT else ""
    P(f"""
s_lshl_b32 s{sWQoff}, s{sW}, 16
s_lshl_b32 s{sT0}, s{sKVH}, 9
s_add_u32 s{sWQoff}, s{sWQoff}, s{sT0}
s_mul_i32 s{sXoff}, s{sW}, {56*1152}
s_lshl_b32 s{sWQm0}, s{sW}, 12
s_add_u32 s{sWQm0}, s{sWQm0}, {WB+32768}
s_mul_i32 s{sXm0}, s{sW}, {7*1024}
s_add_u32 s{sT0}, s{sXm0}, {XB[1]}
s_add_u32 s{sXm0}, s{sXm0}, {XB[0]}
s_xor_b32 s{sXrd}, s{sXm0}, s{sT0}
s_mul_i32 s{sKVm0}, s{sW}, {KVT}
s_add_u32 s{sWend}, s{sWQoff}, {576*8192}
s_add_u32 s{sXend}, s{sXoff}, 1152
{rot_code}
{krot_code}
s_mov_b32 s{sK16}, 16384
s_mov_b32 s{sKm48}, {(-3*16384) & 0xffffffff}
s_mov_b32 s{sKKVS}, {KVS}
s_mov_b32 s{sKm3KVS}, {(-3*KVS) & 0xffffffff}
s_mov_b32 s{sWQw}, 2
s_mov_b32 s{sKVw}, 0
s_waitcnt lgkmcnt(0)
s_cmp_eq_u32 s{sBLK}, 0
s_cselect_b64 s[4:5], s[4:5], s[12:13]
s_cselect_b64 s[6:7], s[6:7], s[14:15]
s_cselect_b64 s[8:9], s[8:9], s[16:17]
s_cselect_b64 s[10:11], s[10:11], s[18:19]
s_cselect_b64 s[22:23], s[22:23], s[76:77]
s_mul_i32 s{sT0}, s{sBP}, 258048
s_add_u32 s{SX}, s4, s{sT0}
s_addc_u32 s{SX+1}, s5, 0
s_mov_b32 s{SX+2}, 258048
s_mov_b32 s{SX+3}, 0x00020000
s_mov_b32 s{SWQ}, s10
s_mov_b32 s{SWQ+1}, s11
s_mov_b32 s{SWQ+2}, 4718592
s_mov_b32 s{SWQ+3}, 0x00020000
""")

    stamp(P, 20, STAMP and bool(os.environ.get("PSTAMP")))
    def flat(groups): return [i for g in groups for i in g]
    def dma_wq(stage):
        out = [[I(f"s_mov_b32 m0, s{sWQm0}"), I(f"s_add_u32 s{sWQw}, s{sWQw}, 1")]]
        for k in range(4):
            d = I(f"buffer_load_dwordx4 v{vWd[k]}, s[{SWQ}:{SWQ+3}], s{sWQoff} offen offset:{1024*k} lds")
            d.defs = {("wq", stage)}; out.append([d])
        out += [[I(f"s_add_u32 s{sWQoff}, s{sWQoff}, {32*8192}")],
                [I(f"s_and_b32 s{sWQw}, s{sWQw}, 3"),
                 I(f"s_cselect_b32 s{sT0}, s{sK16}, s{sKm48}")],
                [I(f"s_add_u32 s{sWQm0}, s{sWQm0}, s{sT0}")]]
        if ROT and stage % 2 == 1:
            out += [[I(f"s_cmp_ge_u32 s{sWQoff}, s{sWend}"), I(f"s_cselect_b32 s{sT0}, {576*8192}, 0")],
                    [I(f"s_sub_u32 s{sWQoff}, s{sWQoff}, s{sT0}")]]
        return out
    def dma_x(stage, part):
        out = [[I(f"s_add_u32 m0, s{sXm0}, {4096*part}")]]
        for i in (range(4) if part == 0 else range(4, 7)):
            d = I(f"buffer_load_dwordx4 v{vXd[i&1]}, s[{SX}:{SX+3}], s{sT1} offen offset:{1024*(i%4)} lds")
            d.defs = {("x", stage)}
            out.append([I(f"s_add_u32 s{sT1}, s{sXoff}, {i*9216 - 1024*(i%4)}"), d])
        if part == 1:
            out.append([I(f"s_add_u32 s{sXoff}, s{sXoff}, 128")])
            if ROT:
                out += [[I(f"s_cmp_ge_u32 s{sXoff}, s{sXend}"), I(f"s_cselect_b32 s{sT1}, 1152, 0")],
                        [I(f"s_sub_u32 s{sXoff}, s{sXoff}, s{sT1}")]]
            out.append([I(f"s_xor_b32 s{sXm0}, s{sXm0}, s{sXrd}")])
        return out
    def dma_kv(stage):
        out = []
        for half in range(2):
            out.append([I(f"s_add_u32 m0, s{sKVm0}, {4352*half}"),
                        I(f"s_add_u32 s{sKVw}, s{sKVw}, 1") if half == 0 else I(f"s_add_u32 s{sKVoff}, s{sKVoff}, 4096")])
            for k in range(4):
                d = I(f"buffer_load_dwordx4 v{vKVd[k]}, s[{SKV}:{SKV+3}], s{sKVoff} offen offset:{1088*k}{kvf} lds")
                d.defs = {("kv", stage)}; out.append([d])
        out += [[I(f"s_and_b32 s{sT0}, s{sKVw}, 3"), I(f"s_cselect_b32 s{sT0}, s{sKKVS}, s{sKm3KVS}")],
                [I(f"s_add_u32 s{sKVoff}, s{sKVoff}, 4096"), I(f"s_add_u32 s{sKVm0}, s{sKVm0}, s{sT0}")]]
        if KROT: out += [[I(f"s_and_b32 s{sKVoff}, s{sKVoff}, 0x1ffff")]]
        if stage >= DIST:
            out += [[I(f"s_cmp_eq_u32 s{sKVw}, 16"), I(f"s_cselect_b64 s[{SKV}:{SKV+1}], s[12:13], s[{SKV}:{SKV+1}]"),
                     I(f"s_cselect_b32 s{SKV+2}, {9216+192 if WOT else 0}, s{SKV+2}"), I(f"s_cselect_b32 s{sKVoff}, 0, s{sKVoff}")]]
        return out

    def kv0_piece():
        d = I(f"buffer_load_dwordx4 v{vKVd[0]}, s[{SKV}:{SKV+3}], s19 offen{kvf} lds"); d.defs = {("kv", 0)}
        o = [[I("s_mov_b32 m0, s17"), I("s_add_u32 s17, s17, 1088")], [d], [I("s_add_u32 s19, s19, 1024")]]
        if THIN:
            t = I(f"buffer_load_dword v{vDum}, v12, s[{SKV}:{SKV+3}], s18 offen offset:192"); t.defs = set()
            o[1].append(t)
            o.append([I(f"s_add_u32 s18, s18, {64 << THIN}")])
        return o
    tf = (" " + TFLAG) if TFLAG else ""
    def touch(vreg, step):
        d = I(f"buffer_load_dword v{vDum}, v{vreg}, s[{SKV}:{SKV+3}], s{sTo} offen{tf}")
        d.defs = set()
        return [[d], [I(f"s_add_u32 s{sTo}, s{sTo}, {step}")]]
    def qtouch():
        d = I(f"buffer_load_dword v{vDum}, v{vTq}, s[{SKV}:{SKV+3}], s{sTo} offen offset:192{tf}")
        d.defs = set()
        lg = {2: 1, 4: 2, 8: 3}[PPS]
        return [[I(f"s_lshr_b32 s{sTo}, s17, {lg}")], [I(f"s_mul_i32 s{sTo}, s{sTo}, {TSTEP*8192}")],
                [I(f"s_add_u32 s{sTo}, s{sTo}, s18")], [I(f"s_and_b32 s{sTo}, s{sTo}, 0x1ffff")],
                [I(f"s_and_b32 s19, s17, {PPS-1}")], [I(f"s_lshl_b32 s19, s19, {13-lg}")],
                [I(f"s_add_u32 s{sTo}, s{sTo}, s19"), d], [I("s_add_u32 s17, s17, 1")]]
    pre_list = [dma_wq(0), dma_x(0, 0), dma_x(0, 1), dma_wq(1), dma_x(1, 0), dma_wq(2)]
    for gl in pre_list[:NPRO]: P.ext(flat(gl))
    if CPF & 1: P.ext(flat(code_touch()))
    P(f"""
s_cmp_eq_u32 s{sHH}, 0
s_cselect_b64 s[6:7], s[6:7], s[8:9]
s_lshl_b32 s{sT0}, s{sBP}, 1
s_add_u32 s{sT0}, s{sT0}, s{sBL}
s_lshl_b32 s{sT1}, s{sT0}, 4
s_add_u32 s{sT1}, s{sT1}, s{sKVH}
s_lshl_b32 s{sT1}, s{sT1}, 17
s_add_u32 s{SKV}, s6, s{sT1}
s_addc_u32 s{SKV+1}, s7, 0
s_sub_u32 s{SKV}, s{SKV}, 192
s_subb_u32 s{SKV+1}, s{SKV+1}, 0
s_mov_b32 s{SKV+2}, {131072+192}
s_mov_b32 s{SKV+3}, 0x00020000
s_lshl_b32 s{sT1}, s{sBLK}, 4
s_add_u32 s{sT0}, s{sT0}, s{sT1}
s_mul_i32 s{sT0}, s{sT0}, {7*TS}
s_lshl_b32 s{sT1}, s{sKVH}, 1
s_add_u32 s{sT1}, s{sT1}, s{sHH}
s_lshl_b32 s{sT1}, s{sT1}, 12
s_add_u32 s{sT0}, s{sT0}, s{sT1}
s_add_u32 s{SO}, s20, s{sT0}
s_addc_u32 s{SO+1}, s21, 0
s_mov_b32 s{SO+2}, {6*TS+4096}
s_mov_b32 s{SO+3}, 0x00020000
v_lshrrev_b32 v10, 4, v{vL}
v_and_b32 v11, 1, v10
v_lshlrev_b32 v11, 1, v11
v_lshrrev_b32 v12, 1, v10
v_lshl_or_b32 v11, v12, 3, v11
s_cmp_eq_u32 s{sHH}, 0
s_cselect_b64 vcc, -1, 0
v_cndmask_b32 v11, v11, v10, vcc
v_and_b32 v12, 15, v{vL}
v_xor_b32 v11, v11, v12
v_lshlrev_b32 v11, 4, v11
v_lshl_add_u32 v11, v10, 8, v11
v_add_u32 v{vKVd[0]}, 192, v11
v_add_u32 v{vKVd[1]}, 128, v11
v_add_u32 v{vKVd[2]}, 64, v11
v_mov_b32 v{vKVd[3]}, v11
""")
    if TOUCH: P(f"v_lshlrev_b32 v{vTq}, {7 - {2: 1, 4: 2, 8: 3}[PPS]}, v{vL}\ns_mov_b32 s17, 0\ns_add_u32 s18, s{sKVoff}, {TS0*8192}")
    P(f"""
s_lshl_b32 s{sT0}, s{sKVH}, 3
s_add_u32 s{sT0}, s{sT0}, s{sBP}
s_lshl_b32 s{sT0}, s{sT0}, 2
s_add_u32 s{sT0}, s{sT0}, s{sW}
s_mul_i32 s{sT0}, s{sT0}, 9216
s_add_u32 s12, s22, s{sT0}
s_addc_u32 s13, s23, 0
s_sub_u32 s12, s12, 192
s_subb_u32 s13, s13, 0
""")
    P("s_mov_b32 s16, 0")
    if KV0AT < 0:
        assert not KROT and not TOUCH and not FUSED
        P(f"s_mov_b32 s17, s{sKVm0}\ns_mov_b32 s19, 0\ns_add_u32 s{sKVm0}, s{sKVm0}, {KVS}\ns_mov_b32 s{sKVoff}, 8192\ns_mov_b32 s{sKVw}, 1")
        if THIN: P(f"s_mov_b32 s18, {TS0*8192}\nv_lshlrev_b32 v12, {THIN}, v{vL}")
    if TLBW:
        P(f"s_mov_b32 s14, {9216+192}\ns_mov_b32 s15, 0x00020000\nv_mov_b32 v12, 192")
        for srd in ((SKV, 12, SO) if TLBW > 1 else (SKV,)):
            d = I(f"buffer_load_dword v{vDum}, v12, s[{srd}:{srd+3}], 0 offen"); d.defs = set(); P.ext([d])
    if FUSED:
        P(f"""
s_lshl_b32 s90, s{sBLK}, 3
s_add_u32 s90, s90, s{sBP}
s_lshl_b32 s90, s90, 7
s_lshl_b32 s{sT0}, s{sKVH}, 2
s_add_u32 s90, s90, s{sT0}
s_add_u32 s90, s90, 32768
s_mov_b32 s91, s{sW}
s_load_dwordx2 s[92:93], s[0:1], 88
s_memrealtime s[18:19]
s_waitcnt lgkmcnt(0)
s_mov_b32 s94, 256
s_mov_b32 s95, 0x00020000
s_or_b32 s{sT0}, s2, s{sW}
s_cmp_lg_u32 s{sT0}, 0
s_cbranch_scc1 {name}_nn
s_or_b32 s18, s18, 1
v_mov_b32 v10, s18
v_mov_b32 v11, 0
s_mov_b64 exec, 1""")
        ns_ = I("buffer_store_dword v10, v11, s[92:95], 0 offen sc1"); ns_.kind = "misc"
        P.ext([ns_])
        P(f"s_mov_b64 exec, -1\n{name}_nn:")
    def wo_touch():
        d = I(f"buffer_load_dword v{vDum}, v{vKVd[3]}, s[12:15], s16 offen"); d.defs = set()
        return [[d], [I("s_add_u32 s16, s16, 1024")]]
    P(f"""
v_lshrrev_b32 v32, 4, v{vL}
v_bfe_u32 v33, v{vL}, 2, 2
v_lshl_add_u32 v34, v32, 3, v33
v_lshlrev_b32 v34, 9, v34
v_and_b32 v35, 1, v32
v_lshl_or_b32 v35, v35, 2, v33
v_lshl_add_u32 v34, v35, 5, v34
v_and_b32 v35, 3, v{vL}
v_lshl_add_u32 v34, v35, 3, v34
s_lshl_b32 s{sT0}, s{sHH}, 8
s_add_u32 s{sT0}, s{sT0}, {WB+32768}
v_add_u32 v{vWa[0]}, s{sT0}, v34
""")
    for mt in range(1, 8): P(f"v_xor_b32 v{vWa[mt]}, {32*mt}, v{vWa[0]}")
    P(f"""
v_and_b32 v33, 15, v{vL}
v_lshrrev_b32 v34, 1, v33
v_xor_b32 v34, v34, v32
v_lshlrev_b32 v34, 4, v34
v_lshl_add_u32 v34, v33, 7, v34
s_mul_i32 s{sT0}, s{sBL}, {112*128}
s_add_u32 s{sT0}, s{sT0}, {XB[0]}
v_add_u32 v{vXa[0]}, s{sT0}, v34
v_xor_b32 v{vXa[1]}, 64, v{vXa[0]}
s_mov_b32 s{sC}, {f2u(CSCALE)}
s_mov_b32 s{sC+1}, {f2u(CSCALE)}
s_mov_b32 s{sNC}, {f2u(-CSCALE)}
s_mov_b32 s{sTH}, {f2u(THRESH / CSCALE if SOFT else THRESH)}
s_mov_b32 s{sCNT}, 0
""")

    P(f"""
v_and_b32 v36, 15, v{vL}
v_lshrrev_b32 v37, 4, v{vL}
v_lshrrev_b32 v38, 2, v36
v_and_b32 v39, 3, v36
v_mul_u32_u24 v40, 1088, v38
v_lshl_add_u32 v40, v39, 8, v40
v_xor_b32 v41, v37, v39
v_lshl_add_u32 v40, v41, 4, v40
s_mul_i32 s{sT0}, s{sBL}, {2*KVT}
v_add_u32 v{vKa}, s{sT0}, v40
""")
    P(f"""
v_mul_u32_u24 v40, 1088, v37
v_lshl_add_u32 v40, v38, 8, v40
v_lshl_add_u32 v40, v39, 3, v40
s_add_u32 s{sT0}, s{sT0}, {KVT}
v_add_u32 v40, s{sT0}, v40
v_and_b32 v41, 1, v38
v_lshrrev_b32 v36, 1, v38
v_lshl_or_b32 v41, v36, 2, v41
""")
    for u in range(4):
        pat = (u & 1) | ((u >> 1) << 2)
        P(f"v_xor_b32 v36, {pat}, v41\nv_lshl_add_u32 v{vVa[u]}, v36, 5, v40")
    P(f"s_mov_b32 s{sKd}, 0\ns_mov_b32 s{sVd}, 0")
    P(f"v_mov_b32 v36, 0x3f803f80\nv_mov_b32 v37, 0")
    for i in range(4): P(f"v_accvgpr_write_b32 a{252+i}, v36")
    for i in range(32): P(f"v_accvgpr_write_b32 a{6*32+i}, v37")
    for i in range(4): P(f"v_accvgpr_write_b32 a{224+24+i}, v37")

    def a_reads(ks, mt, slot=None):
        out = []
        for half in range(2):
            r = Af(mt if slot is None else slot) + 2 * half
            d = I(f"ds_read_b64_tr_b16 a[{r}:{r+1}], v{vWa[mt]} offset:{2048*half + 16384*(ks&1)}")
            d.defs |= {("wqrd", ks)}; out.append(d)
        return out
    def b_read(ks, nt):
        r = Bf(ks & 1, nt)
        d = I(f"ds_read_b128 a[{r}:{r+3}], v{vXa[ks&1]} offset:{2048*nt}")
        d.defs |= {("xrd", ks >> 1)}
        return d
    def qbarrier(i):
        b = I("s_barrier")
        b.uses = {("wq", i), ("wqrd", i - 1)}
        if i % 2 == 0: b.uses |= {("x", i // 2)}
        else: b.uses |= {("xrd", i // 2)}
        if i == 18: b.uses |= {("kv", 0)}
        if i == 16 and GMAJ: b.uses |= {("wq", 17)} | (set() if LATEKV else {("kv", 0)})
        return b

    stamp(P, 21, STAMP and bool(os.environ.get("PSTAMP")))
    P.ext([qbarrier(0)])
    P.ext(a_reads(0, 0)); P.ext([b_read(0, nt) for nt in range(7)]); P.ext(a_reads(0, 1))
    stamp(P, 1, STAMP)
    inst = [("pre", P.L)]

    def conv_group(g, nt, plain=False):
        r = grp(g, nt)
        o = []
        if not SOFT and plain:
            for q in range(8): o.append(I(f"v_mul_f32 v{r+q}, s{sC}, v{r+q}"))
        elif not SOFT:
            for q in range(4): o.append(I(f"v_pk_mul_f32 v[{r+2*q}:{r+2*q+1}], v[{r+2*q}:{r+2*q+1}], s[{sC}:{sC+1}]"))
        for q in range(4): o.append(I(f"v_cvt_pk_bf16_f32 v{r+q}, v{r+2*q}, v{r+2*q+1}"))
        return o
    def swap_group(g, nt):
        r = grp(g, nt)
        return ([I(f"v_permlane32_swap_b32 v{r}, v{r+2}"), I(f"v_permlane32_swap_b32 v{r+1}, v{r+3}")],
                [I(f"v_permlane16_swap_b32 v{r}, v{r+2}"), I(f"v_permlane16_swap_b32 v{r+1}, v{r+3}")])

    sXdelta = 59
    inst[0][1].append(I(f"s_mov_b32 s{sXdelta}, {(XB[1]-XB[0]) & 0xffffffff}"))
    inst[0][1].append(I(f"s_mov_b32 s{sWrd}, {(-32768) & 0xffffffff}"))

    def dma_in(ks):
        lst = []
        k = ks // 2
        if ks == 0:
            for gl in pre_list[NPRO:]: lst += gl
        if ks % 2 == 0:
            if k + 1 <= 8: lst += dma_x(k + 1, 1)
            if ks + 3 <= 17: lst += dma_wq(ks + 3)
        else:
            if ks + 3 <= 17: lst += dma_wq(ks + 3)
            if k + 2 <= 8: lst += dma_x(k + 2, 0)
        if KV0AT >= 0:
            if ks == KV0AT: lst += dma_kv(0)
        elif ks % 2 == 1 and ks <= 13 or ks == 14: lst += kv0_piece()
        if ks == 14 and (CPF & 2): lst += code_touch()
        if ks == 15: lst += dma_kv(1)
        if ks == 17 and DIST >= 3: lst += dma_kv(2)
        if (TOUCH & 1) and 2 <= ks <= 17:
            for _ in range(TPK): lst += qtouch()
        return lst

    def k_read(j, sub, g):
        r = Kf[sub][g]
        d = I(f"ds_read_b128 v[{r}:{r+3}], v{vKa} offset:{64*g + 4352*sub}")
        d.defs |= {("krd", j)}
        return d
    def v_reads(j, dt):
        u = (dt & 1) | ((dt >> 2) << 1)
        out = []
        for half in range(2):
            r = Vf[dt] + 2 * half
            d = I(f"ds_read_b64_tr_b16 v[{r}:{r+1}], v{vVa[u]} offset:{64*((dt>>1)&1) + 4352*half}")
            d.defs |= {("vrd", j)}; out.append(d)
        return out
    CWIN = 111 if SOFT else 12
    def qlast():
        F = [(16 + (i >> 1 & 1), 2 * (i >> 2) + (i & 1)) for i in range(16)]
        mf = []
        for i, (ks, mt) in enumerate(F):
            for nt in range(7):
                c = R("v", acc(mt, nt))
                mf.append(m16(c, R("a", Af(i)), R("a", Bf(ks & 1, nt)), c))
        S = Sched2(mf)
        for i in range(14): S.stream(a_reads(*F[i + 2], slot=i + 2), 7 * i, 7 * i + 3)
        S.stream([b_read(17, nt) for nt in range(7)], 2, 10)
        b = I("s_barrier"); b.uses = {("xrd", 8)}
        S.put(20, b)
        if DIST >= 3: spaced(S, dma_kv(2), 21 + KV2D, 105, 6)
        if LATEKV:
            b = I("s_barrier"); b.uses = {("kv", 0)}
            S.put(LATEKV, b)
        done = {}
        for g in range(3):
            for nt in range(7):
                lo = 28 * g + 21 + nt + 4
                lo = S.stream(conv_group(g, nt, True), lo, min(lo + CWIN, 111))
                done[(g, nt)] = lo
                s0, s1 = swap_group(g, nt)
                lo = S.stream(s0, min(lo + 2, 111), 111)
                S.stream(s1, min(lo + 2, 111), 111)
        hole_owner = [(g, nt) for g in range(4) for nt in range(7)]
        lo = max(60, LATEKV + 1)
        for sub in range(2):
            for g in range(4): lo = S.place(k_read(0, sub, g), max(lo, done[hole_owner[4 * sub + g]] + 1), 111)
        for dt in range(8):
            for d in v_reads(0, dt): lo = S.place(d, max(lo, done[hole_owner[8 + dt]] + 1), 111)
        return S

    def qstep(ks):
        mf = []
        for mt in range(8):
            for nt in range(7):
                c = R("v", acc(mt, nt))
                mf.append(m16(c, R("a", Af(mt)), R("a", Bf(ks & 1, nt)), "0" if ks == 0 else c))
        S = Sched2(mf)
        for mt in range(6):
            S.stream(a_reads(ks, mt + 2), 7 * mt, 7 * mt + 3)
        nxt = ks + 1
        if ks % 2 == 0:
            S.stream([b_read(nxt, nt) for nt in range(7)], 2, 20)
        if nxt < 18:
            if nxt % 2 == 0:
                S.stream([I(f"v_add_u32 v{vXa[0]}, s{sXdelta}, v{vXa[0]}"), I(f"v_add_u32 v{vXa[1]}, s{sXdelta}, v{vXa[1]}"),
                          I(f"s_sub_u32 s{sXdelta}, 0, s{sXdelta}")], 20, 36)
                advs = [I(f"v_add_u32 v{vWa[mt]}, s{sWrd}, v{vWa[mt]}") for mt in range(8)]
                S.stream(advs[:7], 32, 40)
                S.put(40, advs[7])
                S.put(41, I(f"s_sub_u32 s{sWrd}, 0, s{sWrd}"))
            S.put(42, qbarrier(nxt))
            S.stream(a_reads(nxt, 0), 42, 45)
            if nxt % 2 == 0: S.stream([b_read(nxt, nt) for nt in range(7)], 43, 52)
            S.stream(a_reads(nxt, 1), 49, 53)
        items = dma_in(ks)
        nd = sum(1 for g_ in items for i_ in g_ if i_.kind in ("dma", "vload"))
        if nd: spaced(S, items, 1, 55, max(2, min(QSTEP, 52 // nd)))
        return S

    for k in range(9):
        Ss = [qlast()] if (k == 8 and GMAJ) else [qstep(2 * k), qstep(2 * k + 1)]
        if k == 8 and verbose: print('q8 est', sum(S.est() for S in Ss))
        code = []
        key = "qloop" if 1 <= k <= 6 else f"q{k}"
        if key == "qloop": code.append(I(f"{name}_qloop:"))
        for S in Ss: code += S.emit()
        if key == "qloop":
            code += [I(f"s_add_u32 s{sCNT}, s{sCNT}, 1"), I(f"s_cmp_lt_u32 s{sCNT}, 6"), I(f"s_cbranch_scc1 {name}_qloop")]
        inst.append((key, code))
        if STAMP and k in (0, 6):
            T_ = Prog(); stamp(T_, 6 if k == 0 else 7, True); inst.append((f"st{k}", T_.L))

    C = Prog()
    if not GMAJ: C.ext([qbarrier(18)])
    assert not GMAJ or DIST == 3
    if TOUCH & 2: C(f"v_lshlrev_b32 v{vTa}, 7, v{vL}")
    late = dma_kv(3) if DIST >= 4 else []
    if TOUCH & 2:
        first_t = 5 if (TOUCH & 1) else 4
        late += [[I(f"s_mov_b32 s{sTo}, {first_t*8192+192}")]]
        for st_ in range(first_t, 4 + TD): late += touch(vTa, 8192)
    stamp(C, 2, STAMP)
    C(f"s_mov_b32 s{sCNT}, 0\ns_nop 4")
    groups = [(g, nt) for nt in range(7) for g in range(4) if (g == 3 or not GMAJ)]
    prev = None
    for i, (g, nt) in enumerate(groups):
        if late: C.ext(late.pop(0))
        C.ext(conv_group(g, nt))
        if i >= 1: C.ext(swap_group(*groups[i - 1])[0])
        if i >= 2: C.ext(swap_group(*groups[i - 2])[1])
    C("s_nop 1")
    C.ext(swap_group(*groups[-1])[0]); C.ext(swap_group(*groups[-2])[1]); C("s_nop 1"); C.ext(swap_group(*groups[-1])[1])

    def adv(sreg, vregs, st):
        return [[I(f"s_add_u32 s{sreg}, s{sreg}, 1")], [I(f"s_and_b32 s{sreg}, s{sreg}, 3"),
                I(f"s_cselect_b32 s{st}, s{sKKVS}, s{sKm3KVS}")]] + \
               [[I(f"v_add_u32 v{v}, s{st}, v{v}")] for v in vregs]
    def abarrier(j):
        b = I("s_barrier"); b.uses = {("kv", j + 1), ("krd", j), ("vrd", j), ("wqrd", 16), ("wqrd", 17)}
        return b
    def qk(t, zero):
        o = []
        for sub in range(2):
            d = R("v", Sb[sbuf(t)][sub])
            for g in range(4):
                c = d if g else ("0" if (zero or SOFT) else R("v", Ci[t]))
                o.append(m16(d, R("v", Kf[sub][g]), Q(t, g), c))
        return o
    def pv(t, zero):
        o = [m16(O(t, d), R("v", Vf[d]), R("v", Pf), "0" if zero else O(t, d)) for d in range(8)]
        if not VSUM: o.append(m16(Lr(t), ONES, R("v", Pf), "0" if zero else Lr(t)))
        return o
    def sregs(t): return [Sb[sbuf(t)][0] + i for i in range(4)] + [Sb[sbuf(t)][1] + i for i in range(4)]

    if not GMAJ:
        for sub in range(2):
            for g in range(4): C.ext([k_read(0, sub, g)])
        for dt in range(8): C.ext(v_reads(0, dt))
    C.ext(qk(0, True))
    stamp(C, 3, STAMP)
    inst.append(("conv", C.L))

    slow = Prog()
    def epi_tile(t, U, sfx):
        LS = Ci[t] + 2; X = Ci[t] + 3; INV = Ci[t]
        if VSUM:
            o = [f"v_mov_b32 v{X}, v{LS}", "s_nop 1", f"v_permlane32_swap_b32 v{X}, v{LS}", f"v_add_f32 v{LS}, v{LS}, v{X}",
                 f"v_mov_b32 v{X}, v{LS}", "s_nop 1", f"v_permlane16_swap_b32 v{X}, v{LS}", f"v_add_f32 v{LS}, v{LS}, v{X}",
                 f"v_rcp_f32 v{INV}, v{LS}"]
        else:
            o = [f"v_accvgpr_read_b32 v{LS}, a{224+4*t}", f"v_rcp_f32 v{INV}, v{LS}"]
        o = [[I(x)] for x in o]
        for g in range(4):
            val = [U[0] + i for i in range(4)] + [U[1] + i for i in range(4)]
            out = U[2 + (g & 1)]
            for i in range(8): o.append([I(f"v_accvgpr_read_b32 v{val[i]}, a{(t*8+2*g)*4+i}")])
            for i in range(8): o.append([I(f"v_mul_f32 v{val[i]}, v{val[i]}, v{INV}")])
            for q in range(4): o.append([I(f"v_cvt_pk_bf16_f32 v{out+q}, v{val[2*q]}, v{val[2*q+1]}")])
            st = I(f"buffer_store_dwordx4 v[{out}:{out+3}], v{vKa}, s[{SO}:{SO+3}], s{sT3} offen offset:{1024*g}{OFLAG}")
            st.defs = {("ostore", 0)}
            o.append(([I(f"s_mov_b32 s{sT3}, {t*TS}")] if g == 0 else []) + [st])
        return o
    def block(j, first, last=False):
        mf = []; base = []
        for s in range(7):
            base.append(len(mf))
            if not (first and s == 0): mf += pv((s - 1) % 7, first)
            if not (last and s == 6): mf += qk((s + 1) % 7, first and s < 6)
        base.append(len(mf))
        if last: mf += pv(6, False)
        S = Sched2(mf)
        NPV = 8 if VSUM else 9; SL = NPV + 8
        if not first:
            for n, gp in enumerate(VGAPS):
                dt = n // 2
                gp = min(gp, SL + dt - 4)
                assert dt <= gp
                S.put(gp, v_reads(j, dt)[n % 2])
        for i, gp in enumerate(KGAPS if not last else []):
            gp = gp - 9 + NPV
            assert NPV + i <= gp <= SL + NPV + i - 4
            S.put(base[5] + gp, k_read(j + 1, i // 4, i % 4))
        gb = base[2] + 1
        if not last: S.put(gb, abarrier(j))
        elif FUSED:
            b_ = abarrier(j); b_.uses |= {("kv", j + 2), ("kv", j + 3)}
            S.put(gb, b_)
            S.put(gb + 1, "v_mov_b32 v13, 0")
            S.put(gb + 3, "buffer_load_dword v13, v13, s[92:95], 0 offen sc1")
        for t in range(7):
            b0 = base[t]; sr = sregs(t); n = base[t + 1] - b0
            NM, TH, LS = Ci[t], Ci[t] + 1, Ci[t] + 2
            if first:
                ops = [f"v_max3_f32 v{vMX}, v{sr[0]}, v{sr[1]}, v{sr[2]}",
                       f"v_max3_f32 v{vMX}, v{vMX}, v{sr[3]}, v{sr[4]}",
                       f"v_max3_f32 v{vMX}, v{vMX}, v{sr[5]}, v{sr[6]}",
                       f"v_max_f32 v{vMX}, v{vMX}, v{sr[7]}",
                       f"v_mov_b32 v{vT}, v{vMX}", f"v_permlane32_swap_b32 v{vT}, v{vMX}",
                       f"v_max_f32 v{vMX}, v{vT}, v{vMX}",
                       f"v_mov_b32 v{vT}, v{vMX}", f"v_permlane16_swap_b32 v{vT}, v{vMX}",
                       f"v_max_f32 v{vMX}, v{vT}, v{vMX}"]
                if SOFT:
                    ops += [f"v_mul_f32 v{NM}, s{sNC}, v{vMX}"]
                    ops += [f"v_fma_f32 v{r}, v{r}, s{sC}, v{NM}" for r in sr]
                    ops += [f"v_add_f32 v{TH}, s{sTH}, v{vMX}"]
                else:
                    ops += [f"v_sub_f32 v{r}, v{r}, v{vMX}" for r in sr]
                ops += [f"v_exp_f32 v{r}, v{r}" for r in sr]
                if not SOFT: ops += [f"v_sub_f32 v{Ci[t]+i}, 0, v{vMX}" for i in range(4)]
                if VSUM:
                    ops += [f"v_add_f32 v{LS}, v{sr[0]}, v{sr[1]}"] + [f"v_add_f32 v{LS}, v{LS}, v{sr[i]}" for i in range(2, 8)]
                for i, o in enumerate(ops):
                    S.put(b0 + min(n - 2, 1 + (i * (n - 3)) // len(ops)), o)
                for q in range(4): S.put(b0 + n - 2, f"v_cvt_pk_bf16_f32 v{Pf+q}, v{sr[2*q]}, v{sr[2*q+1]}")
            elif SOFT:
                e0 = b0 + n - 1
                sx = "L" if last else ""
                gbr = S.put(e0, f"s_cbranch_vccnz {name}_slow{sx}{t}\n{name}_back{sx}{t}:")
                if VSUM: S.put(e0, f"v_add_f32 v{LS}, v{LS}, v{vTS}")
                ge = []
                for i in range(8):
                    tgt = b0 + (i * (n - 4)) // 8
                    gf = S.place(f"v_fma_f32 v{Er[i]}, v{sr[i]}, s{sC}, v{NM}", max(tgt, b0 + (3 if i >= 4 else 0)), min(max(tgt, b0 + 3) + 1, e0 - 3) if n > 8 else b0 + 3)
                    ge.append(S.place(f"v_exp_f32 v{Er[i]}, v{Er[i]}", gf + 1, min(gf + 2, e0 - 2)))
                cap = lambda x: min(x, e0 - 3)
                g1 = S.place(f"v_max3_f32 v{vMX}, v{sr[0]}, v{sr[1]}, v{sr[2]}", b0, cap(b0 + 6))
                g2 = S.place(f"v_max3_f32 v{vT}, v{sr[4]}, v{sr[5]}, v{sr[6]}", b0 + 3, cap(b0 + 8))
                g3 = S.place(f"v_max3_f32 v{vMX}, v{vMX}, v{sr[3]}, v{sr[7]}", max(g1, b0 + 3), cap(b0 + 10))
                g4 = S.place(f"v_max_f32 v{vMX}, v{vMX}, v{vT}", max(g2, g3), cap(b0 + 11))
                g5 = S.place(f"v_cmp_lt_f32 vcc, v{TH}, v{vMX}", g4, e0 - 2)
                for q in range(4):
                    S.place(f"v_cvt_pk_bf16_f32 v{Pf+q}, v{Er[2*q]}, v{Er[2*q+1]}", max(ge[2*q] + 1, ge[2*q+1] + 1, b0 + NPV - 1), max(e0 - 1, b0 + NPV - 1))
                if VSUM:
                    ga = S.place(f"v_add_f32 v{vTS}, v{Er[0]}, v{Er[1]}", ge[1] + 1, e0 - 1)
                    for i in range(2, 8):
                        ga = S.place(f"v_add_f32 v{vTS}, v{vTS}, v{Er[i]}", max(ga, ge[i] + 1), min(max(ga, ge[i] + 1) + 3, e0 - 1))
            else:
                sx = "L" if last else ""
                e0 = b0 + n - 1
                short = n < SL
                cap = (lambda x, d: min(x, e0 - d)) if short else (lambda x, d: x)
                g1 = S.place(f"v_max3_f32 v{vMX}, v{sr[0]}, v{sr[1]}, v{sr[2]}", b0, cap(b0 + 5, 5))
                g2 = S.place(f"v_max3_f32 v{vT}, v{sr[4]}, v{sr[5]}, v{sr[6]}", b0 + 3, cap(b0 + 7, 5))
                g3 = S.place(f"v_max3_f32 v{vMX}, v{vMX}, v{sr[3]}, v{sr[7]}", max(g1, b0 + 3), cap(b0 + 8, 4))
                g4 = S.place(f"v_max_f32 v{vMX}, v{vMX}, v{vT}", max(g2, g3), cap(b0 + 9, 4))
                g5 = S.place(f"v_cmp_lt_f32 vcc, s{sTH}, v{vMX}", g4, cap(b0 + 10, 3))
                gbr = S.place(f"s_cbranch_vccnz {name}_slow{sx}{t}\n{name}_back{sx}{t}:", g5 + 2, cap(b0 + 12, 1))
                ge = []
                for i in range(8):
                    ge.append(S.place(f"v_exp_f32 v{Er[i]}, v{sr[i]}", b0 + (3 if i >= 4 else 0), cap(b0 + 14, 1)))
                for q in range(4):
                    S.place(f"v_cvt_pk_bf16_f32 v{Pf+q}, v{Er[2*q]}, v{Er[2*q+1]}", max(ge[2*q] + 1, ge[2*q+1] + 1, gbr + 1, b0 + 8), cap(b0 + 15, 0))
        if last:
            S.put(0, f"v_lshlrev_b32 v{vKa}, 4, v{vL}")
            for t in range(5):
                lo = base[t + 1] + NPV + 3; hi = min(base[t + 2] + NPV + 2, len(mf) - 1)
                ops = epi_tile(t, [grp(g, t) for g in range(4)], "")
                for i, o_ in enumerate(ops): S.put(lo + (i * (hi - lo + 1)) // len(ops), o_)
            return S
        spaced(S, dma_kv(j + DIST) + (touch(vTa, 8192) if TOUCH & 2 else []), gb + 1 + DLATE, min(base[5] + 6 + DLATE, len(mf) - 2), DSTEP)
        S.stream(adv(sVd, vVa, sT3), base[2], base[6])
        S.stream(adv(sKd, [vKa], sT4), base[3], base[5] + NPV - 1)
        if PAIR > 0 and not first: pair_mfmas(S, PAIR)
        if PAIR < 0 and not first: group_mfmas(S, -PAIR)
        return S

    S0 = block(0, True)
    inst.append(("blk0", S0.emit()))
    if STAMP:
        T_ = Prog(); stamp(T_, 8, True); inst.append(("stb", T_.L))
    for j in range(1, 15 if PEEL else 16):
        S = block(j, False)
        trace = [I("s_memtime s[76:77]"), I("s_memrealtime s[78:79]"), I("s_waitcnt lgkmcnt(0)"),
                 I(f"s_mov_b32 m0, s{sCNT}"), I("s_nop 1"), I(f"v_writelane_b32 v18, s76, m0"), I(f"v_writelane_b32 v19, s78, m0")] if os.environ.get("TRACE") else []
        code = [I(f"{name}_aloop:")] + trace + S.emit() + [I(f"s_add_u32 s{sCNT}, s{sCNT}, 1"), I(f"s_cmp_lt_u32 s{sCNT}, {14 if PEEL else 15}"),
                                                   I(f"s_cbranch_scc1 {name}_aloop")]
        inst.append(("aloop", code))
        if verbose and j == 1: print("k1 attention block est cycles", S.est(16), "ideal", 16 * len(S.m))

    E = Prog()
    if PEEL:
        pass
        SL_ = block(15, False, last=True)
        if verbose: print("last block est", SL_.est())
        inst.append(("blkL", SL_.emit()))
    else: E.ext(pv(6, False))
    stamp(E, 4, STAMP)
    if os.environ.get("TRACE"):
        E(f"""s_add_u32 s72, s20, 0x5000000
s_addc_u32 s73, s21, 0
s_mov_b32 s74, 0x100000
s_mov_b32 s75, 0x00020000
s_lshl_b32 s70, s2, 11
s_lshl_b32 s71, s{sW}, 9
s_add_u32 s70, s70, s71
v_lshlrev_b32 v2, 3, v{vL}
buffer_store_dwordx2 v[18:19], v2, s[72:75], s70 offen
s_waitcnt vmcnt(0)""")
    if FUSED:
        if PEEL: E("v_mov_b32 v25, v13")
        else: E(f"s_waitcnt vmcnt(0)\ns_barrier\nv_mov_b32 v24, 0\nbuffer_load_dword v25, v24, s[92:95], 0 offen sc1")
    if ZFLAG:
        E(f"""s_add_u32 s72, s20, {ZFLAG}
s_addc_u32 s73, s21, 0
s_mov_b32 s74, 32768
s_mov_b32 s75, 0x00020000
s_lshl_b32 s70, s2, 7
v_and_b32 v2, 31, v{vL}
v_lshlrev_b32 v2, 2, v2
v_mov_b32 v10, 0
buffer_store_dword v10, v2, s[72:75], s70 offen""")
    E(f"v_lshlrev_b32 v2, 4, v{vL}")
    E("s_nop 7")
    tmp = 32
    if VSUM:
        ET = range(5, 7) if PEEL else range(7)
        for t in ET: E(f"v_mov_b32 v{3+t}, v{Ci[t]+2}\nv_mov_b32 v{11+t}, v{Ci[t]+2}")
        E("s_nop 1")
        for t in ET: E(f"v_permlane32_swap_b32 v{3+t}, v{11+t}")
        for t in ET: E(f"v_add_f32 v{3+t}, v{3+t}, v{11+t}")
        for t in ET: E(f"v_mov_b32 v{11+t}, v{3+t}")
        E("s_nop 1")
        for t in ET: E(f"v_permlane16_swap_b32 v{3+t}, v{11+t}")
        for t in ET: E(f"v_add_f32 v{3+t}, v{3+t}, v{11+t}")
    for t in (range(5, 7) if PEEL else range(7)):
        inv = 20 + 2 * (t & 1)
        if VSUM: E(f"s_mov_b32 s{sT0}, {t*TS}\nv_rcp_f32 v{inv}, v{3+t}")
        else: E(f"v_accvgpr_read_b32 v{inv}, a{224+4*t}\ns_mov_b32 s{sT0}, {t*TS}\nv_rcp_f32 v{inv}, v{inv}")
        for g in range(4):
            r = tmp + 16 * ((t * 4 + g) % 8)
            for i in range(8): E(f"v_accvgpr_read_b32 v{r+i}, a{(t*8+2*g)*4+i}")
            for q in range(4): E(f"v_pk_mul_f32 v[{r+2*q}:{r+2*q+1}], v[{r+2*q}:{r+2*q+1}], v[{inv}:{inv+1}] op_sel_hi:[1,0]")
            for q in range(4): E(f"v_cvt_pk_bf16_f32 v{r+8+q}, v{r+2*q}, v{r+2*q+1}")
            E(f"buffer_store_dwordx4 v[{r+8}:{r+11}], v2, s[{SO}:{SO+3}], s{sT0} offen offset:{1024*g}{OFLAG}")
            E.L[-1].defs = {("ostore", 0)}
    if STAMP and not FUSED:
        stamp(E, 5, True)
        stamp_store(E, 9 if not os.environ.get('DBG') else 6, sW, 20, (512, 0))
    if not FUSED: E(f"{name}_done:\ns_endpgm")
    inst.append(("end", E.L))

    for t, sx in [(t, sx) for sx in (("", "L") if PEEL else ("",)) for t in range(7)]:
        sr = sregs(t)
        slow(f"""{name}_slow{sx}{t}:
v_mov_b32 v{vT}, v{vMX}
s_nop 1
v_permlane32_swap_b32 v{vT}, v{vMX}
v_max_f32 v{vMX}, v{vT}, v{vMX}
v_mov_b32 v{vT}, v{vMX}
s_nop 1
v_permlane16_swap_b32 v{vT}, v{vMX}
v_max_f32 v{vMX}, v{vT}, v{vMX}
""")
        NM, TH, LS = Ci[t], Ci[t] + 1, Ci[t] + 2
        if SOFT:
            slow(f"""v_subrev_f32 v{vT}, s{sTH}, v{TH}
v_max_f32 v{vMX}, v{vT}, v{vMX}
v_mul_f32 v{vT}, s{sNC}, v{vMX}
v_sub_f32 v{vF}, v{vT}, v{NM}
v_exp_f32 v{vF}, v{vF}
v_mov_b32 v{NM}, v{vT}
v_add_f32 v{TH}, s{sTH}, v{vMX}""")
            for i in range(8): slow(f"v_fma_f32 v{Er[i]}, v{sr[i]}, s{sC}, v{NM}")
            for i in range(8): slow(f"v_exp_f32 v{Er[i]}, v{Er[i]}")
            slow("s_nop 0")
            for q in range(4): slow(f"v_cvt_pk_bf16_f32 v{Pf+q}, v{Er[2*q]}, v{Er[2*q+1]}")
            if VSUM:
                slow(f"v_add_f32 v{vTS}, v{Er[0]}, v{Er[1]}")
                for i in range(2, 8): slow(f"v_add_f32 v{vTS}, v{vTS}, v{Er[i]}")
                slow(f"v_mul_f32 v{LS}, v{LS}, v{vF}")
        else:
            slow(f"v_max_f32 v{vMX}, 0, v{vMX}\nv_exp_f32 v{vF}, -v{vMX}")
            for r in sr: slow(f"v_sub_f32 v{r}, v{r}, v{vMX}")
            for i in range(8): slow(f"v_exp_f32 v{Er[i]}, v{sr[i]}")
            for i in range(4): slow(f"v_sub_f32 v{Ci[t]+i}, v{Ci[t]+i}, v{vMX}")
        regs = [t * 32 + i for i in range(32)] + ([] if VSUM else [224 + 4 * t + i for i in range(4)])
        for a in regs:
            slow(f"v_accvgpr_read_b32 v{vT}, a{a}\nv_mul_f32 v{vT}, v{vT}, v{vF}\nv_accvgpr_write_b32 a{a}, v{vT}")
        slow(f"s_nop 1\ns_branch {name}_back{sx}{t}")

    EXP = os.environ.get("EXP", "").split(",")
    def keep(key, i):
        if key == "aloop":
            if "a_nodma" in EXP and i.kind == "dma": return False
            if "a_nobar" in EXP and i.kind == "barrier": return False
            if "a_nods" in EXP and i.kind == "dsr": return False
            if "a_noexp" in EXP and i.op == "v_exp_f32": return False
            if "a_nomax" in EXP and (i.op.startswith("v_max") or i.op.startswith("v_cmp") or i.op == "s_cbranch_vccnz"): return False
            if "a_nobr" in EXP and (i.op == "s_cbranch_vccnz"): return False
            if "a_nocvt" in EXP and i.op.startswith("v_cvt"): return False
            if "a_nosum" in EXP and i.kind == "mfma" and "a[252:255]" in i.text: return False
            if "a_nopv" in EXP and i.kind == "mfma" and i.text.split()[1].startswith("a["): return False
        if key == "qloop":
            if "q_nodma" in EXP and i.kind == "dma": return False
            if "q_nobar" in EXP and i.kind == "barrier": return False
            if "q_nods" in EXP and i.kind == "dsr": return False
        return True
    inst = [(k_, [i for i in c_ if keep(k_, i)]) for k_, c_ in inst]
    PADN = int(os.environ.get("PADN", 0))
    if PADN:
        def pad(c_):
            o_ = []; n_ = 0
            for i in c_:
                if i.kind == "mfma":
                    n_ += 1
                    if n_ % PADN == 0: o_.append(I("s_nop 7"))
                o_.append(i)
            return o_
        inst = [(k_, pad(c_) if k_ == "aloop" else c_) for k_, c_ in inst]
    if FUSED: return inst, slow
    out, full, nfix = resolve_all2(inst)
    if verbose: print("k1 nops inserted:", nfix, "est aloop", est_code(out["aloop"]), "est qloop", est_code(out["qloop"]), "blk0", est_code(out["blk0"]))
    msgs = check_hazards(full, name) + check_hazards(slow.L, name + "_slow")
    seen = set()
    for m_ in msgs:
        key = m_.split("]")[1][:60] + m_.split("->")[-1][-50:]
        if key not in seen: print(m_); seen.add(key)
    order = []
    for key, _ in inst:
        if key not in order: order.append(key)
    text = "\n".join(str(i) for key in order for i in out[key]) + "\n" + slow.text()
    launch = f"; @launch kernel={name} grid=(256,1,1) block=(256,1,1) lds=163840"
    return launch, text, kd(name, 512, 256, 102)

def gen_k2(name="oproj_kernel", NS=4, STAMP=False, WROT=1, verbose=True):
    for Lp in range(126): assert (Lp * 57) >> 9 == Lp // 9
    KS = 4
    PB = KS * NS
    ACC = 16
    AF = 48
    BF = 80
    NV = BF + 8 * PB
    vLane16 = 2; vA = [3, 4, 5, 6]; vDma = [7, 8, 9, 10]; vOut = 11
    P = Prog()
    P(f"""
.globl {name}
.p2align 8
.type {name},@function
{name}:
s_cmp_ge_u32 s2, 256
s_cbranch_scc1 {name}_done
s_load_dwordx2 s[4:5], s[0:1], 32
s_load_dwordx2 s[6:7], s[0:1], 72
s_load_dwordx2 s[8:9], s[0:1], 80
s_load_dwordx2 s[10:11], s[0:1], 96
""")
    if STAMP: P("s_memtime s[80:81]\ns_memrealtime s[98:99]")
    P(f"""
s_and_b32 s20, s2, 7
s_lshr_b32 s21, s2, 3
s_and_b32 s22, s20, 1
s_mul_i32 s23, s22, 31
s_cmp_eq_u32 s23, 31
s_cselect_b32 s23, s21, 0
s_cmp_eq_u32 s23, 31
s_cbranch_scc1 {name}_done
s_mul_i32 s22, s20, 63
s_add_u32 s22, s22, 1
s_lshr_b32 s22, s22, 1
s_add_u32 s22, s22, s21
s_cmp_ge_u32 s22, 126
s_cselect_b32 s24, 1, 0
s_mul_i32 s25, s24, 126
s_sub_u32 s22, s22, s25
s_mul_i32 s26, s22, 57
s_lshr_b32 s26, s26, 9
s_mul_i32 s27, s26, 9
s_sub_u32 s27, s22, s27
v_and_b32 v1, 63, v0
v_lshrrev_b32 v12, 6, v0
v_lshlrev_b32 v{vLane16}, 4, v1
v_readfirstlane_b32 s28, v12
""")
    P(f"""
s_lshl_b32 s29, s26, 3
s_lshl_b32 s30, s28, 1
s_add_u32 s29, s29, s30
s_mul_i32 s30, s24, 112
s_add_u32 s30, s30, s29
s_mul_i32 s30, s30, {TS}
v_lshrrev_b32 v12, 3, v1
v_mul_u32_u24 v12, 1152, v12
v_bfe_u32 v13, v1, 4, 2
v_lshlrev_b32 v13, 1, v13
v_and_b32 v14, 7, v1
v_xor_b32 v13, v13, v14
v_lshl_add_u32 v{vDma[0]}, v13, 4, v12
v_add_u32 v{vDma[1]}, 8192, v{vDma[0]}
v_add_u32 v{vDma[2]}, 16384, v{vDma[0]}
v_add_u32 v{vDma[3]}, 24576, v{vDma[0]}
s_mul_i32 s44, s28, 36864
s_lshl_b32 s46, s27, 7
s_add_u32 s44, s44, s46
s_lshl_b32 s45, s28, 12
s_mov_b32 s63, s44
s_mul_i32 s62, s26, 3
s_add_u32 s62, s62, s27
s_and_b32 s62, s62, {WROT-1}
s_mov_b32 s60, 0
s_mov_b32 s61, 0
s_mul_i32 s64, s62, 147456
s_add_u32 s44, s63, s64
s_lshl_b32 s47, s62, 12
s_waitcnt lgkmcnt(0)
s_cmp_eq_u32 s24, 0
s_cselect_b32 s32, s4, s6
s_cselect_b32 s33, s5, s7
s_mov_b32 s34, 4718592
s_mov_b32 s35, 0x00020000
s_add_u32 s36, s10, s30
s_addc_u32 s37, s11, 0
s_mov_b32 s38, 131072
s_mov_b32 s39, 0x00020000
s_add_u32 s56, s36, {TS}
s_addc_u32 s57, s37, 0
s_mov_b32 s58, 131072
s_mov_b32 s59, 0x00020000
s_mov_b32 s40, s8
s_mov_b32 s41, s9
s_mov_b32 s42, 4128768
s_mov_b32 s43, 0x00020000
""")
    def dma(stage):
        slot = stage % NS
        out = [I(f"s_add_u32 m0, s45, {slot*16384}"), I("s_nop 0")]
        for i in range(4):
            d = I(f"buffer_load_dwordx4 v{vDma[i]}, s[32:35], s44 offen offset:{1024*i} lds")
            d.defs = {("lds", stage)}
            out.append(d)
        out += [I("s_add_u32 s60, s60, 1"), I("s_add_u32 s64, s60, s62"), I(f"s_and_b32 s64, s64, {WROT-1}"),
                I(f"s_andn2_b32 s65, s60, {WROT-1}"), I("s_or_b32 s64, s64, s65"), I("s_mul_i32 s64, s64, 147456"), I("s_add_u32 s44, s63, s64")]
        return out
    def bload(g):
        out = []
        for nt in range(2):
            r = BF + 8 * (g % PB) + 4 * nt
            srd = "s[36:39]" if nt == 0 else "s[56:59]"
            out.append(I(f"buffer_load_dwordx4 v[{r}:{r+3}], v{vLane16}, {srd}, s47 offen offset:{1024*(g%4)}"))
        if g % 4 == 3:
            out += [I("s_add_u32 s61, s61, 1"), I("s_add_u32 s66, s61, s62"), I(f"s_and_b32 s66, s66, {WROT-1}"),
                    I(f"s_andn2_b32 s67, s61, {WROT-1}"), I("s_or_b32 s66, s66, s67"), I("s_lshl_b32 s47, s66, 12")]
        return out
    def areads(g, mt):
        stage = g // KS; slot = stage % NS; ks = g % KS
        r = AF + 16 * (g % 2) + 4 * mt
        out = []
        for half in range(2):
            d = I(f"ds_read_b64_tr_b16 v[{r+2*half}:{r+2*half+1}], v{vA[mt]} offset:{slot*16384 + ks*4096 + half*2048}")
            d.defs |= {("ldsrd", stage)}
            out.append(d)
        return out
    def barrier(stage):
        b = I("s_barrier"); b.uses = {("lds", stage), ("ldsrd", stage - 1)}
        return b
    for st in range(NS - 1):
        P.ext(dma(st))
        for g in range(KS * st, KS * st + KS): P.ext(bload(g))
    for g in range(KS * (NS - 1), PB): P.ext(bload(g))
    P(f"""
v_lshrrev_b32 v12, 2, v1
v_bfe_u32 v13, v12, 1, 2
v_lshlrev_b32 v12, 7, v12
v_lshl_add_u32 v12, v13, 5, v12
v_and_b32 v13, 3, v1
v_lshl_add_u32 v{vA[0]}, v13, 3, v12
v_xor_b32 v{vA[1]}, 32, v{vA[0]}
v_xor_b32 v{vA[2]}, 64, v{vA[0]}
v_xor_b32 v{vA[3]}, 96, v{vA[0]}
""")
    P(f"""
s_lshl_b32 s50, s29, 4
v_and_b32 v12, 15, v1
v_add_u32 v12, s50, v12
v_mul_u32_u24 v12, 2304, v12
v_lshrrev_b32 v13, 4, v1
v_lshlrev_b32 v13, 3, v13
s_mul_i32 s53, s24, 1152
s_lshl_b32 s54, s27, 7
s_add_u32 s53, s53, s54
v_add3_u32 v{vOut}, v12, v13, s53
s_mov_b32 s55, 0
""")
    for i in range(32): P(f"v_mov_b32 v{ACC+i}, 0")
    P.ext([barrier(0)])
    P.ext(dma(NS - 1))
    for mt in range(4): P.ext(areads(0, mt))
    stamp(P, 1, STAMP)
    inst = [("pre", P.L)]
    NIT = 128 // PB
    for it in range(NIT):
        code = [I(f"{name}_loop:")]
        for gl in range(PB):
            g = it * PB + gl
            mf = []
            for mt in range(4):
                for nt in range(2):
                    c = R("v", ACC + 8 * mt + 4 * nt)
                    mf.append(m16(c, R("v", AF + 16 * (g % 2) + 4 * mt), R("v", BF + 8 * (g % PB) + 4 * nt), c))
            S = Sched2(mf)
            gn = g + 1
            lo = 0
            if gn % KS == 0:
                S.put(1, barrier(gn // KS)); lo = 1
            for mt in range(4): lo = S.stream(areads(gn, mt), lo, 6)
            if gn % KS == 0: S.stream(dma(gn // KS + NS - 1), 5, 7)
            S.put(7, bload(g + PB))
            code += S.emit()
        code += [I("s_add_u32 s55, s55, 1"), I(f"s_cmp_lt_u32 s55, {NIT}"), I(f"s_cbranch_scc1 {name}_loop")]
        inst.append(("loop", code))
    E = Prog()
    E("s_nop 7")
    stamp(E, 2, STAMP)
    for mt in range(4):
        for nt in range(2):
            c = ACC + 8 * mt + 4 * nt
            t = AF + 4 * mt + 2 * nt
            E(f"v_cvt_pk_bf16_f32 v{t}, v{c}, v{c+1}\nv_cvt_pk_bf16_f32 v{t+1}, v{c+2}, v{c+3}")
            if nt == 0:
                E(f"buffer_store_dwordx2 v[{t}:{t+1}], v{vOut}, s[40:43], 0 offen offset:{32*mt}")
            else:
                E(f"s_mov_b32 s50, {16*2304}\nbuffer_store_dwordx2 v[{t}:{t+1}], v{vOut}, s[40:43], s50 offen offset:{32*mt}")
    if STAMP:
        E("s_waitcnt vmcnt(0)")
        stamp(E, 3, True)
        E("s_add_u32 s10, s10, 0x100000\ns_addc_u32 s11, s11, 0")
        stamp_store(E, 4, 28, 10, (0, 32))
    E(f"{name}_done:\ns_endpgm")
    inst.append(("end", E.L))
    out, full, nfix = resolve_all2(inst)
    for m_ in check_hazards(full, name)[:10]: print(m_)
    text = "\n".join(str(i) for key in ("pre", "loop", "end") for i in out[key])
    launch = f"; @launch kernel={name} grid=(256,1,1) block=(256,1,1) lds={NS*16384}"
    return launch, text, kd(name, NV, ((NV + 3) // 4) * 4, 102)

def write(path, kernels, header=""):
    with open(path, "w") as f:
        f.write(header)
        for l, _, _ in kernels: f.write(l + "\n")
        f.write('.amdgcn_target "amdgcn-amd-amdhsa--gfx950"\n.text\n')
        for _, c, _ in kernels: f.write(c + "\n")
        f.write('code_end:\n.section .rodata,"a"\n')
        for _, _, k in kernels: f.write(".p2align 6\n" + k + "\n")

HEADER = """; Fused GQA block x2 (Q-proj + attention, then O-proj); generated by a hand-written generator script.
"""

if __name__ == "__main__":
    out = sys.argv[1] if len(sys.argv) > 1 else "full.s"
    st = bool(os.environ.get("STAMP"))
    kw = {}; kw2 = {}
    for k_ in ("WROT", "NS"):
        if k_ in os.environ: kw2[k_] = int(os.environ[k_])
    if "KVFLAG" in os.environ: kw["KVFLAG"] = os.environ["KVFLAG"]
    for k_ in ("MAPPING", "ROT", "TOUCH", "WOT", "TD", "KROT", "DLATE", "DSTEP", "DIST", "CPF", "SOFT", "VSUM", "PPS", "TS0", "TSTEP", "TPK"):
        if k_ in os.environ: kw[k_] = int(os.environ[k_])
    if "TFLAG" in os.environ: kw["TFLAG"] = os.environ["TFLAG"]
    write(out, [gen_k1(STAMP=st, **kw), gen_k2(STAMP=st, **kw2)], HEADER)
```

```python
import os, sys, math, struct
from asmlib import *

TS = 131072
KVT = 8704
KVS = 4 * KVT
XB = [2 * KVS, KVS]
WB = 98304
CSCALE = math.log2(math.e) / math.sqrt(128.0)
THRESH = 8.0

def f2u(x): return struct.unpack("<I", struct.pack("<f", x))[0]

def kd(name, vgpr, acc, sgpr=96):
    return f""".amdhsa_kernel {name}
  .amdhsa_next_free_vgpr {vgpr}
  .amdhsa_next_free_sgpr {sgpr}
  .amdhsa_accum_offset {acc}
  .amdhsa_group_segment_fixed_size 0
  .amdhsa_kernarg_size 104
  .amdhsa_user_sgpr_count 2
  .amdhsa_user_sgpr_kernarg_segment_ptr 1
  .amdhsa_system_sgpr_workgroup_id_x 1
.end_amdhsa_kernel"""

def R(kind, base, n=4): return f"{kind}[{base}:{base+n-1}]"

def m16(d, a, b, c):
    return I(f"v_mfma_f32_16x16x32_bf16 {d}, {a}, {b}, {c}")

STMAP = None
if os.environ.get("PSTAMP"): STMAP = {20: 1, 21: 2, 1: 3, 6: 4, 7: 5, 2: 6, 3: 7, 5: 8}
def stamp(P, idx, on):
    import gen
    if gen.STMAP is not None:
        if idx not in gen.STMAP: return
        idx = gen.STMAP[idx]
    if on: P(f"s_memtime s[{80+2*idx}:{81+2*idx}]\ns_waitcnt lgkmcnt(0)")

def stamp_store(E, nst, swave, sws, dbgoff=None):
    E("s_waitcnt vmcnt(0)\ns_memrealtime s[76:77]\ns_waitcnt lgkmcnt(0)")
    DBG = os.environ.get("DBG")
    if DBG:
        wg = int(DBG)
        E(f"""s_load_dwordx2 s[72:73], s[0:1], 88
s_waitcnt lgkmcnt(0)
s_add_u32 s72, s72, {dbgoff[0]}
s_addc_u32 s73, s73, 0
s_mov_b32 s74, 64
s_mov_b32 s75, 0x00020000
s_xor_b32 s70, s2, {wg}
s_or_b32 s70, s70, s{swave}
s_lshl_b32 s70, s70, 8
s_add_u32 s70, s70, {dbgoff[1]}
v_mov_b32 v14, s70
v_mbcnt_lo_u32_b32 v15, -1, 0
v_mbcnt_hi_u32_b32 v15, -1, v15
v_cmp_eq_u32 vcc, 0, v15
s_and_saveexec_b64 s[78:79], vcc""")
        for i in range(1, nst):
            E(f"s_sub_u32 s71, s{80+2*i}, s80\nv_mov_b32 v10, s71\nbuffer_store_dword v10, v14, s[72:75], 0 offen offset:{4*(i+1)}\ns_nop 1")
        E(f"v_mov_b32 v10, s76\nbuffer_store_dword v10, v14, s[72:75], 0 offen offset:4\ns_nop 1")
        E(f"v_mov_b32 v10, s98\nbuffer_store_dword v10, v14, s[72:75], 0 offen offset:0\ns_nop 1")
        return
    E(f"""s_add_u32 s72, s{sws}, 0x4000000
s_addc_u32 s73, s{sws+1}, 0
s_mov_b32 s74, 0x100000
s_mov_b32 s75, 0x00020000
s_lshl_b32 s70, s2, 8
s_lshl_b32 s71, s{swave}, 6
s_add_u32 s70, s70, s71
v_mov_b32 v14, s70
v_mbcnt_lo_u32_b32 v15, -1, 0
v_mbcnt_hi_u32_b32 v15, -1, v15
v_cmp_eq_u32 vcc, 0, v15
s_and_saveexec_b64 s[78:79], vcc""")
    for i in range(1, nst):
        E(f"s_sub_u32 s71, s{80+2*i}, s80\nv_mov_b32 v10, s71\nbuffer_store_dword v10, v14, s[72:75], 0 offen offset:{4*i}\ns_nop 1")
    E(f"v_mov_b32 v10, s76\nbuffer_store_dword v10, v14, s[72:75], 0 offen offset:60\ns_nop 1")
    E(f"v_mov_b32 v10, s98\nbuffer_store_dword v10, v14, s[72:75], 0 offen offset:56\ns_nop 1")

def gen_k1(name="attn_kernel", STAMP=False, KVFLAG="", MAPPING=1, ROT=0, TOUCH=0, TFLAG="", WOT=1, TD=2, PAIR=0, THIN=0, TLBW=0, LATEKV=0, KV2D=0, QSTEP=6, PEEL=0, GMAJ=0, NPRO=6, KV0AT=0, FUSED=0, ZFLAG=0, SOFT=0, VSUM=0, CPF=3, DIST=3, DLATE=0, DSTEP=5, KROT=0, PPS=4, TS0=5, TSTEP=3, TPK=1, verbose=True):
    sW = 40
    sBLK, sKVH, sBP, sBL, sHH = 41, 42, 43, 44, 45
    sWQoff, sXoff, sKVoff = 46, 47, 48
    sWQm0, sXm0, sKVm0 = 49, 50, 51
    sT0, sT1, sT2 = 52, 53, 54
    sCNT = 55
    sWrd, sXrd = 56, 57
    sTH = 58
    sC = 60
    sKd, sVd = 62, 63
    sKVw = 64
    sWQw = 65
    sK16, sKm48, sKKVS, sKm3KVS = 66, 67, 68, 69
    sT3, sT4 = 70, 71
    sWend, sXend, sTo = 72, 73, 74
    vTq, vTa, vDum = 13, 13, 0
    vTS = 18; sNC = 75
    assert SOFT or not VSUM
    SX, SWQ, SKV, SO = 24, 28, 32, 36
    vL = 1
    vKVd = [2, 3, 4, 5]
    vKa = 6; vVa = [7, 8, 9, 10]; vMX = 11; vT = 12; vF = 19
    vWa = list(range(20, 28)); vXa = [28, 29]; vWd = [14, 15, 16, 17]; vXd = [30, 31]
    ACC0 = 32
    def grp(g, nt): return ACC0 + (g * 7 + nt) * 8
    def acc(mt, nt): return grp(mt >> 1, nt) + 4 * (mt & 1)
    def Q(nt, g): return R("v", grp(g, nt))
    holes = [grp(g, nt) + 4 for g in range(4) for nt in range(7)] + [20, 24, 28]
    Kf = [[holes[4 * s + g] for g in range(4)] for s in range(2)]
    Vf = [holes[8 + d] for d in range(8)]
    Sb = [[holes[16 + 2 * b + s] for s in range(2)] for b in range(3)]
    Ci = [holes[22 + t] for t in range(7)]
    Pf = holes[29]
    Er = [holes[30] + i for i in range(4)] + [14, 15, 16, 17]
    VGAPS = [0, 1, 2, 3, 4, 5, 6, 8, 10, 12, 14, 15, 16, 17, 18, 19]
    KGAPS = [9, 11, 13, 15, 16, 18, 20, 22]
    sbuf = lambda t: 2 if t == 6 else (t & 1)
    def O(t, d): return R("a", (t * 8 + d) * 4)
    def Lr(t): return R("a", 224 + 4 * t)
    ONES = R("a", 252)
    def Af(i): return 4 * (i % 4)
    def Bf(par, nt): return 16 + (par * 7 + nt) * 4

    OFLAG = (' ' + os.environ['OFLAG']) if os.environ.get('OFLAG') else ''
    if FUSED: OFLAG = ' sc1'
    kvf = (" " + KVFLAG) if KVFLAG else ""

    P = Prog()
    P(f"""
.globl {name}
.p2align 8
.type {name},@function
{name}:
s_cmp_ge_u32 s2, 256
s_cbranch_scc1 {name}_done
s_load_dwordx8 s[4:11], s[0:1], 0
s_load_dwordx8 s[12:19], s[0:1], 40
s_load_dwordx2 s[20:21], s[0:1], 96
s_load_dwordx2 s[22:23], s[0:1], 32
s_load_dwordx2 s[76:77], s[0:1], 72
""")
    if STAMP: P("s_memtime s[80:81]\ns_memrealtime s[98:99]")
    P(f"""
v_lshrrev_b32 v10, 6, v0
v_and_b32 v{vL}, 63, v0
s_and_b32 s{sT0}, s2, 7
v_readfirstlane_b32 s{sW}, v10
s_lshr_b32 s{sT1}, s2, 3
s_lshr_b32 s{sBLK}, s{sT0}, 2
s_and_b32 s{sT0}, s{sT0}, 3
""")
    if MAPPING == 1:
        P(f"""
s_lshl_b32 s{sKVH}, s{sT0}, 2
s_and_b32 s{sT2}, s{sT1}, 3
s_add_u32 s{sKVH}, s{sKVH}, s{sT2}
s_lshr_b32 s{sBP}, s{sT1}, 2
""")
    elif MAPPING == 3:
        for m_ in range(48): assert (m_ * 52) >> 8 == m_ // 5 and (m_ * 43) >> 8 == m_ // 6
        P(f"""
s_lshl_b32 s{sT0}, s{sT0}, 5
s_add_u32 s{sT0}, s{sT0}, s{sT1}
s_mov_b32 s{sT1}, 0
s_mov_b32 s{sT2}, 0
s_mov_b32 s{sT3}, 52
s_mov_b32 s{sT4}, 5
s_cmp_ge_u32 s{sT0}, 40
s_cselect_b32 s{sT1}, 40, s{sT1}
s_cselect_b32 s{sT2}, 5, s{sT2}
s_cselect_b32 s{sT3}, 43, s{sT3}
s_cselect_b32 s{sT4}, 6, s{sT4}
s_cmp_ge_u32 s{sT0}, 88
s_cselect_b32 s{sT1}, 88, s{sT1}
s_cselect_b32 s{sT2}, 11, s{sT2}
s_cselect_b32 s{sT3}, 52, s{sT3}
s_cselect_b32 s{sT4}, 5, s{sT4}
s_sub_u32 s{sT0}, s{sT0}, s{sT1}
s_mul_i32 s{sBP}, s{sT0}, s{sT3}
s_lshr_b32 s{sBP}, s{sBP}, 8
s_mul_i32 s{sT4}, s{sBP}, s{sT4}
s_sub_u32 s{sT0}, s{sT0}, s{sT4}
s_add_u32 s{sKVH}, s{sT0}, s{sT2}
""")
    else:
        P(f"""
s_lshl_b32 s{sBP}, s{sT0}, 1
s_and_b32 s{sT2}, s{sT1}, 1
s_add_u32 s{sBP}, s{sBP}, s{sT2}
s_lshr_b32 s{sKVH}, s{sT1}, 1
""")
    P(f"""
s_lshr_b32 s{sBL}, s{sW}, 1
s_and_b32 s{sHH}, s{sW}, 1
""")
    if CPF:
        P(f"""
s_getpc_b64 s[96:97]
{name}_pc:
s_sub_u32 s96, s96, {name}_pc-{name}
s_subb_u32 s97, s97, 0
s_lshr_b32 s{sT0}, s2, 3
s_lshl_b32 s{sT0}, s{sT0}, 2
s_add_u32 s{sT0}, s{sT0}, s{sW}
s_lshl_b32 s{sT0}, s{sT0}, 9
v_lshl_add_u32 v13, v{vL}, 3, s{sT0}
s_mov_b32 s{sT0}, code_end-{name}-4
v_min_u32 v13, s{sT0}, v13
""")
    def code_touch():
        d = I(f"global_load_dword v{vDum}, v13, s[96:97]"); d.defs = set()
        return [[d]]
    P(f"""
v_lshrrev_b32 v10, 5, v{vL}
v_and_b32 v11, 31, v{vL}
s_lshl_b32 s{sT0}, s{sHH}, 3
v_lshlrev_b32 v12, 1, v10
v_or_b32 v12, s{sT0}, v12
v_xor_b32 v12, v12, v11
v_lshlrev_b32 v18, 13, v10
v_lshl_add_u32 v{vWd[0]}, v12, 4, v18
v_add_u32 v{vWd[2]}, {4*8192-2048}, v{vWd[0]}
v_xor_b32 v12, 4, v12
v_lshl_add_u32 v{vWd[1]}, v12, 4, v18
v_add_u32 v{vWd[1]}, {2*8192-1024}, v{vWd[1]}
v_add_u32 v{vWd[3]}, {4*8192-2048}, v{vWd[1]}
""")
    P(f"""
v_lshrrev_b32 v10, 3, v{vL}
v_mul_u32_u24 v10, 1152, v10
v_lshrrev_b32 v11, 4, v{vL}
v_and_b32 v12, 7, v{vL}
v_xor_b32 v11, v11, v12
s_lshl_b32 s{sT0}, s{sHH}, 2
v_xor_b32 v11, s{sT0}, v11
v_lshl_add_u32 v{vXd[0]}, v11, 4, v10
v_xor_b32 v11, 4, v11
v_lshl_add_u32 v{vXd[1]}, v11, 4, v10
""")
    krot_code = f"""s_lshr_b32 s{sT0}, s2, 3
s_mul_i32 s{sT0}, s{sT0}, 5
s_and_b32 s{sT1}, s2, 7
s_lshl_b32 s{sT1}, s{sT1}, 1
s_add_u32 s{sT0}, s{sT0}, s{sT1}
s_lshl_b32 s{sT1}, s{sBL}, 3
s_add_u32 s{sT0}, s{sT0}, s{sT1}
s_and_b32 s{sT0}, s{sT0}, 15
s_lshl_b32 s{sKVoff}, s{sT0}, 13""" if KROT else f"s_mov_b32 s{sKVoff}, 0"
    rot_code = f"""s_and_b32 s{sT0}, s{sKVH}, 3
s_lshl_b32 s{sT0}, s{sT0}, 1
s_add_u32 s{sT0}, s{sT0}, s{sBP}
s_cmp_ge_u32 s{sT0}, 9
s_cselect_b32 s{sT1}, 9, 0
s_sub_u32 s{sT0}, s{sT0}, s{sT1}
s_lshl_b32 s{sT1}, s{sT0}, 19
s_add_u32 s{sWQoff}, s{sWQoff}, s{sT1}
s_lshl_b32 s{sT1}, s{sT0}, 7
s_add_u32 s{sXoff}, s{sXoff}, s{sT1}""" if ROT else ""
    P(f"""
s_lshl_b32 s{sWQoff}, s{sW}, 16
s_lshl_b32 s{sT0}, s{sKVH}, 9
s_add_u32 s{sWQoff}, s{sWQoff}, s{sT0}
s_mul_i32 s{sXoff}, s{sW}, {56*1152}
s_lshl_b32 s{sWQm0}, s{sW}, 12
s_add_u32 s{sWQm0}, s{sWQm0}, {WB+32768}
s_mul_i32 s{sXm0}, s{sW}, {7*1024}
s_add_u32 s{sT0}, s{sXm0}, {XB[1]}
s_add_u32 s{sXm0}, s{sXm0}, {XB[0]}
s_xor_b32 s{sXrd}, s{sXm0}, s{sT0}
s_mul_i32 s{sKVm0}, s{sW}, {KVT}
s_add_u32 s{sWend}, s{sWQoff}, {576*8192}
s_add_u32 s{sXend}, s{sXoff}, 1152
{rot_code}
{krot_code}
s_mov_b32 s{sK16}, 16384
s_mov_b32 s{sKm48}, {(-3*16384) & 0xffffffff}
s_mov_b32 s{sKKVS}, {KVS}
s_mov_b32 s{sKm3KVS}, {(-3*KVS) & 0xffffffff}
s_mov_b32 s{sWQw}, 2
s_mov_b32 s{sKVw}, 0
s_waitcnt lgkmcnt(0)
s_cmp_eq_u32 s{sBLK}, 0
s_cselect_b64 s[4:5], s[4:5], s[12:13]
s_cselect_b64 s[6:7], s[6:7], s[14:15]
s_cselect_b64 s[8:9], s[8:9], s[16:17]
s_cselect_b64 s[10:11], s[10:11], s[18:19]
s_cselect_b64 s[22:23], s[22:23], s[76:77]
s_mul_i32 s{sT0}, s{sBP}, 258048
s_add_u32 s{SX}, s4, s{sT0}
s_addc_u32 s{SX+1}, s5, 0
s_mov_b32 s{SX+2}, 258048
s_mov_b32 s{SX+3}, 0x00020000
s_mov_b32 s{SWQ}, s10
s_mov_b32 s{SWQ+1}, s11
s_mov_b32 s{SWQ+2}, 4718592
s_mov_b32 s{SWQ+3}, 0x00020000
""")

    stamp(P, 20, STAMP and bool(os.environ.get("PSTAMP")))
    def flat(groups): return [i for g in groups for i in g]
    def dma_wq(stage):
        out = [[I(f"s_mov_b32 m0, s{sWQm0}"), I(f"s_add_u32 s{sWQw}, s{sWQw}, 1")]]
        for k in range(4):
            d = I(f"buffer_load_dwordx4 v{vWd[k]}, s[{SWQ}:{SWQ+3}], s{sWQoff} offen offset:{1024*k} lds")
            d.defs = {("wq", stage)}; out.append([d])
        out += [[I(f"s_add_u32 s{sWQoff}, s{sWQoff}, {32*8192}")],
                [I(f"s_and_b32 s{sWQw}, s{sWQw}, 3"),
                 I(f"s_cselect_b32 s{sT0}, s{sK16}, s{sKm48}")],
                [I(f"s_add_u32 s{sWQm0}, s{sWQm0}, s{sT0}")]]
        if ROT and stage % 2 == 1:
            out += [[I(f"s_cmp_ge_u32 s{sWQoff}, s{sWend}"), I(f"s_cselect_b32 s{sT0}, {576*8192}, 0")],
                    [I(f"s_sub_u32 s{sWQoff}, s{sWQoff}, s{sT0}")]]
        return out
    def dma_x(stage, part):
        out = [[I(f"s_add_u32 m0, s{sXm0}, {4096*part}")]]
        for i in (range(4) if part == 0 else range(4, 7)):
            d = I(f"buffer_load_dwordx4 v{vXd[i&1]}, s[{SX}:{SX+3}], s{sT1} offen offset:{1024*(i%4)} lds")
            d.defs = {("x", stage)}
            out.append([I(f"s_add_u32 s{sT1}, s{sXoff}, {i*9216 - 1024*(i%4)}"), d])
        if part == 1:
            out.append([I(f"s_add_u32 s{sXoff}, s{sXoff}, 128")])
            if ROT:
                out += [[I(f"s_cmp_ge_u32 s{sXoff}, s{sXend}"), I(f"s_cselect_b32 s{sT1}, 1152, 0")],
                        [I(f"s_sub_u32 s{sXoff}, s{sXoff}, s{sT1}")]]
            out.append([I(f"s_xor_b32 s{sXm0}, s{sXm0}, s{sXrd}")])
        return out
    def dma_kv(stage):
        out = []
        for half in range(2):
            out.append([I(f"s_add_u32 m0, s{sKVm0}, {4352*half}"),
                        I(f"s_add_u32 s{sKVw}, s{sKVw}, 1") if half == 0 else I(f"s_add_u32 s{sKVoff}, s{sKVoff}, 4096")])
            for k in range(4):
                d = I(f"buffer_load_dwordx4 v{vKVd[k]}, s[{SKV}:{SKV+3}], s{sKVoff} offen offset:{1088*k}{kvf} lds")
                d.defs = {("kv", stage)}; out.append([d])
        out += [[I(f"s_and_b32 s{sT0}, s{sKVw}, 3"), I(f"s_cselect_b32 s{sT0}, s{sKKVS}, s{sKm3KVS}")],
                [I(f"s_add_u32 s{sKVoff}, s{sKVoff}, 4096"), I(f"s_add_u32 s{sKVm0}, s{sKVm0}, s{sT0}")]]
        if KROT: out += [[I(f"s_and_b32 s{sKVoff}, s{sKVoff}, 0x1ffff")]]
        if stage >= DIST:
            out += [[I(f"s_cmp_eq_u32 s{sKVw}, 16"), I(f"s_cselect_b64 s[{SKV}:{SKV+1}], s[12:13], s[{SKV}:{SKV+1}]"),
                     I(f"s_cselect_b32 s{SKV+2}, {9216+192 if WOT == 1 else 0}, s{SKV+2}"), I(f"s_cselect_b32 s{sKVoff}, 0, s{sKVoff}")]]
        return out

    def kv0_piece():
        d = I(f"buffer_load_dwordx4 v{vKVd[0]}, s[{SKV}:{SKV+3}], s19 offen{kvf} lds"); d.defs = {("kv", 0)}
        o = [[I("s_mov_b32 m0, s17"), I("s_add_u32 s17, s17, 1088")], [d], [I("s_add_u32 s19, s19, 1024")]]
        if THIN:
            t = I(f"buffer_load_dword v{vDum}, v12, s[{SKV}:{SKV+3}], s18 offen offset:192"); t.defs = set()
            o[1].append(t)
            o.append([I(f"s_add_u32 s18, s18, {64 << THIN}")])
        return o
    tf = (" " + TFLAG) if TFLAG else ""
    def touch(vreg, step):
        d = I(f"buffer_load_dword v{vDum}, v{vreg}, s[{SKV}:{SKV+3}], s{sTo} offen{tf}")
        d.defs = set()
        return [[d], [I(f"s_add_u32 s{sTo}, s{sTo}, {step}")]]
    def qtouch():
        d = I(f"buffer_load_dword v{vDum}, v{vTq}, s[{SKV}:{SKV+3}], s{sTo} offen offset:192{tf}")
        d.defs = set()
        lg = {2: 1, 4: 2, 8: 3}[PPS]
        return [[I(f"s_lshr_b32 s{sTo}, s17, {lg}")], [I(f"s_mul_i32 s{sTo}, s{sTo}, {TSTEP*8192}")],
                [I(f"s_add_u32 s{sTo}, s{sTo}, s18")], [I(f"s_and_b32 s{sTo}, s{sTo}, 0x1ffff")],
                [I(f"s_and_b32 s19, s17, {PPS-1}")], [I(f"s_lshl_b32 s19, s19, {13-lg}")],
                [I(f"s_add_u32 s{sTo}, s{sTo}, s19"), d], [I("s_add_u32 s17, s17, 1")]]
    pre_list = [dma_wq(0), dma_x(0, 0), dma_x(0, 1), dma_wq(1), dma_x(1, 0), dma_wq(2)]
    for gl in pre_list[:NPRO]: P.ext(flat(gl))
    if CPF & 1: P.ext(flat(code_touch()))
    P(f"""
s_cmp_eq_u32 s{sHH}, 0
s_cselect_b64 s[6:7], s[6:7], s[8:9]
s_lshl_b32 s{sT0}, s{sBP}, 1
s_add_u32 s{sT0}, s{sT0}, s{sBL}
s_lshl_b32 s{sT1}, s{sT0}, 4
s_add_u32 s{sT1}, s{sT1}, s{sKVH}
s_lshl_b32 s{sT1}, s{sT1}, 17
s_add_u32 s{SKV}, s6, s{sT1}
s_addc_u32 s{SKV+1}, s7, 0
s_sub_u32 s{SKV}, s{SKV}, 192
s_subb_u32 s{SKV+1}, s{SKV+1}, 0
s_mov_b32 s{SKV+2}, {131072+192}
s_mov_b32 s{SKV+3}, 0x00020000
s_lshl_b32 s{sT1}, s{sBLK}, 4
s_add_u32 s{sT0}, s{sT0}, s{sT1}
s_mul_i32 s{sT0}, s{sT0}, {7*TS}
s_lshl_b32 s{sT1}, s{sKVH}, 1
s_add_u32 s{sT1}, s{sT1}, s{sHH}
s_lshl_b32 s{sT1}, s{sT1}, 12
s_add_u32 s{sT0}, s{sT0}, s{sT1}
s_add_u32 s{SO}, s20, s{sT0}
s_addc_u32 s{SO+1}, s21, 0
s_mov_b32 s{SO+2}, {6*TS+4096}
s_mov_b32 s{SO+3}, 0x00020000
v_lshrrev_b32 v10, 4, v{vL}
v_and_b32 v11, 1, v10
v_lshlrev_b32 v11, 1, v11
v_lshrrev_b32 v12, 1, v10
v_lshl_or_b32 v11, v12, 3, v11
s_cmp_eq_u32 s{sHH}, 0
s_cselect_b64 vcc, -1, 0
v_cndmask_b32 v11, v11, v10, vcc
v_and_b32 v12, 15, v{vL}
v_xor_b32 v11, v11, v12
v_lshlrev_b32 v11, 4, v11
v_lshl_add_u32 v11, v10, 8, v11
v_add_u32 v{vKVd[0]}, 192, v11
v_add_u32 v{vKVd[1]}, 128, v11
v_add_u32 v{vKVd[2]}, 64, v11
v_mov_b32 v{vKVd[3]}, v11
""")
    if TOUCH: P(f"v_lshlrev_b32 v{vTq}, {7 - {2: 1, 4: 2, 8: 3}[PPS]}, v{vL}\ns_mov_b32 s17, 0\ns_add_u32 s18, s{sKVoff}, {TS0*8192}")
    P(f"""
s_lshl_b32 s{sT0}, s{sKVH}, 3
s_add_u32 s{sT0}, s{sT0}, s{sBP}
s_lshl_b32 s{sT0}, s{sT0}, 2
s_add_u32 s{sT0}, s{sT0}, s{sW}
s_mul_i32 s{sT0}, s{sT0}, 9216
s_add_u32 s12, s22, s{sT0}
s_addc_u32 s13, s23, 0
s_sub_u32 s12, s12, 192
s_subb_u32 s13, s13, 0
""")
    P("s_mov_b32 s16, 0")
    if KV0AT < 0:
        assert not KROT and not TOUCH and not FUSED
        P(f"s_mov_b32 s17, s{sKVm0}\ns_mov_b32 s19, 0\ns_add_u32 s{sKVm0}, s{sKVm0}, {KVS}\ns_mov_b32 s{sKVoff}, 8192\ns_mov_b32 s{sKVw}, 1")
        if THIN: P(f"s_mov_b32 s18, {TS0*8192}\nv_lshlrev_b32 v12, {THIN}, v{vL}")
    if TLBW:
        P(f"s_mov_b32 s14, {9216+192}\ns_mov_b32 s15, 0x00020000\nv_mov_b32 v12, 192")
        for srd in ((SKV, 12, SO) if TLBW > 1 else (SKV,)):
            d = I(f"buffer_load_dword v{vDum}, v12, s[{srd}:{srd+3}], 0 offen"); d.defs = set(); P.ext([d])
    if FUSED:
        P(f"""
s_lshl_b32 s90, s{sBLK}, 3
s_add_u32 s90, s90, s{sBP}
s_lshl_b32 s90, s90, 7
s_lshl_b32 s{sT0}, s{sKVH}, 2
s_add_u32 s90, s90, s{sT0}
s_add_u32 s90, s90, 32768
s_mov_b32 s91, s{sW}
s_load_dwordx2 s[92:93], s[0:1], 88
s_memrealtime s[18:19]
s_waitcnt lgkmcnt(0)
s_mov_b32 s94, 256
s_mov_b32 s95, 0x00020000
s_or_b32 s{sT0}, s2, s{sW}
s_cmp_lg_u32 s{sT0}, 0
s_cbranch_scc1 {name}_nn
s_or_b32 s18, s18, 1
v_mov_b32 v10, s18
v_mov_b32 v11, 0
s_mov_b64 exec, 1""")
        ns_ = I("buffer_store_dword v10, v11, s[92:95], 0 offen sc1"); ns_.kind = "misc"
        P.ext([ns_])
        P(f"s_mov_b64 exec, -1\n{name}_nn:")
    def wo_touch():
        d = I(f"buffer_load_dword v{vDum}, v{vKVd[3]}, s[12:15], s16 offen"); d.defs = set()
        return [[d], [I("s_add_u32 s16, s16, 1024")]]
    P(f"""
v_lshrrev_b32 v32, 4, v{vL}
v_bfe_u32 v33, v{vL}, 2, 2
v_lshl_add_u32 v34, v32, 3, v33
v_lshlrev_b32 v34, 9, v34
v_and_b32 v35, 1, v32
v_lshl_or_b32 v35, v35, 2, v33
v_lshl_add_u32 v34, v35, 5, v34
v_and_b32 v35, 3, v{vL}
v_lshl_add_u32 v34, v35, 3, v34
s_lshl_b32 s{sT0}, s{sHH}, 8
s_add_u32 s{sT0}, s{sT0}, {WB+32768}
v_add_u32 v{vWa[0]}, s{sT0}, v34
""")
    for mt in range(1, 8): P(f"v_xor_b32 v{vWa[mt]}, {32*mt}, v{vWa[0]}")
    P(f"""
v_and_b32 v33, 15, v{vL}
v_lshrrev_b32 v34, 1, v33
v_xor_b32 v34, v34, v32
v_lshlrev_b32 v34, 4, v34
v_lshl_add_u32 v34, v33, 7, v34
s_mul_i32 s{sT0}, s{sBL}, {112*128}
s_add_u32 s{sT0}, s{sT0}, {XB[0]}
v_add_u32 v{vXa[0]}, s{sT0}, v34
v_xor_b32 v{vXa[1]}, 64, v{vXa[0]}
s_mov_b32 s{sC}, {f2u(CSCALE)}
s_mov_b32 s{sC+1}, {f2u(CSCALE)}
s_mov_b32 s{sNC}, {f2u(-CSCALE)}
s_mov_b32 s{sTH}, {f2u(THRESH / CSCALE if SOFT else THRESH)}
s_mov_b32 s{sCNT}, 0
""")

    P(f"""
v_and_b32 v36, 15, v{vL}
v_lshrrev_b32 v37, 4, v{vL}
v_lshrrev_b32 v38, 2, v36
v_and_b32 v39, 3, v36
v_mul_u32_u24 v40, 1088, v38
v_lshl_add_u32 v40, v39, 8, v40
v_xor_b32 v41, v37, v39
v_lshl_add_u32 v40, v41, 4, v40
s_mul_i32 s{sT0}, s{sBL}, {2*KVT}
v_add_u32 v{vKa}, s{sT0}, v40
""")
    P(f"""
v_mul_u32_u24 v40, 1088, v37
v_lshl_add_u32 v40, v38, 8, v40
v_lshl_add_u32 v40, v39, 3, v40
s_add_u32 s{sT0}, s{sT0}, {KVT}
v_add_u32 v40, s{sT0}, v40
v_and_b32 v41, 1, v38
v_lshrrev_b32 v36, 1, v38
v_lshl_or_b32 v41, v36, 2, v41
""")
    for u in range(4):
        pat = (u & 1) | ((u >> 1) << 2)
        P(f"v_xor_b32 v36, {pat}, v41\nv_lshl_add_u32 v{vVa[u]}, v36, 5, v40")
    P(f"s_mov_b32 s{sKd}, 0\ns_mov_b32 s{sVd}, 0")
    P(f"v_mov_b32 v36, 0x3f803f80\nv_mov_b32 v37, 0")
    for i in range(4): P(f"v_accvgpr_write_b32 a{252+i}, v36")
    for i in range(32): P(f"v_accvgpr_write_b32 a{6*32+i}, v37")
    for i in range(4): P(f"v_accvgpr_write_b32 a{224+24+i}, v37")

    def a_reads(ks, mt, slot=None):
        out = []
        for half in range(2):
            r = Af(mt if slot is None else slot) + 2 * half
            d = I(f"ds_read_b64_tr_b16 a[{r}:{r+1}], v{vWa[mt]} offset:{2048*half + 16384*(ks&1)}")
            d.defs |= {("wqrd", ks)}; out.append(d)
        return out
    def b_read(ks, nt):
        r = Bf(ks & 1, nt)
        d = I(f"ds_read_b128 a[{r}:{r+3}], v{vXa[ks&1]} offset:{2048*nt}")
        d.defs |= {("xrd", ks >> 1)}
        return d
    def qbarrier(i):
        b = I("s_barrier")
        b.uses = {("wq", i), ("wqrd", i - 1)}
        if i % 2 == 0: b.uses |= {("x", i // 2)}
        else: b.uses |= {("xrd", i // 2)}
        if i == 18: b.uses |= {("kv", 0)}
        if i == 16 and GMAJ: b.uses |= {("wq", 17)} | (set() if LATEKV else {("kv", 0)})
        return b

    stamp(P, 21, STAMP and bool(os.environ.get("PSTAMP")))
    P.ext([qbarrier(0)])
    P.ext(a_reads(0, 0)); P.ext([b_read(0, nt) for nt in range(7)]); P.ext(a_reads(0, 1))
    stamp(P, 1, STAMP)
    inst = [("pre", P.L)]

    def conv_group(g, nt, plain=False):
        r = grp(g, nt)
        o = []
        if not SOFT and plain:
            for q in range(8): o.append(I(f"v_mul_f32 v{r+q}, s{sC}, v{r+q}"))
        elif not SOFT:
            for q in range(4): o.append(I(f"v_pk_mul_f32 v[{r+2*q}:{r+2*q+1}], v[{r+2*q}:{r+2*q+1}], s[{sC}:{sC+1}]"))
        for q in range(4): o.append(I(f"v_cvt_pk_bf16_f32 v{r+q}, v{r+2*q}, v{r+2*q+1}"))
        return o
    def swap_group(g, nt):
        r = grp(g, nt)
        return ([I(f"v_permlane32_swap_b32 v{r}, v{r+2}"), I(f"v_permlane32_swap_b32 v{r+1}, v{r+3}")],
                [I(f"v_permlane16_swap_b32 v{r}, v{r+2}"), I(f"v_permlane16_swap_b32 v{r+1}, v{r+3}")])

    sXdelta = 59
    inst[0][1].append(I(f"s_mov_b32 s{sXdelta}, {(XB[1]-XB[0]) & 0xffffffff}"))
    inst[0][1].append(I(f"s_mov_b32 s{sWrd}, {(-32768) & 0xffffffff}"))

    def dma_in(ks):
        lst = []
        k = ks // 2
        if ks == 0:
            for gl in pre_list[NPRO:]: lst += gl
        if ks % 2 == 0:
            if k + 1 <= 8: lst += dma_x(k + 1, 1)
            if ks + 3 <= 17: lst += dma_wq(ks + 3)
        else:
            if ks + 3 <= 17: lst += dma_wq(ks + 3)
            if k + 2 <= 8: lst += dma_x(k + 2, 0)
        if KV0AT >= 0:
            if ks == KV0AT: lst += dma_kv(0)
        elif ks % 2 == 1 and ks <= 13 or ks == 14: lst += kv0_piece()
        if ks == 14 and (CPF & 2): lst += code_touch()
        if ks == 15: lst += dma_kv(1)
        if ks == 17 and DIST >= 3: lst += dma_kv(2)
        if (TOUCH & 1) and 2 <= ks <= 17:
            for _ in range(TPK): lst += qtouch()
        return lst

    def k_read(j, sub, g):
        r = Kf[sub][g]
        d = I(f"ds_read_b128 v[{r}:{r+3}], v{vKa} offset:{64*g + 4352*sub}")
        d.defs |= {("krd", j)}
        return d
    def v_reads(j, dt):
        u = (dt & 1) | ((dt >> 2) << 1)
        out = []
        for half in range(2):
            r = Vf[dt] + 2 * half
            d = I(f"ds_read_b64_tr_b16 v[{r}:{r+1}], v{vVa[u]} offset:{64*((dt>>1)&1) + 4352*half}")
            d.defs |= {("vrd", j)}; out.append(d)
        return out
    CWIN = 111 if SOFT else 12
    def qlast():
        F = [(16 + (i >> 1 & 1), 2 * (i >> 2) + (i & 1)) for i in range(16)]
        mf = []
        for i, (ks, mt) in enumerate(F):
            for nt in range(7):
                c = R("v", acc(mt, nt))
                mf.append(m16(c, R("a", Af(i)), R("a", Bf(ks & 1, nt)), c))
        S = Sched2(mf)
        for i in range(14): S.stream(a_reads(*F[i + 2], slot=i + 2), 7 * i, 7 * i + 3)
        S.stream([b_read(17, nt) for nt in range(7)], 2, 10)
        b = I("s_barrier"); b.uses = {("xrd", 8)}
        S.put(20, b)
        if DIST >= 3: spaced(S, dma_kv(2), 21 + KV2D, 105, 6)
        if LATEKV:
            b = I("s_barrier"); b.uses = {("kv", 0)}
            S.put(LATEKV, b)
        done = {}
        for g in range(3):
            for nt in range(7):
                lo = 28 * g + 21 + nt + 4
                lo = S.stream(conv_group(g, nt, True), lo, min(lo + CWIN, 111))
                done[(g, nt)] = lo
                s0, s1 = swap_group(g, nt)
                lo = S.stream(s0, min(lo + 2, 111), 111)
                S.stream(s1, min(lo + 2, 111), 111)
        hole_owner = [(g, nt) for g in range(4) for nt in range(7)]
        lo = max(60, LATEKV + 1)
        for sub in range(2):
            for g in range(4): lo = S.place(k_read(0, sub, g), max(lo, done[hole_owner[4 * sub + g]] + 1), 111)
        for dt in range(8):
            for d in v_reads(0, dt): lo = S.place(d, max(lo, done[hole_owner[8 + dt]] + 1), 111)
        return S

    def qstep(ks):
        mf = []
        for mt in range(8):
            for nt in range(7):
                c = R("v", acc(mt, nt))
                mf.append(m16(c, R("a", Af(mt)), R("a", Bf(ks & 1, nt)), "0" if ks == 0 else c))
        S = Sched2(mf)
        for mt in range(6):
            S.stream(a_reads(ks, mt + 2), 7 * mt, 7 * mt + 3)
        nxt = ks + 1
        if ks % 2 == 0:
            S.stream([b_read(nxt, nt) for nt in range(7)], 2, 20)
        if nxt < 18:
            if nxt % 2 == 0:
                S.stream([I(f"v_add_u32 v{vXa[0]}, s{sXdelta}, v{vXa[0]}"), I(f"v_add_u32 v{vXa[1]}, s{sXdelta}, v{vXa[1]}"),
                          I(f"s_sub_u32 s{sXdelta}, 0, s{sXdelta}")], 20, 36)
                advs = [I(f"v_add_u32 v{vWa[mt]}, s{sWrd}, v{vWa[mt]}") for mt in range(8)]
                S.stream(advs[:7], 32, 40)
                S.put(40, advs[7])
                S.put(41, I(f"s_sub_u32 s{sWrd}, 0, s{sWrd}"))
            S.put(42, qbarrier(nxt))
            S.stream(a_reads(nxt, 0), 42, 45)
            if nxt % 2 == 0: S.stream([b_read(nxt, nt) for nt in range(7)], 43, 52)
            S.stream(a_reads(nxt, 1), 49, 53)
        items = dma_in(ks)
        nd = sum(1 for g_ in items for i_ in g_ if i_.kind in ("dma", "vload"))
        if nd: spaced(S, items, 1, 55, max(2, min(QSTEP, 52 // nd)))
        return S

    for k in range(9):
        Ss = [qlast()] if (k == 8 and GMAJ) else [qstep(2 * k), qstep(2 * k + 1)]
        if k == 8 and verbose: print('q8 est', sum(S.est() for S in Ss))
        code = []
        key = "qloop" if 1 <= k <= 6 else f"q{k}"
        if key == "qloop": code.append(I(f"{name}_qloop:"))
        for S in Ss: code += S.emit()
        if key == "qloop":
            code += [I(f"s_add_u32 s{sCNT}, s{sCNT}, 1"), I(f"s_cmp_lt_u32 s{sCNT}, 6"), I(f"s_cbranch_scc1 {name}_qloop")]
        inst.append((key, code))
        if STAMP and k in (0, 6):
            T_ = Prog(); stamp(T_, 6 if k == 0 else 7, True); inst.append((f"st{k}", T_.L))

    C = Prog()
    if not GMAJ: C.ext([qbarrier(18)])
    assert not GMAJ or DIST == 3
    if TOUCH & 2: C(f"v_lshlrev_b32 v{vTa}, 7, v{vL}")
    late = dma_kv(3) if DIST >= 4 else []
    if TOUCH & 2:
        first_t = 5 if (TOUCH & 1) else 4
        late += [[I(f"s_mov_b32 s{sTo}, {first_t*8192+192}")]]
        for st_ in range(first_t, 4 + TD): late += touch(vTa, 8192)
    stamp(C, 2, STAMP)
    C(f"s_mov_b32 s{sCNT}, 0\ns_nop 4")
    groups = [(g, nt) for nt in range(7) for g in range(4) if (g == 3 or not GMAJ)]
    prev = None
    for i, (g, nt) in enumerate(groups):
        if late: C.ext(late.pop(0))
        C.ext(conv_group(g, nt))
        if i >= 1: C.ext(swap_group(*groups[i - 1])[0])
        if i >= 2: C.ext(swap_group(*groups[i - 2])[1])
    C("s_nop 1")
    C.ext(swap_group(*groups[-1])[0]); C.ext(swap_group(*groups[-2])[1]); C("s_nop 1"); C.ext(swap_group(*groups[-1])[1])

    def adv(sreg, vregs, st):
        return [[I(f"s_add_u32 s{sreg}, s{sreg}, 1")], [I(f"s_and_b32 s{sreg}, s{sreg}, 3"),
                I(f"s_cselect_b32 s{st}, s{sKKVS}, s{sKm3KVS}")]] + \
               [[I(f"v_add_u32 v{v}, s{st}, v{v}")] for v in vregs]
    def abarrier(j):
        b = I("s_barrier"); b.uses = {("kv", j + 1), ("krd", j), ("vrd", j), ("wqrd", 16), ("wqrd", 17)}
        return b
    def qk(t, zero):
        o = []
        for sub in range(2):
            d = R("v", Sb[sbuf(t)][sub])
            for g in range(4):
                c = d if g else ("0" if (zero or SOFT) else R("v", Ci[t]))
                o.append(m16(d, R("v", Kf[sub][g]), Q(t, g), c))
        return o
    def pv(t, zero):
        o = [m16(O(t, d), R("v", Vf[d]), R("v", Pf), "0" if zero else O(t, d)) for d in range(8)]
        if not VSUM: o.append(m16(Lr(t), ONES, R("v", Pf), "0" if zero else Lr(t)))
        return o
    def sregs(t): return [Sb[sbuf(t)][0] + i for i in range(4)] + [Sb[sbuf(t)][1] + i for i in range(4)]

    if not GMAJ:
        for sub in range(2):
            for g in range(4): C.ext([k_read(0, sub, g)])
        for dt in range(8): C.ext(v_reads(0, dt))
    C.ext(qk(0, True))
    stamp(C, 3, STAMP)
    inst.append(("conv", C.L))

    slow = Prog()
    def epi_tile(t, U, sfx):
        LS = Ci[t] + 2; X = Ci[t] + 3; INV = Ci[t]
        if VSUM:
            o = [f"v_mov_b32 v{X}, v{LS}", "s_nop 1", f"v_permlane32_swap_b32 v{X}, v{LS}", f"v_add_f32 v{LS}, v{LS}, v{X}",
                 f"v_mov_b32 v{X}, v{LS}", "s_nop 1", f"v_permlane16_swap_b32 v{X}, v{LS}", f"v_add_f32 v{LS}, v{LS}, v{X}",
                 f"v_rcp_f32 v{INV}, v{LS}"]
        else:
            o = [f"v_accvgpr_read_b32 v{LS}, a{224+4*t}", f"v_rcp_f32 v{INV}, v{LS}"]
        o = [[I(x)] for x in o]
        for g in range(4):
            val = [U[0] + i for i in range(4)] + [U[1] + i for i in range(4)]
            out = U[2 + (g & 1)]
            for i in range(8): o.append([I(f"v_accvgpr_read_b32 v{val[i]}, a{(t*8+2*g)*4+i}")])
            for i in range(8): o.append([I(f"v_mul_f32 v{val[i]}, v{val[i]}, v{INV}")])
            for q in range(4): o.append([I(f"v_cvt_pk_bf16_f32 v{out+q}, v{val[2*q]}, v{val[2*q+1]}")])
            st = I(f"buffer_store_dwordx4 v[{out}:{out+3}], v{vKa}, s[{SO}:{SO+3}], s{sT3} offen offset:{1024*g}{OFLAG}")
            st.defs = {("ostore", 0)}
            o.append(([I(f"s_mov_b32 s{sT3}, {t*TS}")] if g == 0 else []) + [st])
        return o
    def block(j, first, last=False):
        mf = []; base = []
        for s in range(7):
            base.append(len(mf))
            if not (first and s == 0): mf += pv((s - 1) % 7, first)
            if not (last and s == 6): mf += qk((s + 1) % 7, first and s < 6)
        base.append(len(mf))
        if last: mf += pv(6, False)
        S = Sched2(mf)
        NPV = 8 if VSUM else 9; SL = NPV + 8
        if not first:
            for n, gp in enumerate(VGAPS):
                dt = n // 2
                gp = min(gp, SL + dt - 4)
                assert dt <= gp
                S.put(gp, v_reads(j, dt)[n % 2])
        for i, gp in enumerate(KGAPS if not last else []):
            gp = gp - 9 + NPV
            assert NPV + i <= gp <= SL + NPV + i - 4
            S.put(base[5] + gp, k_read(j + 1, i // 4, i % 4))
        gb = base[2] + 1
        if not last: S.put(gb, abarrier(j))
        elif FUSED:
            b_ = abarrier(j); b_.uses |= {("kv", j + 2), ("kv", j + 3)}
            S.put(gb, b_)
            S.put(gb + 1, "v_mov_b32 v13, 0")
            S.put(gb + 3, "buffer_load_dword v13, v13, s[92:95], 0 offen sc1")
        for t in range(7):
            b0 = base[t]; sr = sregs(t); n = base[t + 1] - b0
            NM, TH, LS = Ci[t], Ci[t] + 1, Ci[t] + 2
            if first:
                ops = [f"v_max3_f32 v{vMX}, v{sr[0]}, v{sr[1]}, v{sr[2]}",
                       f"v_max3_f32 v{vMX}, v{vMX}, v{sr[3]}, v{sr[4]}",
                       f"v_max3_f32 v{vMX}, v{vMX}, v{sr[5]}, v{sr[6]}",
                       f"v_max_f32 v{vMX}, v{vMX}, v{sr[7]}",
                       f"v_mov_b32 v{vT}, v{vMX}", f"v_permlane32_swap_b32 v{vT}, v{vMX}",
                       f"v_max_f32 v{vMX}, v{vT}, v{vMX}",
                       f"v_mov_b32 v{vT}, v{vMX}", f"v_permlane16_swap_b32 v{vT}, v{vMX}",
                       f"v_max_f32 v{vMX}, v{vT}, v{vMX}"]
                if SOFT:
                    ops += [f"v_mul_f32 v{NM}, s{sNC}, v{vMX}"]
                    ops += [f"v_fma_f32 v{r}, v{r}, s{sC}, v{NM}" for r in sr]
                    ops += [f"v_add_f32 v{TH}, s{sTH}, v{vMX}"]
                else:
                    ops += [f"v_sub_f32 v{r}, v{r}, v{vMX}" for r in sr]
                ops += [f"v_exp_f32 v{r}, v{r}" for r in sr]
                if not SOFT: ops += [f"v_sub_f32 v{Ci[t]+i}, 0, v{vMX}" for i in range(4)]
                if VSUM:
                    ops += [f"v_add_f32 v{LS}, v{sr[0]}, v{sr[1]}"] + [f"v_add_f32 v{LS}, v{LS}, v{sr[i]}" for i in range(2, 8)]
                for i, o in enumerate(ops):
                    S.put(b0 + min(n - 2, 1 + (i * (n - 3)) // len(ops)), o)
                for q in range(4): S.put(b0 + n - 2, f"v_cvt_pk_bf16_f32 v{Pf+q}, v{sr[2*q]}, v{sr[2*q+1]}")
            elif SOFT:
                e0 = b0 + n - 1
                sx = "L" if last else ""
                gbr = S.put(e0, f"s_cbranch_vccnz {name}_slow{sx}{t}\n{name}_back{sx}{t}:")
                if VSUM: S.put(e0, f"v_add_f32 v{LS}, v{LS}, v{vTS}")
                ge = []
                for i in range(8):
                    tgt = b0 + (i * (n - 4)) // 8
                    gf = S.place(f"v_fma_f32 v{Er[i]}, v{sr[i]}, s{sC}, v{NM}", max(tgt, b0 + (3 if i >= 4 else 0)), min(max(tgt, b0 + 3) + 1, e0 - 3) if n > 8 else b0 + 3)
                    ge.append(S.place(f"v_exp_f32 v{Er[i]}, v{Er[i]}", gf + 1, min(gf + 2, e0 - 2)))
                cap = lambda x: min(x, e0 - 3)
                g1 = S.place(f"v_max3_f32 v{vMX}, v{sr[0]}, v{sr[1]}, v{sr[2]}", b0, cap(b0 + 6))
                g2 = S.place(f"v_max3_f32 v{vT}, v{sr[4]}, v{sr[5]}, v{sr[6]}", b0 + 3, cap(b0 + 8))
                g3 = S.place(f"v_max3_f32 v{vMX}, v{vMX}, v{sr[3]}, v{sr[7]}", max(g1, b0 + 3), cap(b0 + 10))
                g4 = S.place(f"v_max_f32 v{vMX}, v{vMX}, v{vT}", max(g2, g3), cap(b0 + 11))
                g5 = S.place(f"v_cmp_lt_f32 vcc, v{TH}, v{vMX}", g4, e0 - 2)
                for q in range(4):
                    S.place(f"v_cvt_pk_bf16_f32 v{Pf+q}, v{Er[2*q]}, v{Er[2*q+1]}", max(ge[2*q] + 1, ge[2*q+1] + 1, b0 + NPV - 1), max(e0 - 1, b0 + NPV - 1))
                if VSUM:
                    ga = S.place(f"v_add_f32 v{vTS}, v{Er[0]}, v{Er[1]}", ge[1] + 1, e0 - 1)
                    for i in range(2, 8):
                        ga = S.place(f"v_add_f32 v{vTS}, v{vTS}, v{Er[i]}", max(ga, ge[i] + 1), min(max(ga, ge[i] + 1) + 3, e0 - 1))
            else:
                sx = "L" if last else ""
                e0 = b0 + n - 1
                short = n < SL
                cap = (lambda x, d: min(x, e0 - d)) if short else (lambda x, d: x)
                g1 = S.place(f"v_max3_f32 v{vMX}, v{sr[0]}, v{sr[1]}, v{sr[2]}", b0, cap(b0 + 5, 5))
                g2 = S.place(f"v_max3_f32 v{vT}, v{sr[4]}, v{sr[5]}, v{sr[6]}", b0 + 3, cap(b0 + 7, 5))
                g3 = S.place(f"v_max3_f32 v{vMX}, v{vMX}, v{sr[3]}, v{sr[7]}", max(g1, b0 + 3), cap(b0 + 8, 4))
                g4 = S.place(f"v_max_f32 v{vMX}, v{vMX}, v{vT}", max(g2, g3), cap(b0 + 9, 4))
                g5 = S.place(f"v_cmp_lt_f32 vcc, s{sTH}, v{vMX}", g4, cap(b0 + 10, 3))
                gbr = S.place(f"s_cbranch_vccnz {name}_slow{sx}{t}\n{name}_back{sx}{t}:", g5 + 2, cap(b0 + 12, 1))
                ge = []
                for i in range(8):
                    ge.append(S.place(f"v_exp_f32 v{Er[i]}, v{sr[i]}", b0 + (3 if i >= 4 else 0), cap(b0 + 14, 1)))
                for q in range(4):
                    S.place(f"v_cvt_pk_bf16_f32 v{Pf+q}, v{Er[2*q]}, v{Er[2*q+1]}", max(ge[2*q] + 1, ge[2*q+1] + 1, gbr + 1, b0 + 8), cap(b0 + 15, 0))
        if last:
            S.put(0, f"v_lshlrev_b32 v{vKa}, 4, v{vL}")
            if WOT == 2:
                S.put(0, f"s_mov_b32 s14, {9216+192}\ns_mov_b32 s15, 0x00020000")
                for i in range(9):
                    d = I(f"buffer_load_dword v{vDum}, v{vKVd[0]}, s[12:15], s16 offen"); d.defs = set()
                    S.put(2 + 3 * i, [d, I("s_add_u32 s16, s16, 1024")])
            for t in range(5):
                lo = base[t + 1] + NPV + 3; hi = min(base[t + 2] + NPV + 2, len(mf) - 1)
                ops = epi_tile(t, [grp(g, t) for g in range(4)], "")
                for i, o_ in enumerate(ops): S.put(lo + (i * (hi - lo + 1)) // len(ops), o_)
            return S
        spaced(S, dma_kv(j + DIST) + (touch(vTa, 8192) if TOUCH & 2 else []), gb + 1 + DLATE, min(base[5] + 6 + DLATE, len(mf) - 2), DSTEP)
        S.stream(adv(sVd, vVa, sT3), base[2], base[6])
        S.stream(adv(sKd, [vKa], sT4), base[3], base[5] + NPV - 1)
        if PAIR > 0 and not first: pair_mfmas(S, PAIR)
        if PAIR < 0 and not first: group_mfmas(S, -PAIR)
        return S

    S0 = block(0, True)
    inst.append(("blk0", S0.emit()))
    if STAMP:
        T_ = Prog(); stamp(T_, 8, True); inst.append(("stb", T_.L))
    for j in range(1, 15 if PEEL else 16):
        S = block(j, False)
        trace = [I("s_memtime s[76:77]"), I("s_memrealtime s[78:79]"), I("s_waitcnt lgkmcnt(0)"),
                 I(f"s_mov_b32 m0, s{sCNT}"), I("s_nop 1"), I(f"v_writelane_b32 v18, s76, m0"), I(f"v_writelane_b32 v19, s78, m0")] if os.environ.get("TRACE") else []
        code = [I(f"{name}_aloop:")] + trace + S.emit() + [I(f"s_add_u32 s{sCNT}, s{sCNT}, 1"), I(f"s_cmp_lt_u32 s{sCNT}, {14 if PEEL else 15}"),
                                                   I(f"s_cbranch_scc1 {name}_aloop")]
        inst.append(("aloop", code))
        if verbose and j == 1: print("k1 attention block est cycles", S.est(16), "ideal", 16 * len(S.m))

    E = Prog()
    if PEEL:
        pass
        SL_ = block(15, False, last=True)
        if verbose: print("last block est", SL_.est())
        inst.append(("blkL", SL_.emit()))
    else: E.ext(pv(6, False))
    stamp(E, 4, STAMP)
    if os.environ.get("TRACE"):
        E(f"""s_add_u32 s72, s20, 0x5000000
s_addc_u32 s73, s21, 0
s_mov_b32 s74, 0x100000
s_mov_b32 s75, 0x00020000
s_lshl_b32 s70, s2, 11
s_lshl_b32 s71, s{sW}, 9
s_add_u32 s70, s70, s71
v_lshlrev_b32 v2, 3, v{vL}
buffer_store_dwordx2 v[18:19], v2, s[72:75], s70 offen
s_waitcnt vmcnt(0)""")
    if FUSED:
        if PEEL: E("v_mov_b32 v25, v13")
        else: E(f"s_waitcnt vmcnt(0)\ns_barrier\nv_mov_b32 v24, 0\nbuffer_load_dword v25, v24, s[92:95], 0 offen sc1")
    if ZFLAG:
        E(f"""s_add_u32 s72, s20, {ZFLAG}
s_addc_u32 s73, s21, 0
s_mov_b32 s74, 32768
s_mov_b32 s75, 0x00020000
s_lshl_b32 s70, s2, 7
v_and_b32 v2, 31, v{vL}
v_lshlrev_b32 v2, 2, v2
v_mov_b32 v10, 0
buffer_store_dword v10, v2, s[72:75], s70 offen""")
    E(f"v_lshlrev_b32 v2, 4, v{vL}")
    E("s_nop 7")
    tmp = 32
    if VSUM:
        ET = range(5, 7) if PEEL else range(7)
        for t in ET: E(f"v_mov_b32 v{3+t}, v{Ci[t]+2}\nv_mov_b32 v{11+t}, v{Ci[t]+2}")
        E("s_nop 1")
        for t in ET: E(f"v_permlane32_swap_b32 v{3+t}, v{11+t}")
        for t in ET: E(f"v_add_f32 v{3+t}, v{3+t}, v{11+t}")
        for t in ET: E(f"v_mov_b32 v{11+t}, v{3+t}")
        E("s_nop 1")
        for t in ET: E(f"v_permlane16_swap_b32 v{3+t}, v{11+t}")
        for t in ET: E(f"v_add_f32 v{3+t}, v{3+t}, v{11+t}")
    for t in (range(5, 7) if PEEL else range(7)):
        inv = 20 + 2 * (t & 1)
        if VSUM: E(f"s_mov_b32 s{sT0}, {t*TS}\nv_rcp_f32 v{inv}, v{3+t}")
        else: E(f"v_accvgpr_read_b32 v{inv}, a{224+4*t}\ns_mov_b32 s{sT0}, {t*TS}\nv_rcp_f32 v{inv}, v{inv}")
        for g in range(4):
            r = tmp + 16 * ((t * 4 + g) % 8)
            for i in range(8): E(f"v_accvgpr_read_b32 v{r+i}, a{(t*8+2*g)*4+i}")
            for q in range(4): E(f"v_pk_mul_f32 v[{r+2*q}:{r+2*q+1}], v[{r+2*q}:{r+2*q+1}], v[{inv}:{inv+1}] op_sel_hi:[1,0]")
            for q in range(4): E(f"v_cvt_pk_bf16_f32 v{r+8+q}, v{r+2*q}, v{r+2*q+1}")
            E(f"buffer_store_dwordx4 v[{r+8}:{r+11}], v2, s[{SO}:{SO+3}], s{sT0} offen offset:{1024*g}{OFLAG}")
            E.L[-1].defs = {("ostore", 0)}
    if STAMP and not FUSED:
        stamp(E, 5, True)
        stamp_store(E, 9 if not os.environ.get('DBG') else 6, sW, 20, (512, 0))
    if not FUSED: E(f"{name}_done:\ns_endpgm")
    inst.append(("end", E.L))

    for t, sx in [(t, sx) for sx in (("", "L") if PEEL else ("",)) for t in range(7)]:
        sr = sregs(t)
        slow(f"""{name}_slow{sx}{t}:
v_mov_b32 v{vT}, v{vMX}
s_nop 1
v_permlane32_swap_b32 v{vT}, v{vMX}
v_max_f32 v{vMX}, v{vT}, v{vMX}
v_mov_b32 v{vT}, v{vMX}
s_nop 1
v_permlane16_swap_b32 v{vT}, v{vMX}
v_max_f32 v{vMX}, v{vT}, v{vMX}
""")
        NM, TH, LS = Ci[t], Ci[t] + 1, Ci[t] + 2
        if SOFT:
            slow(f"""v_subrev_f32 v{vT}, s{sTH}, v{TH}
v_max_f32 v{vMX}, v{vT}, v{vMX}
v_mul_f32 v{vT}, s{sNC}, v{vMX}
v_sub_f32 v{vF}, v{vT}, v{NM}
v_exp_f32 v{vF}, v{vF}
v_mov_b32 v{NM}, v{vT}
v_add_f32 v{TH}, s{sTH}, v{vMX}""")
            for i in range(8): slow(f"v_fma_f32 v{Er[i]}, v{sr[i]}, s{sC}, v{NM}")
            for i in range(8): slow(f"v_exp_f32 v{Er[i]}, v{Er[i]}")
            slow("s_nop 0")
            for q in range(4): slow(f"v_cvt_pk_bf16_f32 v{Pf+q}, v{Er[2*q]}, v{Er[2*q+1]}")
            if VSUM:
                slow(f"v_add_f32 v{vTS}, v{Er[0]}, v{Er[1]}")
                for i in range(2, 8): slow(f"v_add_f32 v{vTS}, v{vTS}, v{Er[i]}")
                slow(f"v_mul_f32 v{LS}, v{LS}, v{vF}")
        else:
            slow(f"v_max_f32 v{vMX}, 0, v{vMX}\nv_exp_f32 v{vF}, -v{vMX}")
            for r in sr: slow(f"v_sub_f32 v{r}, v{r}, v{vMX}")
            for i in range(8): slow(f"v_exp_f32 v{Er[i]}, v{sr[i]}")
            for i in range(4): slow(f"v_sub_f32 v{Ci[t]+i}, v{Ci[t]+i}, v{vMX}")
        regs = [t * 32 + i for i in range(32)] + ([] if VSUM else [224 + 4 * t + i for i in range(4)])
        for a in regs:
            slow(f"v_accvgpr_read_b32 v{vT}, a{a}\nv_mul_f32 v{vT}, v{vT}, v{vF}\nv_accvgpr_write_b32 a{a}, v{vT}")
        slow(f"s_nop 1\ns_branch {name}_back{sx}{t}")

    EXP = os.environ.get("EXP", "").split(",")
    def keep(key, i):
        if key == "aloop":
            if "a_nodma" in EXP and i.kind == "dma": return False
            if "a_nobar" in EXP and i.kind == "barrier": return False
            if "a_nods" in EXP and i.kind == "dsr": return False
            if "a_noexp" in EXP and i.op == "v_exp_f32": return False
            if "a_nomax" in EXP and (i.op.startswith("v_max") or i.op.startswith("v_cmp") or i.op == "s_cbranch_vccnz"): return False
            if "a_nobr" in EXP and (i.op == "s_cbranch_vccnz"): return False
            if "a_nocvt" in EXP and i.op.startswith("v_cvt"): return False
            if "a_nosum" in EXP and i.kind == "mfma" and "a[252:255]" in i.text: return False
            if "a_nopv" in EXP and i.kind == "mfma" and i.text.split()[1].startswith("a["): return False
        if key == "qloop":
            if "q_nodma" in EXP and i.kind == "dma": return False
            if "q_nobar" in EXP and i.kind == "barrier": return False
            if "q_nods" in EXP and i.kind == "dsr": return False
        return True
    inst = [(k_, [i for i in c_ if keep(k_, i)]) for k_, c_ in inst]
    PADN = int(os.environ.get("PADN", 0))
    if PADN:
        def pad(c_):
            o_ = []; n_ = 0
            for i in c_:
                if i.kind == "mfma":
                    n_ += 1
                    if n_ % PADN == 0: o_.append(I("s_nop 7"))
                o_.append(i)
            return o_
        inst = [(k_, pad(c_) if k_ == "aloop" else c_) for k_, c_ in inst]
    if FUSED: return inst, slow
    out, full, nfix = resolve_all2(inst)
    if verbose: print("k1 nops inserted:", nfix, "est aloop", est_code(out["aloop"]), "est qloop", est_code(out["qloop"]), "blk0", est_code(out["blk0"]))
    msgs = check_hazards(full, name) + check_hazards(slow.L, name + "_slow")
    seen = set()
    for m_ in msgs:
        key = m_.split("]")[1][:60] + m_.split("->")[-1][-50:]
        if key not in seen: print(m_); seen.add(key)
    order = []
    for key, _ in inst:
        if key not in order: order.append(key)
    text = "\n".join(str(i) for key in order for i in out[key]) + "\n" + slow.text()
    launch = f"; @launch kernel={name} grid=(256,1,1) block=(256,1,1) lds=163840"
    return launch, text, kd(name, 512, 256, 102)

def gen_k2(name="oproj_kernel", NS=4, STAMP=False, WROT=1, verbose=True):
    for Lp in range(126): assert (Lp * 57) >> 9 == Lp // 9
    KS = 4
    PB = KS * NS
    ACC = 16
    AF = 48
    BF = 80
    NV = BF + 8 * PB
    vLane16 = 2; vA = [3, 4, 5, 6]; vDma = [7, 8, 9, 10]; vOut = 11
    P = Prog()
    P(f"""
.globl {name}
.p2align 8
.type {name},@function
{name}:
s_cmp_ge_u32 s2, 256
s_cbranch_scc1 {name}_done
s_load_dwordx2 s[4:5], s[0:1], 32
s_load_dwordx2 s[6:7], s[0:1], 72
s_load_dwordx2 s[8:9], s[0:1], 80
s_load_dwordx2 s[10:11], s[0:1], 96
""")
    if STAMP: P("s_memtime s[80:81]\ns_memrealtime s[98:99]")
    P(f"""
s_and_b32 s20, s2, 7
s_lshr_b32 s21, s2, 3
s_and_b32 s22, s20, 1
s_mul_i32 s23, s22, 31
s_cmp_eq_u32 s23, 31
s_cselect_b32 s23, s21, 0
s_cmp_eq_u32 s23, 31
s_cbranch_scc1 {name}_done
s_mul_i32 s22, s20, 63
s_add_u32 s22, s22, 1
s_lshr_b32 s22, s22, 1
s_add_u32 s22, s22, s21
s_cmp_ge_u32 s22, 126
s_cselect_b32 s24, 1, 0
s_mul_i32 s25, s24, 126
s_sub_u32 s22, s22, s25
s_mul_i32 s26, s22, 57
s_lshr_b32 s26, s26, 9
s_mul_i32 s27, s26, 9
s_sub_u32 s27, s22, s27
v_and_b32 v1, 63, v0
v_lshrrev_b32 v12, 6, v0
v_lshlrev_b32 v{vLane16}, 4, v1
v_readfirstlane_b32 s28, v12
""")
    P(f"""
s_lshl_b32 s29, s26, 3
s_lshl_b32 s30, s28, 1
s_add_u32 s29, s29, s30
s_mul_i32 s30, s24, 112
s_add_u32 s30, s30, s29
s_mul_i32 s30, s30, {TS}
v_lshrrev_b32 v12, 3, v1
v_mul_u32_u24 v12, 1152, v12
v_bfe_u32 v13, v1, 4, 2
v_lshlrev_b32 v13, 1, v13
v_and_b32 v14, 7, v1
v_xor_b32 v13, v13, v14
v_lshl_add_u32 v{vDma[0]}, v13, 4, v12
v_add_u32 v{vDma[1]}, 8192, v{vDma[0]}
v_add_u32 v{vDma[2]}, 16384, v{vDma[0]}
v_add_u32 v{vDma[3]}, 24576, v{vDma[0]}
s_mul_i32 s44, s28, 36864
s_lshl_b32 s46, s27, 7
s_add_u32 s44, s44, s46
s_lshl_b32 s45, s28, 12
s_mov_b32 s63, s44
s_mul_i32 s62, s26, 3
s_add_u32 s62, s62, s27
s_and_b32 s62, s62, {WROT-1}
s_mov_b32 s60, 0
s_mov_b32 s61, 0
s_mul_i32 s64, s62, 147456
s_add_u32 s44, s63, s64
s_lshl_b32 s47, s62, 12
s_waitcnt lgkmcnt(0)
s_cmp_eq_u32 s24, 0
s_cselect_b32 s32, s4, s6
s_cselect_b32 s33, s5, s7
s_mov_b32 s34, 4718592
s_mov_b32 s35, 0x00020000
s_add_u32 s36, s10, s30
s_addc_u32 s37, s11, 0
s_mov_b32 s38, 131072
s_mov_b32 s39, 0x00020000
s_add_u32 s56, s36, {TS}
s_addc_u32 s57, s37, 0
s_mov_b32 s58, 131072
s_mov_b32 s59, 0x00020000
s_mov_b32 s40, s8
s_mov_b32 s41, s9
s_mov_b32 s42, 4128768
s_mov_b32 s43, 0x00020000
""")
    def dma(stage):
        slot = stage % NS
        out = [I(f"s_add_u32 m0, s45, {slot*16384}"), I("s_nop 0")]
        for i in range(4):
            d = I(f"buffer_load_dwordx4 v{vDma[i]}, s[32:35], s44 offen offset:{1024*i} lds")
            d.defs = {("lds", stage)}
            out.append(d)
        out += [I("s_add_u32 s60, s60, 1"), I("s_add_u32 s64, s60, s62"), I(f"s_and_b32 s64, s64, {WROT-1}"),
                I(f"s_andn2_b32 s65, s60, {WROT-1}"), I("s_or_b32 s64, s64, s65"), I("s_mul_i32 s64, s64, 147456"), I("s_add_u32 s44, s63, s64")]
        return out
    def bload(g):
        out = []
        for nt in range(2):
            r = BF + 8 * (g % PB) + 4 * nt
            srd = "s[36:39]" if nt == 0 else "s[56:59]"
            out.append(I(f"buffer_load_dwordx4 v[{r}:{r+3}], v{vLane16}, {srd}, s47 offen offset:{1024*(g%4)}"))
        if g % 4 == 3:
            out += [I("s_add_u32 s61, s61, 1"), I("s_add_u32 s66, s61, s62"), I(f"s_and_b32 s66, s66, {WROT-1}"),
                    I(f"s_andn2_b32 s67, s61, {WROT-1}"), I("s_or_b32 s66, s66, s67"), I("s_lshl_b32 s47, s66, 12")]
        return out
    def areads(g, mt):
        stage = g // KS; slot = stage % NS; ks = g % KS
        r = AF + 16 * (g % 2) + 4 * mt
        out = []
        for half in range(2):
            d = I(f"ds_read_b64_tr_b16 v[{r+2*half}:{r+2*half+1}], v{vA[mt]} offset:{slot*16384 + ks*4096 + half*2048}")
            d.defs |= {("ldsrd", stage)}
            out.append(d)
        return out
    def barrier(stage):
        b = I("s_barrier"); b.uses = {("lds", stage), ("ldsrd", stage - 1)}
        return b
    for st in range(NS - 1):
        P.ext(dma(st))
        for g in range(KS * st, KS * st + KS): P.ext(bload(g))
    for g in range(KS * (NS - 1), PB): P.ext(bload(g))
    P(f"""
v_lshrrev_b32 v12, 2, v1
v_bfe_u32 v13, v12, 1, 2
v_lshlrev_b32 v12, 7, v12
v_lshl_add_u32 v12, v13, 5, v12
v_and_b32 v13, 3, v1
v_lshl_add_u32 v{vA[0]}, v13, 3, v12
v_xor_b32 v{vA[1]}, 32, v{vA[0]}
v_xor_b32 v{vA[2]}, 64, v{vA[0]}
v_xor_b32 v{vA[3]}, 96, v{vA[0]}
""")
    P(f"""
s_lshl_b32 s50, s29, 4
v_and_b32 v12, 15, v1
v_add_u32 v12, s50, v12
v_mul_u32_u24 v12, 2304, v12
v_lshrrev_b32 v13, 4, v1
v_lshlrev_b32 v13, 3, v13
s_mul_i32 s53, s24, 1152
s_lshl_b32 s54, s27, 7
s_add_u32 s53, s53, s54
v_add3_u32 v{vOut}, v12, v13, s53
s_mov_b32 s55, 0
""")
    for i in range(32): P(f"v_mov_b32 v{ACC+i}, 0")
    P.ext([barrier(0)])
    P.ext(dma(NS - 1))
    for mt in range(4): P.ext(areads(0, mt))
    stamp(P, 1, STAMP)
    inst = [("pre", P.L)]
    NIT = 128 // PB
    for it in range(NIT):
        code = [I(f"{name}_loop:")]
        for gl in range(PB):
            g = it * PB + gl
            mf = []
            for mt in range(4):
                for nt in range(2):
                    c = R("v", ACC + 8 * mt + 4 * nt)
                    mf.append(m16(c, R("v", AF + 16 * (g % 2) + 4 * mt), R("v", BF + 8 * (g % PB) + 4 * nt), c))
            S = Sched2(mf)
            gn = g + 1
            lo = 0
            if gn % KS == 0:
                S.put(1, barrier(gn // KS)); lo = 1
            for mt in range(4): lo = S.stream(areads(gn, mt), lo, 6)
            if gn % KS == 0: S.stream(dma(gn // KS + NS - 1), 5, 7)
            S.put(7, bload(g + PB))
            code += S.emit()
        code += [I("s_add_u32 s55, s55, 1"), I(f"s_cmp_lt_u32 s55, {NIT}"), I(f"s_cbranch_scc1 {name}_loop")]
        inst.append(("loop", code))
    E = Prog()
    E("s_nop 7")
    stamp(E, 2, STAMP)
    for mt in range(4):
        for nt in range(2):
            c = ACC + 8 * mt + 4 * nt
            t = AF + 4 * mt + 2 * nt
            E(f"v_cvt_pk_bf16_f32 v{t}, v{c}, v{c+1}\nv_cvt_pk_bf16_f32 v{t+1}, v{c+2}, v{c+3}")
            if nt == 0:
                E(f"buffer_store_dwordx2 v[{t}:{t+1}], v{vOut}, s[40:43], 0 offen offset:{32*mt}")
            else:
                E(f"s_mov_b32 s50, {16*2304}\nbuffer_store_dwordx2 v[{t}:{t+1}], v{vOut}, s[40:43], s50 offen offset:{32*mt}")
    if STAMP:
        E("s_waitcnt vmcnt(0)")
        stamp(E, 3, True)
        E("s_add_u32 s10, s10, 0x100000\ns_addc_u32 s11, s11, 0")
        stamp_store(E, 4, 28, 10, (0, 32))
    E(f"{name}_done:\ns_endpgm")
    inst.append(("end", E.L))
    out, full, nfix = resolve_all2(inst)
    for m_ in check_hazards(full, name)[:10]: print(m_)
    text = "\n".join(str(i) for key in ("pre", "loop", "end") for i in out[key])
    launch = f"; @launch kernel={name} grid=(256,1,1) block=(256,1,1) lds={NS*16384}"
    return launch, text, kd(name, NV, ((NV + 3) // 4) * 4, 102)

def write(path, kernels, header=""):
    with open(path, "w") as f:
        f.write(header)
        for l, _, _ in kernels: f.write(l + "\n")
        f.write('.amdgcn_target "amdgcn-amd-amdhsa--gfx950"\n.text\n')
        for _, c, _ in kernels: f.write(c + "\n")
        f.write('code_end:\n.section .rodata,"a"\n')
        for _, _, k in kernels: f.write(".p2align 6\n" + k + "\n")

HEADER = """; Fused GQA block x2 (Q-proj + attention, then O-proj); generated by a hand-written generator script.
"""

if __name__ == "__main__":
    out = sys.argv[1] if len(sys.argv) > 1 else "full.s"
    st = bool(os.environ.get("STAMP"))
    kw = {}; kw2 = {}
    for k_ in ("WROT", "NS"):
        if k_ in os.environ: kw2[k_] = int(os.environ[k_])
    if "KVFLAG" in os.environ: kw["KVFLAG"] = os.environ["KVFLAG"]
    for k_ in ("MAPPING", "ROT", "TOUCH", "WOT", "TD", "KROT", "DLATE", "DSTEP", "DIST", "CPF", "SOFT", "VSUM", "PPS", "TS0", "TSTEP", "TPK"):
        if k_ in os.environ: kw[k_] = int(os.environ[k_])
    if "TFLAG" in os.environ: kw["TFLAG"] = os.environ["TFLAG"]
    write(out, [gen_k1(STAMP=st, **kw), gen_k2(STAMP=st, **kw2)], HEADER)
```

```python
import os, sys, math, struct
from asmlib import *

TS = 131072
KVT = 8704
KVS = 4 * KVT
XB = [2 * KVS, KVS]
WB = 98304
CSCALE = math.log2(math.e) / math.sqrt(128.0)
THRESH = 8.0

def f2u(x): return struct.unpack("<I", struct.pack("<f", x))[0]

def kd(name, vgpr, acc, sgpr=96):
    return f""".amdhsa_kernel {name}
  .amdhsa_next_free_vgpr {vgpr}
  .amdhsa_next_free_sgpr {sgpr}
  .amdhsa_accum_offset {acc}
  .amdhsa_group_segment_fixed_size 0
  .amdhsa_kernarg_size 104
  .amdhsa_user_sgpr_count 2
  .amdhsa_user_sgpr_kernarg_segment_ptr 1
  .amdhsa_system_sgpr_workgroup_id_x 1
.end_amdhsa_kernel"""

def R(kind, base, n=4): return f"{kind}[{base}:{base+n-1}]"

def m16(d, a, b, c):
    return I(f"v_mfma_f32_16x16x32_bf16 {d}, {a}, {b}, {c}")

STMAP = None
if os.environ.get("PSTAMP"): STMAP = {20: 1, 21: 2, 1: 3, 6: 4, 7: 5, 2: 6, 3: 7, 5: 8}
def stamp(P, idx, on):
    import gen
    if gen.STMAP is not None:
        if idx not in gen.STMAP: return
        idx = gen.STMAP[idx]
    if on: P(f"s_memtime s[{80+2*idx}:{81+2*idx}]\ns_waitcnt lgkmcnt(0)")

def stamp_store(E, nst, swave, sws, dbgoff=None):
    E("s_waitcnt vmcnt(0)\ns_memrealtime s[76:77]\ns_waitcnt lgkmcnt(0)")
    DBG = os.environ.get("DBG")
    if DBG:
        wg = int(DBG)
        E(f"""s_load_dwordx2 s[72:73], s[0:1], 88
s_waitcnt lgkmcnt(0)
s_add_u32 s72, s72, {dbgoff[0]}
s_addc_u32 s73, s73, 0
s_mov_b32 s74, 64
s_mov_b32 s75, 0x00020000
s_xor_b32 s70, s2, {wg}
s_or_b32 s70, s70, s{swave}
s_lshl_b32 s70, s70, 8
s_add_u32 s70, s70, {dbgoff[1]}
v_mov_b32 v14, s70
v_mbcnt_lo_u32_b32 v15, -1, 0
v_mbcnt_hi_u32_b32 v15, -1, v15
v_cmp_eq_u32 vcc, 0, v15
s_and_saveexec_b64 s[78:79], vcc""")
        for i in range(1, nst):
            E(f"s_sub_u32 s71, s{80+2*i}, s80\nv_mov_b32 v10, s71\nbuffer_store_dword v10, v14, s[72:75], 0 offen offset:{4*(i+1)}\ns_nop 1")
        E(f"v_mov_b32 v10, s76\nbuffer_store_dword v10, v14, s[72:75], 0 offen offset:4\ns_nop 1")
        E(f"v_mov_b32 v10, s98\nbuffer_store_dword v10, v14, s[72:75], 0 offen offset:0\ns_nop 1")
        return
    E(f"""s_add_u32 s72, s{sws}, 0x4000000
s_addc_u32 s73, s{sws+1}, 0
s_mov_b32 s74, 0x100000
s_mov_b32 s75, 0x00020000
s_lshl_b32 s70, s2, 8
s_lshl_b32 s71, s{swave}, 6
s_add_u32 s70, s70, s71
v_mov_b32 v14, s70
v_mbcnt_lo_u32_b32 v15, -1, 0
v_mbcnt_hi_u32_b32 v15, -1, v15
v_cmp_eq_u32 vcc, 0, v15
s_and_saveexec_b64 s[78:79], vcc""")
    for i in range(1, nst):
        E(f"s_sub_u32 s71, s{80+2*i}, s80\nv_mov_b32 v10, s71\nbuffer_store_dword v10, v14, s[72:75], 0 offen offset:{4*i}\ns_nop 1")
    E(f"v_mov_b32 v10, s76\nbuffer_store_dword v10, v14, s[72:75], 0 offen offset:60\ns_nop 1")
    E(f"v_mov_b32 v10, s98\nbuffer_store_dword v10, v14, s[72:75], 0 offen offset:56\ns_nop 1")

def gen_k1(name="attn_kernel", STAMP=False, KVFLAG="", MAPPING=1, ROT=0, TOUCH=0, TFLAG="", WOT=1, TD=2, PAIR=0, THIN=0, TLBW=0, LATEKV=0, KV2D=0, QSTEP=6, PEEL=0, GMAJ=0, NPRO=6, KV0AT=0, FUSED=0, ZFLAG=0, SOFT=0, VSUM=0, CPF=3, DIST=3, DLATE=0, DSTEP=5, KROT=0, PPS=4, TS0=5, TSTEP=3, TPK=1, verbose=True):
    sW = 40
    sBLK, sKVH, sBP, sBL, sHH = 41, 42, 43, 44, 45
    sWQoff, sXoff, sKVoff = 46, 47, 48
    sWQm0, sXm0, sKVm0 = 49, 50, 51
    sT0, sT1, sT2 = 52, 53, 54
    sCNT = 55
    sWrd, sXrd = 56, 57
    sTH = 58
    sC = 60
    sKd, sVd = 62, 63
    sKVw = 64
    sWQw = 65
    sK16, sKm48, sKKVS, sKm3KVS = 66, 67, 68, 69
    sT3, sT4 = 70, 71
    sWend, sXend, sTo = 72, 73, 74
    vTq, vTa, vDum = 13, 13, 0
    vTS = 18; sNC = 75
    assert SOFT or not VSUM
    SX, SWQ, SKV, SO = 24, 28, 32, 36
    vL = 1
    vKVd = [2, 3, 4, 5]
    vKa = 6; vVa = [7, 8, 9, 10]; vMX = 11; vT = 12; vF = 19
    vWa = list(range(20, 28)); vXa = [28, 29]; vWd = [14, 15, 16, 17]; vXd = [30, 31]
    ACC0 = 32
    def grp(g, nt): return ACC0 + (g * 7 + nt) * 8
    def acc(mt, nt): return grp(mt >> 1, nt) + 4 * (mt & 1)
    def Q(nt, g): return R("v", grp(g, nt))
    holes = [grp(g, nt) + 4 for g in range(4) for nt in range(7)] + [20, 24, 28]
    Kf = [[holes[4 * s + g] for g in range(4)] for s in range(2)]
    Vf = [holes[8 + d] for d in range(8)]
    Sb = [[holes[16 + 2 * b + s] for s in range(2)] for b in range(3)]
    Ci = [holes[22 + t] for t in range(7)]
    Pf = holes[29]
    Er = [holes[30] + i for i in range(4)] + [14, 15, 16, 17]
    VGAPS = [0, 1, 2, 3, 4, 5, 6, 8, 10, 12, 14, 15, 16, 17, 18, 19]
    KGAPS = [9, 11, 13, 15, 16, 18, 20, 22]
    sbuf = lambda t: 2 if t == 6 else (t & 1)
    def O(t, d): return R("a", (t * 8 + d) * 4)
    def Lr(t): return R("a", 224 + 4 * t)
    ONES = R("a", 252)
    def Af(i): return 4 * (i % 4)
    def Bf(par, nt): return 16 + (par * 7 + nt) * 4

    OFLAG = (' ' + os.environ['OFLAG']) if os.environ.get('OFLAG') else ''
    if FUSED: OFLAG = ' sc1'
    kvf = (" " + KVFLAG) if KVFLAG else ""

    P = Prog()
    P(f"""
.globl {name}
.p2align 8
.type {name},@function
{name}:
s_cmp_ge_u32 s2, 256
s_cbranch_scc1 {name}_done
s_load_dwordx8 s[4:11], s[0:1], 0
s_load_dwordx8 s[12:19], s[0:1], 40
s_load_dwordx2 s[20:21], s[0:1], 96
s_load_dwordx2 s[22:23], s[0:1], 32
s_load_dwordx2 s[76:77], s[0:1], 72
""")
    if STAMP: P("s_memtime s[80:81]\ns_memrealtime s[98:99]")
    P(f"""
v_lshrrev_b32 v10, 6, v0
v_and_b32 v{vL}, 63, v0
s_and_b32 s{sT0}, s2, 7
v_readfirstlane_b32 s{sW}, v10
s_lshr_b32 s{sT1}, s2, 3
s_lshr_b32 s{sBLK}, s{sT0}, 2
s_and_b32 s{sT0}, s{sT0}, 3
""")
    if MAPPING == 1:
        P(f"""
s_lshl_b32 s{sKVH}, s{sT0}, 2
s_and_b32 s{sT2}, s{sT1}, 3
s_add_u32 s{sKVH}, s{sKVH}, s{sT2}
s_lshr_b32 s{sBP}, s{sT1}, 2
""")
    elif MAPPING == 3:
        for m_ in range(48): assert (m_ * 52) >> 8 == m_ // 5 and (m_ * 43) >> 8 == m_ // 6
        P(f"""
s_lshl_b32 s{sT0}, s{sT0}, 5
s_add_u32 s{sT0}, s{sT0}, s{sT1}
s_mov_b32 s{sT1}, 0
s_mov_b32 s{sT2}, 0
s_mov_b32 s{sT3}, 52
s_mov_b32 s{sT4}, 5
s_cmp_ge_u32 s{sT0}, 40
s_cselect_b32 s{sT1}, 40, s{sT1}
s_cselect_b32 s{sT2}, 5, s{sT2}
s_cselect_b32 s{sT3}, 43, s{sT3}
s_cselect_b32 s{sT4}, 6, s{sT4}
s_cmp_ge_u32 s{sT0}, 88
s_cselect_b32 s{sT1}, 88, s{sT1}
s_cselect_b32 s{sT2}, 11, s{sT2}
s_cselect_b32 s{sT3}, 52, s{sT3}
s_cselect_b32 s{sT4}, 5, s{sT4}
s_sub_u32 s{sT0}, s{sT0}, s{sT1}
s_mul_i32 s{sBP}, s{sT0}, s{sT3}
s_lshr_b32 s{sBP}, s{sBP}, 8
s_mul_i32 s{sT4}, s{sBP}, s{sT4}
s_sub_u32 s{sT0}, s{sT0}, s{sT4}
s_add_u32 s{sKVH}, s{sT0}, s{sT2}
""")
    else:
        P(f"""
s_lshl_b32 s{sBP}, s{sT0}, 1
s_and_b32 s{sT2}, s{sT1}, 1
s_add_u32 s{sBP}, s{sBP}, s{sT2}
s_lshr_b32 s{sKVH}, s{sT1}, 1
""")
    P(f"""
s_lshr_b32 s{sBL}, s{sW}, 1
s_and_b32 s{sHH}, s{sW}, 1
""")
    if CPF:
        P(f"""
s_getpc_b64 s[96:97]
{name}_pc:
s_sub_u32 s96, s96, {name}_pc-{name}
s_subb_u32 s97, s97, 0
s_lshr_b32 s{sT0}, s2, 3
s_lshl_b32 s{sT0}, s{sT0}, 2
s_add_u32 s{sT0}, s{sT0}, s{sW}
s_lshl_b32 s{sT0}, s{sT0}, 9
v_lshl_add_u32 v13, v{vL}, 3, s{sT0}
s_mov_b32 s{sT0}, code_end-{name}-4
v_min_u32 v13, s{sT0}, v13
""")
    def code_touch():
        d = I(f"global_load_dword v{vDum}, v13, s[96:97]"); d.defs = set()
        return [[d]]
    P(f"""
v_lshrrev_b32 v10, 5, v{vL}
v_and_b32 v11, 31, v{vL}
s_lshl_b32 s{sT0}, s{sHH}, 3
v_lshlrev_b32 v12, 1, v10
v_or_b32 v12, s{sT0}, v12
v_xor_b32 v12, v12, v11
v_lshlrev_b32 v18, 13, v10
v_lshl_add_u32 v{vWd[0]}, v12, 4, v18
v_add_u32 v{vWd[2]}, {4*8192-2048}, v{vWd[0]}
v_xor_b32 v12, 4, v12
v_lshl_add_u32 v{vWd[1]}, v12, 4, v18
v_add_u32 v{vWd[1]}, {2*8192-1024}, v{vWd[1]}
v_add_u32 v{vWd[3]}, {4*8192-2048}, v{vWd[1]}
""")
    P(f"""
v_lshrrev_b32 v10, 3, v{vL}
v_mul_u32_u24 v10, 1152, v10
v_lshrrev_b32 v11, 4, v{vL}
v_and_b32 v12, 7, v{vL}
v_xor_b32 v11, v11, v12
s_lshl_b32 s{sT0}, s{sHH}, 2
v_xor_b32 v11, s{sT0}, v11
v_lshl_add_u32 v{vXd[0]}, v11, 4, v10
v_xor_b32 v11, 4, v11
v_lshl_add_u32 v{vXd[1]}, v11, 4, v10
""")
    krot_code = f"""s_lshr_b32 s{sT0}, s2, 3
s_mul_i32 s{sT0}, s{sT0}, 5
s_and_b32 s{sT1}, s2, 7
s_lshl_b32 s{sT1}, s{sT1}, 1
s_add_u32 s{sT0}, s{sT0}, s{sT1}
s_lshl_b32 s{sT1}, s{sBL}, 3
s_add_u32 s{sT0}, s{sT0}, s{sT1}
s_and_b32 s{sT0}, s{sT0}, 15
s_lshl_b32 s{sKVoff}, s{sT0}, 13""" if KROT else f"s_mov_b32 s{sKVoff}, 0"
    rot_code = f"""s_and_b32 s{sT0}, s{sKVH}, 3
s_lshl_b32 s{sT0}, s{sT0}, 1
s_add_u32 s{sT0}, s{sT0}, s{sBP}
s_cmp_ge_u32 s{sT0}, 9
s_cselect_b32 s{sT1}, 9, 0
s_sub_u32 s{sT0}, s{sT0}, s{sT1}
s_lshl_b32 s{sT1}, s{sT0}, 19
s_add_u32 s{sWQoff}, s{sWQoff}, s{sT1}
s_lshl_b32 s{sT1}, s{sT0}, 7
s_add_u32 s{sXoff}, s{sXoff}, s{sT1}""" if ROT else ""
    P(f"""
s_lshl_b32 s{sWQoff}, s{sW}, 16
s_lshl_b32 s{sT0}, s{sKVH}, 9
s_add_u32 s{sWQoff}, s{sWQoff}, s{sT0}
s_mul_i32 s{sXoff}, s{sW}, {56*1152}
s_lshl_b32 s{sWQm0}, s{sW}, 12
s_add_u32 s{sWQm0}, s{sWQm0}, {WB+32768}
s_mul_i32 s{sXm0}, s{sW}, {7*1024}
s_add_u32 s{sT0}, s{sXm0}, {XB[1]}
s_add_u32 s{sXm0}, s{sXm0}, {XB[0]}
s_xor_b32 s{sXrd}, s{sXm0}, s{sT0}
s_mul_i32 s{sKVm0}, s{sW}, {KVT}
s_add_u32 s{sWend}, s{sWQoff}, {576*8192}
s_add_u32 s{sXend}, s{sXoff}, 1152
{rot_code}
{krot_code}
s_mov_b32 s{sK16}, 16384
s_mov_b32 s{sKm48}, {(-3*16384) & 0xffffffff}
s_mov_b32 s{sKKVS}, {KVS}
s_mov_b32 s{sKm3KVS}, {(-3*KVS) & 0xffffffff}
s_mov_b32 s{sWQw}, 2
s_mov_b32 s{sKVw}, 0
s_waitcnt lgkmcnt(0)
s_cmp_eq_u32 s{sBLK}, 0
s_cselect_b64 s[4:5], s[4:5], s[12:13]
s_cselect_b64 s[6:7], s[6:7], s[14:15]
s_cselect_b64 s[8:9], s[8:9], s[16:17]
s_cselect_b64 s[10:11], s[10:11], s[18:19]
s_cselect_b64 s[22:23], s[22:23], s[76:77]
s_mul_i32 s{sT0}, s{sBP}, 258048
s_add_u32 s{SX}, s4, s{sT0}
s_addc_u32 s{SX+1}, s5, 0
s_mov_b32 s{SX+2}, 258048
s_mov_b32 s{SX+3}, 0x00020000
s_mov_b32 s{SWQ}, s10
s_mov_b32 s{SWQ+1}, s11
s_mov_b32 s{SWQ+2}, 4718592
s_mov_b32 s{SWQ+3}, 0x00020000
""")

    stamp(P, 20, STAMP and bool(os.environ.get("PSTAMP")))
    def flat(groups): return [i for g in groups for i in g]
    def dma_wq(stage):
        out = [[I(f"s_mov_b32 m0, s{sWQm0}"), I(f"s_add_u32 s{sWQw}, s{sWQw}, 1")]]
        for k in range(4):
            d = I(f"buffer_load_dwordx4 v{vWd[k]}, s[{SWQ}:{SWQ+3}], s{sWQoff} offen offset:{1024*k} lds")
            d.defs = {("wq", stage)}; out.append([d])
        out += [[I(f"s_add_u32 s{sWQoff}, s{sWQoff}, {32*8192}")],
                [I(f"s_and_b32 s{sWQw}, s{sWQw}, 3"),
                 I(f"s_cselect_b32 s{sT0}, s{sK16}, s{sKm48}")],
                [I(f"s_add_u32 s{sWQm0}, s{sWQm0}, s{sT0}")]]
        if ROT and stage % 2 == 1:
            out += [[I(f"s_cmp_ge_u32 s{sWQoff}, s{sWend}"), I(f"s_cselect_b32 s{sT0}, {576*8192}, 0")],
                    [I(f"s_sub_u32 s{sWQoff}, s{sWQoff}, s{sT0}")]]
        return out
    def dma_x(stage, part):
        out = [[I(f"s_add_u32 m0, s{sXm0}, {4096*part}")]]
        for i in (range(4) if part == 0 else range(4, 7)):
            d = I(f"buffer_load_dwordx4 v{vXd[i&1]}, s[{SX}:{SX+3}], s{sT1} offen offset:{1024*(i%4)} lds")
            d.defs = {("x", stage)}
            out.append([I(f"s_add_u32 s{sT1}, s{sXoff}, {i*9216 - 1024*(i%4)}"), d])
        if part == 1:
            out.append([I(f"s_add_u32 s{sXoff}, s{sXoff}, 128")])
            if ROT:
                out += [[I(f"s_cmp_ge_u32 s{sXoff}, s{sXend}"), I(f"s_cselect_b32 s{sT1}, 1152, 0")],
                        [I(f"s_sub_u32 s{sXoff}, s{sXoff}, s{sT1}")]]
            out.append([I(f"s_xor_b32 s{sXm0}, s{sXm0}, s{sXrd}")])
        return out
    def dma_kv(stage):
        out = []
        for half in range(2):
            out.append([I(f"s_add_u32 m0, s{sKVm0}, {4352*half}"),
                        I(f"s_add_u32 s{sKVw}, s{sKVw}, 1") if half == 0 else I(f"s_add_u32 s{sKVoff}, s{sKVoff}, 4096")])
            for k in range(4):
                d = I(f"buffer_load_dwordx4 v{vKVd[k]}, s[{SKV}:{SKV+3}], s{sKVoff} offen offset:{1088*k}{kvf} lds")
                d.defs = {("kv", stage)}; out.append([d])
        out += [[I(f"s_and_b32 s{sT0}, s{sKVw}, 3"), I(f"s_cselect_b32 s{sT0}, s{sKKVS}, s{sKm3KVS}")],
                [I(f"s_add_u32 s{sKVoff}, s{sKVoff}, 4096"), I(f"s_add_u32 s{sKVm0}, s{sKVm0}, s{sT0}")]]
        if KROT: out += [[I(f"s_and_b32 s{sKVoff}, s{sKVoff}, 0x1ffff")]]
        if stage >= DIST and WOT != 3:
            out += [[I(f"s_cmp_eq_u32 s{sKVw}, 16"), I(f"s_cselect_b64 s[{SKV}:{SKV+1}], s[12:13], s[{SKV}:{SKV+1}]"),
                     I(f"s_cselect_b32 s{SKV+2}, {9216+192 if WOT == 1 else 0}, s{SKV+2}"), I(f"s_cselect_b32 s{sKVoff}, 0, s{sKVoff}")]]
        if stage >= DIST and WOT == 3:
            out += [[I(f"s_cmp_eq_u32 s{sKVw}, 16"), I(f"s_cselect_b32 s16, 0, s16")]]
            for i in range(3):
                d = I(f"buffer_load_dword v{vDum}, v{vKVd[0]}, s[12:15], s16 offen offset:{1024*i}"); d.defs = set()
                out.append([d])
            out.append([I("s_add_u32 s16, s16, 3072")])
        return out

    def kv0_piece():
        d = I(f"buffer_load_dwordx4 v{vKVd[0]}, s[{SKV}:{SKV+3}], s19 offen{kvf} lds"); d.defs = {("kv", 0)}
        o = [[I("s_mov_b32 m0, s17"), I("s_add_u32 s17, s17, 1088")], [d], [I("s_add_u32 s19, s19, 1024")]]
        if THIN:
            t = I(f"buffer_load_dword v{vDum}, v12, s[{SKV}:{SKV+3}], s18 offen offset:192"); t.defs = set()
            o[1].append(t)
            o.append([I(f"s_add_u32 s18, s18, {64 << THIN}")])
        return o
    tf = (" " + TFLAG) if TFLAG else ""
    def touch(vreg, step):
        d = I(f"buffer_load_dword v{vDum}, v{vreg}, s[{SKV}:{SKV+3}], s{sTo} offen{tf}")
        d.defs = set()
        return [[d], [I(f"s_add_u32 s{sTo}, s{sTo}, {step}")]]
    def qtouch():
        d = I(f"buffer_load_dword v{vDum}, v{vTq}, s[{SKV}:{SKV+3}], s{sTo} offen offset:192{tf}")
        d.defs = set()
        lg = {2: 1, 4: 2, 8: 3}[PPS]
        return [[I(f"s_lshr_b32 s{sTo}, s17, {lg}")], [I(f"s_mul_i32 s{sTo}, s{sTo}, {TSTEP*8192}")],
                [I(f"s_add_u32 s{sTo}, s{sTo}, s18")], [I(f"s_and_b32 s{sTo}, s{sTo}, 0x1ffff")],
                [I(f"s_and_b32 s19, s17, {PPS-1}")], [I(f"s_lshl_b32 s19, s19, {13-lg}")],
                [I(f"s_add_u32 s{sTo}, s{sTo}, s19"), d], [I("s_add_u32 s17, s17, 1")]]
    pre_list = [dma_wq(0), dma_x(0, 0), dma_x(0, 1), dma_wq(1), dma_x(1, 0), dma_wq(2)]
    for gl in pre_list[:NPRO]: P.ext(flat(gl))
    if CPF & 1: P.ext(flat(code_touch()))
    P(f"""
s_cmp_eq_u32 s{sHH}, 0
s_cselect_b64 s[6:7], s[6:7], s[8:9]
s_lshl_b32 s{sT0}, s{sBP}, 1
s_add_u32 s{sT0}, s{sT0}, s{sBL}
s_lshl_b32 s{sT1}, s{sT0}, 4
s_add_u32 s{sT1}, s{sT1}, s{sKVH}
s_lshl_b32 s{sT1}, s{sT1}, 17
s_add_u32 s{SKV}, s6, s{sT1}
s_addc_u32 s{SKV+1}, s7, 0
s_sub_u32 s{SKV}, s{SKV}, 192
s_subb_u32 s{SKV+1}, s{SKV+1}, 0
s_mov_b32 s{SKV+2}, {131072+192}
s_mov_b32 s{SKV+3}, 0x00020000
s_lshl_b32 s{sT1}, s{sBLK}, 4
s_add_u32 s{sT0}, s{sT0}, s{sT1}
s_mul_i32 s{sT0}, s{sT0}, {7*TS}
s_lshl_b32 s{sT1}, s{sKVH}, 1
s_add_u32 s{sT1}, s{sT1}, s{sHH}
s_lshl_b32 s{sT1}, s{sT1}, 12
s_add_u32 s{sT0}, s{sT0}, s{sT1}
s_add_u32 s{SO}, s20, s{sT0}
s_addc_u32 s{SO+1}, s21, 0
s_mov_b32 s{SO+2}, {6*TS+4096}
s_mov_b32 s{SO+3}, 0x00020000
v_lshrrev_b32 v10, 4, v{vL}
v_and_b32 v11, 1, v10
v_lshlrev_b32 v11, 1, v11
v_lshrrev_b32 v12, 1, v10
v_lshl_or_b32 v11, v12, 3, v11
s_cmp_eq_u32 s{sHH}, 0
s_cselect_b64 vcc, -1, 0
v_cndmask_b32 v11, v11, v10, vcc
v_and_b32 v12, 15, v{vL}
v_xor_b32 v11, v11, v12
v_lshlrev_b32 v11, 4, v11
v_lshl_add_u32 v11, v10, 8, v11
v_add_u32 v{vKVd[0]}, 192, v11
v_add_u32 v{vKVd[1]}, 128, v11
v_add_u32 v{vKVd[2]}, 64, v11
v_mov_b32 v{vKVd[3]}, v11
""")
    if TOUCH: P(f"v_lshlrev_b32 v{vTq}, {7 - {2: 1, 4: 2, 8: 3}[PPS]}, v{vL}\ns_mov_b32 s17, 0\ns_add_u32 s18, s{sKVoff}, {TS0*8192}")
    P(f"""
s_lshl_b32 s{sT0}, s{sKVH}, 3
s_add_u32 s{sT0}, s{sT0}, s{sBP}
s_lshl_b32 s{sT0}, s{sT0}, 2
s_add_u32 s{sT0}, s{sT0}, s{sW}
s_mul_i32 s{sT0}, s{sT0}, 9216
s_add_u32 s12, s22, s{sT0}
s_addc_u32 s13, s23, 0
s_sub_u32 s12, s12, 192
s_subb_u32 s13, s13, 0
""")
    P("s_mov_b32 s16, 0" if WOT != 3 else f"s_mov_b32 s16, 0x70000000\ns_mov_b32 s14, {9216+192}\ns_mov_b32 s15, 0x00020000")
    if KV0AT < 0:
        assert not KROT and not TOUCH and not FUSED
        P(f"s_mov_b32 s17, s{sKVm0}\ns_mov_b32 s19, 0\ns_add_u32 s{sKVm0}, s{sKVm0}, {KVS}\ns_mov_b32 s{sKVoff}, 8192\ns_mov_b32 s{sKVw}, 1")
        if THIN: P(f"s_mov_b32 s18, {TS0*8192}\nv_lshlrev_b32 v12, {THIN}, v{vL}")
    if TLBW:
        P(f"s_mov_b32 s14, {9216+192}\ns_mov_b32 s15, 0x00020000\nv_mov_b32 v12, 192")
        for srd in ((SKV, 12, SO) if TLBW > 1 else (SKV,)):
            d = I(f"buffer_load_dword v{vDum}, v12, s[{srd}:{srd+3}], 0 offen"); d.defs = set(); P.ext([d])
    if FUSED:
        P(f"""
s_lshl_b32 s90, s{sBLK}, 3
s_add_u32 s90, s90, s{sBP}
s_lshl_b32 s90, s90, 7
s_lshl_b32 s{sT0}, s{sKVH}, 2
s_add_u32 s90, s90, s{sT0}
s_add_u32 s90, s90, 32768
s_mov_b32 s91, s{sW}
s_load_dwordx2 s[92:93], s[0:1], 88
s_memrealtime s[18:19]
s_waitcnt lgkmcnt(0)
s_mov_b32 s94, 256
s_mov_b32 s95, 0x00020000
s_or_b32 s{sT0}, s2, s{sW}
s_cmp_lg_u32 s{sT0}, 0
s_cbranch_scc1 {name}_nn
s_or_b32 s18, s18, 1
v_mov_b32 v10, s18
v_mov_b32 v11, 0
s_mov_b64 exec, 1""")
        ns_ = I("buffer_store_dword v10, v11, s[92:95], 0 offen sc1"); ns_.kind = "misc"
        P.ext([ns_])
        P(f"s_mov_b64 exec, -1\n{name}_nn:")
    def wo_touch():
        d = I(f"buffer_load_dword v{vDum}, v{vKVd[3]}, s[12:15], s16 offen"); d.defs = set()
        return [[d], [I("s_add_u32 s16, s16, 1024")]]
    P(f"""
v_lshrrev_b32 v32, 4, v{vL}
v_bfe_u32 v33, v{vL}, 2, 2
v_lshl_add_u32 v34, v32, 3, v33
v_lshlrev_b32 v34, 9, v34
v_and_b32 v35, 1, v32
v_lshl_or_b32 v35, v35, 2, v33
v_lshl_add_u32 v34, v35, 5, v34
v_and_b32 v35, 3, v{vL}
v_lshl_add_u32 v34, v35, 3, v34
s_lshl_b32 s{sT0}, s{sHH}, 8
s_add_u32 s{sT0}, s{sT0}, {WB+32768}
v_add_u32 v{vWa[0]}, s{sT0}, v34
""")
    for mt in range(1, 8): P(f"v_xor_b32 v{vWa[mt]}, {32*mt}, v{vWa[0]}")
    P(f"""
v_and_b32 v33, 15, v{vL}
v_lshrrev_b32 v34, 1, v33
v_xor_b32 v34, v34, v32
v_lshlrev_b32 v34, 4, v34
v_lshl_add_u32 v34, v33, 7, v34
s_mul_i32 s{sT0}, s{sBL}, {112*128}
s_add_u32 s{sT0}, s{sT0}, {XB[0]}
v_add_u32 v{vXa[0]}, s{sT0}, v34
v_xor_b32 v{vXa[1]}, 64, v{vXa[0]}
s_mov_b32 s{sC}, {f2u(CSCALE)}
s_mov_b32 s{sC+1}, {f2u(CSCALE)}
s_mov_b32 s{sNC}, {f2u(-CSCALE)}
s_mov_b32 s{sTH}, {f2u(THRESH / CSCALE if SOFT else THRESH)}
s_mov_b32 s{sCNT}, 0
""")

    P(f"""
v_and_b32 v36, 15, v{vL}
v_lshrrev_b32 v37, 4, v{vL}
v_lshrrev_b32 v38, 2, v36
v_and_b32 v39, 3, v36
v_mul_u32_u24 v40, 1088, v38
v_lshl_add_u32 v40, v39, 8, v40
v_xor_b32 v41, v37, v39
v_lshl_add_u32 v40, v41, 4, v40
s_mul_i32 s{sT0}, s{sBL}, {2*KVT}
v_add_u32 v{vKa}, s{sT0}, v40
""")
    P(f"""
v_mul_u32_u24 v40, 1088, v37
v_lshl_add_u32 v40, v38, 8, v40
v_lshl_add_u32 v40, v39, 3, v40
s_add_u32 s{sT0}, s{sT0}, {KVT}
v_add_u32 v40, s{sT0}, v40
v_and_b32 v41, 1, v38
v_lshrrev_b32 v36, 1, v38
v_lshl_or_b32 v41, v36, 2, v41
""")
    for u in range(4):
        pat = (u & 1) | ((u >> 1) << 2)
        P(f"v_xor_b32 v36, {pat}, v41\nv_lshl_add_u32 v{vVa[u]}, v36, 5, v40")
    P(f"s_mov_b32 s{sKd}, 0\ns_mov_b32 s{sVd}, 0")
    P(f"v_mov_b32 v36, 0x3f803f80\nv_mov_b32 v37, 0")
    for i in range(4): P(f"v_accvgpr_write_b32 a{252+i}, v36")
    for i in range(32): P(f"v_accvgpr_write_b32 a{6*32+i}, v37")
    for i in range(4): P(f"v_accvgpr_write_b32 a{224+24+i}, v37")

    def a_reads(ks, mt, slot=None):
        out = []
        for half in range(2):
            r = Af(mt if slot is None else slot) + 2 * half
            d = I(f"ds_read_b64_tr_b16 a[{r}:{r+1}], v{vWa[mt]} offset:{2048*half + 16384*(ks&1)}")
            d.defs |= {("wqrd", ks)}; out.append(d)
        return out
    def b_read(ks, nt):
        r = Bf(ks & 1, nt)
        d = I(f"ds_read_b128 a[{r}:{r+3}], v{vXa[ks&1]} offset:{2048*nt}")
        d.defs |= {("xrd", ks >> 1)}
        return d
    def qbarrier(i):
        b = I("s_barrier")
        b.uses = {("wq", i), ("wqrd", i - 1)}
        if i % 2 == 0: b.uses |= {("x", i // 2)}
        else: b.uses |= {("xrd", i // 2)}
        if i == 18: b.uses |= {("kv", 0)}
        if i == 16 and GMAJ: b.uses |= {("wq", 17)} | (set() if LATEKV else {("kv", 0)})
        return b

    stamp(P, 21, STAMP and bool(os.environ.get("PSTAMP")))
    P.ext([qbarrier(0)])
    P.ext(a_reads(0, 0)); P.ext([b_read(0, nt) for nt in range(7)]); P.ext(a_reads(0, 1))
    stamp(P, 1, STAMP)
    inst = [("pre", P.L)]

    def conv_group(g, nt, plain=False):
        r = grp(g, nt)
        o = []
        if not SOFT and plain:
            for q in range(8): o.append(I(f"v_mul_f32 v{r+q}, s{sC}, v{r+q}"))
        elif not SOFT:
            for q in range(4): o.append(I(f"v_pk_mul_f32 v[{r+2*q}:{r+2*q+1}], v[{r+2*q}:{r+2*q+1}], s[{sC}:{sC+1}]"))
        for q in range(4): o.append(I(f"v_cvt_pk_bf16_f32 v{r+q}, v{r+2*q}, v{r+2*q+1}"))
        return o
    def swap_group(g, nt):
        r = grp(g, nt)
        return ([I(f"v_permlane32_swap_b32 v{r}, v{r+2}"), I(f"v_permlane32_swap_b32 v{r+1}, v{r+3}")],
                [I(f"v_permlane16_swap_b32 v{r}, v{r+2}"), I(f"v_permlane16_swap_b32 v{r+1}, v{r+3}")])

    sXdelta = 59
    inst[0][1].append(I(f"s_mov_b32 s{sXdelta}, {(XB[1]-XB[0]) & 0xffffffff}"))
    inst[0][1].append(I(f"s_mov_b32 s{sWrd}, {(-32768) & 0xffffffff}"))

    def dma_in(ks):
        lst = []
        k = ks // 2
        if ks == 0:
            for gl in pre_list[NPRO:]: lst += gl
        if ks % 2 == 0:
            if k + 1 <= 8: lst += dma_x(k + 1, 1)
            if ks + 3 <= 17: lst += dma_wq(ks + 3)
        else:
            if ks + 3 <= 17: lst += dma_wq(ks + 3)
            if k + 2 <= 8: lst += dma_x(k + 2, 0)
        if KV0AT >= 0:
            if ks == KV0AT: lst += dma_kv(0)
        elif ks % 2 == 1 and ks <= 13 or ks == 14: lst += kv0_piece()
        if ks == 14 and (CPF & 2): lst += code_touch()
        if ks == 15: lst += dma_kv(1)
        if ks == 17 and DIST >= 3: lst += dma_kv(2)
        if (TOUCH & 1) and 2 <= ks <= 17:
            for _ in range(TPK): lst += qtouch()
        return lst

    def k_read(j, sub, g):
        r = Kf[sub][g]
        d = I(f"ds_read_b128 v[{r}:{r+3}], v{vKa} offset:{64*g + 4352*sub}")
        d.defs |= {("krd", j)}
        return d
    def v_reads(j, dt):
        u = (dt & 1) | ((dt >> 2) << 1)
        out = []
        for half in range(2):
            r = Vf[dt] + 2 * half
            d = I(f"ds_read_b64_tr_b16 v[{r}:{r+1}], v{vVa[u]} offset:{64*((dt>>1)&1) + 4352*half}")
            d.defs |= {("vrd", j)}; out.append(d)
        return out
    CWIN = 111 if SOFT else 12
    def qlast():
        F = [(16 + (i >> 1 & 1), 2 * (i >> 2) + (i & 1)) for i in range(16)]
        mf = []
        for i, (ks, mt) in enumerate(F):
            for nt in range(7):
                c = R("v", acc(mt, nt))
                mf.append(m16(c, R("a", Af(i)), R("a", Bf(ks & 1, nt)), c))
        S = Sched2(mf)
        for i in range(14): S.stream(a_reads(*F[i + 2], slot=i + 2), 7 * i, 7 * i + 3)
        S.stream([b_read(17, nt) for nt in range(7)], 2, 10)
        b = I("s_barrier"); b.uses = {("xrd", 8)}
        S.put(20, b)
        if DIST >= 3: spaced(S, dma_kv(2), 21 + KV2D, 105, 6)
        if LATEKV:
            b = I("s_barrier"); b.uses = {("kv", 0)}
            S.put(LATEKV, b)
        done = {}
        for g in range(3):
            for nt in range(7):
                lo = 28 * g + 21 + nt + 4
                lo = S.stream(conv_group(g, nt, True), lo, min(lo + CWIN, 111))
                done[(g, nt)] = lo
                s0, s1 = swap_group(g, nt)
                lo = S.stream(s0, min(lo + 2, 111), 111)
                S.stream(s1, min(lo + 2, 111), 111)
        hole_owner = [(g, nt) for g in range(4) for nt in range(7)]
        lo = max(60, LATEKV + 1)
        for sub in range(2):
            for g in range(4): lo = S.place(k_read(0, sub, g), max(lo, done[hole_owner[4 * sub + g]] + 1), 111)
        for dt in range(8):
            for d in v_reads(0, dt): lo = S.place(d, max(lo, done[hole_owner[8 + dt]] + 1), 111)
        return S

    def qstep(ks):
        mf = []
        for mt in range(8):
            for nt in range(7):
                c = R("v", acc(mt, nt))
                mf.append(m16(c, R("a", Af(mt)), R("a", Bf(ks & 1, nt)), "0" if ks == 0 else c))
        S = Sched2(mf)
        for mt in range(6):
            S.stream(a_reads(ks, mt + 2), 7 * mt, 7 * mt + 3)
        nxt = ks + 1
        if ks % 2 == 0:
            S.stream([b_read(nxt, nt) for nt in range(7)], 2, 20)
        if nxt < 18:
            if nxt % 2 == 0:
                S.stream([I(f"v_add_u32 v{vXa[0]}, s{sXdelta}, v{vXa[0]}"), I(f"v_add_u32 v{vXa[1]}, s{sXdelta}, v{vXa[1]}"),
                          I(f"s_sub_u32 s{sXdelta}, 0, s{sXdelta}")], 20, 36)
                advs = [I(f"v_add_u32 v{vWa[mt]}, s{sWrd}, v{vWa[mt]}") for mt in range(8)]
                S.stream(advs[:7], 32, 40)
                S.put(40, advs[7])
                S.put(41, I(f"s_sub_u32 s{sWrd}, 0, s{sWrd}"))
            S.put(42, qbarrier(nxt))
            S.stream(a_reads(nxt, 0), 42, 45)
            if nxt % 2 == 0: S.stream([b_read(nxt, nt) for nt in range(7)], 43, 52)
            S.stream(a_reads(nxt, 1), 49, 53)
        items = dma_in(ks)
        nd = sum(1 for g_ in items for i_ in g_ if i_.kind in ("dma", "vload"))
        if nd: spaced(S, items, 1, 55, max(2, min(QSTEP, 52 // nd)))
        return S

    for k in range(9):
        Ss = [qlast()] if (k == 8 and GMAJ) else [qstep(2 * k), qstep(2 * k + 1)]
        if k == 8 and verbose: print('q8 est', sum(S.est() for S in Ss))
        code = []
        key = "qloop" if 1 <= k <= 6 else f"q{k}"
        if key == "qloop": code.append(I(f"{name}_qloop:"))
        for S in Ss: code += S.emit()
        if key == "qloop":
            code += [I(f"s_add_u32 s{sCNT}, s{sCNT}, 1"), I(f"s_cmp_lt_u32 s{sCNT}, 6"), I(f"s_cbranch_scc1 {name}_qloop")]
        inst.append((key, code))
        if STAMP and k in (0, 6):
            T_ = Prog(); stamp(T_, 6 if k == 0 else 7, True); inst.append((f"st{k}", T_.L))

    C = Prog()
    if not GMAJ: C.ext([qbarrier(18)])
    assert not GMAJ or DIST == 3
    if TOUCH & 2: C(f"v_lshlrev_b32 v{vTa}, 7, v{vL}")
    late = dma_kv(3) if DIST >= 4 else []
    if TOUCH & 2:
        first_t = 5 if (TOUCH & 1) else 4
        late += [[I(f"s_mov_b32 s{sTo}, {first_t*8192+192}")]]
        for st_ in range(first_t, 4 + TD): late += touch(vTa, 8192)
    stamp(C, 2, STAMP)
    C(f"s_mov_b32 s{sCNT}, 0\ns_nop 4")
    groups = [(g, nt) for nt in range(7) for g in range(4) if (g == 3 or not GMAJ)]
    prev = None
    for i, (g, nt) in enumerate(groups):
        if late: C.ext(late.pop(0))
        C.ext(conv_group(g, nt))
        if i >= 1: C.ext(swap_group(*groups[i - 1])[0])
        if i >= 2: C.ext(swap_group(*groups[i - 2])[1])
    C("s_nop 1")
    C.ext(swap_group(*groups[-1])[0]); C.ext(swap_group(*groups[-2])[1]); C("s_nop 1"); C.ext(swap_group(*groups[-1])[1])

    def adv(sreg, vregs, st):
        return [[I(f"s_add_u32 s{sreg}, s{sreg}, 1")], [I(f"s_and_b32 s{sreg}, s{sreg}, 3"),
                I(f"s_cselect_b32 s{st}, s{sKKVS}, s{sKm3KVS}")]] + \
               [[I(f"v_add_u32 v{v}, s{st}, v{v}")] for v in vregs]
    def abarrier(j):
        b = I("s_barrier"); b.uses = {("kv", j + 1), ("krd", j), ("vrd", j), ("wqrd", 16), ("wqrd", 17)}
        return b
    def qk(t, zero):
        o = []
        for sub in range(2):
            d = R("v", Sb[sbuf(t)][sub])
            for g in range(4):
                c = d if g else ("0" if (zero or SOFT) else R("v", Ci[t]))
                o.append(m16(d, R("v", Kf[sub][g]), Q(t, g), c))
        return o
    def pv(t, zero):
        o = [m16(O(t, d), R("v", Vf[d]), R("v", Pf), "0" if zero else O(t, d)) for d in range(8)]
        if not VSUM: o.append(m16(Lr(t), ONES, R("v", Pf), "0" if zero else Lr(t)))
        return o
    def sregs(t): return [Sb[sbuf(t)][0] + i for i in range(4)] + [Sb[sbuf(t)][1] + i for i in range(4)]

    if not GMAJ:
        for sub in range(2):
            for g in range(4): C.ext([k_read(0, sub, g)])
        for dt in range(8): C.ext(v_reads(0, dt))
    C.ext(qk(0, True))
    stamp(C, 3, STAMP)
    inst.append(("conv", C.L))

    slow = Prog()
    def epi_tile(t, U, sfx):
        LS = Ci[t] + 2; X = Ci[t] + 3; INV = Ci[t]
        if VSUM:
            o = [f"v_mov_b32 v{X}, v{LS}", "s_nop 1", f"v_permlane32_swap_b32 v{X}, v{LS}", f"v_add_f32 v{LS}, v{LS}, v{X}",
                 f"v_mov_b32 v{X}, v{LS}", "s_nop 1", f"v_permlane16_swap_b32 v{X}, v{LS}", f"v_add_f32 v{LS}, v{LS}, v{X}",
                 f"v_rcp_f32 v{INV}, v{LS}"]
        else:
            o = [f"v_accvgpr_read_b32 v{LS}, a{224+4*t}", f"v_rcp_f32 v{INV}, v{LS}"]
        o = [[I(x)] for x in o]
        for g in range(4):
            val = [U[0] + i for i in range(4)] + [U[1] + i for i in range(4)]
            out = U[2 + (g & 1)]
            for i in range(8): o.append([I(f"v_accvgpr_read_b32 v{val[i]}, a{(t*8+2*g)*4+i}")])
            for i in range(8): o.append([I(f"v_mul_f32 v{val[i]}, v{val[i]}, v{INV}")])
            for q in range(4): o.append([I(f"v_cvt_pk_bf16_f32 v{out+q}, v{val[2*q]}, v{val[2*q+1]}")])
            st = I(f"buffer_store_dwordx4 v[{out}:{out+3}], v{vKa}, s[{SO}:{SO+3}], s{sT3} offen offset:{1024*g}{OFLAG}")
            st.defs = {("ostore", 0)}
            o.append(([I(f"s_mov_b32 s{sT3}, {t*TS}")] if g == 0 else []) + [st])
        return o
    def block(j, first, last=False):
        mf = []; base = []
        for s in range(7):
            base.append(len(mf))
            if not (first and s == 0): mf += pv((s - 1) % 7, first)
            if not (last and s == 6): mf += qk((s + 1) % 7, first and s < 6)
        base.append(len(mf))
        if last: mf += pv(6, False)
        S = Sched2(mf)
        NPV = 8 if VSUM else 9; SL = NPV + 8
        if not first:
            for n, gp in enumerate(VGAPS):
                dt = n // 2
                gp = min(gp, SL + dt - 4)
                assert dt <= gp
                S.put(gp, v_reads(j, dt)[n % 2])
        for i, gp in enumerate(KGAPS if not last else []):
            gp = gp - 9 + NPV
            assert NPV + i <= gp <= SL + NPV + i - 4
            S.put(base[5] + gp, k_read(j + 1, i // 4, i % 4))
        gb = base[2] + 1
        if not last: S.put(gb, abarrier(j))
        elif FUSED:
            b_ = abarrier(j); b_.uses |= {("kv", j + 2), ("kv", j + 3)}
            S.put(gb, b_)
            S.put(gb + 1, "v_mov_b32 v13, 0")
            S.put(gb + 3, "buffer_load_dword v13, v13, s[92:95], 0 offen sc1")
        for t in range(7):
            b0 = base[t]; sr = sregs(t); n = base[t + 1] - b0
            NM, TH, LS = Ci[t], Ci[t] + 1, Ci[t] + 2
            if first:
                ops = [f"v_max3_f32 v{vMX}, v{sr[0]}, v{sr[1]}, v{sr[2]}",
                       f"v_max3_f32 v{vMX}, v{vMX}, v{sr[3]}, v{sr[4]}",
                       f"v_max3_f32 v{vMX}, v{vMX}, v{sr[5]}, v{sr[6]}",
                       f"v_max_f32 v{vMX}, v{vMX}, v{sr[7]}",
                       f"v_mov_b32 v{vT}, v{vMX}", f"v_permlane32_swap_b32 v{vT}, v{vMX}",
                       f"v_max_f32 v{vMX}, v{vT}, v{vMX}",
                       f"v_mov_b32 v{vT}, v{vMX}", f"v_permlane16_swap_b32 v{vT}, v{vMX}",
                       f"v_max_f32 v{vMX}, v{vT}, v{vMX}"]
                if SOFT:
                    ops += [f"v_mul_f32 v{NM}, s{sNC}, v{vMX}"]
                    ops += [f"v_fma_f32 v{r}, v{r}, s{sC}, v{NM}" for r in sr]
                    ops += [f"v_add_f32 v{TH}, s{sTH}, v{vMX}"]
                else:
                    ops += [f"v_sub_f32 v{r}, v{r}, v{vMX}" for r in sr]
                ops += [f"v_exp_f32 v{r}, v{r}" for r in sr]
                if not SOFT: ops += [f"v_sub_f32 v{Ci[t]+i}, 0, v{vMX}" for i in range(4)]
                if VSUM:
                    ops += [f"v_add_f32 v{LS}, v{sr[0]}, v{sr[1]}"] + [f"v_add_f32 v{LS}, v{LS}, v{sr[i]}" for i in range(2, 8)]
                for i, o in enumerate(ops):
                    S.put(b0 + min(n - 2, 1 + (i * (n - 3)) // len(ops)), o)
                for q in range(4): S.put(b0 + n - 2, f"v_cvt_pk_bf16_f32 v{Pf+q}, v{sr[2*q]}, v{sr[2*q+1]}")
            elif SOFT:
                e0 = b0 + n - 1
                sx = "L" if last else ""
                gbr = S.put(e0, f"s_cbranch_vccnz {name}_slow{sx}{t}\n{name}_back{sx}{t}:")
                if VSUM: S.put(e0, f"v_add_f32 v{LS}, v{LS}, v{vTS}")
                ge = []
                for i in range(8):
                    tgt = b0 + (i * (n - 4)) // 8
                    gf = S.place(f"v_fma_f32 v{Er[i]}, v{sr[i]}, s{sC}, v{NM}", max(tgt, b0 + (3 if i >= 4 else 0)), min(max(tgt, b0 + 3) + 1, e0 - 3) if n > 8 else b0 + 3)
                    ge.append(S.place(f"v_exp_f32 v{Er[i]}, v{Er[i]}", gf + 1, min(gf + 2, e0 - 2)))
                cap = lambda x: min(x, e0 - 3)
                g1 = S.place(f"v_max3_f32 v{vMX}, v{sr[0]}, v{sr[1]}, v{sr[2]}", b0, cap(b0 + 6))
                g2 = S.place(f"v_max3_f32 v{vT}, v{sr[4]}, v{sr[5]}, v{sr[6]}", b0 + 3, cap(b0 + 8))
                g3 = S.place(f"v_max3_f32 v{vMX}, v{vMX}, v{sr[3]}, v{sr[7]}", max(g1, b0 + 3), cap(b0 + 10))
                g4 = S.place(f"v_max_f32 v{vMX}, v{vMX}, v{vT}", max(g2, g3), cap(b0 + 11))
                g5 = S.place(f"v_cmp_lt_f32 vcc, v{TH}, v{vMX}", g4, e0 - 2)
                for q in range(4):
                    S.place(f"v_cvt_pk_bf16_f32 v{Pf+q}, v{Er[2*q]}, v{Er[2*q+1]}", max(ge[2*q] + 1, ge[2*q+1] + 1, b0 + NPV - 1), max(e0 - 1, b0 + NPV - 1))
                if VSUM:
                    ga = S.place(f"v_add_f32 v{vTS}, v{Er[0]}, v{Er[1]}", ge[1] + 1, e0 - 1)
                    for i in range(2, 8):
                        ga = S.place(f"v_add_f32 v{vTS}, v{vTS}, v{Er[i]}", max(ga, ge[i] + 1), min(max(ga, ge[i] + 1) + 3, e0 - 1))
            else:
                sx = "L" if last else ""
                e0 = b0 + n - 1
                short = n < SL
                cap = (lambda x, d: min(x, e0 - d)) if short else (lambda x, d: x)
                g1 = S.place(f"v_max3_f32 v{vMX}, v{sr[0]}, v{sr[1]}, v{sr[2]}", b0, cap(b0 + 5, 5))
                g2 = S.place(f"v_max3_f32 v{vT}, v{sr[4]}, v{sr[5]}, v{sr[6]}", b0 + 3, cap(b0 + 7, 5))
                g3 = S.place(f"v_max3_f32 v{vMX}, v{vMX}, v{sr[3]}, v{sr[7]}", max(g1, b0 + 3), cap(b0 + 8, 4))
                g4 = S.place(f"v_max_f32 v{vMX}, v{vMX}, v{vT}", max(g2, g3), cap(b0 + 9, 4))
                g5 = S.place(f"v_cmp_lt_f32 vcc, s{sTH}, v{vMX}", g4, cap(b0 + 10, 3))
                gbr = S.place(f"s_cbranch_vccnz {name}_slow{sx}{t}\n{name}_back{sx}{t}:", g5 + 2, cap(b0 + 12, 1))
                ge = []
                for i in range(8):
                    ge.append(S.place(f"v_exp_f32 v{Er[i]}, v{sr[i]}", b0 + (3 if i >= 4 else 0), cap(b0 + 14, 1)))
                for q in range(4):
                    S.place(f"v_cvt_pk_bf16_f32 v{Pf+q}, v{Er[2*q]}, v{Er[2*q+1]}", max(ge[2*q] + 1, ge[2*q+1] + 1, gbr + 1, b0 + 8), cap(b0 + 15, 0))
        if last:
            S.put(0, f"v_lshlrev_b32 v{vKa}, 4, v{vL}")
            if WOT == 2:
                S.put(0, f"s_mov_b32 s14, {9216+192}\ns_mov_b32 s15, 0x00020000")
                for i in range(9):
                    d = I(f"buffer_load_dword v{vDum}, v{vKVd[0]}, s[12:15], s16 offen"); d.defs = set()
                    S.put(2 + 3 * i, [d, I("s_add_u32 s16, s16, 1024")])
            for t in range(5):
                lo = base[t + 1] + NPV + 3; hi = min(base[t + 2] + NPV + 2, len(mf) - 1)
                ops = epi_tile(t, [grp(g, t) for g in range(4)], "")
                for i, o_ in enumerate(ops): S.put(lo + (i * (hi - lo + 1)) // len(ops), o_)
            return S
        spaced(S, dma_kv(j + DIST) + (touch(vTa, 8192) if TOUCH & 2 else []), gb + 1 + DLATE, min(base[5] + 6 + DLATE + (15 if WOT == 3 else 0), len(mf) - 2), DSTEP)
        S.stream(adv(sVd, vVa, sT3), base[2], base[6])
        S.stream(adv(sKd, [vKa], sT4), base[3], base[5] + NPV - 1)
        if PAIR > 0 and not first: pair_mfmas(S, PAIR)
        if PAIR < 0 and not first: group_mfmas(S, -PAIR)
        return S

    S0 = block(0, True)
    inst.append(("blk0", S0.emit()))
    if STAMP:
        T_ = Prog(); stamp(T_, 8, True); inst.append(("stb", T_.L))
    for j in range(1, 15 if PEEL else 16):
        S = block(j, False)
        trace = [I("s_memtime s[76:77]"), I("s_memrealtime s[78:79]"), I("s_waitcnt lgkmcnt(0)"),
                 I(f"s_mov_b32 m0, s{sCNT}"), I("s_nop 1"), I(f"v_writelane_b32 v18, s76, m0"), I(f"v_writelane_b32 v19, s78, m0")] if os.environ.get("TRACE") else []
        code = [I(f"{name}_aloop:")] + trace + S.emit() + [I(f"s_add_u32 s{sCNT}, s{sCNT}, 1"), I(f"s_cmp_lt_u32 s{sCNT}, {14 if PEEL else 15}"),
                                                   I(f"s_cbranch_scc1 {name}_aloop")]
        inst.append(("aloop", code))
        if verbose and j == 1: print("k1 attention block est cycles", S.est(16), "ideal", 16 * len(S.m))

    E = Prog()
    if PEEL:
        pass
        SL_ = block(15, False, last=True)
        if verbose: print("last block est", SL_.est())
        inst.append(("blkL", SL_.emit()))
    else: E.ext(pv(6, False))
    stamp(E, 4, STAMP)
    if os.environ.get("TRACE"):
        E(f"""s_add_u32 s72, s20, 0x5000000
s_addc_u32 s73, s21, 0
s_mov_b32 s74, 0x100000
s_mov_b32 s75, 0x00020000
s_lshl_b32 s70, s2, 11
s_lshl_b32 s71, s{sW}, 9
s_add_u32 s70, s70, s71
v_lshlrev_b32 v2, 3, v{vL}
buffer_store_dwordx2 v[18:19], v2, s[72:75], s70 offen
s_waitcnt vmcnt(0)""")
    if FUSED:
        if PEEL: E("v_mov_b32 v25, v13")
        else: E(f"s_waitcnt vmcnt(0)\ns_barrier\nv_mov_b32 v24, 0\nbuffer_load_dword v25, v24, s[92:95], 0 offen sc1")
    if ZFLAG:
        E(f"""s_add_u32 s72, s20, {ZFLAG}
s_addc_u32 s73, s21, 0
s_mov_b32 s74, 32768
s_mov_b32 s75, 0x00020000
s_lshl_b32 s70, s2, 7
v_and_b32 v2, 31, v{vL}
v_lshlrev_b32 v2, 2, v2
v_mov_b32 v10, 0
buffer_store_dword v10, v2, s[72:75], s70 offen""")
    E(f"v_lshlrev_b32 v2, 4, v{vL}")
    E("s_nop 7")
    tmp = 32
    if VSUM:
        ET = range(5, 7) if PEEL else range(7)
        for t in ET: E(f"v_mov_b32 v{3+t}, v{Ci[t]+2}\nv_mov_b32 v{11+t}, v{Ci[t]+2}")
        E("s_nop 1")
        for t in ET: E(f"v_permlane32_swap_b32 v{3+t}, v{11+t}")
        for t in ET: E(f"v_add_f32 v{3+t}, v{3+t}, v{11+t}")
        for t in ET: E(f"v_mov_b32 v{11+t}, v{3+t}")
        E("s_nop 1")
        for t in ET: E(f"v_permlane16_swap_b32 v{3+t}, v{11+t}")
        for t in ET: E(f"v_add_f32 v{3+t}, v{3+t}, v{11+t}")
    for t in (range(5, 7) if PEEL else range(7)):
        inv = 20 + 2 * (t & 1)
        if VSUM: E(f"s_mov_b32 s{sT0}, {t*TS}\nv_rcp_f32 v{inv}, v{3+t}")
        else: E(f"v_accvgpr_read_b32 v{inv}, a{224+4*t}\ns_mov_b32 s{sT0}, {t*TS}\nv_rcp_f32 v{inv}, v{inv}")
        for g in range(4):
            r = tmp + 16 * ((t * 4 + g) % 8)
            for i in range(8): E(f"v_accvgpr_read_b32 v{r+i}, a{(t*8+2*g)*4+i}")
            for q in range(4): E(f"v_pk_mul_f32 v[{r+2*q}:{r+2*q+1}], v[{r+2*q}:{r+2*q+1}], v[{inv}:{inv+1}] op_sel_hi:[1,0]")
            for q in range(4): E(f"v_cvt_pk_bf16_f32 v{r+8+q}, v{r+2*q}, v{r+2*q+1}")
            E(f"buffer_store_dwordx4 v[{r+8}:{r+11}], v2, s[{SO}:{SO+3}], s{sT0} offen offset:{1024*g}{OFLAG}")
            E.L[-1].defs = {("ostore", 0)}
    if STAMP and not FUSED:
        stamp(E, 5, True)
        stamp_store(E, 9 if not os.environ.get('DBG') else 6, sW, 20, (512, 0))
    if not FUSED: E(f"{name}_done:\ns_endpgm")
    inst.append(("end", E.L))

    for t, sx in [(t, sx) for sx in (("", "L") if PEEL else ("",)) for t in range(7)]:
        sr = sregs(t)
        slow(f"""{name}_slow{sx}{t}:
v_mov_b32 v{vT}, v{vMX}
s_nop 1
v_permlane32_swap_b32 v{vT}, v{vMX}
v_max_f32 v{vMX}, v{vT}, v{vMX}
v_mov_b32 v{vT}, v{vMX}
s_nop 1
v_permlane16_swap_b32 v{vT}, v{vMX}
v_max_f32 v{vMX}, v{vT}, v{vMX}
""")
        NM, TH, LS = Ci[t], Ci[t] + 1, Ci[t] + 2
        if SOFT:
            slow(f"""v_subrev_f32 v{vT}, s{sTH}, v{TH}
v_max_f32 v{vMX}, v{vT}, v{vMX}
v_mul_f32 v{vT}, s{sNC}, v{vMX}
v_sub_f32 v{vF}, v{vT}, v{NM}
v_exp_f32 v{vF}, v{vF}
v_mov_b32 v{NM}, v{vT}
v_add_f32 v{TH}, s{sTH}, v{vMX}""")
            for i in range(8): slow(f"v_fma_f32 v{Er[i]}, v{sr[i]}, s{sC}, v{NM}")
            for i in range(8): slow(f"v_exp_f32 v{Er[i]}, v{Er[i]}")
            slow("s_nop 0")
            for q in range(4): slow(f"v_cvt_pk_bf16_f32 v{Pf+q}, v{Er[2*q]}, v{Er[2*q+1]}")
            if VSUM:
                slow(f"v_add_f32 v{vTS}, v{Er[0]}, v{Er[1]}")
                for i in range(2, 8): slow(f"v_add_f32 v{vTS}, v{vTS}, v{Er[i]}")
                slow(f"v_mul_f32 v{LS}, v{LS}, v{vF}")
        else:
            slow(f"v_max_f32 v{vMX}, 0, v{vMX}\nv_exp_f32 v{vF}, -v{vMX}")
            for r in sr: slow(f"v_sub_f32 v{r}, v{r}, v{vMX}")
            for i in range(8): slow(f"v_exp_f32 v{Er[i]}, v{sr[i]}")
            for i in range(4): slow(f"v_sub_f32 v{Ci[t]+i}, v{Ci[t]+i}, v{vMX}")
        regs = [t * 32 + i for i in range(32)] + ([] if VSUM else [224 + 4 * t + i for i in range(4)])
        for a in regs:
            slow(f"v_accvgpr_read_b32 v{vT}, a{a}\nv_mul_f32 v{vT}, v{vT}, v{vF}\nv_accvgpr_write_b32 a{a}, v{vT}")
        slow(f"s_nop 1\ns_branch {name}_back{sx}{t}")

    EXP = os.environ.get("EXP", "").split(",")
    def keep(key, i):
        if key == "aloop":
            if "a_nodma" in EXP and i.kind == "dma": return False
            if "a_nobar" in EXP and i.kind == "barrier": return False
            if "a_nods" in EXP and i.kind == "dsr": return False
            if "a_noexp" in EXP and i.op == "v_exp_f32": return False
            if "a_nomax" in EXP and (i.op.startswith("v_max") or i.op.startswith("v_cmp") or i.op == "s_cbranch_vccnz"): return False
            if "a_nobr" in EXP and (i.op == "s_cbranch_vccnz"): return False
            if "a_nocvt" in EXP and i.op.startswith("v_cvt"): return False
            if "a_nosum" in EXP and i.kind == "mfma" and "a[252:255]" in i.text: return False
            if "a_nopv" in EXP and i.kind == "mfma" and i.text.split()[1].startswith("a["): return False
        if key == "qloop":
            if "q_nodma" in EXP and i.kind == "dma": return False
            if "q_nobar" in EXP and i.kind == "barrier": return False
            if "q_nods" in EXP and i.kind == "dsr": return False
        return True
    inst = [(k_, [i for i in c_ if keep(k_, i)]) for k_, c_ in inst]
    PADN = int(os.environ.get("PADN", 0))
    if PADN:
        def pad(c_):
            o_ = []; n_ = 0
            for i in c_:
                if i.kind == "mfma":
                    n_ += 1
                    if n_ % PADN == 0: o_.append(I("s_nop 7"))
                o_.append(i)
            return o_
        inst = [(k_, pad(c_) if k_ == "aloop" else c_) for k_, c_ in inst]
    if FUSED: return inst, slow
    out, full, nfix = resolve_all2(inst)
    if verbose: print("k1 nops inserted:", nfix, "est aloop", est_code(out["aloop"]), "est qloop", est_code(out["qloop"]), "blk0", est_code(out["blk0"]))
    msgs = check_hazards(full, name) + check_hazards(slow.L, name + "_slow")
    seen = set()
    for m_ in msgs:
        key = m_.split("]")[1][:60] + m_.split("->")[-1][-50:]
        if key not in seen: print(m_); seen.add(key)
    order = []
    for key, _ in inst:
        if key not in order: order.append(key)
    text = "\n".join(str(i) for key in order for i in out[key]) + "\n" + slow.text()
    launch = f"; @launch kernel={name} grid=(256,1,1) block=(256,1,1) lds=163840"
    return launch, text, kd(name, 512, 256, 102)

def gen_k2(name="oproj_kernel", NS=4, STAMP=False, WROT=1, verbose=True):
    for Lp in range(126): assert (Lp * 57) >> 9 == Lp // 9
    KS = 4
    PB = KS * NS
    ACC = 16
    AF = 48
    BF = 80
    NV = BF + 8 * PB
    vLane16 = 2; vA = [3, 4, 5, 6]; vDma = [7, 8, 9, 10]; vOut = 11
    P = Prog()
    P(f"""
.globl {name}
.p2align 8
.type {name},@function
{name}:
s_cmp_ge_u32 s2, 256
s_cbranch_scc1 {name}_done
s_load_dwordx2 s[4:5], s[0:1], 32
s_load_dwordx2 s[6:7], s[0:1], 72
s_load_dwordx2 s[8:9], s[0:1], 80
s_load_dwordx2 s[10:11], s[0:1], 96
""")
    if STAMP: P("s_memtime s[80:81]\ns_memrealtime s[98:99]")
    P(f"""
s_and_b32 s20, s2, 7
s_lshr_b32 s21, s2, 3
s_and_b32 s22, s20, 1
s_mul_i32 s23, s22, 31
s_cmp_eq_u32 s23, 31
s_cselect_b32 s23, s21, 0
s_cmp_eq_u32 s23, 31
s_cbranch_scc1 {name}_done
s_mul_i32 s22, s20, 63
s_add_u32 s22, s22, 1
s_lshr_b32 s22, s22, 1
s_add_u32 s22, s22, s21
s_cmp_ge_u32 s22, 126
s_cselect_b32 s24, 1, 0
s_mul_i32 s25, s24, 126
s_sub_u32 s22, s22, s25
s_mul_i32 s26, s22, 57
s_lshr_b32 s26, s26, 9
s_mul_i32 s27, s26, 9
s_sub_u32 s27, s22, s27
v_and_b32 v1, 63, v0
v_lshrrev_b32 v12, 6, v0
v_lshlrev_b32 v{vLane16}, 4, v1
v_readfirstlane_b32 s28, v12
""")
    P(f"""
s_lshl_b32 s29, s26, 3
s_lshl_b32 s30, s28, 1
s_add_u32 s29, s29, s30
s_mul_i32 s30, s24, 112
s_add_u32 s30, s30, s29
s_mul_i32 s30, s30, {TS}
v_lshrrev_b32 v12, 3, v1
v_mul_u32_u24 v12, 1152, v12
v_bfe_u32 v13, v1, 4, 2
v_lshlrev_b32 v13, 1, v13
v_and_b32 v14, 7, v1
v_xor_b32 v13, v13, v14
v_lshl_add_u32 v{vDma[0]}, v13, 4, v12
v_add_u32 v{vDma[1]}, 8192, v{vDma[0]}
v_add_u32 v{vDma[2]}, 16384, v{vDma[0]}
v_add_u32 v{vDma[3]}, 24576, v{vDma[0]}
s_mul_i32 s44, s28, 36864
s_lshl_b32 s46, s27, 7
s_add_u32 s44, s44, s46
s_lshl_b32 s45, s28, 12
s_mov_b32 s63, s44
s_mul_i32 s62, s26, 3
s_add_u32 s62, s62, s27
s_and_b32 s62, s62, {WROT-1}
s_mov_b32 s60, 0
s_mov_b32 s61, 0
s_mul_i32 s64, s62, 147456
s_add_u32 s44, s63, s64
s_lshl_b32 s47, s62, 12
s_waitcnt lgkmcnt(0)
s_cmp_eq_u32 s24, 0
s_cselect_b32 s32, s4, s6
s_cselect_b32 s33, s5, s7
s_mov_b32 s34, 4718592
s_mov_b32 s35, 0x00020000
s_add_u32 s36, s10, s30
s_addc_u32 s37, s11, 0
s_mov_b32 s38, 131072
s_mov_b32 s39, 0x00020000
s_add_u32 s56, s36, {TS}
s_addc_u32 s57, s37, 0
s_mov_b32 s58, 131072
s_mov_b32 s59, 0x00020000
s_mov_b32 s40, s8
s_mov_b32 s41, s9
s_mov_b32 s42, 4128768
s_mov_b32 s43, 0x00020000
""")
    def dma(stage):
        slot = stage % NS
        out = [I(f"s_add_u32 m0, s45, {slot*16384}"), I("s_nop 0")]
        for i in range(4):
            d = I(f"buffer_load_dwordx4 v{vDma[i]}, s[32:35], s44 offen offset:{1024*i} lds")
            d.defs = {("lds", stage)}
            out.append(d)
        out += [I("s_add_u32 s60, s60, 1"), I("s_add_u32 s64, s60, s62"), I(f"s_and_b32 s64, s64, {WROT-1}"),
                I(f"s_andn2_b32 s65, s60, {WROT-1}"), I("s_or_b32 s64, s64, s65"), I("s_mul_i32 s64, s64, 147456"), I("s_add_u32 s44, s63, s64")]
        return out
    def bload(g):
        out = []
        for nt in range(2):
            r = BF + 8 * (g % PB) + 4 * nt
            srd = "s[36:39]" if nt == 0 else "s[56:59]"
            out.append(I(f"buffer_load_dwordx4 v[{r}:{r+3}], v{vLane16}, {srd}, s47 offen offset:{1024*(g%4)}"))
        if g % 4 == 3:
            out += [I("s_add_u32 s61, s61, 1"), I("s_add_u32 s66, s61, s62"), I(f"s_and_b32 s66, s66, {WROT-1}"),
                    I(f"s_andn2_b32 s67, s61, {WROT-1}"), I("s_or_b32 s66, s66, s67"), I("s_lshl_b32 s47, s66, 12")]
        return out
    def areads(g, mt):
        stage = g // KS; slot = stage % NS; ks = g % KS
        r = AF + 16 * (g % 2) + 4 * mt
        out = []
        for half in range(2):
            d = I(f"ds_read_b64_tr_b16 v[{r+2*half}:{r+2*half+1}], v{vA[mt]} offset:{slot*16384 + ks*4096 + half*2048}")
            d.defs |= {("ldsrd", stage)}
            out.append(d)
        return out
    def barrier(stage):
        b = I("s_barrier"); b.uses = {("lds", stage), ("ldsrd", stage - 1)}
        return b
    for st in range(NS - 1):
        P.ext(dma(st))
        for g in range(KS * st, KS * st + KS): P.ext(bload(g))
    for g in range(KS * (NS - 1), PB): P.ext(bload(g))
    P(f"""
v_lshrrev_b32 v12, 2, v1
v_bfe_u32 v13, v12, 1, 2
v_lshlrev_b32 v12, 7, v12
v_lshl_add_u32 v12, v13, 5, v12
v_and_b32 v13, 3, v1
v_lshl_add_u32 v{vA[0]}, v13, 3, v12
v_xor_b32 v{vA[1]}, 32, v{vA[0]}
v_xor_b32 v{vA[2]}, 64, v{vA[0]}
v_xor_b32 v{vA[3]}, 96, v{vA[0]}
""")
    P(f"""
s_lshl_b32 s50, s29, 4
v_and_b32 v12, 15, v1
v_add_u32 v12, s50, v12
v_mul_u32_u24 v12, 2304, v12
v_lshrrev_b32 v13, 4, v1
v_lshlrev_b32 v13, 3, v13
s_mul_i32 s53, s24, 1152
s_lshl_b32 s54, s27, 7
s_add_u32 s53, s53, s54
v_add3_u32 v{vOut}, v12, v13, s53
s_mov_b32 s55, 0
""")
    for i in range(32): P(f"v_mov_b32 v{ACC+i}, 0")
    P.ext([barrier(0)])
    P.ext(dma(NS - 1))
    for mt in range(4): P.ext(areads(0, mt))
    stamp(P, 1, STAMP)
    inst = [("pre", P.L)]
    NIT = 128 // PB
    for it in range(NIT):
        code = [I(f"{name}_loop:")]
        for gl in range(PB):
            g = it * PB + gl
            mf = []
            for mt in range(4):
                for nt in range(2):
                    c = R("v", ACC + 8 * mt + 4 * nt)
                    mf.append(m16(c, R("v", AF + 16 * (g % 2) + 4 * mt), R("v", BF + 8 * (g % PB) + 4 * nt), c))
            S = Sched2(mf)
            gn = g + 1
            lo = 0
            if gn % KS == 0:
                S.put(1, barrier(gn // KS)); lo = 1
            for mt in range(4): lo = S.stream(areads(gn, mt), lo, 6)
            if gn % KS == 0: S.stream(dma(gn // KS + NS - 1), 5, 7)
            S.put(7, bload(g + PB))
            code += S.emit()
        code += [I("s_add_u32 s55, s55, 1"), I(f"s_cmp_lt_u32 s55, {NIT}"), I(f"s_cbranch_scc1 {name}_loop")]
        inst.append(("loop", code))
    E = Prog()
    E("s_nop 7")
    stamp(E, 2, STAMP)
    for mt in range(4):
        for nt in range(2):
            c = ACC + 8 * mt + 4 * nt
            t = AF + 4 * mt + 2 * nt
            E(f"v_cvt_pk_bf16_f32 v{t}, v{c}, v{c+1}\nv_cvt_pk_bf16_f32 v{t+1}, v{c+2}, v{c+3}")
            if nt == 0:
                E(f"buffer_store_dwordx2 v[{t}:{t+1}], v{vOut}, s[40:43], 0 offen offset:{32*mt}")
            else:
                E(f"s_mov_b32 s50, {16*2304}\nbuffer_store_dwordx2 v[{t}:{t+1}], v{vOut}, s[40:43], s50 offen offset:{32*mt}")
    if STAMP:
        E("s_waitcnt vmcnt(0)")
        stamp(E, 3, True)
        E("s_add_u32 s10, s10, 0x100000\ns_addc_u32 s11, s11, 0")
        stamp_store(E, 4, 28, 10, (0, 32))
    E(f"{name}_done:\ns_endpgm")
    inst.append(("end", E.L))
    out, full, nfix = resolve_all2(inst)
    for m_ in check_hazards(full, name)[:10]: print(m_)
    text = "\n".join(str(i) for key in ("pre", "loop", "end") for i in out[key])
    launch = f"; @launch kernel={name} grid=(256,1,1) block=(256,1,1) lds={NS*16384}"
    return launch, text, kd(name, NV, ((NV + 3) // 4) * 4, 102)

def write(path, kernels, header=""):
    with open(path, "w") as f:
        f.write(header)
        for l, _, _ in kernels: f.write(l + "\n")
        f.write('.amdgcn_target "amdgcn-amd-amdhsa--gfx950"\n.text\n')
        for _, c, _ in kernels: f.write(c + "\n")
        f.write('code_end:\n.section .rodata,"a"\n')
        for _, _, k in kernels: f.write(".p2align 6\n" + k + "\n")

HEADER = """; Fused GQA block x2 (Q-proj + attention, then O-proj); generated by a hand-written generator script.
"""

if __name__ == "__main__":
    out = sys.argv[1] if len(sys.argv) > 1 else "full.s"
    st = bool(os.environ.get("STAMP"))
    kw = {}; kw2 = {}
    for k_ in ("WROT", "NS"):
        if k_ in os.environ: kw2[k_] = int(os.environ[k_])
    if "KVFLAG" in os.environ: kw["KVFLAG"] = os.environ["KVFLAG"]
    for k_ in ("MAPPING", "ROT", "TOUCH", "WOT", "TD", "KROT", "DLATE", "DSTEP", "DIST", "CPF", "SOFT", "VSUM", "PPS", "TS0", "TSTEP", "TPK"):
        if k_ in os.environ: kw[k_] = int(os.environ[k_])
    if "TFLAG" in os.environ: kw["TFLAG"] = os.environ["TFLAG"]
    write(out, [gen_k1(STAMP=st, **kw), gen_k2(STAMP=st, **kw2)], HEADER)
```

```python
from gen import *

XOFF = 0x2000000
FOFF = 0x3000000

def gen_k2r(name="oproj_kernel", STAMP=False, NSL=8, FLAGST=5, LA=2, RX=8, LEAD=2, LOOKU=4, PACE=3, LAG=1, PERM=0, FUSED=0, verbose=True):
    for L in range(252): assert (L * 171) >> 9 == L // 3
    for L in range(126): assert (L * 781) >> 15 == L // 42
    NK = 44; KS = 4; NST = NK // KS
    ACC = [32, 64, 32]
    AF = 96
    def Bf(g, nt):
        n = 2 * g + nt
        return R("a", 4 * n) if n < 64 else R("v", 160 + 4 * (n - 64))
    vLane16 = 2; vA = [3, 4, 5, 6]; vAh = [7, 8, 9, 10]; vDma = [11, 12, 13, 14]; vOut = 15
    sBLK, sNG, sMQ, sS, sW, sL, sTAU = 24, 26, 27, 25, 28, 22, 23
    P = Prog()
    if not FUSED:
        P(f"""
.globl {name}
.p2align 8
.type {name},@function
{name}:
s_cmp_ge_u32 s2, 256
s_cbranch_scc1 {name}_done""")
    P(f"""
s_load_dwordx2 s[4:5], s[0:1], 32
s_load_dwordx2 s[6:7], s[0:1], 72
s_load_dwordx2 s[8:9], s[0:1], 80
s_load_dwordx2 s[10:11], s[0:1], 96
""")
    if STAMP and not FUSED: P("s_memtime s[80:81]\ns_memrealtime s[98:99]")
    sc = " sc1" if FUSED else ((" " + os.environ["BFLAG"]) if os.environ.get("BFLAG") else "")
    af = (" " + os.environ["AFLAG"]) if os.environ.get("AFLAG") else ""
    P(f"""
s_and_b32 s20, s2, 7
s_lshr_b32 s21, s2, 3
s_and_b32 s22, s20, 1
s_mul_i32 s23, s22, 31
s_cmp_eq_u32 s23, 31
s_cselect_b32 s23, s21, 0
s_cmp_eq_u32 s23, 31
s_cbranch_scc1 {name + ("_notile" if FUSED else "_done")}
s_mul_i32 s22, s20, 63
s_add_u32 s22, s22, 1
s_lshr_b32 s22, s22, 1
s_add_u32 s{sL}, s22, s21
s_cmp_ge_u32 s{sL}, 126
s_cselect_b32 s{sBLK}, 1, 0
s_mul_i32 s20, s{sBLK}, 126
s_sub_u32 s20, s{sL}, s20
s_mul_i32 s{sS}, s20, 781
s_lshr_b32 s{sS}, s{sS}, 15
s_mul_i32 s21, s{sS}, 42
s_sub_u32 s20, s20, s21
s_mul_i32 s{sNG}, s20, 171
s_lshr_b32 s{sNG}, s{sNG}, 9
s_mul_i32 s21, s{sNG}, 3
s_sub_u32 s{sMQ}, s20, s21
s_mul_i32 s{sTAU}, s{sBLK}, 42
s_add_u32 s{sTAU}, s{sTAU}, s20
s_mul_i32 s{sL}, s{sTAU}, 3
s_add_u32 s{sL}, s{sL}, s{sS}
{"s_mov_b32 s24, 0" + chr(10) + "s_mov_b32 s26, 0" + chr(10) + "s_mov_b32 s27, 0" if "same" in os.environ.get("EXP2", "") else ""}
{"v_and_b32 v1, 63, v0" + chr(10) + "v_lshrrev_b32 v16, 6, v0" if not FUSED else ""}
v_lshlrev_b32 v{vLane16}, 4, v1
{f"v_readfirstlane_b32 s{sW}, v16" if not FUSED else f"s_mov_b32 s{sW}, s91"}
s_lshl_b32 s29, s{sNG}, 3
s_add_u32 s51, s{sS}, 1
s_cmp_ge_u32 s51, 3
s_cselect_b32 s52, 3, 0
s_sub_u32 s51, s51, s52
s_add_u32 s52, s{sS}, 2
s_cmp_ge_u32 s52, 3
s_cselect_b32 s53, 3, 0
s_sub_u32 s52, s52, s53
s_lshl_b32 s30, s{sW}, 1
s_add_u32 s29, s29, s30
s_mul_i32 s30, s{sBLK}, 112
s_add_u32 s30, s30, s29
s_mul_i32 s30, s30, {TS}
v_lshrrev_b32 v16, 3, v1
v_mul_u32_u24 v16, 1152, v16
v_bfe_u32 v17, v1, 4, 2
v_lshlrev_b32 v17, 1, v17
v_and_b32 v18, 7, v1
v_xor_b32 v17, v17, v18
v_lshl_add_u32 v{vDma[0]}, v17, 4, v16
v_add_u32 v{vDma[1]}, 8192, v{vDma[0]}
v_add_u32 v{vDma[2]}, 16384, v{vDma[0]}
v_add_u32 v{vDma[3]}, 24576, v{vDma[0]}
s_mul_i32 s46, s{sS}, {NK*32*1152}
s_mul_i32 s47, s{sW}, {32*1152}
s_add_u32 s46, s46, s47
s_mul_i32 s47, s{sMQ}, 384
s_add_u32 s46, s46, s47
s_lshl_b32 s47, s51, 7
s_add_u32 s60, s46, s47
s_lshl_b32 s47, s52, 7
s_add_u32 s61, s46, s47
s_lshl_b32 s47, s{sS}, 7
s_add_u32 s62, s46, s47
s_lshl_b32 s45, s{sW}, 12
s_mul_i32 s48, s{sS}, {NK*1024}
s_add_u32 s49, s{sMQ}, s{sNG}
s_mul_i32 s50, s49, 171
s_lshr_b32 s50, s50, 9
s_mul_i32 s50, s50, 3
s_sub_u32 s49, s49, s50
{"" if PERM else "s_mov_b32 s49, 0"}
s_mul_i32 s12, s49, 147456
s_lshl_b32 s15, s49, 12
s_add_u32 s49, s49, 1
s_cmp_eq_u32 s49, 3
s_cselect_b32 s49, 0, s49
s_mul_i32 s13, s49, 147456
s_lshl_b32 s16, s49, 12
s_add_u32 s49, s49, 1
s_cmp_eq_u32 s49, 3
s_cselect_b32 s49, 0, s49
s_mul_i32 s14, s49, 147456
s_lshl_b32 s17, s49, 12
s_add_u32 s15, s15, s48
s_add_u32 s16, s16, s48
s_add_u32 s17, s17, s48
s_waitcnt lgkmcnt(0)
s_cmp_eq_u32 s{sBLK}, 0
s_cselect_b32 s32, s4, s6
s_cselect_b32 s33, s5, s7
s_mov_b32 s34, 4718592
s_mov_b32 s35, 0x00020000
s_add_u32 s36, s10, s30
s_addc_u32 s37, s11, 0
s_mov_b32 s38, 131072
s_mov_b32 s39, 0x00020000
s_add_u32 s56, s36, {TS}
s_addc_u32 s57, s37, 0
s_mov_b32 s58, 131072
s_mov_b32 s59, 0x00020000
""")
    units = []
    for k in range(NST + LEAD):
        if k < NST: units.append((0, k))
        if k >= LEAD: units.append((1, k - LEAD))
    units += [(2, k) for k in range(NST)]
    NU = len(units)
    def dma(u):
        p, k = units[u]
        if k < 9:
            out = [[I(f"s_add_u32 s44, s{60+p}, s{12+k%3}")], [I(f"s_add_u32 m0, s45, {(u % NSL)*16384}"), I(f"s_add_u32 s44, s44, {(k//3)*3*128*1152}")]]
        else:
            out = [[I(f"s_add_u32 m0, s45, {(u % NSL)*16384}"), I(f"s_add_u32 s44, s{60+p}, {k*128*1152}")]]
        for i in range(4):
            d = I(f"buffer_load_dwordx4 v{vDma[i]}, s[32:35], s44 offen offset:{1024*i}{af} lds")
            d.defs = {("lds", u)}
            out.append([d])
        return out
    def bload(g):
        out = []
        k = g // 4
        if g % 4 == 0:
            out.append([I(f"s_add_u32 s47, s{15+k%3}, {(k//3)*3*4096}") if k < 9 else I(f"s_add_u32 s47, s48, {k*4096}")])
        for nt in range(2):
            srd = "s[36:39]" if nt == 0 else "s[56:59]"
            out.append([I(f"buffer_load_dwordx4 {Bf(g, nt)}, v{vLane16}, {srd}, s47 offen offset:{1024*(g%4)}{sc}")])
        return out
    def aread(G, mt, half):
        u = G // KS; slot = u % NSL; ks = G % KS
        r = AF + 16 * (G % 4) + 4 * mt + 2 * half
        va = vA[mt] if slot < 4 else vAh[mt]
        d = I(f"ds_read_b64_tr_b16 v[{r}:{r+1}], v{va} offset:{(slot % 4)*16384 + ks*4096 + half*2048}")
        d.defs |= {("ldsrd", u)}
        return d
    def barrier(u):
        b = I("s_barrier"); b.uses = {("lds", u), ("ldsrd", u - 1 - LAG)}
        return b
    flat = lambda gs: [i for g_ in gs for i in g_]
    LOOK = 4
    def loads_for(u):
        o = dma(u)
        p, k = units[u]
        if p == 0:
            for g in range(KS * k, KS * k + KS): o += bload(g)
        return o
    NPRE = LOOKU if FUSED else 0
    if FUSED:
        for u in range(2): P.ext(flat(dma(u)))
    else: P.ext(flat(loads_for(0)))
    P(f"""
v_lshrrev_b32 v16, 2, v1
v_bfe_u32 v17, v16, 1, 2
v_lshlrev_b32 v16, 7, v16
v_lshl_add_u32 v16, v17, 5, v16
v_and_b32 v17, 3, v1
v_lshl_add_u32 v{vA[0]}, v17, 3, v16
v_xor_b32 v{vA[1]}, 32, v{vA[0]}
v_xor_b32 v{vA[2]}, 64, v{vA[0]}
v_xor_b32 v{vA[3]}, 96, v{vA[0]}
""")
    for u in range(4): P(f"v_add_u32 v{vAh[u]}, 0x10000, v{vA[u]}")
    if FUSED:
        for u in range(2, NPRE): P.ext(flat(dma(u)))
    else: P.ext(flat(loads_for(1)))
    P(f"""
s_mov_b32 s40, s8
s_mov_b32 s41, s9
s_mov_b32 s42, 4128768
s_mov_b32 s43, 0x00020000
s_lshl_b32 s50, s29, 4
v_and_b32 v16, 15, v1
v_add_u32 v16, s50, v16
v_mul_u32_u24 v16, 2304, v16
v_lshrrev_b32 v17, 4, v1
v_lshlrev_b32 v17, 3, v17
s_mul_i32 s53, s{sBLK}, 1152
s_mul_i32 s54, s{sMQ}, 384
s_add_u32 s53, s53, s54
s_lshl_b32 s54, s{sS}, 7
s_add_u32 s53, s53, s54
v_add3_u32 v{vOut}, v16, v17, s53
s_add_u32 s68, s10, {XOFF}
s_addc_u32 s69, s11, 0
s_mov_b32 s70, 0x1100000
s_mov_b32 s71, 0x00020000
s_add_u32 s72, s10, {FOFF}
s_addc_u32 s73, s11, 0
s_mov_b32 s74, 65536
s_mov_b32 s75, 0x00020000
s_mul_i32 s50, s{sTAU}, {6*16384}
s_lshl_b32 s53, s{sW}, 12
s_add_u32 s50, s50, s53
s_lshl_b32 s53, s51, 15
s_add_u32 s63, s53, s50
s_lshl_b32 s54, s52, 15
s_add_u32 s64, s54, s50
s_add_u32 s64, s64, 16384
s_lshl_b32 s55, s{sS}, 15
s_add_u32 s65, s55, s50
s_mul_i32 s50, s{sTAU}, 3
s_add_u32 s51, s51, s50
s_add_u32 s52, s52, s50
s_lshl_b32 s51, s51, 7
s_lshl_b32 s52, s52, 7
s_lshl_b32 s50, s{sL}, 7
v_mov_b32 v20, s52
v_mov_b32 v21, s51
v_and_b32 v16, 1, v1
v_cmp_eq_u32 vcc, 0, v16
s_nop 1
v_cndmask_b32 v20, v21, v20, vcc
v_mov_b32 v22, s50
""")
    if not FUSED:
        P(f"""
v_mov_b32 v23, 1
s_getpc_b64 s[96:97]
{name}_pc:
s_sub_u32 s96, s96, {name}_pc-{name}
s_subb_u32 s97, s97, 0
s_lshr_b32 s50, s2, 3
s_lshl_b32 s50, s50, 2
s_add_u32 s50, s50, s{sW}
s_lshl_b32 s50, s50, 8
v_lshl_add_u32 v16, v1, 2, s50
s_mov_b32 s50, code_end-{name}-4
v_min_u32 v16, s50, v16
global_load_dword v0, v16, s[96:97]
""")
    polls = Prog()
    if FUSED:
        for T_ in range(112): assert (T_ * 147) >> 11 == T_ // 14
        P(f"""
s_lshl_b32 s53, s{sNG}, 3
s_mul_i32 s50, s53, 147
s_lshr_b32 s50, s50, 11
s_add_u32 s53, s53, 7
s_mul_i32 s53, s53, 147
s_lshr_b32 s53, s53, 11
s_lshl_b32 s51, s{sBLK}, 3
s_add_u32 s50, s50, s51
s_add_u32 s53, s53, s51
s_lshl_b32 s50, s50, 7
s_lshl_b32 s53, s53, 7
s_add_u32 s50, s50, 32768
s_add_u32 s53, s53, 32768
s_mul_i32 s51, s{sS}, 11
s_lshr_b32 s51, s51, 1
s_add_u32 s52, s51, 5
s_min_u32 s52, s52, 15
v_and_b32 v26, 15, v1
v_max_u32 v26, s51, v26
v_min_u32 v26, s52, v26
v_mov_b32 v27, s50
v_mov_b32 v28, s53
v_cmp_gt_u32 vcc, 16, v1
s_nop 1
v_cndmask_b32 v27, v28, v27, vcc
v_lshl_add_u32 v26, v26, 2, v27
v_mov_b32 v27, s90
""")
        pub = I("s_barrier"); pub.uses = {("ostore", 0), ("v", 25)}
        P.ext([pub])
        fs = I("buffer_store_dword v25, v27, s[72:75], 0 offen sc1"); fs.kind = "misc"
        P(f"v_cmp_eq_u32 vcc, 0, v25\ns_cbranch_vccnz {name}_nonce\n{name}_nb:\nv_mov_b32 v23, v25\ns_cmp_lg_u32 s{sW}, 0\ns_cbranch_scc1 {name}_od\ns_mov_b64 exec, 1")
        P.ext([fs])
        P(f"s_mov_b64 exec, -1\ns_mov_b32 s78, 0\n{name}_ow:")
        pl = I("buffer_load_dword v24, v26, s[72:75], 0 offen sc1"); pl.kind = "misc"; pl.defs = set()
        P.ext([pl])
        w0 = I("s_waitcnt vmcnt(0)"); w0.kind = "misc"
        P.ext([w0])
        P(f"""v_cmp_ne_u32 vcc, v25, v24
s_add_u32 s78, s78, 1
s_cmp_lt_u32 s78, 0x40000
s_cbranch_scc0 {name}_od
s_cbranch_vccnz {name}_ow
{name}_od:
s_barrier""")
        stamp(P, 16, STAMP)
        for g in range(2 * KS): P.ext(flat(bload(g)))
        polls(f"""{name}_nonce:
s_mov_b32 s78, 0
{name}_nl:
v_mov_b32 v24, 0
buffer_load_dword v25, v24, s[92:95], 0 offen sc1
s_waitcnt vmcnt(0)
v_cmp_eq_u32 vcc, 0, v25
s_add_u32 s78, s78, 1
s_cmp_lt_u32 s78, 0x40000
s_cbranch_scc0 {name}_nb
s_cbranch_vccnz {name}_nl
s_branch {name}_nb
{name}_notile:
s_waitcnt vmcnt(0) lgkmcnt(0)
s_add_u32 s72, s10, {FOFF}
s_addc_u32 s73, s11, 0
s_mov_b32 s74, 65536
s_mov_b32 s75, 0x00020000
v_mov_b32 v27, s90
s_barrier
s_cmp_lg_u32 s91, 0
s_cbranch_scc1 {name}_done
s_mov_b32 s78, 0
{name}_ntl:
v_cmp_ne_u32 vcc, 0, v25
s_cbranch_vccnz {name}_nts
v_mov_b32 v24, 0
buffer_load_dword v25, v24, s[92:95], 0 offen sc1
s_waitcnt vmcnt(0)
s_add_u32 s78, s78, 1
s_cmp_lt_u32 s78, 0x40000
s_cbranch_scc1 {name}_ntl
{name}_nts:
s_mov_b64 exec, 1
buffer_store_dword v25, v27, s[72:75], 0 offen sc1
s_endpgm""")
    P.ext([barrier(0)])
    for G in range(LA):
        for mt in range(4):
            for half in range(2): P.ext([aread(G, mt, half)])
    stamp(P, 1 if not FUSED else 17, STAMP)
    code = P.L
    NG = NU * KS
    lq = []
    for v in range(NU):
        p_, k_ = units[v]
        if v >= max(2, NPRE): lq += [(v, gr) for gr in dma(v)]
        if p_ == 0 and k_ >= 2:
            for g in range(KS * k_, KS * k_ + KS): lq += [(v, gr) for gr in bload(g)]
    gap_carry = 0
    def sends(p):
        o = []
        for i in range(4):
            c = ACC[p] + 8 * i
            for q in range(4): o.append([I(f"v_cvt_pk_bf16_f32 v{c+q}, v{c+2*q}, v{c+2*q+1}")])
            d = I(f"buffer_store_dwordx4 v[{c}:{c+3}], v{vLane16}, s[68:71], s{63+p} offen offset:{1024*i} sc1")
            d.defs = {("sent", p)}
            o.append([d])
        return o
    def recvs():
        o = []
        for sl in range(2):
            for i in range(4):
                o.append([I(f"buffer_load_dwordx4 a[{16*sl+4*i}:{16*sl+4*i+3}], v{vLane16}, s[68:71], s65 offen offset:{1024*i} sc1")])
            if sl == 0: o.append([I(f"s_add_u32 s65, s65, 16384")])
        return o
    flag_load = lambda: I(f"buffer_load_dword v24, v20, s[72:75], 0 offen sc1")
    def flag_check():
        polls(f"""{name}_poll:
s_mov_b32 s78, 0
{name}_pl:
buffer_load_dword v24, v20, s[72:75], 0 offen sc1
s_waitcnt vmcnt(0)
v_cmp_ne_u32 vcc, v23, v24
s_add_u32 s78, s78, 1
s_cmp_lt_u32 s78, 0x40000
s_cbranch_scc0 {name}_pb
s_cbranch_vccnz {name}_pl
s_branch {name}_pb""")
        return [I(f"v_cmp_ne_u32 vcc, v23, v24"), I(f"s_cbranch_vccnz {name}_poll"), I(f"{name}_pb:")]
    U2 = 2 * NST
    for u in range(NU):
        p, k = units[u]
        mf = []
        for ks in range(KS):
            G = KS * u + ks; g = KS * k + ks
            for mt in range(4):
                for nt in range(2):
                    c = R("v", ACC[p] + (mt * 2 + nt) * 4)
                    mf.append(m16(c, R("v", AF + 16 * (G % 4) + 4 * mt), Bf(g, nt), "0" if g == 0 else c))
        S = Sched2(mf)
        for ks in range(KS):
            Gn = KS * u + ks + LA
            if Gn >= NG: continue
            lo = 8 * ks
            if Gn % KS == 0:
                b = barrier(Gn // KS)
                pub = (u == U2 + FLAGST)
                if pub: b.uses |= {("sent", 0), ("sent", 1)}
                S.put(lo, b)
                if pub:
                    fs = I(f"buffer_store_dword v23, v22, s[72:75], 0 offen sc1")
                    fs.kind = "misc"
                    S.put(lo + 1, [I(f"s_cmp_lg_u32 s{sW}, 0"), I(f"s_cbranch_scc1 {name}_nf"), I("s_mov_b64 exec, 1"),
                                   fs, I("s_mov_b64 exec, -1"), I(f"{name}_nf:")])
            n = 0
            for mt in range(4):
                for half in range(2):
                    S.put(lo + n, aread(Gn, mt, half)); n += 1
        gp = gap_carry
        while gp < 32 and lq:
            v, gr = lq[0]
            if v - NSL + LAG > u or v > u + LOOKU: break
            if v - NSL + LAG == u and gp <= 8 * (KS - LA): gp = 8 * (KS - LA) + 1
            lq.pop(0)
            S.put(gp, gr)
            if any(is_mem(i_) for i_ in gr): gp += PACE
        gap_carry = max(0, gp - 32)
        items = []
        if u == U2 + RX: items += [[flag_load()]]
        if u == U2 + RX + 1: items += [flag_check()] + recvs()
        if items: spaced(S, items, 2, 31, 3)
        if u > 0 and units[u - 1][1] == NST - 1 and units[u - 1][0] < 2:
            S.stream(sends(units[u - 1][0]), 4, 31)
        code += S.emit()
        if STAMP and u == U2 - 1 and not FUSED:
            T_ = Prog(); stamp(T_, 4, True); stamp(T_, 5, True); code += T_.L
    E = Prog()
    stamp(E, 2 if not FUSED else 18, STAMP)
    E(f"s_mov_b32 s50, {16*2304}\ns_mov_b32 s51, 0xffff0000\ns_nop 7")
    for i in range(8):
        mt, nt = i // 2, i % 2
        c = ACC[2] + i * 4
        for sl in range(2):
            for h in range(2):
                t = 96 + 16 * i + 8 * sl + 4 * h
                E(f"v_accvgpr_read_b32 v{t}, a{16*sl + 2*i + h}")
        for sl in range(2):
            for h in range(2):
                t = 96 + 16 * i + 8 * sl + 4 * h
                E(f"v_lshlrev_b32 v{t+1}, 16, v{t}\nv_and_b32 v{t+2}, s51, v{t}")
        for sl in range(2):
            for h in range(2):
                t = 96 + 16 * i + 8 * sl + 4 * h
                E(f"v_add_f32 v{c+2*h}, v{c+2*h}, v{t+1}\nv_add_f32 v{c+2*h+1}, v{c+2*h+1}, v{t+2}")
        t = 64 + 2 * i
        E(f"v_cvt_pk_bf16_f32 v{t}, v{c}, v{c+1}\nv_cvt_pk_bf16_f32 v{t+1}, v{c+2}, v{c+3}")
        E(f"buffer_store_dwordx2 v[{t}:{t+1}], v{vOut}, s[40:43], {'0' if nt == 0 else 's50'} offen offset:{32*mt}{(' ' + os.environ['OUTFLAG']) if os.environ.get('OUTFLAG') else ''}")
    if STAMP:
        E("s_waitcnt vmcnt(0)")
        if FUSED:
            stamp(E, 19, True)
            stamp_store(E, 5, sW, 10, (0, 0))
        else:
            stamp(E, 3, True)
            E("s_add_u32 s10, s10, 0x100000\ns_addc_u32 s11, s11, 0")
            stamp_store(E, 6 if not os.environ.get("DBG") else 4, sW, 10, (0, 32))
    E(f"{name}_done:\ns_endpgm")
    EXP = os.environ.get("EXP2", "").split(",")
    if "nosend" in EXP: code = [i for i in code if not (i.kind == "vstore")]
    if "norecv" in EXP: code = [i for i in code if not ("sc1" in i.text and i.kind == "vload") and "poll" not in i.text]
    if "nobar" in EXP: code = [i for i in code if i.kind != "barrier"]
    if "nomfma" in EXP: code = [i for i in code if i.kind != "mfma"]
    if "nob" in EXP: code = [i for i in code if not (i.kind == "vload" and "sc1" not in i.text and "buffer" in i.text)]
    if "nods" in EXP: code = [i for i in code if i.kind != "dsr"]
    if FUSED: return [("k2main", code), ("k2end", E.L)], polls
    out, full, nfix = resolve_all2([("main", code), ("end", E.L)])
    for m_ in check_hazards(full, name)[:10]: print(m_)
    if verbose: print("k2r est", est_code(out["main"]), "ideal", 3 * NK * 128, "nops", nfix)
    text = "\n".join(str(i) for key in ("main", "end") for i in out[key]) + "\n" + polls.text()
    launch = f"; @launch kernel={name} grid=(256,1,1) block=(256,1,1) lds={NSL*16384}"
    return launch, text, kd(name, 512, 256, 102)

if __name__ == "__main__":
    out = sys.argv[1]
    st = bool(os.environ.get("STAMP"))
    kw = {}; kw2 = {}
    if "KVFLAG" in os.environ: kw["KVFLAG"] = os.environ["KVFLAG"]
    for k_ in ("MAPPING", "ROT", "TOUCH", "WOT", "TD", "KROT", "DLATE", "DSTEP", "DIST", "CPF", "SOFT", "VSUM", "NPRO", "KV0AT", "GMAJ", "PEEL", "QSTEP", "LATEKV", "KV2D", "TLBW", "THIN", "TS0", "PAIR"):
        if k_ in os.environ: kw[k_] = int(os.environ[k_])
    for k_ in ("FLAGST", "LA", "RX", "LEAD", "LOOKU", "PACE", "PERM", "LAG"):
        if k_ in os.environ: kw2[k_] = int(os.environ[k_])
    write(out, [gen_k1(STAMP=st, ZFLAG=FOFF, **kw), gen_k2r(STAMP=st, **kw2)], HEADER)
```

```python
from gen import *

XOFF = 0x2000000
FOFF = 0x3000000

def gen_k2r(name="oproj_kernel", STAMP=False, NSL=8, FLAGST=5, LA=2, RX=8, LEAD=2, LOOKU=4, PACE=3, CHAIN=0, LAG=1, PERM=0, FUSED=0, verbose=True):
    for L in range(252): assert (L * 171) >> 9 == L // 3
    for L in range(126): assert (L * 781) >> 15 == L // 42
    NK = 44; KS = 4; NST = NK // KS
    ACC = [32, 64, 32]
    AF = 96
    def Bf(g, nt):
        n = 2 * g + nt
        return R("a", 4 * n) if n < 64 else R("v", 160 + 4 * (n - 64))
    vLane16 = 2; vA = [3, 4, 5, 6]; vAh = [7, 8, 9, 10]; vDma = [11, 12, 13, 14]; vOut = 15
    sBLK, sNG, sMQ, sS, sW, sL, sTAU = 24, 26, 27, 25, 28, 22, 23
    P = Prog()
    if not FUSED:
        P(f"""
.globl {name}
.p2align 8
.type {name},@function
{name}:
s_cmp_ge_u32 s2, 256
s_cbranch_scc1 {name}_done""")
    if FUSED != 2:
        P(f"""
s_load_dwordx2 s[4:5], s[0:1], 32
s_load_dwordx2 s[6:7], s[0:1], 72
s_load_dwordx2 s[8:9], s[0:1], 80
s_load_dwordx2 s[10:11], s[0:1], 96
""")
    if STAMP and not FUSED: P("s_memtime s[80:81]\ns_memrealtime s[98:99]")
    sc = " sc1" if FUSED else ((" " + os.environ["BFLAG"]) if os.environ.get("BFLAG") else "")
    af = (" " + os.environ["AFLAG"]) if os.environ.get("AFLAG") else ""
    P(f"""
s_and_b32 s20, s2, 7
s_lshr_b32 s21, s2, 3
s_and_b32 s22, s20, 1
s_mul_i32 s23, s22, 31
s_cmp_eq_u32 s23, 31
s_cselect_b32 s23, s21, 0
s_cmp_eq_u32 s23, 31
s_cbranch_scc1 {name + ("_notile" if FUSED else "_done")}
s_mul_i32 s22, s20, 63
s_add_u32 s22, s22, 1
s_lshr_b32 s22, s22, 1
s_add_u32 s{sL}, s22, s21
s_cmp_ge_u32 s{sL}, 126
s_cselect_b32 s{sBLK}, 1, 0
s_mul_i32 s20, s{sBLK}, 126
s_sub_u32 s20, s{sL}, s20
s_mul_i32 s{sS}, s20, 781
s_lshr_b32 s{sS}, s{sS}, 15
s_mul_i32 s21, s{sS}, 42
s_sub_u32 s20, s20, s21
s_mul_i32 s{sNG}, s20, 171
s_lshr_b32 s{sNG}, s{sNG}, 9
s_mul_i32 s21, s{sNG}, 3
s_sub_u32 s{sMQ}, s20, s21
s_mul_i32 s{sTAU}, s{sBLK}, 42
s_add_u32 s{sTAU}, s{sTAU}, s20
s_mul_i32 s{sL}, s{sTAU}, 3
s_add_u32 s{sL}, s{sL}, s{sS}
{"s_mov_b32 s24, 0" + chr(10) + "s_mov_b32 s26, 0" + chr(10) + "s_mov_b32 s27, 0" if "same" in os.environ.get("EXP2", "") else ""}
{"v_and_b32 v1, 63, v0" + chr(10) + "v_lshrrev_b32 v16, 6, v0" if not FUSED else ""}
v_lshlrev_b32 v{vLane16}, 4, v1
{f"v_readfirstlane_b32 s{sW}, v16" if not FUSED else f"s_mov_b32 s{sW}, s91"}
s_lshl_b32 s29, s{sNG}, 3
s_add_u32 s51, s{sS}, 1
s_cmp_ge_u32 s51, 3
s_cselect_b32 s52, 3, 0
s_sub_u32 s51, s51, s52
s_add_u32 s52, s{sS}, 2
s_cmp_ge_u32 s52, 3
s_cselect_b32 s53, 3, 0
s_sub_u32 s52, s52, s53
s_lshl_b32 s30, s{sW}, 1
s_add_u32 s29, s29, s30
s_mul_i32 s30, s{sBLK}, 112
s_add_u32 s30, s30, s29
s_mul_i32 s30, s30, {TS}
v_lshrrev_b32 v16, 3, v1
v_mul_u32_u24 v16, 1152, v16
v_bfe_u32 v17, v1, 4, 2
v_lshlrev_b32 v17, 1, v17
v_and_b32 v18, 7, v1
v_xor_b32 v17, v17, v18
v_lshl_add_u32 v{vDma[0]}, v17, 4, v16
v_add_u32 v{vDma[1]}, 8192, v{vDma[0]}
v_add_u32 v{vDma[2]}, 16384, v{vDma[0]}
v_add_u32 v{vDma[3]}, 24576, v{vDma[0]}
s_mul_i32 s46, s{sS}, {NK*32*1152}
s_mul_i32 s47, s{sW}, {32*1152}
s_add_u32 s46, s46, s47
s_mul_i32 s47, s{sMQ}, 384
s_add_u32 s46, s46, s47
s_lshl_b32 s47, s51, 7
s_add_u32 s60, s46, s47
s_lshl_b32 s47, s52, 7
s_add_u32 s61, s46, s47
s_lshl_b32 s47, s{sS}, 7
s_add_u32 s62, s46, s47
s_lshl_b32 s45, s{sW}, 12
s_mul_i32 s48, s{sS}, {NK*1024}
s_add_u32 s49, s{sMQ}, s{sNG}
s_mul_i32 s50, s49, 171
s_lshr_b32 s50, s50, 9
s_mul_i32 s50, s50, 3
s_sub_u32 s49, s49, s50
{"" if PERM else "s_mov_b32 s49, 0"}
s_mul_i32 s12, s49, 147456
s_lshl_b32 s15, s49, 12
s_add_u32 s49, s49, 1
s_cmp_eq_u32 s49, 3
s_cselect_b32 s49, 0, s49
s_mul_i32 s13, s49, 147456
s_lshl_b32 s16, s49, 12
s_add_u32 s49, s49, 1
s_cmp_eq_u32 s49, 3
s_cselect_b32 s49, 0, s49
s_mul_i32 s14, s49, 147456
s_lshl_b32 s17, s49, 12
s_add_u32 s15, s15, s48
s_add_u32 s16, s16, s48
s_add_u32 s17, s17, s48
s_waitcnt lgkmcnt(0)
s_cmp_eq_u32 s{sBLK}, 0
s_cselect_b32 s32, s4, s6
s_cselect_b32 s33, s5, s7
s_mov_b32 s34, 4718592
s_mov_b32 s35, 0x00020000
s_add_u32 s36, s10, s30
s_addc_u32 s37, s11, 0
s_mov_b32 s38, 131072
s_mov_b32 s39, 0x00020000
s_add_u32 s56, s36, {TS}
s_addc_u32 s57, s37, 0
s_mov_b32 s58, 131072
s_mov_b32 s59, 0x00020000
""")
    units = []
    for k in range(NST + LEAD):
        if k < NST: units.append((0, k))
        if k >= LEAD: units.append((1, k - LEAD))
    units += [(2, k) for k in range(NST)]
    NU = len(units)
    def dma(u):
        p, k = units[u]
        if k < 9:
            out = [[I(f"s_add_u32 s44, s{60+p}, s{12+k%3}")], [I(f"s_add_u32 m0, s45, {(u % NSL)*16384}"), I(f"s_add_u32 s44, s44, {(k//3)*3*128*1152}")]]
        else:
            out = [[I(f"s_add_u32 m0, s45, {(u % NSL)*16384}"), I(f"s_add_u32 s44, s{60+p}, {k*128*1152}")]]
        for i in range(4):
            d = I(f"buffer_load_dwordx4 v{vDma[i]}, s[32:35], s44 offen offset:{1024*i}{af} lds")
            d.defs = {("lds", u)}
            out.append([d])
        return out
    def bload(g):
        out = []
        k = g // 4
        if g % 4 == 0:
            out.append([I(f"s_add_u32 s47, s{15+k%3}, {(k//3)*3*4096}") if k < 9 else I(f"s_add_u32 s47, s48, {k*4096}")])
        for nt in range(2):
            srd = "s[36:39]" if nt == 0 else "s[56:59]"
            out.append([I(f"buffer_load_dwordx4 {Bf(g, nt)}, v{vLane16}, {srd}, s47 offen offset:{1024*(g%4)}{sc}")])
        return out
    def aread(G, i, half):
        u = G // KS; slot = u % NSL
        ks, mt = (i, G % KS) if CHAIN else (G % KS, i)
        r = AF + 16 * (G % 4) + 4 * i + 2 * half
        va = vA[mt] if slot < 4 else vAh[mt]
        d = I(f"ds_read_b64_tr_b16 v[{r}:{r+1}], v{va} offset:{(slot % 4)*16384 + ks*4096 + half*2048}")
        d.defs |= {("ldsrd", u)}
        return d
    def barrier(u):
        b = I("s_barrier"); b.uses = {("lds", u), ("ldsrd", u - 1 - LAG)}
        return b
    flat = lambda gs: [i for g_ in gs for i in g_]
    LOOK = 4
    def loads_for(u):
        o = dma(u)
        p, k = units[u]
        if p == 0:
            for g in range(KS * k, KS * k + KS): o += bload(g)
        return o
    NPRE = LOOKU if FUSED else 0
    if FUSED:
        for u in range(2): P.ext(flat(dma(u)))
    else: P.ext(flat(loads_for(0)))
    P(f"""
v_lshrrev_b32 v16, 2, v1
v_bfe_u32 v17, v16, 1, 2
v_lshlrev_b32 v16, 7, v16
v_lshl_add_u32 v16, v17, 5, v16
v_and_b32 v17, 3, v1
v_lshl_add_u32 v{vA[0]}, v17, 3, v16
v_xor_b32 v{vA[1]}, 32, v{vA[0]}
v_xor_b32 v{vA[2]}, 64, v{vA[0]}
v_xor_b32 v{vA[3]}, 96, v{vA[0]}
""")
    for u in range(4): P(f"v_add_u32 v{vAh[u]}, 0x10000, v{vA[u]}")
    if FUSED:
        for u in range(2, NPRE): P.ext(flat(dma(u)))
    else: P.ext(flat(loads_for(1)))
    P(f"""
s_mov_b32 s40, s8
s_mov_b32 s41, s9
s_mov_b32 s42, 4128768
s_mov_b32 s43, 0x00020000
s_lshl_b32 s50, s29, 4
v_and_b32 v16, 15, v1
v_add_u32 v16, s50, v16
v_mul_u32_u24 v16, 2304, v16
v_lshrrev_b32 v17, 4, v1
v_lshlrev_b32 v17, 3, v17
s_mul_i32 s53, s{sBLK}, 1152
s_mul_i32 s54, s{sMQ}, 384
s_add_u32 s53, s53, s54
s_lshl_b32 s54, s{sS}, 7
s_add_u32 s53, s53, s54
v_add3_u32 v{vOut}, v16, v17, s53
s_add_u32 s68, s10, {XOFF}
s_addc_u32 s69, s11, 0
s_mov_b32 s70, 0x1100000
s_mov_b32 s71, 0x00020000
s_add_u32 s72, s10, {FOFF}
s_addc_u32 s73, s11, 0
s_mov_b32 s74, 65536
s_mov_b32 s75, 0x00020000
s_mul_i32 s50, s{sTAU}, {6*16384}
s_lshl_b32 s53, s{sW}, 12
s_add_u32 s50, s50, s53
s_lshl_b32 s53, s51, 15
s_add_u32 s63, s53, s50
s_lshl_b32 s54, s52, 15
s_add_u32 s64, s54, s50
s_add_u32 s64, s64, 16384
s_lshl_b32 s55, s{sS}, 15
s_add_u32 s65, s55, s50
s_mul_i32 s50, s{sTAU}, 3
s_add_u32 s51, s51, s50
s_add_u32 s52, s52, s50
s_lshl_b32 s51, s51, 7
s_lshl_b32 s52, s52, 7
s_lshl_b32 s50, s{sL}, 7
v_mov_b32 v20, s52
v_mov_b32 v21, s51
v_and_b32 v16, 1, v1
v_cmp_eq_u32 vcc, 0, v16
s_nop 1
v_cndmask_b32 v20, v21, v20, vcc
v_mov_b32 v22, s50
""")
    if not FUSED:
        P(f"""
v_mov_b32 v23, 1
s_getpc_b64 s[96:97]
{name}_pc:
s_sub_u32 s96, s96, {name}_pc-{name}
s_subb_u32 s97, s97, 0
s_lshr_b32 s50, s2, 3
s_lshl_b32 s50, s50, 2
s_add_u32 s50, s50, s{sW}
s_lshl_b32 s50, s50, 8
v_lshl_add_u32 v16, v1, 2, s50
s_mov_b32 s50, code_end-{name}-4
v_min_u32 v16, s50, v16
global_load_dword v0, v16, s[96:97]
""")
    polls = Prog()
    if FUSED:
        for T_ in range(112): assert (T_ * 147) >> 11 == T_ // 14
        P(f"""
s_lshl_b32 s53, s{sNG}, 3
s_mul_i32 s50, s53, 147
s_lshr_b32 s50, s50, 11
s_add_u32 s53, s53, 7
s_mul_i32 s53, s53, 147
s_lshr_b32 s53, s53, 11
s_lshl_b32 s51, s{sBLK}, 3
s_add_u32 s50, s50, s51
s_add_u32 s53, s53, s51
s_lshl_b32 s50, s50, 7
s_lshl_b32 s53, s53, 7
s_add_u32 s50, s50, 32768
s_add_u32 s53, s53, 32768
s_mul_i32 s51, s{sS}, 11
s_lshr_b32 s51, s51, 1
s_add_u32 s52, s51, 5
s_min_u32 s52, s52, 15
v_and_b32 v26, 15, v1
v_max_u32 v26, s51, v26
v_min_u32 v26, s52, v26
v_mov_b32 v27, s50
v_mov_b32 v28, s53
v_cmp_gt_u32 vcc, 16, v1
s_nop 1
v_cndmask_b32 v27, v28, v27, vcc
v_lshl_add_u32 v26, v26, 2, v27
v_mov_b32 v27, s90
""")
        pub = I("s_barrier"); pub.uses = {("ostore", 0), ("v", 25)}
        P.ext([pub])
        fs = I("buffer_store_dword v25, v27, s[72:75], 0 offen sc1"); fs.kind = "misc"
        P(f"v_cmp_eq_u32 vcc, 0, v25\ns_cbranch_vccnz {name}_nonce\n{name}_nb:\nv_mov_b32 v23, v25\ns_cmp_lg_u32 s{sW}, 0\ns_cbranch_scc1 {name}_od\ns_mov_b64 exec, 1")
        P.ext([fs])
        P(f"s_mov_b64 exec, -1\ns_mov_b32 s78, 0\n{name}_ow:")
        pl = I("buffer_load_dword v24, v26, s[72:75], 0 offen sc1"); pl.kind = "misc"; pl.defs = set()
        P.ext([pl])
        w0 = I("s_waitcnt vmcnt(0)"); w0.kind = "misc"
        P.ext([w0])
        P(f"""v_cmp_ne_u32 vcc, v25, v24
s_add_u32 s78, s78, 1
s_cmp_lt_u32 s78, 0x40000
s_cbranch_scc0 {name}_od
s_cbranch_vccnz {name}_ow
{name}_od:
s_barrier""")
        stamp(P, 16, STAMP)
        for g in range(2 * KS): P.ext(flat(bload(g)))
        polls(f"""{name}_nonce:
s_mov_b32 s78, 0
{name}_nl:
v_mov_b32 v24, 0
buffer_load_dword v25, v24, s[92:95], 0 offen sc1
s_waitcnt vmcnt(0)
v_cmp_eq_u32 vcc, 0, v25
s_add_u32 s78, s78, 1
s_cmp_lt_u32 s78, 0x40000
s_cbranch_scc0 {name}_nb
s_cbranch_vccnz {name}_nl
s_branch {name}_nb
{name}_notile:
s_waitcnt vmcnt(0) lgkmcnt(0)
s_add_u32 s72, s10, {FOFF}
s_addc_u32 s73, s11, 0
s_mov_b32 s74, 65536
s_mov_b32 s75, 0x00020000
v_mov_b32 v27, s90
s_barrier
s_cmp_lg_u32 s91, 0
s_cbranch_scc1 {name}_done
s_mov_b32 s78, 0
{name}_ntl:
v_cmp_ne_u32 vcc, 0, v25
s_cbranch_vccnz {name}_nts
v_mov_b32 v24, 0
buffer_load_dword v25, v24, s[92:95], 0 offen sc1
s_waitcnt vmcnt(0)
s_add_u32 s78, s78, 1
s_cmp_lt_u32 s78, 0x40000
s_cbranch_scc1 {name}_ntl
{name}_nts:
s_mov_b64 exec, 1
buffer_store_dword v25, v27, s[72:75], 0 offen sc1
s_endpgm""")
    P.ext([barrier(0)])
    for G in range(LA):
        for mt in range(4):
            for half in range(2): P.ext([aread(G, mt, half)])
    stamp(P, 1 if not FUSED else 17, STAMP)
    code = P.L
    NG = NU * KS
    lq = []
    for v in range(NU):
        p_, k_ = units[v]
        if v >= max(2, NPRE): lq += [(v, gr) for gr in dma(v)]
        if p_ == 0 and k_ >= 2:
            for g in range(KS * k_, KS * k_ + KS): lq += [(v, gr) for gr in bload(g)]
    gap_carry = 0
    def sends(p):
        o = []
        for i in range(4):
            c = ACC[p] + 8 * i
            for q in range(4): o.append([I(f"v_cvt_pk_bf16_f32 v{c+q}, v{c+2*q}, v{c+2*q+1}")])
            d = I(f"buffer_store_dwordx4 v[{c}:{c+3}], v{vLane16}, s[68:71], s{63+p} offen offset:{1024*i} sc1")
            d.defs = {("sent", p)}
            o.append([d])
        return o
    def recvs():
        o = []
        for sl in range(2):
            for i in range(4):
                o.append([I(f"buffer_load_dwordx4 a[{16*sl+4*i}:{16*sl+4*i+3}], v{vLane16}, s[68:71], s65 offen offset:{1024*i} sc1")])
            if sl == 0: o.append([I(f"s_add_u32 s65, s65, 16384")])
        return o
    flag_load = lambda: I(f"buffer_load_dword v24, v20, s[72:75], 0 offen sc1")
    def flag_check():
        polls(f"""{name}_poll:
s_mov_b32 s78, 0
{name}_pl:
buffer_load_dword v24, v20, s[72:75], 0 offen sc1
s_waitcnt vmcnt(0)
v_cmp_ne_u32 vcc, v23, v24
s_add_u32 s78, s78, 1
s_cmp_lt_u32 s78, 0x40000
s_cbranch_scc0 {name}_pb
s_cbranch_vccnz {name}_pl
s_branch {name}_pb""")
        return [I(f"v_cmp_ne_u32 vcc, v23, v24"), I(f"s_cbranch_vccnz {name}_poll"), I(f"{name}_pb:")]
    U2 = 2 * NST
    for u in range(NU):
        p, k = units[u]
        mf = []
        for st_ in range(KS):
            G = KS * u + st_
            if CHAIN:
                for nt in range(2):
                    for ks in range(KS):
                        g = KS * k + ks
                        c = R("v", ACC[p] + (st_ * 2 + nt) * 4)
                        mf.append(m16(c, R("v", AF + 16 * (G % 4) + 4 * ks), Bf(g, nt), "0" if g == 0 else c))
            else:
                g = KS * k + st_
                for mt in range(4):
                    for nt in range(2):
                        c = R("v", ACC[p] + (mt * 2 + nt) * 4)
                        mf.append(m16(c, R("v", AF + 16 * (G % 4) + 4 * mt), Bf(g, nt), "0" if g == 0 else c))
        S = Sched2(mf)
        for ks in range(KS):
            Gn = KS * u + ks + LA
            if Gn >= NG: continue
            lo = 8 * ks
            if Gn % KS == 0:
                b = barrier(Gn // KS)
                pub = (u == U2 + FLAGST)
                if pub: b.uses |= {("sent", 0), ("sent", 1)}
                S.put(lo, b)
                if pub:
                    fs = I(f"buffer_store_dword v23, v22, s[72:75], 0 offen sc1")
                    fs.kind = "misc"
                    S.put(lo + 1, [I(f"s_cmp_lg_u32 s{sW}, 0"), I(f"s_cbranch_scc1 {name}_nf"), I("s_mov_b64 exec, 1"),
                                   fs, I("s_mov_b64 exec, -1"), I(f"{name}_nf:")])
            n = 0
            for mt in range(4):
                for half in range(2):
                    S.put(lo + n, aread(Gn, mt, half)); n += 1
        gp = gap_carry
        while gp < 32 and lq:
            v, gr = lq[0]
            if v - NSL + LAG > u or v > u + LOOKU: break
            if v - NSL + LAG == u and gp <= 8 * (KS - LA): gp = 8 * (KS - LA) + 1
            lq.pop(0)
            S.put(gp, gr)
            if any(is_mem(i_) for i_ in gr): gp += PACE
        gap_carry = max(0, gp - 32)
        items = []
        if u == U2 + RX: items += [[flag_load()]]
        if u == U2 + RX + 1: items += [flag_check()] + recvs()
        if items: spaced(S, items, 2, 31, 3)
        if u > 0 and units[u - 1][1] == NST - 1 and units[u - 1][0] < 2:
            S.stream(sends(units[u - 1][0]), 4, 31)
        code += S.emit()
        if STAMP and u == U2 - 1 and not FUSED:
            T_ = Prog(); stamp(T_, 4, True); stamp(T_, 5, True); code += T_.L
    E = Prog()
    stamp(E, 2 if not FUSED else 18, STAMP)
    E(f"s_mov_b32 s50, {16*2304}\ns_mov_b32 s51, 0xffff0000\ns_nop 7")
    for i in range(8):
        mt, nt = i // 2, i % 2
        c = ACC[2] + i * 4
        for sl in range(2):
            for h in range(2):
                t = 96 + 16 * i + 8 * sl + 4 * h
                E(f"v_accvgpr_read_b32 v{t}, a{16*sl + 2*i + h}")
        for sl in range(2):
            for h in range(2):
                t = 96 + 16 * i + 8 * sl + 4 * h
                E(f"v_lshlrev_b32 v{t+1}, 16, v{t}\nv_and_b32 v{t+2}, s51, v{t}")
        for sl in range(2):
            for h in range(2):
                t = 96 + 16 * i + 8 * sl + 4 * h
                E(f"v_add_f32 v{c+2*h}, v{c+2*h}, v{t+1}\nv_add_f32 v{c+2*h+1}, v{c+2*h+1}, v{t+2}")
        t = 64 + 2 * i
        E(f"v_cvt_pk_bf16_f32 v{t}, v{c}, v{c+1}\nv_cvt_pk_bf16_f32 v{t+1}, v{c+2}, v{c+3}")
        E(f"buffer_store_dwordx2 v[{t}:{t+1}], v{vOut}, s[40:43], {'0' if nt == 0 else 's50'} offen offset:{32*mt}{(' ' + os.environ['OUTFLAG']) if os.environ.get('OUTFLAG') else ''}")
    if STAMP:
        E("s_waitcnt vmcnt(0)")
        if FUSED:
            stamp(E, 19, True)
            stamp_store(E, 5, sW, 10, (0, 0))
        else:
            stamp(E, 3, True)
            E("s_add_u32 s10, s10, 0x100000\ns_addc_u32 s11, s11, 0")
            stamp_store(E, 6 if not os.environ.get("DBG") else 4, sW, 10, (0, 32))
    E(f"{name}_done:\ns_endpgm")
    EXP = os.environ.get("EXP2", "").split(",")
    if "nosend" in EXP: code = [i for i in code if not (i.kind == "vstore")]
    if "norecv" in EXP: code = [i for i in code if not ("sc1" in i.text and i.kind == "vload") and "poll" not in i.text]
    if "nobar" in EXP: code = [i for i in code if i.kind != "barrier"]
    if "nomfma" in EXP: code = [i for i in code if i.kind != "mfma"]
    if "nob" in EXP: code = [i for i in code if not (i.kind == "vload" and "sc1" not in i.text and "buffer" in i.text)]
    if "nods" in EXP: code = [i for i in code if i.kind != "dsr"]
    if FUSED: return [("k2main", code), ("k2end", E.L)], polls
    out, full, nfix = resolve_all2([("main", code), ("end", E.L)])
    for m_ in check_hazards(full, name)[:10]: print(m_)
    if verbose: print("k2r est", est_code(out["main"]), "ideal", 3 * NK * 128, "nops", nfix)
    text = "\n".join(str(i) for key in ("main", "end") for i in out[key]) + "\n" + polls.text()
    launch = f"; @launch kernel={name} grid=(256,1,1) block=(256,1,1) lds={NSL*16384}"
    return launch, text, kd(name, 512, 256, 102)

if __name__ == "__main__":
    out = sys.argv[1]
    st = bool(os.environ.get("STAMP"))
    kw = {}; kw2 = {}
    if "KVFLAG" in os.environ: kw["KVFLAG"] = os.environ["KVFLAG"]
    for k_ in ("MAPPING", "ROT", "TOUCH", "WOT", "TD", "KROT", "DLATE", "DSTEP", "DIST", "CPF", "SOFT", "VSUM", "NPRO", "KV0AT", "GMAJ", "PEEL", "QSTEP", "LATEKV", "KV2D", "TLBW", "THIN", "TS0", "PAIR"):
        if k_ in os.environ: kw[k_] = int(os.environ[k_])
    for k_ in ("FLAGST", "LA", "RX", "LEAD", "LOOKU", "PACE", "PERM", "LAG", "CHAIN"):
        if k_ in os.environ: kw2[k_] = int(os.environ[k_])
    write(out, [gen_k1(STAMP=st, ZFLAG=FOFF, **kw), gen_k2r(STAMP=st, **kw2)], HEADER)
```

```python
import os, sys, math, struct
from asmlib import *

TS = 131072
KVT = 8704
KVS = 4 * KVT
XB = [2 * KVS, KVS]
WB = 98304
CSCALE = math.log2(math.e) / math.sqrt(128.0)
THRESH = 8.0

def f2u(x): return struct.unpack("<I", struct.pack("<f", x))[0]

def kd(name, vgpr, acc, sgpr=96):
    return f""".amdhsa_kernel {name}
  .amdhsa_next_free_vgpr {vgpr}
  .amdhsa_next_free_sgpr {sgpr}
  .amdhsa_accum_offset {acc}
  .amdhsa_group_segment_fixed_size 0
  .amdhsa_kernarg_size 104
  .amdhsa_user_sgpr_count 2
  .amdhsa_user_sgpr_kernarg_segment_ptr 1
  .amdhsa_system_sgpr_workgroup_id_x 1
.end_amdhsa_kernel"""

def R(kind, base, n=4): return f"{kind}[{base}:{base+n-1}]"

def m16(d, a, b, c):
    return I(f"v_mfma_f32_16x16x32_bf16 {d}, {a}, {b}, {c}")

STMAP = None
if os.environ.get("PSTAMP"): STMAP = {20: 1, 21: 2, 1: 3, 6: 4, 7: 5, 2: 6, 3: 7, 5: 8}
def stamp(P, idx, on):
    import gen
    if gen.STMAP is not None:
        if idx not in gen.STMAP: return
        idx = gen.STMAP[idx]
    if on: P(f"s_memtime s[{80+2*idx}:{81+2*idx}]\ns_waitcnt lgkmcnt(0)")

def stamp_store(E, nst, swave, sws, dbgoff=None):
    E("s_waitcnt vmcnt(0)\ns_memrealtime s[76:77]\ns_waitcnt lgkmcnt(0)")
    DBG = os.environ.get("DBG")
    if DBG:
        wg = int(DBG)
        E(f"""s_load_dwordx2 s[72:73], s[0:1], 88
s_waitcnt lgkmcnt(0)
s_add_u32 s72, s72, {dbgoff[0]}
s_addc_u32 s73, s73, 0
s_mov_b32 s74, 64
s_mov_b32 s75, 0x00020000
s_xor_b32 s70, s2, {wg}
s_or_b32 s70, s70, s{swave}
s_lshl_b32 s70, s70, 8
s_add_u32 s70, s70, {dbgoff[1]}
v_mov_b32 v14, s70
v_mbcnt_lo_u32_b32 v15, -1, 0
v_mbcnt_hi_u32_b32 v15, -1, v15
v_cmp_eq_u32 vcc, 0, v15
s_and_saveexec_b64 s[78:79], vcc""")
        for i in range(1, nst):
            E(f"s_sub_u32 s71, s{80+2*i}, s80\nv_mov_b32 v10, s71\nbuffer_store_dword v10, v14, s[72:75], 0 offen offset:{4*(i+1)}\ns_nop 1")
        E(f"v_mov_b32 v10, s76\nbuffer_store_dword v10, v14, s[72:75], 0 offen offset:4\ns_nop 1")
        E(f"v_mov_b32 v10, s98\nbuffer_store_dword v10, v14, s[72:75], 0 offen offset:0\ns_nop 1")
        return
    E(f"""s_add_u32 s72, s{sws}, 0x4000000
s_addc_u32 s73, s{sws+1}, 0
s_mov_b32 s74, 0x100000
s_mov_b32 s75, 0x00020000
s_lshl_b32 s70, s2, 8
s_lshl_b32 s71, s{swave}, 6
s_add_u32 s70, s70, s71
v_mov_b32 v14, s70
v_mbcnt_lo_u32_b32 v15, -1, 0
v_mbcnt_hi_u32_b32 v15, -1, v15
v_cmp_eq_u32 vcc, 0, v15
s_and_saveexec_b64 s[78:79], vcc""")
    for i in range(1, nst):
        E(f"s_sub_u32 s71, s{80+2*i}, s80\nv_mov_b32 v10, s71\nbuffer_store_dword v10, v14, s[72:75], 0 offen offset:{4*i}\ns_nop 1")
    E(f"v_mov_b32 v10, s76\nbuffer_store_dword v10, v14, s[72:75], 0 offen offset:60\ns_nop 1")
    E(f"v_mov_b32 v10, s98\nbuffer_store_dword v10, v14, s[72:75], 0 offen offset:56\ns_nop 1")

def gen_k1(name="attn_kernel", STAMP=False, KVFLAG="", MAPPING=1, ROT=0, TOUCH=0, TFLAG="", WOT=1, TD=2, PAIR=0, THIN=0, TLBW=0, LATEKV=0, KV2D=0, QSTEP=6, PEEL=0, GMAJ=0, NPRO=6, KV0AT=0, FUSED=0, ZFLAG=0, SOFT=0, VSUM=0, CPF=3, DIST=3, DLATE=0, DSTEP=5, KROT=0, PPS=4, TS0=5, TSTEP=3, TPK=1, verbose=True):
    sW = 40
    sBLK, sKVH, sBP, sBL, sHH = 41, 42, 43, 44, 45
    sWQoff, sXoff, sKVoff = 46, 47, 48
    sWQm0, sXm0, sKVm0 = 49, 50, 51
    sT0, sT1, sT2 = 52, 53, 54
    sCNT = 55
    sWrd, sXrd = 56, 57
    sTH = 58
    sC = 60
    sKd, sVd = 62, 63
    sKVw = 64
    sWQw = 65
    sK16, sKm48, sKKVS, sKm3KVS = 66, 67, 68, 69
    sT3, sT4 = 70, 71
    sWend, sXend, sTo = 72, 73, 74
    vTq, vTa, vDum = 13, 13, 0
    vTS = 18; sNC = 75
    assert SOFT or not VSUM
    SX, SWQ, SKV, SO = 24, 28, 32, 36
    vL = 1
    vKVd = [2, 3, 4, 5]
    vKa = 6; vVa = [7, 8, 9, 10]; vMX = 11; vT = 12; vF = 19
    vWa = list(range(20, 28)); vXa = [28, 29]; vWd = [14, 15, 16, 17]; vXd = [30, 31]
    ACC0 = 32
    def grp(g, nt): return ACC0 + (g * 7 + nt) * 8
    def acc(mt, nt): return grp(mt >> 1, nt) + 4 * (mt & 1)
    def Q(nt, g): return R("v", grp(g, nt))
    holes = [grp(g, nt) + 4 for g in range(4) for nt in range(7)] + [20, 24, 28]
    Kf = [[holes[4 * s + g] for g in range(4)] for s in range(2)]
    Vf = [holes[8 + d] for d in range(8)]
    Sb = [[holes[16 + 2 * b + s] for s in range(2)] for b in range(3)]
    Ci = [holes[22 + t] for t in range(7)]
    Pf = holes[29]
    Er = [holes[30] + i for i in range(4)] + [14, 15, 16, 17]
    VGAPS = [0, 1, 2, 3, 4, 5, 6, 8, 10, 12, 14, 15, 16, 17, 18, 19]
    KGAPS = [9, 11, 13, 15, 16, 18, 20, 22]
    sbuf = lambda t: 2 if t == 6 else (t & 1)
    def O(t, d): return R("a", (t * 8 + d) * 4)
    def Lr(t): return R("a", 224 + 4 * t)
    ONES = R("a", 252)
    def Af(i): return 4 * (i % 4)
    def Bf(par, nt): return 16 + (par * 7 + nt) * 4

    OFLAG = (' ' + os.environ['OFLAG']) if os.environ.get('OFLAG') else ''
    if FUSED: OFLAG = ' sc1'
    kvf = (" " + KVFLAG) if KVFLAG else ""

    P = Prog()
    P(f"""
.globl {name}
.p2align 8
.type {name},@function
{name}:
s_cmp_ge_u32 s2, 256
s_cbranch_scc1 {name}_done
s_load_dwordx8 s[4:11], s[0:1], 0
s_load_dwordx8 s[12:19], s[0:1], 40
s_load_dwordx2 s[20:21], s[0:1], 96
s_load_dwordx2 s[22:23], s[0:1], 32
s_load_dwordx2 s[76:77], s[0:1], 72
""")
    if STAMP: P("s_memtime s[80:81]\ns_memrealtime s[98:99]")
    P(f"""
v_lshrrev_b32 v10, 6, v0
v_and_b32 v{vL}, 63, v0
s_and_b32 s{sT0}, s2, 7
v_readfirstlane_b32 s{sW}, v10
s_lshr_b32 s{sT1}, s2, 3
s_lshr_b32 s{sBLK}, s{sT0}, 2
s_and_b32 s{sT0}, s{sT0}, 3
""")
    if MAPPING == 1:
        P(f"""
s_lshl_b32 s{sKVH}, s{sT0}, 2
s_and_b32 s{sT2}, s{sT1}, 3
s_add_u32 s{sKVH}, s{sKVH}, s{sT2}
s_lshr_b32 s{sBP}, s{sT1}, 2
""")
    elif MAPPING == 3:
        for m_ in range(48): assert (m_ * 52) >> 8 == m_ // 5 and (m_ * 43) >> 8 == m_ // 6
        P(f"""
s_lshl_b32 s{sT0}, s{sT0}, 5
s_add_u32 s{sT0}, s{sT0}, s{sT1}
s_mov_b32 s{sT1}, 0
s_mov_b32 s{sT2}, 0
s_mov_b32 s{sT3}, 52
s_mov_b32 s{sT4}, 5
s_cmp_ge_u32 s{sT0}, 40
s_cselect_b32 s{sT1}, 40, s{sT1}
s_cselect_b32 s{sT2}, 5, s{sT2}
s_cselect_b32 s{sT3}, 43, s{sT3}
s_cselect_b32 s{sT4}, 6, s{sT4}
s_cmp_ge_u32 s{sT0}, 88
s_cselect_b32 s{sT1}, 88, s{sT1}
s_cselect_b32 s{sT2}, 11, s{sT2}
s_cselect_b32 s{sT3}, 52, s{sT3}
s_cselect_b32 s{sT4}, 5, s{sT4}
s_sub_u32 s{sT0}, s{sT0}, s{sT1}
s_mul_i32 s{sBP}, s{sT0}, s{sT3}
s_lshr_b32 s{sBP}, s{sBP}, 8
s_mul_i32 s{sT4}, s{sBP}, s{sT4}
s_sub_u32 s{sT0}, s{sT0}, s{sT4}
s_add_u32 s{sKVH}, s{sT0}, s{sT2}
""")
    else:
        P(f"""
s_lshl_b32 s{sBP}, s{sT0}, 1
s_and_b32 s{sT2}, s{sT1}, 1
s_add_u32 s{sBP}, s{sBP}, s{sT2}
s_lshr_b32 s{sKVH}, s{sT1}, 1
""")
    P(f"""
s_lshr_b32 s{sBL}, s{sW}, 1
s_and_b32 s{sHH}, s{sW}, 1
""")
    if CPF:
        P(f"""
s_getpc_b64 s[96:97]
{name}_pc:
s_sub_u32 s96, s96, {name}_pc-{name}
s_subb_u32 s97, s97, 0
s_lshr_b32 s{sT0}, s2, 3
s_lshl_b32 s{sT0}, s{sT0}, 2
s_add_u32 s{sT0}, s{sT0}, s{sW}
s_lshl_b32 s{sT0}, s{sT0}, 9
v_lshl_add_u32 v13, v{vL}, 3, s{sT0}
s_mov_b32 s{sT0}, code_end-{name}-4
v_min_u32 v13, s{sT0}, v13
""")
    def code_touch():
        d = I(f"global_load_dword v{vDum}, v13, s[96:97]"); d.defs = set()
        return [[d]]
    P(f"""
v_lshrrev_b32 v10, 5, v{vL}
v_and_b32 v11, 31, v{vL}
s_lshl_b32 s{sT0}, s{sHH}, 3
v_lshlrev_b32 v12, 1, v10
v_or_b32 v12, s{sT0}, v12
v_xor_b32 v12, v12, v11
v_lshlrev_b32 v18, 13, v10
v_lshl_add_u32 v{vWd[0]}, v12, 4, v18
v_add_u32 v{vWd[2]}, {4*8192-2048}, v{vWd[0]}
v_xor_b32 v12, 4, v12
v_lshl_add_u32 v{vWd[1]}, v12, 4, v18
v_add_u32 v{vWd[1]}, {2*8192-1024}, v{vWd[1]}
v_add_u32 v{vWd[3]}, {4*8192-2048}, v{vWd[1]}
""")
    P(f"""
v_lshrrev_b32 v10, 3, v{vL}
v_mul_u32_u24 v10, 1152, v10
v_lshrrev_b32 v11, 4, v{vL}
v_and_b32 v12, 7, v{vL}
v_xor_b32 v11, v11, v12
s_lshl_b32 s{sT0}, s{sHH}, 2
v_xor_b32 v11, s{sT0}, v11
v_lshl_add_u32 v{vXd[0]}, v11, 4, v10
v_xor_b32 v11, 4, v11
v_lshl_add_u32 v{vXd[1]}, v11, 4, v10
""")
    krot_code = f"""s_lshr_b32 s{sT0}, s2, 3
s_mul_i32 s{sT0}, s{sT0}, 5
s_and_b32 s{sT1}, s2, 7
s_lshl_b32 s{sT1}, s{sT1}, 1
s_add_u32 s{sT0}, s{sT0}, s{sT1}
s_lshl_b32 s{sT1}, s{sBL}, 3
s_add_u32 s{sT0}, s{sT0}, s{sT1}
s_and_b32 s{sT0}, s{sT0}, 15
s_lshl_b32 s{sKVoff}, s{sT0}, 13""" if KROT else f"s_mov_b32 s{sKVoff}, 0"
    rot_code = f"""s_and_b32 s{sT0}, s{sKVH}, 3
s_lshl_b32 s{sT0}, s{sT0}, 1
s_add_u32 s{sT0}, s{sT0}, s{sBP}
s_cmp_ge_u32 s{sT0}, 9
s_cselect_b32 s{sT1}, 9, 0
s_sub_u32 s{sT0}, s{sT0}, s{sT1}
s_lshl_b32 s{sT1}, s{sT0}, 19
s_add_u32 s{sWQoff}, s{sWQoff}, s{sT1}
s_lshl_b32 s{sT1}, s{sT0}, 7
s_add_u32 s{sXoff}, s{sXoff}, s{sT1}""" if ROT else ""
    P(f"""
s_lshl_b32 s{sWQoff}, s{sW}, 16
s_lshl_b32 s{sT0}, s{sKVH}, 9
s_add_u32 s{sWQoff}, s{sWQoff}, s{sT0}
s_mul_i32 s{sXoff}, s{sW}, {56*1152}
s_lshl_b32 s{sWQm0}, s{sW}, 12
s_add_u32 s{sWQm0}, s{sWQm0}, {WB+32768}
s_mul_i32 s{sXm0}, s{sW}, {7*1024}
s_add_u32 s{sT0}, s{sXm0}, {XB[1]}
s_add_u32 s{sXm0}, s{sXm0}, {XB[0]}
s_xor_b32 s{sXrd}, s{sXm0}, s{sT0}
s_mul_i32 s{sKVm0}, s{sW}, {KVT}
s_add_u32 s{sWend}, s{sWQoff}, {576*8192}
s_add_u32 s{sXend}, s{sXoff}, 1152
{rot_code}
{krot_code}
s_mov_b32 s{sK16}, 16384
s_mov_b32 s{sKm48}, {(-3*16384) & 0xffffffff}
s_mov_b32 s{sKKVS}, {KVS}
s_mov_b32 s{sKm3KVS}, {(-3*KVS) & 0xffffffff}
s_mov_b32 s{sWQw}, 2
s_mov_b32 s{sKVw}, 0
s_waitcnt lgkmcnt(0)
s_cmp_eq_u32 s{sBLK}, 0
s_cselect_b64 s[4:5], s[4:5], s[12:13]
s_cselect_b64 s[6:7], s[6:7], s[14:15]
s_cselect_b64 s[8:9], s[8:9], s[16:17]
s_cselect_b64 s[10:11], s[10:11], s[18:19]
s_cselect_b64 s[22:23], s[22:23], s[76:77]
s_mul_i32 s{sT0}, s{sBP}, 258048
s_add_u32 s{SX}, s4, s{sT0}
s_addc_u32 s{SX+1}, s5, 0
s_mov_b32 s{SX+2}, 258048
s_mov_b32 s{SX+3}, 0x00020000
s_mov_b32 s{SWQ}, s10
s_mov_b32 s{SWQ+1}, s11
s_mov_b32 s{SWQ+2}, 4718592
s_mov_b32 s{SWQ+3}, 0x00020000
""")

    stamp(P, 20, STAMP and bool(os.environ.get("PSTAMP")))
    def flat(groups): return [i for g in groups for i in g]
    def dma_wq(stage):
        out = [[I(f"s_mov_b32 m0, s{sWQm0}"), I(f"s_add_u32 s{sWQw}, s{sWQw}, 1")]]
        for k in range(4):
            d = I(f"buffer_load_dwordx4 v{vWd[k]}, s[{SWQ}:{SWQ+3}], s{sWQoff} offen offset:{1024*k} lds")
            d.defs = {("wq", stage)}; out.append([d])
        out += [[I(f"s_add_u32 s{sWQoff}, s{sWQoff}, {32*8192}")],
                [I(f"s_and_b32 s{sWQw}, s{sWQw}, 3"),
                 I(f"s_cselect_b32 s{sT0}, s{sK16}, s{sKm48}")],
                [I(f"s_add_u32 s{sWQm0}, s{sWQm0}, s{sT0}")]]
        if ROT and stage % 2 == 1:
            out += [[I(f"s_cmp_ge_u32 s{sWQoff}, s{sWend}"), I(f"s_cselect_b32 s{sT0}, {576*8192}, 0")],
                    [I(f"s_sub_u32 s{sWQoff}, s{sWQoff}, s{sT0}")]]
        return out
    def dma_x(stage, part):
        out = [[I(f"s_add_u32 m0, s{sXm0}, {4096*part}")]]
        for i in (range(4) if part == 0 else range(4, 7)):
            d = I(f"buffer_load_dwordx4 v{vXd[i&1]}, s[{SX}:{SX+3}], s{sT1} offen offset:{1024*(i%4)} lds")
            d.defs = {("x", stage)}
            out.append([I(f"s_add_u32 s{sT1}, s{sXoff}, {i*9216 - 1024*(i%4)}"), d])
        if part == 1:
            out.append([I(f"s_add_u32 s{sXoff}, s{sXoff}, 128")])
            if ROT:
                out += [[I(f"s_cmp_ge_u32 s{sXoff}, s{sXend}"), I(f"s_cselect_b32 s{sT1}, 1152, 0")],
                        [I(f"s_sub_u32 s{sXoff}, s{sXoff}, s{sT1}")]]
            out.append([I(f"s_xor_b32 s{sXm0}, s{sXm0}, s{sXrd}")])
        return out
    def dma_kv(stage):
        out = []
        for half in range(2):
            out.append([I(f"s_add_u32 m0, s{sKVm0}, {4352*half}"),
                        I(f"s_add_u32 s{sKVw}, s{sKVw}, 1") if half == 0 else I(f"s_add_u32 s{sKVoff}, s{sKVoff}, 4096")])
            for k in range(4):
                d = I(f"buffer_load_dwordx4 v{vKVd[k]}, s[{SKV}:{SKV+3}], s{sKVoff} offen offset:{1088*k}{kvf} lds")
                d.defs = {("kv", stage)}; out.append([d])
        out += [[I(f"s_and_b32 s{sT0}, s{sKVw}, 3"), I(f"s_cselect_b32 s{sT0}, s{sKKVS}, s{sKm3KVS}")],
                [I(f"s_add_u32 s{sKVoff}, s{sKVoff}, 4096"), I(f"s_add_u32 s{sKVm0}, s{sKVm0}, s{sT0}")]]
        if KROT: out += [[I(f"s_and_b32 s{sKVoff}, s{sKVoff}, 0x1ffff")]]
        if stage >= DIST and WOT != 3:
            out += [[I(f"s_cmp_eq_u32 s{sKVw}, 16"), I(f"s_cselect_b64 s[{SKV}:{SKV+1}], s[12:13], s[{SKV}:{SKV+1}]"),
                     I(f"s_cselect_b32 s{SKV+2}, {9216+192 if WOT == 1 else 0}, s{SKV+2}"), I(f"s_cselect_b32 s{sKVoff}, 0, s{sKVoff}")]]
        if stage >= DIST and WOT == 3:
            out += [[I(f"s_cmp_eq_u32 s{sKVw}, 16"), I(f"s_cselect_b32 s16, 0, s16")]]
            for i in range(3):
                d = I(f"buffer_load_dword v{vDum}, v{vKVd[0]}, s[12:15], s16 offen offset:{1024*i}"); d.defs = set()
                out.append([d])
            out.append([I("s_add_u32 s16, s16, 3072")])
        return out

    def kv0_piece():
        d = I(f"buffer_load_dwordx4 v{vKVd[0]}, s[{SKV}:{SKV+3}], s19 offen{kvf} lds"); d.defs = {("kv", 0)}
        o = [[I("s_mov_b32 m0, s17"), I("s_add_u32 s17, s17, 1088")], [d], [I("s_add_u32 s19, s19, 1024")]]
        if THIN:
            t = I(f"buffer_load_dword v{vDum}, v12, s[{SKV}:{SKV+3}], s18 offen offset:192"); t.defs = set()
            o[1].append(t)
            o.append([I(f"s_add_u32 s18, s18, {64 << THIN}")])
        return o
    tf = (" " + TFLAG) if TFLAG else ""
    def touch(vreg, step):
        d = I(f"buffer_load_dword v{vDum}, v{vreg}, s[{SKV}:{SKV+3}], s{sTo} offen{tf}")
        d.defs = set()
        return [[d], [I(f"s_add_u32 s{sTo}, s{sTo}, {step}")]]
    def qtouch():
        d = I(f"buffer_load_dword v{vDum}, v{vTq}, s[{SKV}:{SKV+3}], s{sTo} offen offset:192{tf}")
        d.defs = set()
        lg = {2: 1, 4: 2, 8: 3}[PPS]
        return [[I(f"s_lshr_b32 s{sTo}, s17, {lg}")], [I(f"s_mul_i32 s{sTo}, s{sTo}, {TSTEP*8192}")],
                [I(f"s_add_u32 s{sTo}, s{sTo}, s18")], [I(f"s_and_b32 s{sTo}, s{sTo}, 0x1ffff")],
                [I(f"s_and_b32 s19, s17, {PPS-1}")], [I(f"s_lshl_b32 s19, s19, {13-lg}")],
                [I(f"s_add_u32 s{sTo}, s{sTo}, s19"), d], [I("s_add_u32 s17, s17, 1")]]
    pre_list = [dma_wq(0), dma_x(0, 0), dma_x(0, 1), dma_wq(1), dma_x(1, 0), dma_wq(2)]
    for gl in pre_list[:NPRO]: P.ext(flat(gl))
    if CPF & 1: P.ext(flat(code_touch()))
    P(f"""
s_cmp_eq_u32 s{sHH}, 0
s_cselect_b64 s[6:7], s[6:7], s[8:9]
s_lshl_b32 s{sT0}, s{sBP}, 1
s_add_u32 s{sT0}, s{sT0}, s{sBL}
s_lshl_b32 s{sT1}, s{sT0}, 4
s_add_u32 s{sT1}, s{sT1}, s{sKVH}
s_lshl_b32 s{sT1}, s{sT1}, 17
s_add_u32 s{SKV}, s6, s{sT1}
s_addc_u32 s{SKV+1}, s7, 0
s_sub_u32 s{SKV}, s{SKV}, 192
s_subb_u32 s{SKV+1}, s{SKV+1}, 0
s_mov_b32 s{SKV+2}, {131072+192}
s_mov_b32 s{SKV+3}, 0x00020000
s_lshl_b32 s{sT1}, s{sBLK}, 4
s_add_u32 s{sT0}, s{sT0}, s{sT1}
s_mul_i32 s{sT0}, s{sT0}, {7*TS}
s_lshl_b32 s{sT1}, s{sKVH}, 1
s_add_u32 s{sT1}, s{sT1}, s{sHH}
s_lshl_b32 s{sT1}, s{sT1}, 12
s_add_u32 s{sT0}, s{sT0}, s{sT1}
s_add_u32 s{SO}, s20, s{sT0}
s_addc_u32 s{SO+1}, s21, 0
s_mov_b32 s{SO+2}, {6*TS+4096}
s_mov_b32 s{SO+3}, 0x00020000
v_lshrrev_b32 v10, 4, v{vL}
v_and_b32 v11, 1, v10
v_lshlrev_b32 v11, 1, v11
v_lshrrev_b32 v12, 1, v10
v_lshl_or_b32 v11, v12, 3, v11
s_cmp_eq_u32 s{sHH}, 0
s_cselect_b64 vcc, -1, 0
v_cndmask_b32 v11, v11, v10, vcc
v_and_b32 v12, 15, v{vL}
v_xor_b32 v11, v11, v12
v_lshlrev_b32 v11, 4, v11
v_lshl_add_u32 v11, v10, 8, v11
v_add_u32 v{vKVd[0]}, 192, v11
v_add_u32 v{vKVd[1]}, 128, v11
v_add_u32 v{vKVd[2]}, 64, v11
v_mov_b32 v{vKVd[3]}, v11
""")
    if TOUCH: P(f"v_lshlrev_b32 v{vTq}, {7 - {2: 1, 4: 2, 8: 3}[PPS]}, v{vL}\ns_mov_b32 s17, 0\ns_add_u32 s18, s{sKVoff}, {TS0*8192}")
    P(f"""
s_lshl_b32 s{sT0}, s{sKVH}, 3
s_add_u32 s{sT0}, s{sT0}, s{sBP}
s_lshl_b32 s{sT0}, s{sT0}, 2
s_add_u32 s{sT0}, s{sT0}, s{sW}
s_mul_i32 s{sT0}, s{sT0}, 9216
s_add_u32 s12, s22, s{sT0}
s_addc_u32 s13, s23, 0
s_sub_u32 s12, s12, 192
s_subb_u32 s13, s13, 0
""")
    P("s_mov_b32 s16, 0" if WOT != 3 else f"s_mov_b32 s16, 0x70000000\ns_mov_b32 s14, {9216+192}\ns_mov_b32 s15, 0x00020000")
    if KV0AT < 0:
        assert not KROT and not TOUCH
        P(f"s_mov_b32 s17, s{sKVm0}\ns_mov_b32 s19, 0\ns_add_u32 s{sKVm0}, s{sKVm0}, {KVS}\ns_mov_b32 s{sKVoff}, 8192\ns_mov_b32 s{sKVw}, 1")
        if THIN: P(f"s_mov_b32 s18, {TS0*8192}\nv_lshlrev_b32 v12, {THIN}, v{vL}")
    if TLBW:
        P(f"s_mov_b32 s14, {9216+192}\ns_mov_b32 s15, 0x00020000\nv_mov_b32 v12, 192")
        for srd in ((SKV, 12, SO) if TLBW > 1 else (SKV,)):
            d = I(f"buffer_load_dword v{vDum}, v12, s[{srd}:{srd+3}], 0 offen"); d.defs = set(); P.ext([d])
    if FUSED:
        P(f"""
s_lshl_b32 s90, s{sBLK}, 3
s_add_u32 s90, s90, s{sBP}
s_lshl_b32 s90, s90, 7
s_lshl_b32 s{sT0}, s{sKVH}, 2
s_add_u32 s90, s90, s{sT0}
s_add_u32 s90, s90, 32768
s_mov_b32 s91, s{sW}
s_load_dwordx2 s[92:93], s[0:1], 88
s_memrealtime s[76:77]
s_waitcnt lgkmcnt(0)
s_mov_b32 s94, 256
s_mov_b32 s95, 0x00020000
s_or_b32 s{sT0}, s2, s{sW}
s_cmp_lg_u32 s{sT0}, 0
s_cbranch_scc1 {name}_nn
s_or_b32 s76, s76, 1
v_mov_b32 v10, s76
v_mov_b32 v11, 0
s_mov_b64 exec, 1""")
        ns_ = I("buffer_store_dword v10, v11, s[92:95], 0 offen sc1"); ns_.kind = "misc"
        P.ext([ns_])
        P(f"s_mov_b64 exec, -1\n{name}_nn:")
    def wo_touch():
        d = I(f"buffer_load_dword v{vDum}, v{vKVd[3]}, s[12:15], s16 offen"); d.defs = set()
        return [[d], [I("s_add_u32 s16, s16, 1024")]]
    P(f"""
v_lshrrev_b32 v32, 4, v{vL}
v_bfe_u32 v33, v{vL}, 2, 2
v_lshl_add_u32 v34, v32, 3, v33
v_lshlrev_b32 v34, 9, v34
v_and_b32 v35, 1, v32
v_lshl_or_b32 v35, v35, 2, v33
v_lshl_add_u32 v34, v35, 5, v34
v_and_b32 v35, 3, v{vL}
v_lshl_add_u32 v34, v35, 3, v34
s_lshl_b32 s{sT0}, s{sHH}, 8
s_add_u32 s{sT0}, s{sT0}, {WB+32768}
v_add_u32 v{vWa[0]}, s{sT0}, v34
""")
    for mt in range(1, 8): P(f"v_xor_b32 v{vWa[mt]}, {32*mt}, v{vWa[0]}")
    P(f"""
v_and_b32 v33, 15, v{vL}
v_lshrrev_b32 v34, 1, v33
v_xor_b32 v34, v34, v32
v_lshlrev_b32 v34, 4, v34
v_lshl_add_u32 v34, v33, 7, v34
s_mul_i32 s{sT0}, s{sBL}, {112*128}
s_add_u32 s{sT0}, s{sT0}, {XB[0]}
v_add_u32 v{vXa[0]}, s{sT0}, v34
v_xor_b32 v{vXa[1]}, 64, v{vXa[0]}
s_mov_b32 s{sC}, {f2u(CSCALE)}
s_mov_b32 s{sC+1}, {f2u(CSCALE)}
s_mov_b32 s{sNC}, {f2u(-CSCALE)}
s_mov_b32 s{sTH}, {f2u(THRESH / CSCALE if SOFT else THRESH)}
s_mov_b32 s{sCNT}, 0
""")

    P(f"""
v_and_b32 v36, 15, v{vL}
v_lshrrev_b32 v37, 4, v{vL}
v_lshrrev_b32 v38, 2, v36
v_and_b32 v39, 3, v36
v_mul_u32_u24 v40, 1088, v38
v_lshl_add_u32 v40, v39, 8, v40
v_xor_b32 v41, v37, v39
v_lshl_add_u32 v40, v41, 4, v40
s_mul_i32 s{sT0}, s{sBL}, {2*KVT}
v_add_u32 v{vKa}, s{sT0}, v40
""")
    P(f"""
v_mul_u32_u24 v40, 1088, v37
v_lshl_add_u32 v40, v38, 8, v40
v_lshl_add_u32 v40, v39, 3, v40
s_add_u32 s{sT0}, s{sT0}, {KVT}
v_add_u32 v40, s{sT0}, v40
v_and_b32 v41, 1, v38
v_lshrrev_b32 v36, 1, v38
v_lshl_or_b32 v41, v36, 2, v41
""")
    for u in range(4):
        pat = (u & 1) | ((u >> 1) << 2)
        P(f"v_xor_b32 v36, {pat}, v41\nv_lshl_add_u32 v{vVa[u]}, v36, 5, v40")
    P(f"s_mov_b32 s{sKd}, 0\ns_mov_b32 s{sVd}, 0")
    P(f"v_mov_b32 v36, 0x3f803f80\nv_mov_b32 v37, 0")
    for i in range(4): P(f"v_accvgpr_write_b32 a{252+i}, v36")
    for i in range(32): P(f"v_accvgpr_write_b32 a{6*32+i}, v37")
    for i in range(4): P(f"v_accvgpr_write_b32 a{224+24+i}, v37")

    def a_reads(ks, mt, slot=None):
        out = []
        for half in range(2):
            r = Af(mt if slot is None else slot) + 2 * half
            d = I(f"ds_read_b64_tr_b16 a[{r}:{r+1}], v{vWa[mt]} offset:{2048*half + 16384*(ks&1)}")
            d.defs |= {("wqrd", ks)}; out.append(d)
        return out
    def b_read(ks, nt):
        r = Bf(ks & 1, nt)
        d = I(f"ds_read_b128 a[{r}:{r+3}], v{vXa[ks&1]} offset:{2048*nt}")
        d.defs |= {("xrd", ks >> 1)}
        return d
    def qbarrier(i):
        b = I("s_barrier")
        b.uses = {("wq", i), ("wqrd", i - 1)}
        if i % 2 == 0: b.uses |= {("x", i // 2)}
        else: b.uses |= {("xrd", i // 2)}
        if i == 18: b.uses |= {("kv", 0)}
        if i == 16 and GMAJ: b.uses |= {("wq", 17)} | (set() if LATEKV else {("kv", 0)})
        return b

    stamp(P, 21, STAMP and bool(os.environ.get("PSTAMP")))
    P.ext([qbarrier(0)])
    P.ext(a_reads(0, 0)); P.ext([b_read(0, nt) for nt in range(7)]); P.ext(a_reads(0, 1))
    stamp(P, 1, STAMP)
    inst = [("pre", P.L)]

    def conv_group(g, nt, plain=False):
        r = grp(g, nt)
        o = []
        if not SOFT and plain:
            for q in range(8): o.append(I(f"v_mul_f32 v{r+q}, s{sC}, v{r+q}"))
        elif not SOFT:
            for q in range(4): o.append(I(f"v_pk_mul_f32 v[{r+2*q}:{r+2*q+1}], v[{r+2*q}:{r+2*q+1}], s[{sC}:{sC+1}]"))
        for q in range(4): o.append(I(f"v_cvt_pk_bf16_f32 v{r+q}, v{r+2*q}, v{r+2*q+1}"))
        return o
    def swap_group(g, nt):
        r = grp(g, nt)
        return ([I(f"v_permlane32_swap_b32 v{r}, v{r+2}"), I(f"v_permlane32_swap_b32 v{r+1}, v{r+3}")],
                [I(f"v_permlane16_swap_b32 v{r}, v{r+2}"), I(f"v_permlane16_swap_b32 v{r+1}, v{r+3}")])

    sXdelta = 59
    inst[0][1].append(I(f"s_mov_b32 s{sXdelta}, {(XB[1]-XB[0]) & 0xffffffff}"))
    inst[0][1].append(I(f"s_mov_b32 s{sWrd}, {(-32768) & 0xffffffff}"))

    def dma_in(ks):
        lst = []
        k = ks // 2
        if ks == 0:
            for gl in pre_list[NPRO:]: lst += gl
        if ks % 2 == 0:
            if k + 1 <= 8: lst += dma_x(k + 1, 1)
            if ks + 3 <= 17: lst += dma_wq(ks + 3)
        else:
            if ks + 3 <= 17: lst += dma_wq(ks + 3)
            if k + 2 <= 8: lst += dma_x(k + 2, 0)
        if KV0AT >= 0:
            if ks == KV0AT: lst += dma_kv(0)
        elif ks % 2 == 1 and ks <= 13 or ks == 14: lst += kv0_piece()
        if ks == 14 and (CPF & 2): lst += code_touch()
        if ks == 15: lst += dma_kv(1)
        if ks == 17 and DIST >= 3: lst += dma_kv(2)
        if (TOUCH & 1) and 2 <= ks <= 17:
            for _ in range(TPK): lst += qtouch()
        return lst

    def k_read(j, sub, g):
        r = Kf[sub][g]
        d = I(f"ds_read_b128 v[{r}:{r+3}], v{vKa} offset:{64*g + 4352*sub}")
        d.defs |= {("krd", j)}
        return d
    def v_reads(j, dt):
        u = (dt & 1) | ((dt >> 2) << 1)
        out = []
        for half in range(2):
            r = Vf[dt] + 2 * half
            d = I(f"ds_read_b64_tr_b16 v[{r}:{r+1}], v{vVa[u]} offset:{64*((dt>>1)&1) + 4352*half}")
            d.defs |= {("vrd", j)}; out.append(d)
        return out
    CWIN = 111 if SOFT else 12
    def qlast():
        F = [(16 + (i >> 1 & 1), 2 * (i >> 2) + (i & 1)) for i in range(16)]
        mf = []
        for i, (ks, mt) in enumerate(F):
            for nt in range(7):
                c = R("v", acc(mt, nt))
                mf.append(m16(c, R("a", Af(i)), R("a", Bf(ks & 1, nt)), c))
        S = Sched2(mf)
        for i in range(14): S.stream(a_reads(*F[i + 2], slot=i + 2), 7 * i, 7 * i + 3)
        S.stream([b_read(17, nt) for nt in range(7)], 2, 10)
        b = I("s_barrier"); b.uses = {("xrd", 8)}
        S.put(20, b)
        if DIST >= 3: spaced(S, dma_kv(2), 21 + KV2D, 105, 6)
        if LATEKV:
            b = I("s_barrier"); b.uses = {("kv", 0)}
            S.put(LATEKV, b)
        done = {}
        for g in range(3):
            for nt in range(7):
                lo = 28 * g + 21 + nt + 4
                lo = S.stream(conv_group(g, nt, True), lo, min(lo + CWIN, 111))
                done[(g, nt)] = lo
                s0, s1 = swap_group(g, nt)
                lo = S.stream(s0, min(lo + 2, 111), 111)
                S.stream(s1, min(lo + 2, 111), 111)
        hole_owner = [(g, nt) for g in range(4) for nt in range(7)]
        lo = max(60, LATEKV + 1)
        for sub in range(2):
            for g in range(4): lo = S.place(k_read(0, sub, g), max(lo, done[hole_owner[4 * sub + g]] + 1), 111)
        for dt in range(8):
            for d in v_reads(0, dt): lo = S.place(d, max(lo, done[hole_owner[8 + dt]] + 1), 111)
        return S

    def qstep(ks):
        mf = []
        for mt in range(8):
            for nt in range(7):
                c = R("v", acc(mt, nt))
                mf.append(m16(c, R("a", Af(mt)), R("a", Bf(ks & 1, nt)), "0" if ks == 0 else c))
        S = Sched2(mf)
        for mt in range(6):
            S.stream(a_reads(ks, mt + 2), 7 * mt, 7 * mt + 3)
        nxt = ks + 1
        if ks % 2 == 0:
            S.stream([b_read(nxt, nt) for nt in range(7)], 2, 20)
        if nxt < 18:
            if nxt % 2 == 0:
                S.stream([I(f"v_add_u32 v{vXa[0]}, s{sXdelta}, v{vXa[0]}"), I(f"v_add_u32 v{vXa[1]}, s{sXdelta}, v{vXa[1]}"),
                          I(f"s_sub_u32 s{sXdelta}, 0, s{sXdelta}")], 20, 36)
                advs = [I(f"v_add_u32 v{vWa[mt]}, s{sWrd}, v{vWa[mt]}") for mt in range(8)]
                S.stream(advs[:7], 32, 40)
                S.put(40, advs[7])
                S.put(41, I(f"s_sub_u32 s{sWrd}, 0, s{sWrd}"))
            S.put(42, qbarrier(nxt))
            S.stream(a_reads(nxt, 0), 42, 45)
            if nxt % 2 == 0: S.stream([b_read(nxt, nt) for nt in range(7)], 43, 52)
            S.stream(a_reads(nxt, 1), 49, 53)
        items = dma_in(ks)
        nd = sum(1 for g_ in items for i_ in g_ if i_.kind in ("dma", "vload"))
        if nd: spaced(S, items, 1, 55, max(2, min(QSTEP, 52 // nd)))
        return S

    for k in range(9):
        Ss = [qlast()] if (k == 8 and GMAJ) else [qstep(2 * k), qstep(2 * k + 1)]
        if k == 8 and verbose: print('q8 est', sum(S.est() for S in Ss))
        code = []
        key = "qloop" if 1 <= k <= 6 else f"q{k}"
        if key == "qloop": code.append(I(f"{name}_qloop:"))
        for S in Ss: code += S.emit()
        if key == "qloop":
            code += [I(f"s_add_u32 s{sCNT}, s{sCNT}, 1"), I(f"s_cmp_lt_u32 s{sCNT}, 6"), I(f"s_cbranch_scc1 {name}_qloop")]
        inst.append((key, code))
        if STAMP and k in (0, 6):
            T_ = Prog(); stamp(T_, 6 if k == 0 else 7, True); inst.append((f"st{k}", T_.L))

    C = Prog()
    if not GMAJ: C.ext([qbarrier(18)])
    assert not GMAJ or DIST == 3
    if TOUCH & 2: C(f"v_lshlrev_b32 v{vTa}, 7, v{vL}")
    late = dma_kv(3) if DIST >= 4 else []
    if TOUCH & 2:
        first_t = 5 if (TOUCH & 1) else 4
        late += [[I(f"s_mov_b32 s{sTo}, {first_t*8192+192}")]]
        for st_ in range(first_t, 4 + TD): late += touch(vTa, 8192)
    stamp(C, 2, STAMP)
    C(f"s_mov_b32 s{sCNT}, 0\ns_nop 4")
    groups = [(g, nt) for nt in range(7) for g in range(4) if (g == 3 or not GMAJ)]
    prev = None
    for i, (g, nt) in enumerate(groups):
        if late: C.ext(late.pop(0))
        C.ext(conv_group(g, nt))
        if i >= 1: C.ext(swap_group(*groups[i - 1])[0])
        if i >= 2: C.ext(swap_group(*groups[i - 2])[1])
    C("s_nop 1")
    C.ext(swap_group(*groups[-1])[0]); C.ext(swap_group(*groups[-2])[1]); C("s_nop 1"); C.ext(swap_group(*groups[-1])[1])

    def adv(sreg, vregs, st):
        return [[I(f"s_add_u32 s{sreg}, s{sreg}, 1")], [I(f"s_and_b32 s{sreg}, s{sreg}, 3"),
                I(f"s_cselect_b32 s{st}, s{sKKVS}, s{sKm3KVS}")]] + \
               [[I(f"v_add_u32 v{v}, s{st}, v{v}")] for v in vregs]
    def abarrier(j):
        b = I("s_barrier"); b.uses = {("kv", j + 1), ("krd", j), ("vrd", j), ("wqrd", 16), ("wqrd", 17)}
        return b
    def qk(t, zero):
        o = []
        for sub in range(2):
            d = R("v", Sb[sbuf(t)][sub])
            for g in range(4):
                c = d if g else ("0" if (zero or SOFT) else R("v", Ci[t]))
                o.append(m16(d, R("v", Kf[sub][g]), Q(t, g), c))
        return o
    def pv(t, zero):
        o = [m16(O(t, d), R("v", Vf[d]), R("v", Pf), "0" if zero else O(t, d)) for d in range(8)]
        if not VSUM: o.append(m16(Lr(t), ONES, R("v", Pf), "0" if zero else Lr(t)))
        return o
    def sregs(t): return [Sb[sbuf(t)][0] + i for i in range(4)] + [Sb[sbuf(t)][1] + i for i in range(4)]

    if not GMAJ:
        for sub in range(2):
            for g in range(4): C.ext([k_read(0, sub, g)])
        for dt in range(8): C.ext(v_reads(0, dt))
    C.ext(qk(0, True))
    stamp(C, 3, STAMP)
    inst.append(("conv", C.L))

    slow = Prog()
    def epi_tile(t, U, sfx):
        LS = Ci[t] + 2; X = Ci[t] + 3; INV = Ci[t]
        if VSUM:
            o = [f"v_mov_b32 v{X}, v{LS}", "s_nop 1", f"v_permlane32_swap_b32 v{X}, v{LS}", f"v_add_f32 v{LS}, v{LS}, v{X}",
                 f"v_mov_b32 v{X}, v{LS}", "s_nop 1", f"v_permlane16_swap_b32 v{X}, v{LS}", f"v_add_f32 v{LS}, v{LS}, v{X}",
                 f"v_rcp_f32 v{INV}, v{LS}"]
        else:
            o = [f"v_accvgpr_read_b32 v{LS}, a{224+4*t}", f"v_rcp_f32 v{INV}, v{LS}"]
        o = [[I(x)] for x in o]
        for g in range(4):
            val = [U[0] + i for i in range(4)] + [U[1] + i for i in range(4)]
            out = U[2 + (g & 1)]
            for i in range(8): o.append([I(f"v_accvgpr_read_b32 v{val[i]}, a{(t*8+2*g)*4+i}")])
            for i in range(8): o.append([I(f"v_mul_f32 v{val[i]}, v{val[i]}, v{INV}")])
            for q in range(4): o.append([I(f"v_cvt_pk_bf16_f32 v{out+q}, v{val[2*q]}, v{val[2*q+1]}")])
            st = I(f"buffer_store_dwordx4 v[{out}:{out+3}], v{vKa}, s[{SO}:{SO+3}], s{sT3} offen offset:{1024*g}{OFLAG}")
            st.defs = {("ostore", 0)}
            o.append(([I(f"s_mov_b32 s{sT3}, {t*TS}")] if g == 0 else []) + [st])
        return o
    def block(j, first, last=False):
        mf = []; base = []
        for s in range(7):
            base.append(len(mf))
            if not (first and s == 0): mf += pv((s - 1) % 7, first)
            if not (last and s == 6): mf += qk((s + 1) % 7, first and s < 6)
        base.append(len(mf))
        if last: mf += pv(6, False)
        S = Sched2(mf)
        NPV = 8 if VSUM else 9; SL = NPV + 8
        if not first:
            for n, gp in enumerate(VGAPS):
                dt = n // 2
                gp = min(gp, SL + dt - 4)
                assert dt <= gp
                S.put(gp, v_reads(j, dt)[n % 2])
        for i, gp in enumerate(KGAPS if not last else []):
            gp = gp - 9 + NPV
            assert NPV + i <= gp <= SL + NPV + i - 4
            S.put(base[5] + gp, k_read(j + 1, i // 4, i % 4))
        gb = base[2] + 1
        if not last: S.put(gb, abarrier(j))
        elif FUSED:
            b_ = abarrier(j); b_.uses |= {("kv", j + 2), ("kv", j + 3)}
            S.put(gb, b_)
            S.put(gb + 1, "v_mov_b32 v13, 0")
            S.put(gb + 3, "buffer_load_dword v13, v13, s[92:95], 0 offen sc1")
            S.put(gb + 5, "s_load_dwordx2 s[4:5], s[0:1], 32\ns_load_dwordx2 s[6:7], s[0:1], 72")
            S.put(gb + 6, "s_load_dwordx2 s[8:9], s[0:1], 80\ns_load_dwordx2 s[10:11], s[0:1], 96")
        for t in range(7):
            b0 = base[t]; sr = sregs(t); n = base[t + 1] - b0
            NM, TH, LS = Ci[t], Ci[t] + 1, Ci[t] + 2
            if first:
                ops = [f"v_max3_f32 v{vMX}, v{sr[0]}, v{sr[1]}, v{sr[2]}",
                       f"v_max3_f32 v{vMX}, v{vMX}, v{sr[3]}, v{sr[4]}",
                       f"v_max3_f32 v{vMX}, v{vMX}, v{sr[5]}, v{sr[6]}",
                       f"v_max_f32 v{vMX}, v{vMX}, v{sr[7]}",
                       f"v_mov_b32 v{vT}, v{vMX}", f"v_permlane32_swap_b32 v{vT}, v{vMX}",
                       f"v_max_f32 v{vMX}, v{vT}, v{vMX}",
                       f"v_mov_b32 v{vT}, v{vMX}", f"v_permlane16_swap_b32 v{vT}, v{vMX}",
                       f"v_max_f32 v{vMX}, v{vT}, v{vMX}"]
                if SOFT:
                    ops += [f"v_mul_f32 v{NM}, s{sNC}, v{vMX}"]
                    ops += [f"v_fma_f32 v{r}, v{r}, s{sC}, v{NM}" for r in sr]
                    ops += [f"v_add_f32 v{TH}, s{sTH}, v{vMX}"]
                else:
                    ops += [f"v_sub_f32 v{r}, v{r}, v{vMX}" for r in sr]
                ops += [f"v_exp_f32 v{r}, v{r}" for r in sr]
                if not SOFT: ops += [f"v_sub_f32 v{Ci[t]+i}, 0, v{vMX}" for i in range(4)]
                if VSUM:
                    ops += [f"v_add_f32 v{LS}, v{sr[0]}, v{sr[1]}"] + [f"v_add_f32 v{LS}, v{LS}, v{sr[i]}" for i in range(2, 8)]
                for i, o in enumerate(ops):
                    S.put(b0 + min(n - 2, 1 + (i * (n - 3)) // len(ops)), o)
                for q in range(4): S.put(b0 + n - 2, f"v_cvt_pk_bf16_f32 v{Pf+q}, v{sr[2*q]}, v{sr[2*q+1]}")
            elif SOFT:
                e0 = b0 + n - 1
                sx = "L" if last else ""
                gbr = S.put(e0, f"s_cbranch_vccnz {name}_slow{sx}{t}\n{name}_back{sx}{t}:")
                if VSUM: S.put(e0, f"v_add_f32 v{LS}, v{LS}, v{vTS}")
                ge = []
                for i in range(8):
                    tgt = b0 + (i * (n - 4)) // 8
                    gf = S.place(f"v_fma_f32 v{Er[i]}, v{sr[i]}, s{sC}, v{NM}", max(tgt, b0 + (3 if i >= 4 else 0)), min(max(tgt, b0 + 3) + 1, e0 - 3) if n > 8 else b0 + 3)
                    ge.append(S.place(f"v_exp_f32 v{Er[i]}, v{Er[i]}", gf + 1, min(gf + 2, e0 - 2)))
                cap = lambda x: min(x, e0 - 3)
                g1 = S.place(f"v_max3_f32 v{vMX}, v{sr[0]}, v{sr[1]}, v{sr[2]}", b0, cap(b0 + 6))
                g2 = S.place(f"v_max3_f32 v{vT}, v{sr[4]}, v{sr[5]}, v{sr[6]}", b0 + 3, cap(b0 + 8))
                g3 = S.place(f"v_max3_f32 v{vMX}, v{vMX}, v{sr[3]}, v{sr[7]}", max(g1, b0 + 3), cap(b0 + 10))
                g4 = S.place(f"v_max_f32 v{vMX}, v{vMX}, v{vT}", max(g2, g3), cap(b0 + 11))
                g5 = S.place(f"v_cmp_lt_f32 vcc, v{TH}, v{vMX}", g4, e0 - 2)
                for q in range(4):
                    S.place(f"v_cvt_pk_bf16_f32 v{Pf+q}, v{Er[2*q]}, v{Er[2*q+1]}", max(ge[2*q] + 1, ge[2*q+1] + 1, b0 + NPV - 1), max(e0 - 1, b0 + NPV - 1))
                if VSUM:
                    ga = S.place(f"v_add_f32 v{vTS}, v{Er[0]}, v{Er[1]}", ge[1] + 1, e0 - 1)
                    for i in range(2, 8):
                        ga = S.place(f"v_add_f32 v{vTS}, v{vTS}, v{Er[i]}", max(ga, ge[i] + 1), min(max(ga, ge[i] + 1) + 3, e0 - 1))
            else:
                sx = "L" if last else ""
                e0 = b0 + n - 1
                short = n < SL
                cap = (lambda x, d: min(x, e0 - d)) if short else (lambda x, d: x)
                g1 = S.place(f"v_max3_f32 v{vMX}, v{sr[0]}, v{sr[1]}, v{sr[2]}", b0, cap(b0 + 5, 5))
                g2 = S.place(f"v_max3_f32 v{vT}, v{sr[4]}, v{sr[5]}, v{sr[6]}", b0 + 3, cap(b0 + 7, 5))
                g3 = S.place(f"v_max3_f32 v{vMX}, v{vMX}, v{sr[3]}, v{sr[7]}", max(g1, b0 + 3), cap(b0 + 8, 4))
                g4 = S.place(f"v_max_f32 v{vMX}, v{vMX}, v{vT}", max(g2, g3), cap(b0 + 9, 4))
                g5 = S.place(f"v_cmp_lt_f32 vcc, s{sTH}, v{vMX}", g4, cap(b0 + 10, 3))
                gbr = S.place(f"s_cbranch_vccnz {name}_slow{sx}{t}\n{name}_back{sx}{t}:", g5 + 2, cap(b0 + 12, 1))
                ge = []
                for i in range(8):
                    ge.append(S.place(f"v_exp_f32 v{Er[i]}, v{sr[i]}", b0 + (3 if i >= 4 else 0), cap(b0 + 14, 1)))
                for q in range(4):
                    S.place(f"v_cvt_pk_bf16_f32 v{Pf+q}, v{Er[2*q]}, v{Er[2*q+1]}", max(ge[2*q] + 1, ge[2*q+1] + 1, gbr + 1, b0 + 8), cap(b0 + 15, 0))
        if last:
            S.put(0, f"v_lshlrev_b32 v{vKa}, 4, v{vL}")
            if WOT == 2:
                S.put(0, f"s_mov_b32 s14, {9216+192}\ns_mov_b32 s15, 0x00020000")
                for i in range(9):
                    d = I(f"buffer_load_dword v{vDum}, v{vKVd[0]}, s[12:15], s16 offen"); d.defs = set()
                    S.put(2 + 3 * i, [d, I("s_add_u32 s16, s16, 1024")])
            for t in range(5):
                lo = base[t + 1] + NPV + 3; hi = min(base[t + 2] + NPV + 2, len(mf) - 1)
                ops = epi_tile(t, [grp(g, t) for g in range(4)], "")
                for i, o_ in enumerate(ops): S.put(lo + (i * (hi - lo + 1)) // len(ops), o_)
            return S
        spaced(S, dma_kv(j + DIST) + (touch(vTa, 8192) if TOUCH & 2 else []), gb + 1 + DLATE, min(base[5] + 6 + DLATE + (15 if WOT == 3 else 0), len(mf) - 2), DSTEP)
        S.stream(adv(sVd, vVa, sT3), base[2], base[6])
        S.stream(adv(sKd, [vKa], sT4), base[3], base[5] + NPV - 1)
        if PAIR > 0 and not first: pair_mfmas(S, PAIR)
        if PAIR < 0 and not first: group_mfmas(S, -PAIR)
        return S

    S0 = block(0, True)
    inst.append(("blk0", S0.emit()))
    if STAMP:
        T_ = Prog(); stamp(T_, 8, True); inst.append(("stb", T_.L))
    for j in range(1, 15 if PEEL else 16):
        S = block(j, False)
        trace = [I("s_memtime s[76:77]"), I("s_memrealtime s[78:79]"), I("s_waitcnt lgkmcnt(0)"),
                 I(f"s_mov_b32 m0, s{sCNT}"), I("s_nop 1"), I(f"v_writelane_b32 v18, s76, m0"), I(f"v_writelane_b32 v19, s78, m0")] if os.environ.get("TRACE") else []
        code = [I(f"{name}_aloop:")] + trace + S.emit() + [I(f"s_add_u32 s{sCNT}, s{sCNT}, 1"), I(f"s_cmp_lt_u32 s{sCNT}, {14 if PEEL else 15}"),
                                                   I(f"s_cbranch_scc1 {name}_aloop")]
        inst.append(("aloop", code))
        if verbose and j == 1: print("k1 attention block est cycles", S.est(16), "ideal", 16 * len(S.m))

    E = Prog()
    if PEEL:
        pass
        SL_ = block(15, False, last=True)
        if verbose: print("last block est", SL_.est())
        inst.append(("blkL", SL_.emit()))
    else: E.ext(pv(6, False))
    stamp(E, 4, STAMP)
    if os.environ.get("TRACE"):
        E(f"""s_add_u32 s72, s20, 0x5000000
s_addc_u32 s73, s21, 0
s_mov_b32 s74, 0x100000
s_mov_b32 s75, 0x00020000
s_lshl_b32 s70, s2, 11
s_lshl_b32 s71, s{sW}, 9
s_add_u32 s70, s70, s71
v_lshlrev_b32 v2, 3, v{vL}
buffer_store_dwordx2 v[18:19], v2, s[72:75], s70 offen
s_waitcnt vmcnt(0)""")
    if FUSED:
        if PEEL: E("v_mov_b32 v25, v13")
        else: E(f"s_waitcnt vmcnt(0)\ns_barrier\nv_mov_b32 v24, 0\nbuffer_load_dword v25, v24, s[92:95], 0 offen sc1")
    if ZFLAG:
        E(f"""s_add_u32 s72, s20, {ZFLAG}
s_addc_u32 s73, s21, 0
s_mov_b32 s74, 32768
s_mov_b32 s75, 0x00020000
s_lshl_b32 s70, s2, 7
v_and_b32 v2, 31, v{vL}
v_lshlrev_b32 v2, 2, v2
v_mov_b32 v10, 0
buffer_store_dword v10, v2, s[72:75], s70 offen""")
    E(f"v_lshlrev_b32 v2, 4, v{vL}")
    E("s_nop 7")
    tmp = 32
    if VSUM:
        ET = range(5, 7) if PEEL else range(7)
        for t in ET: E(f"v_mov_b32 v{3+t}, v{Ci[t]+2}\nv_mov_b32 v{11+t}, v{Ci[t]+2}")
        E("s_nop 1")
        for t in ET: E(f"v_permlane32_swap_b32 v{3+t}, v{11+t}")
        for t in ET: E(f"v_add_f32 v{3+t}, v{3+t}, v{11+t}")
        for t in ET: E(f"v_mov_b32 v{11+t}, v{3+t}")
        E("s_nop 1")
        for t in ET: E(f"v_permlane16_swap_b32 v{3+t}, v{11+t}")
        for t in ET: E(f"v_add_f32 v{3+t}, v{3+t}, v{11+t}")
    for t in (range(5, 7) if PEEL else range(7)):
        inv = 20 + 2 * (t & 1)
        if VSUM: E(f"s_mov_b32 s{sT0}, {t*TS}\nv_rcp_f32 v{inv}, v{3+t}")
        else: E(f"v_accvgpr_read_b32 v{inv}, a{224+4*t}\ns_mov_b32 s{sT0}, {t*TS}\nv_rcp_f32 v{inv}, v{inv}")
        for g in range(4):
            r = tmp + 16 * ((t * 4 + g) % 8)
            for i in range(8): E(f"v_accvgpr_read_b32 v{r+i}, a{(t*8+2*g)*4+i}")
            for q in range(4): E(f"v_pk_mul_f32 v[{r+2*q}:{r+2*q+1}], v[{r+2*q}:{r+2*q+1}], v[{inv}:{inv+1}] op_sel_hi:[1,0]")
            for q in range(4): E(f"v_cvt_pk_bf16_f32 v{r+8+q}, v{r+2*q}, v{r+2*q+1}")
            E(f"buffer_store_dwordx4 v[{r+8}:{r+11}], v2, s[{SO}:{SO+3}], s{sT0} offen offset:{1024*g}{OFLAG}")
            E.L[-1].defs = {("ostore", 0)}
    if STAMP and not FUSED:
        stamp(E, 5, True)
        stamp_store(E, 9 if not os.environ.get('DBG') else 6, sW, 20, (512, 0))
    if not FUSED: E(f"{name}_done:\ns_endpgm")
    inst.append(("end", E.L))

    for t, sx in [(t, sx) for sx in (("", "L") if PEEL else ("",)) for t in range(7)]:
        sr = sregs(t)
        slow(f"""{name}_slow{sx}{t}:
v_mov_b32 v{vT}, v{vMX}
s_nop 1
v_permlane32_swap_b32 v{vT}, v{vMX}
v_max_f32 v{vMX}, v{vT}, v{vMX}
v_mov_b32 v{vT}, v{vMX}
s_nop 1
v_permlane16_swap_b32 v{vT}, v{vMX}
v_max_f32 v{vMX}, v{vT}, v{vMX}
""")
        NM, TH, LS = Ci[t], Ci[t] + 1, Ci[t] + 2
        if SOFT:
            slow(f"""v_subrev_f32 v{vT}, s{sTH}, v{TH}
v_max_f32 v{vMX}, v{vT}, v{vMX}
v_mul_f32 v{vT}, s{sNC}, v{vMX}
v_sub_f32 v{vF}, v{vT}, v{NM}
v_exp_f32 v{vF}, v{vF}
v_mov_b32 v{NM}, v{vT}
v_add_f32 v{TH}, s{sTH}, v{vMX}""")
            for i in range(8): slow(f"v_fma_f32 v{Er[i]}, v{sr[i]}, s{sC}, v{NM}")
            for i in range(8): slow(f"v_exp_f32 v{Er[i]}, v{Er[i]}")
            slow("s_nop 0")
            for q in range(4): slow(f"v_cvt_pk_bf16_f32 v{Pf+q}, v{Er[2*q]}, v{Er[2*q+1]}")
            if VSUM:
                slow(f"v_add_f32 v{vTS}, v{Er[0]}, v{Er[1]}")
                for i in range(2, 8): slow(f"v_add_f32 v{vTS}, v{vTS}, v{Er[i]}")
                slow(f"v_mul_f32 v{LS}, v{LS}, v{vF}")
        else:
            slow(f"v_max_f32 v{vMX}, 0, v{vMX}\nv_exp_f32 v{vF}, -v{vMX}")
            for r in sr: slow(f"v_sub_f32 v{r}, v{r}, v{vMX}")
            for i in range(8): slow(f"v_exp_f32 v{Er[i]}, v{sr[i]}")
            for i in range(4): slow(f"v_sub_f32 v{Ci[t]+i}, v{Ci[t]+i}, v{vMX}")
        regs = [t * 32 + i for i in range(32)] + ([] if VSUM else [224 + 4 * t + i for i in range(4)])
        for a in regs:
            slow(f"v_accvgpr_read_b32 v{vT}, a{a}\nv_mul_f32 v{vT}, v{vT}, v{vF}\nv_accvgpr_write_b32 a{a}, v{vT}")
        slow(f"s_nop 1\ns_branch {name}_back{sx}{t}")

    EXP = os.environ.get("EXP", "").split(",")
    def keep(key, i):
        if key == "aloop":
            if "a_nodma" in EXP and i.kind == "dma": return False
            if "a_nobar" in EXP and i.kind == "barrier": return False
            if "a_nods" in EXP and i.kind == "dsr": return False
            if "a_noexp" in EXP and i.op == "v_exp_f32": return False
            if "a_nomax" in EXP and (i.op.startswith("v_max") or i.op.startswith("v_cmp") or i.op == "s_cbranch_vccnz"): return False
            if "a_nobr" in EXP and (i.op == "s_cbranch_vccnz"): return False
            if "a_nocvt" in EXP and i.op.startswith("v_cvt"): return False
            if "a_nosum" in EXP and i.kind == "mfma" and "a[252:255]" in i.text: return False
            if "a_nopv" in EXP and i.kind == "mfma" and i.text.split()[1].startswith("a["): return False
        if key == "qloop":
            if "q_nodma" in EXP and i.kind == "dma": return False
            if "q_nobar" in EXP and i.kind == "barrier": return False
            if "q_nods" in EXP and i.kind == "dsr": return False
        return True
    inst = [(k_, [i for i in c_ if keep(k_, i)]) for k_, c_ in inst]
    PADN = int(os.environ.get("PADN", 0))
    if PADN:
        def pad(c_):
            o_ = []; n_ = 0
            for i in c_:
                if i.kind == "mfma":
                    n_ += 1
                    if n_ % PADN == 0: o_.append(I("s_nop 7"))
                o_.append(i)
            return o_
        inst = [(k_, pad(c_) if k_ == "aloop" else c_) for k_, c_ in inst]
    if FUSED: return inst, slow
    out, full, nfix = resolve_all2(inst)
    if verbose: print("k1 nops inserted:", nfix, "est aloop", est_code(out["aloop"]), "est qloop", est_code(out["qloop"]), "blk0", est_code(out["blk0"]))
    msgs = check_hazards(full, name) + check_hazards(slow.L, name + "_slow")
    seen = set()
    for m_ in msgs:
        key = m_.split("]")[1][:60] + m_.split("->")[-1][-50:]
        if key not in seen: print(m_); seen.add(key)
    order = []
    for key, _ in inst:
        if key not in order: order.append(key)
    text = "\n".join(str(i) for key in order for i in out[key]) + "\n" + slow.text()
    launch = f"; @launch kernel={name} grid=(256,1,1) block=(256,1,1) lds=163840"
    return launch, text, kd(name, 512, 256, 102)

def gen_k2(name="oproj_kernel", NS=4, STAMP=False, WROT=1, verbose=True):
    for Lp in range(126): assert (Lp * 57) >> 9 == Lp // 9
    KS = 4
    PB = KS * NS
    ACC = 16
    AF = 48
    BF = 80
    NV = BF + 8 * PB
    vLane16 = 2; vA = [3, 4, 5, 6]; vDma = [7, 8, 9, 10]; vOut = 11
    P = Prog()
    P(f"""
.globl {name}
.p2align 8
.type {name},@function
{name}:
s_cmp_ge_u32 s2, 256
s_cbranch_scc1 {name}_done
s_load_dwordx2 s[4:5], s[0:1], 32
s_load_dwordx2 s[6:7], s[0:1], 72
s_load_dwordx2 s[8:9], s[0:1], 80
s_load_dwordx2 s[10:11], s[0:1], 96
""")
    if STAMP: P("s_memtime s[80:81]\ns_memrealtime s[98:99]")
    P(f"""
s_and_b32 s20, s2, 7
s_lshr_b32 s21, s2, 3
s_and_b32 s22, s20, 1
s_mul_i32 s23, s22, 31
s_cmp_eq_u32 s23, 31
s_cselect_b32 s23, s21, 0
s_cmp_eq_u32 s23, 31
s_cbranch_scc1 {name}_done
s_mul_i32 s22, s20, 63
s_add_u32 s22, s22, 1
s_lshr_b32 s22, s22, 1
s_add_u32 s22, s22, s21
s_cmp_ge_u32 s22, 126
s_cselect_b32 s24, 1, 0
s_mul_i32 s25, s24, 126
s_sub_u32 s22, s22, s25
s_mul_i32 s26, s22, 57
s_lshr_b32 s26, s26, 9
s_mul_i32 s27, s26, 9
s_sub_u32 s27, s22, s27
v_and_b32 v1, 63, v0
v_lshrrev_b32 v12, 6, v0
v_lshlrev_b32 v{vLane16}, 4, v1
v_readfirstlane_b32 s28, v12
""")
    P(f"""
s_lshl_b32 s29, s26, 3
s_lshl_b32 s30, s28, 1
s_add_u32 s29, s29, s30
s_mul_i32 s30, s24, 112
s_add_u32 s30, s30, s29
s_mul_i32 s30, s30, {TS}
v_lshrrev_b32 v12, 3, v1
v_mul_u32_u24 v12, 1152, v12
v_bfe_u32 v13, v1, 4, 2
v_lshlrev_b32 v13, 1, v13
v_and_b32 v14, 7, v1
v_xor_b32 v13, v13, v14
v_lshl_add_u32 v{vDma[0]}, v13, 4, v12
v_add_u32 v{vDma[1]}, 8192, v{vDma[0]}
v_add_u32 v{vDma[2]}, 16384, v{vDma[0]}
v_add_u32 v{vDma[3]}, 24576, v{vDma[0]}
s_mul_i32 s44, s28, 36864
s_lshl_b32 s46, s27, 7
s_add_u32 s44, s44, s46
s_lshl_b32 s45, s28, 12
s_mov_b32 s63, s44
s_mul_i32 s62, s26, 3
s_add_u32 s62, s62, s27
s_and_b32 s62, s62, {WROT-1}
s_mov_b32 s60, 0
s_mov_b32 s61, 0
s_mul_i32 s64, s62, 147456
s_add_u32 s44, s63, s64
s_lshl_b32 s47, s62, 12
s_waitcnt lgkmcnt(0)
s_cmp_eq_u32 s24, 0
s_cselect_b32 s32, s4, s6
s_cselect_b32 s33, s5, s7
s_mov_b32 s34, 4718592
s_mov_b32 s35, 0x00020000
s_add_u32 s36, s10, s30
s_addc_u32 s37, s11, 0
s_mov_b32 s38, 131072
s_mov_b32 s39, 0x00020000
s_add_u32 s56, s36, {TS}
s_addc_u32 s57, s37, 0
s_mov_b32 s58, 131072
s_mov_b32 s59, 0x00020000
s_mov_b32 s40, s8
s_mov_b32 s41, s9
s_mov_b32 s42, 4128768
s_mov_b32 s43, 0x00020000
""")
    def dma(stage):
        slot = stage % NS
        out = [I(f"s_add_u32 m0, s45, {slot*16384}"), I("s_nop 0")]
        for i in range(4):
            d = I(f"buffer_load_dwordx4 v{vDma[i]}, s[32:35], s44 offen offset:{1024*i} lds")
            d.defs = {("lds", stage)}
            out.append(d)
        out += [I("s_add_u32 s60, s60, 1"), I("s_add_u32 s64, s60, s62"), I(f"s_and_b32 s64, s64, {WROT-1}"),
                I(f"s_andn2_b32 s65, s60, {WROT-1}"), I("s_or_b32 s64, s64, s65"), I("s_mul_i32 s64, s64, 147456"), I("s_add_u32 s44, s63, s64")]
        return out
    def bload(g):
        out = []
        for nt in range(2):
            r = BF + 8 * (g % PB) + 4 * nt
            srd = "s[36:39]" if nt == 0 else "s[56:59]"
            out.append(I(f"buffer_load_dwordx4 v[{r}:{r+3}], v{vLane16}, {srd}, s47 offen offset:{1024*(g%4)}"))
        if g % 4 == 3:
            out += [I("s_add_u32 s61, s61, 1"), I("s_add_u32 s66, s61, s62"), I(f"s_and_b32 s66, s66, {WROT-1}"),
                    I(f"s_andn2_b32 s67, s61, {WROT-1}"), I("s_or_b32 s66, s66, s67"), I("s_lshl_b32 s47, s66, 12")]
        return out
    def areads(g, mt):
        stage = g // KS; slot = stage % NS; ks = g % KS
        r = AF + 16 * (g % 2) + 4 * mt
        out = []
        for half in range(2):
            d = I(f"ds_read_b64_tr_b16 v[{r+2*half}:{r+2*half+1}], v{vA[mt]} offset:{slot*16384 + ks*4096 + half*2048}")
            d.defs |= {("ldsrd", stage)}
            out.append(d)
        return out
    def barrier(stage):
        b = I("s_barrier"); b.uses = {("lds", stage), ("ldsrd", stage - 1)}
        return b
    for st in range(NS - 1):
        P.ext(dma(st))
        for g in range(KS * st, KS * st + KS): P.ext(bload(g))
    for g in range(KS * (NS - 1), PB): P.ext(bload(g))
    P(f"""
v_lshrrev_b32 v12, 2, v1
v_bfe_u32 v13, v12, 1, 2
v_lshlrev_b32 v12, 7, v12
v_lshl_add_u32 v12, v13, 5, v12
v_and_b32 v13, 3, v1
v_lshl_add_u32 v{vA[0]}, v13, 3, v12
v_xor_b32 v{vA[1]}, 32, v{vA[0]}
v_xor_b32 v{vA[2]}, 64, v{vA[0]}
v_xor_b32 v{vA[3]}, 96, v{vA[0]}
""")
    P(f"""
s_lshl_b32 s50, s29, 4
v_and_b32 v12, 15, v1
v_add_u32 v12, s50, v12
v_mul_u32_u24 v12, 2304, v12
v_lshrrev_b32 v13, 4, v1
v_lshlrev_b32 v13, 3, v13
s_mul_i32 s53, s24, 1152
s_lshl_b32 s54, s27, 7
s_add_u32 s53, s53, s54
v_add3_u32 v{vOut}, v12, v13, s53
s_mov_b32 s55, 0
""")
    for i in range(32): P(f"v_mov_b32 v{ACC+i}, 0")
    P.ext([barrier(0)])
    P.ext(dma(NS - 1))
    for mt in range(4): P.ext(areads(0, mt))
    stamp(P, 1, STAMP)
    inst = [("pre", P.L)]
    NIT = 128 // PB
    for it in range(NIT):
        code = [I(f"{name}_loop:")]
        for gl in range(PB):
            g = it * PB + gl
            mf = []
            for mt in range(4):
                for nt in range(2):
                    c = R("v", ACC + 8 * mt + 4 * nt)
                    mf.append(m16(c, R("v", AF + 16 * (g % 2) + 4 * mt), R("v", BF + 8 * (g % PB) + 4 * nt), c))
            S = Sched2(mf)
            gn = g + 1
            lo = 0
            if gn % KS == 0:
                S.put(1, barrier(gn // KS)); lo = 1
            for mt in range(4): lo = S.stream(areads(gn, mt), lo, 6)
            if gn % KS == 0: S.stream(dma(gn // KS + NS - 1), 5, 7)
            S.put(7, bload(g + PB))
            code += S.emit()
        code += [I("s_add_u32 s55, s55, 1"), I(f"s_cmp_lt_u32 s55, {NIT}"), I(f"s_cbranch_scc1 {name}_loop")]
        inst.append(("loop", code))
    E = Prog()
    E("s_nop 7")
    stamp(E, 2, STAMP)
    for mt in range(4):
        for nt in range(2):
            c = ACC + 8 * mt + 4 * nt
            t = AF + 4 * mt + 2 * nt
            E(f"v_cvt_pk_bf16_f32 v{t}, v{c}, v{c+1}\nv_cvt_pk_bf16_f32 v{t+1}, v{c+2}, v{c+3}")
            if nt == 0:
                E(f"buffer_store_dwordx2 v[{t}:{t+1}], v{vOut}, s[40:43], 0 offen offset:{32*mt}")
            else:
                E(f"s_mov_b32 s50, {16*2304}\nbuffer_store_dwordx2 v[{t}:{t+1}], v{vOut}, s[40:43], s50 offen offset:{32*mt}")
    if STAMP:
        E("s_waitcnt vmcnt(0)")
        stamp(E, 3, True)
        E("s_add_u32 s10, s10, 0x100000\ns_addc_u32 s11, s11, 0")
        stamp_store(E, 4, 28, 10, (0, 32))
    E(f"{name}_done:\ns_endpgm")
    inst.append(("end", E.L))
    out, full, nfix = resolve_all2(inst)
    for m_ in check_hazards(full, name)[:10]: print(m_)
    text = "\n".join(str(i) for key in ("pre", "loop", "end") for i in out[key])
    launch = f"; @launch kernel={name} grid=(256,1,1) block=(256,1,1) lds={NS*16384}"
    return launch, text, kd(name, NV, ((NV + 3) // 4) * 4, 102)

def write(path, kernels, header=""):
    with open(path, "w") as f:
        f.write(header)
        for l, _, _ in kernels: f.write(l + "\n")
        f.write('.amdgcn_target "amdgcn-amd-amdhsa--gfx950"\n.text\n')
        for _, c, _ in kernels: f.write(c + "\n")
        f.write('code_end:\n.section .rodata,"a"\n')
        for _, _, k in kernels: f.write(".p2align 6\n" + k + "\n")

HEADER = """; Fused GQA block x2 (Q-proj + attention, then O-proj); generated by a hand-written generator script.
"""

if __name__ == "__main__":
    out = sys.argv[1] if len(sys.argv) > 1 else "full.s"
    st = bool(os.environ.get("STAMP"))
    kw = {}; kw2 = {}
    for k_ in ("WROT", "NS"):
        if k_ in os.environ: kw2[k_] = int(os.environ[k_])
    if "KVFLAG" in os.environ: kw["KVFLAG"] = os.environ["KVFLAG"]
    for k_ in ("MAPPING", "ROT", "TOUCH", "WOT", "TD", "KROT", "DLATE", "DSTEP", "DIST", "CPF", "SOFT", "VSUM", "PPS", "TS0", "TSTEP", "TPK"):
        if k_ in os.environ: kw[k_] = int(os.environ[k_])
    if "TFLAG" in os.environ: kw["TFLAG"] = os.environ["TFLAG"]
    write(out, [gen_k1(STAMP=st, **kw), gen_k2(STAMP=st, **kw2)], HEADER)
```
